```python
import torch

def _softmax(x, axis=-1):
    return torch.softmax(x, dim=axis)

def _gelu(x):
    return torch.nn.functional.gelu(x, approximate='tanh')

def _silu(x):
    return torch.nn.functional.silu(x)

def _sigmoid(x):
    return torch.sigmoid(x)

def _layernorm(x, axis=-1, eps=1e-05):
    m = x.mean(dim=axis, keepdim=True)
    v = x.var(dim=axis, keepdim=True, unbiased=False)
    return (x - m) / torch.sqrt(v + eps)

def _scatter_add(tgt, idx, src, axis=0):
    return tgt.clone().index_add_(axis, idx, src)

def _segment_sum(src, seg, n):
    out = torch.zeros((n,) + src.shape[1:], dtype=src.dtype)
    return out.index_add_(0, seg, src)

def _pad(x, pw):
    flat = tuple((v for pair in reversed(pw) for v in pair))
    return torch.nn.functional.pad(x, flat)
kernel_name = 'parallel_sum__ssm_conv_s4__mixer_gmlp__prompt'

def setup_inputs():

    _w = lambda a: (lambda t: t.to(torch.bfloat16) if t.is_floating_point() else t)(torch.as_tensor(a))

    def _A_setup():
        B, L, D, N = (1, 2048, 512, 128)
        A_re = -(lambda _x: torch.exp(torch.as_tensor(_x)))((lambda *s: torch.randn(*s, dtype=torch.bfloat16) * 3.2)(D, N))
        A_im = torch.pi * (lambda *s: torch.randn(*s, dtype=torch.bfloat16) * 0.1)(D, N)
        B_re = (lambda *s: torch.randn(*s, dtype=torch.bfloat16) * 0.8)(D, N)
        B_im = (lambda *s: torch.randn(*s, dtype=torch.bfloat16) * 0.8)(D, N)
        C_re = (lambda *s: torch.randn(*s, dtype=torch.bfloat16) * 0.8)(D, N)
        C_im = (lambda *s: torch.randn(*s, dtype=torch.bfloat16) * 0.8)(D, N)
        log_dt = (lambda *s: torch.randn(*s, dtype=torch.bfloat16) * 0.1)(D) * 0.5 - 4.0
        Dskip = (lambda *s: torch.randn(*s, dtype=torch.bfloat16) * 0.8)(D)
        return {'u': _w((lambda *s: torch.randn(*s, dtype=torch.bfloat16) * 0.05)(B, L, D)), 'A_re': _w(A_re), 'A_im': _w(A_im), 'B_re': _w(B_re), 'B_im': _w(B_im), 'C_re': _w(C_re), 'C_im': _w(C_im), 'log_dt': _w(log_dt), 'Dskip': _w(Dskip)}
    _A_in = _A_setup()

    def _B_setup():
        B, S, D, F = (1, 2048, 512, 1792)
        Fh = F // 2
        return {'x': _w((lambda *s: torch.randn(*s, dtype=torch.bfloat16) * 0.05)(B, S, D)), 'w_in': _w((lambda *s: torch.randn(*s, dtype=torch.bfloat16) * 0.4)(D, 2 * Fh)), 'w_sp': _w(0.01 * (lambda *s: torch.randn(*s, dtype=torch.bfloat16) * 0.4)(S, S)), 'b_sp': _w(1.0 + 0.01 * (lambda *s: torch.randn(*s, dtype=torch.bfloat16) * 0.05)(S)), 'w_out': _w((lambda *s: torch.randn(*s, dtype=torch.bfloat16) * 0.05)(Fh, D))}
    _B_in = _B_setup()
    return {'A_u': _A_in['u'], 'A_A_re': _A_in['A_re'], 'A_A_im': _A_in['A_im'], 'A_B_re': _A_in['B_re'], 'A_B_im': _A_in['B_im'], 'A_C_re': _A_in['C_re'], 'A_C_im': _A_in['C_im'], 'A_log_dt': _A_in['log_dt'], 'A_Dskip': _A_in['Dskip'], 'B_x': _B_in['x'], 'B_w_in': _B_in['w_in'], 'B_w_sp': _B_in['w_sp'], 'B_b_sp': _B_in['b_sp'], 'B_w_out': _B_in['w_out']}

def reference(A_u, A_A_re, A_A_im, A_B_re, A_B_im, A_C_re, A_C_im, A_log_dt, A_Dskip, B_x, B_w_in, B_w_sp, B_b_sp, B_w_out):

    def _A_ref(u, A_re, A_im, B_re, B_im, C_re, C_im, log_dt, Dskip):
        Bsz, L, D = u.shape
        dt = torch.exp(log_dt)[:, None]
        A = A_re + 1j * A_im
        Bc = B_re + 1j * B_im
        Cc = C_re + 1j * C_im
        logdA = dt * A
        dB = dt * Bc
        l = (lambda x, dt: x.to(dt))(torch.arange(L), A_re.dtype)
        P = torch.exp(logdA[:, :, None] * l[None, None, :])
        K = torch.einsum('dn,dnl,dn->dl', Cc, P, dB).real
        L2 = 2 * L
        Kp = _pad(K, ((0, 0), (0, L)))
        up = (lambda x, *d: x.permute(*d))(u, 0, 2, 1)
        up = _pad(up, ((0, 0), (0, 0), (0, L)))
        Kf = (lambda x, axes=(-2, -1): torch.fft.rfft2(x.float(), dim=axes))(Kp[:, None, :], axes=(-2, -1))
        Uf = (lambda x, axes=(-2, -1): torch.fft.rfft2(x.float(), dim=axes))(up[:, :, None, :], axes=(-2, -1))
        Yf = Uf * Kf[None, :, :, :]
        y = (lambda x, s, axes=(-2, -1): torch.fft.irfft2(x, s=s, dim=axes).to(torch.bfloat16))(Yf, (1, L2), axes=(-2, -1))[:, :, 0, :L]
        y = (lambda x, *d: x.permute(*d))(y, 0, 2, 1) + u * Dskip[None, None, :]
        return y

    def _B_ref(x, w_in, w_sp, b_sp, w_out):
        B, S, D = x.shape
        F = w_in.shape[-1]
        Fh = F // 2
        z = _gelu(torch.einsum('bsd,df->bsf', x, w_in))
        z1 = z[..., :Fh].clone()
        z2 = _layernorm(z[..., Fh:], axis=-1)
        g = torch.einsum('ts,bsf->btf', w_sp, z2) + b_sp[None, :, None]
        return torch.einsum('bsf,fd->bsd', z1 * g, w_out)
    x = A_u
    xn = _layernorm(x, axis=-1)
    return x + _A_ref(xn, A_A_re, A_A_im, A_B_re, A_B_im, A_C_re, A_C_im, A_log_dt, A_Dskip) + _B_ref(xn, B_w_in, B_w_sp, B_b_sp, B_w_out)
```

```python
from k1 import *

LOG2E = math.log2(math.e)
PROWS = [0,1,2,3,4,5,6,7, 256,258,260,262, 512,516,768,772, 1024,1280,1536,1792, 2048]
TROW = 272
QT0 = 21 * TROW
KW_AREA = 16384

def cmul(P, r, a, b, t):
    P(f"v_pk_mul_f32 v[{t}:{t+1}], v[{a}:{a+1}], v[{b}:{b+1}] op_sel:[0,0] op_sel_hi:[1,0]")
    P(f"v_pk_fma_f32 v[{r}:{r+1}], v[{a}:{a+1}], v[{b}:{b+1}], v[{t}:{t+1}] op_sel:[1,1,0] op_sel_hi:[0,1,1] neg_lo:[1,0,0]")

def aux(P, X, T, VXW, pr):
    P("s_load_dwordx4 s[68:71], s[0:1], 8")
    P("s_load_dwordx4 s[72:75], s[0:1], 24")
    P("s_load_dwordx4 s[76:79], s[0:1], 40")
    P("s_load_dwordx2 s[80:81], s[0:1], 56")
    P("s_load_dwordx2 s[82:83], s[0:1], 104")
    P("s_waitcnt lgkmcnt(0)")
    srd(P, 20, 82, 896 * 512 * 2)
    srd(P, 24, 8, 0x200000, WS_XNT)
    srd(P, 28, 8, 896 * 1024, WS_WOF)
    srd(P, 32, 8, 512 * KR_STRIDE, WS_KR)
    PAR = 96
    P(f"v_lshlrev_b32 v{T}, 2, v0")
    P("s_lshl_b32 s52, s14, 4")
    P("s_lshl_b32 s53, s3, 1")
    P("s_add_u32 s52, s52, s53")
    P("s_lshl_b32 s53, s52, 8")
    P(f"v_add_u32 v{T}, s53, v{T}")
    for k in range(6):
        for c in range(2):
            P(f"global_load_dword v{PAR+6*c+k}, v{T}, s[{68+2*k}:{69+2*k}] offset:{256*c}")
    P("s_lshl_b32 s53, s52, 1")
    P(f"v_mov_b32 v{T}, s53")
    P(f"global_load_dword v{PAR+12}, v{T}, s[80:81]")
    P("s_mul_i32 s54, s14, 7")
    P("s_add_u32 s54, s54, s3")
    P("s_mul_i32 s55, s54, 1171")
    P("s_lshr_b32 s55, s55, 15")
    P("s_mul_i32 s56, s55, 28")
    P("s_sub_u32 s56, s54, s56")
    P("s_lshl_b32 s56, s56, 15")
    P("s_lshl_b32 s55, s55, 7")
    P("s_add_u32 s56, s56, s55")
    P(f"v_lshrrev_b32 v{T}, 3, v0")
    P(f"v_and_b32 v{T+1}, 7, v0")
    P(f"v_lshlrev_b32 v{T+1}, 4, v{T+1}")
    P(f"v_lshl_add_u32 v{T+1}, v{T}, 10, v{T+1}")
    WO = 112
    for e in range(4):
        P(f"s_add_u32 s57, s56, {8192*e}")
        P(f"buffer_load_dwordx4 v[{WO+4*e}:{WO+4*e+3}], v{T+1}, s[20:23], s57 offen")
    P("s_waitcnt vmcnt(17)")
    ln1(P, X, T, 16, 52)
    for r in range(32):
        a, b = T + 4 + (r & 1) * 2, T + 5 + (r & 1) * 2
        P(f"v_lshlrev_b32 v{a}, 16, v{X+r}")
        P(f"v_and_b32 v{b}, 0xffff0000, v{X+r}")
        P(f"v_cvt_pk_f16_f32 v{X+r}, v{a}, v{b}")
    for e in range(8):
        P(f"ds_write_b128 v{VXW+(e&1)}, v[{X+4*e}:{X+4*e+3}] offset:{256*(e>>1)}")
    P(f"v_lshlrev_b32 v{T}, 4, v0")
    P("s_lshl_b32 s53, s3, 12")
    P(f"v_add_u32 v{T}, s53, v{T}")
    P("s_waitcnt vmcnt(0)")
    for e in range(4):
        P(f"ds_write_b128 v{T}, v[{WO+4*e}:{WO+4*e+3}] offset:{1024*e}")
    P(f"v_lshrrev_b32 v{T+1}, 2, v0")
    P(f"v_and_b32 v{T+2}, 3, v0")
    P(f"v_lshlrev_b32 v{T+1}, 7, v{T+1}")
    P(f"v_lshl_add_u32 v{T+1}, v{T+2}, 4, v{T+1}")
    P(f"v_add_u32 v{T+1}, s53, v{T+1}")
    P("s_waitcnt lgkmcnt(0)")
    for dt in range(4):
        for eta in range(2):
            d = WO + 4 * dt + 2 * eta
            P(f"ds_read_b64_tr_b16 v[{d}:{d+1}], v{T+1} offset:{2048*eta + 64*(dt>>1) + 8*(dt&1)}")
    P(f"v_lshlrev_b32 v{T}, 4, v0")
    P("s_lshl_b32 s53, s54, 12")
    P("s_waitcnt lgkmcnt(0)")
    P("s_cmp_eq_u32 s3, 7")
    P("s_cbranch_scc1 aux_nowo")
    for dt in range(4):
        P(f"buffer_store_dwordx4 v[{WO+4*dt}:{WO+4*dt+3}], v{T}, s[28:31], s53 offen offset:{1024*dt} sc1")
    P.label("aux_nowo")
    P("s_barrier")
    P(f"v_lshrrev_b32 v{T}, 4, v0")
    P(f"v_bfe_u32 v{T+1}, v0, 2, 2")
    P(f"v_and_b32 v{T+2}, 3, v0")
    P(f"v_lshlrev_b32 v{T}, 3, v{T}")
    P(f"v_add_u32 v{T}, 7, v{T}")
    P(f"v_sub_u32 v{T}, v{T}, v{T+1}")
    P(f"v_lshrrev_b32 v{T+3}, 1, v{T+2}")
    P(f"v_and_b32 v{T+2}, 1, v{T+2}")
    P("s_and_b32 s53, s3, 1")
    P("s_lshl_b32 s53, s53, 7")
    P("s_lshr_b32 s55, s3, 1")
    P("s_lshl_b32 s55, s55, 8")
    P(f"s_add_u32 s55, s55, {XB}")
    for rr in range(2):
        if rr: P(f"v_subrev_u32 v{T}, 4, v{T}")
        P(f"v_and_b32 v{T+4}, 15, v{T}")
        P(f"v_xor_b32 v{T+4}, v{T+4}, v{T+3}")
        P(f"v_lshlrev_b32 v{T+4}, 4, v{T+4}")
        P(f"v_xor_b32 v{T+4}, s53, v{T+4}")
        P(f"v_lshl_add_u32 v{T+4}, v{T+2}, 3, v{T+4}")
        P(f"v_lshl_add_u32 v{T+4}, v{T}, 10, v{T+4}")
        P(f"v_add_u32 v{T+5+rr}, s55, v{T+4}")
    P(f"v_and_b32 v{T}, 15, v0")
    P(f"v_lshrrev_b32 v{T+1}, 4, v0")
    P(f"v_lshlrev_b32 v{T}, 12, v{T}")
    P(f"v_lshl_add_u32 v{T}, v{T+1}, 4, v{T}")
    P("s_lshl_b32 s53, s3, 18")
    P("s_lshl_b32 s55, s14, 7")
    P("s_add_u32 s53, s53, s55")
    for D in range(4):
        for rr in range(2):
            P(f"v_xor_b32 v{T+7+rr}, {32*D}, v{T+5+rr}")
        for half in range(2):
            for rr in range(2):
                d = X + 8 * D + 4 * half + 2 * rr
                P(f"ds_read_b64_tr_b16 v[{d}:{d+1}], v{T+7+rr} offset:{32768*half}")
    P("s_waitcnt lgkmcnt(0)")
    for D in range(4):
        P(f"s_add_u32 s55, s53, {65536*D}")
        for half in range(2):
            d = X + 8 * D + 4 * half
            P(f"buffer_store_dwordx4 v[{d}:{d+3}], v{T}, s[24:27], s55 offen offset:{64*half} sc1")
    P("s_barrier")
    prof(P, 1, pr)
    P(f"s_mul_i32 s54, s3, {KW_AREA}")
    VW_ = 17
    VR_ = 18
    P(f"v_lshlrev_b32 v{VW_}, 2, v0")
    P(f"v_add_u32 v{VW_}, s54, v{VW_}")
    P(f"v_and_b32 v{T}, 31, v0")
    P(f"v_lshrrev_b32 v{T+1}, 5, v0")
    P(f"s_movk_i32 s53, {TROW}")
    P(f"v_mul_u32_u24 v{T}, s53, v{T}")
    P(f"v_lshl_add_u32 v{T}, v{T+1}, 4, v{T}")
    P(f"v_add_u32 v{VR_}, s54, v{T}")
    P(f"s_mov_b32 s65, {fbits(LOG2E)}")
    P(f"s_mov_b32 s66, {fbits(1/(2*math.pi))}")
    AL, BE = 20, 22
    CC = 28
    ACC = 64
    Z1r, Z2r, Z4r, Z8r = 32, 34, 36, 38
    QJ = 40
    AN = 56
    for c in range(2):
        pa = PAR + 6 * c
        if c == 0: P(f"v_lshlrev_b32 v{T}, 16, v{PAR+12}")
        else: P(f"v_and_b32 v{T}, 0xffff0000, v{PAR+12}")
        P(f"v_mul_f32 v{T}, s65, v{T}")
        P(f"v_exp_f32 v{T}, v{T}")
        bf16_round_v(P, T, T, T + 1)
        for pi in range(2):
            def unp(dst, src):
                if pi == 0: P(f"v_lshlrev_b32 v{dst}, 16, v{src}")
                else: P(f"v_and_b32 v{dst}, 0xffff0000, v{src}")
            unp(T + 2, pa + 0); unp(T + 3, pa + 1)
            P(f"v_mul_f32 v{T+2}, v{T+2}, v{T}")
            P(f"v_mul_f32 v{T+3}, v{T+3}, v{T}")
            P(f"v_mul_f32 v{AL+pi}, s65, v{T+2}")
            P(f"v_mul_f32 v{BE+pi}, s66, v{T+3}")
            unp(T + 2, pa + 2); unp(T + 3, pa + 3)
            P(f"v_mul_f32 v{T+2}, v{T+2}, v{T}")
            P(f"v_mul_f32 v{T+3}, v{T+3}, v{T}")
            unp(T + 4, pa + 4); unp(T + 5, pa + 5)
            cmul(P, CC + 2 * pi, T + 2, T + 4, T + 6)
        P(f"v_max3_f32 v{T}, abs(v{CC}), abs(v{CC+1}), abs(v{CC+2})")
        P(f"v_max_f32 v{T}, abs(v{CC+3}), v{T}")
        for m in ("quad_perm:[1,0,3,2]", "quad_perm:[2,3,0,1]", "row_half_mirror", "row_mirror"):
            P(f"v_max_f32_dpp v{T}, v{T}, v{T} {m} row_mask:0xf bank_mask:0xf")
        P(f"v_readlane_b32 s55, v{T}, 0")
        P(f"v_readlane_b32 s56, v{T}, 16")
        P(f"v_readlane_b32 s57, v{T}, 32")
        P(f"v_readlane_b32 s58, v{T}, 48")
        P("s_max_u32 s55, s55, s56")
        P("s_max_u32 s57, s57, s58")
        P("s_max_u32 s55, s55, s57")
        P("s_lshr_b32 s55, s55, 23")
        P("s_max_u32 s55, s55, 6")
        P("s_min_u32 s55, s55, 250")
        P("s_sub_u32 s56, 259, s55")
        P("s_lshl_b32 s56, s56, 23")
        P("s_sub_u32 s57, s55, 5")
        P("s_lshl_b32 s57, s57, 23")
        for r in range(4):
            P(f"v_mul_f32 v{CC+r}, s56, v{CC+r}")
        for r in range(16): P(f"v_mov_b32 v{ACC+r}, 0")
        for pi in range(2):
            cc = CC + 2 * pi
            def direct(dst, p):
                t = T
                if p == 1:
                    P(f"v_exp_f32 v{t}, v{AL+pi}")
                    P(f"v_fract_f32 v{t+1}, v{BE+pi}")
                else:
                    P(f"v_mul_f32 v{t}, {fbits(float(p))}, v{AL+pi}")
                    P(f"v_mul_f32 v{t+1}, {fbits(float(p))}, v{BE+pi}")
                    P(f"v_exp_f32 v{t}, v{t}")
                    P(f"v_fract_f32 v{t+1}, v{t+1}")
                P(f"v_cos_f32 v{dst}, v{t+1}")
                P(f"v_sin_f32 v{dst+1}, v{t+1}")
                P(f"v_mul_f32 v{dst}, v{dst}, v{t}")
                P(f"v_mul_f32 v{dst+1}, v{dst+1}, v{t}")
            def putP(row, src):
                P(f"v_cvt_pk_f16_f32 v{T+4+(row&1)}, v{src}, -v{src+1}")
                P(f"ds_write_b32 v{VW_}, v{T+4+(row&1)} offset:{row*TROW}")
            def putQ(row, src):
                P(f"v_cvt_pk_f16_f32 v{T+4+(row&1)}, v{src}, v{src+1}")
                P(f"ds_write_b32 v{VW_}, v{T+4+(row&1)} offset:{QT0 + row*TROW}")
            direct(Z1r, 1)
            direct(Z8r, 8)
            cmul(P, Z2r, Z1r, Z1r, T + 2)
            cmul(P, Z4r, Z2r, Z2r, T + 2)
            P(f"v_mov_b32 v{QJ}, 1.0")
            P(f"v_mov_b32 v{QJ+1}, 0")
            putQ(0, QJ)
            P(f"v_mov_b32 v{QJ+2}, v{Z8r}")
            P(f"v_mov_b32 v{QJ+3}, v{Z8r+1}")
            putQ(1, QJ + 2)
            putP(0, cc)
            prev = cc
            for j in range(2, 8):
                cmul(P, QJ + 2 * j, QJ + 2 * (j - 1), Z8r, T + 2)
                dstp = AN + 2 + 2 * (j & 1)
                cmul(P, dstp, prev, Z1r, T + 6)
                putQ(j, QJ + 2 * j)
                putP(j - 1, dstp); prev = dstp
            dstp = AN + 2
            cmul(P, dstp, prev, Z1r, T + 6); putP(7, dstp)
            for m in range(1, 4):
                direct(AN, 64 * m)
                putQ(8 * m, AN)
                for j in range(1, 8):
                    dstp = AN + 2 + 2 * (j & 1)
                    cmul(P, dstp, QJ + 2 * j, AN, T + 2 + 4 * (j & 1))
                    putQ(8 * m + j, dstp)
            direct(AN, 256); cmul(P, AN + 2, AN, cc, T + 2); putP(8, AN + 2)
            cmul(P, AN + 4, AN + 2, Z2r, T + 2); putP(9, AN + 4)
            cmul(P, AN, AN + 2, Z4r, T + 6); putP(10, AN)
            cmul(P, AN + 2, AN + 4, Z4r, T + 2); putP(11, AN + 2)
            for k, p in ((12, 512), (14, 768)):
                direct(AN, p); cmul(P, AN + 2, AN, cc, T + 2); putP(k, AN + 2)
                cmul(P, AN + 4, AN + 2, Z4r, T + 2); putP(k + 1, AN + 4)
            for k, p in ((16, 1024), (17, 1280), (18, 1536), (19, 1792), (20, 2048)):
                direct(AN, p); cmul(P, AN + 2, AN, cc, T + 2); putP(k, AN + 2)
            P("s_waitcnt lgkmcnt(0)")
            FR = 80
            def rdf(st):
                b = FR + 8 * (st & 1)
                P(f"ds_read_b128 v[{b}:{b+3}], v{VR_} offset:{32*st}")
                P(f"ds_read_b128 v[{b+4}:{b+7}], v{VR_} offset:{QT0 + 32*st}")
            rdf(0)
            for st in range(8):
                if st + 1 < 8: rdf(st + 1)
                P(f"s_waitcnt lgkmcnt({2 if st+1 < 8 else 0})")
                b = FR + 8 * (st & 1)
                P(f"v_mfma_f32_32x32x16_f16 v[{ACC}:{ACC+15}], v[{b}:{b+3}], v[{b+4}:{b+7}], v[{ACC}:{ACC+15}]")
        NX = 80
        for r in range(4, 12):
            P(f"v_mov_b32_dpp v{NX+r-4}, v{ACC+r} wave_shl:1 row_mask:0xf bank_mask:0xf")
        fixes = [(63, 4, 32, 6), (63, 6, 0, 8), (31, 8, 0, 9), (31, 9, 0, 10), (31, 10, 0, 11), (31, 11, 32, 8)]
        for k, (dl, dr, sl, sr) in enumerate(fixes):
            P(f"v_readlane_b32 s{84+k}, v{ACC+sr}, {sl}")
        for k, (dl, dr, sl, sr) in enumerate(fixes):
            P(f"v_writelane_b32 v{NX+dr-4}, s{84+k}, {dl}")
        EA = T + 8
        P(f"v_and_b32 v{T}, 31, v0")
        P(f"v_lshlrev_b32 v{EA}, 4, v{T}")
        P(f"v_add_u32 v{EA}, s54, v{EA}")
        P(f"v_lshrrev_b32 v{T+1}, 5, v0")
        P(f"v_lshl_add_u32 v{EA+1}, v{T+1}, 3, v{EA}")
        O = 88
        P(f"v_cvt_pk_f16_f32 v{O}, v{ACC}, v{ACC+1}")
        P(f"v_cvt_pk_f16_f32 v{O+1}, v{ACC+2}, v{ACC+3}")
        P(f"ds_write_b64 v{EA+1}, v[{O}:{O+1}]")
        P(f"v_and_b32 v{T}, 1, v0")
        P(f"v_cmp_eq_u32 vcc, 1, v{T}")
        P("s_mov_b32 exec_lo, -1")
        P("s_mov_b32 exec_hi, 0")
        A4 = ACC + 4
        P(f"v_cvt_pk_f16_f32 v{O+4}, v{A4}, v{A4}")
        P(f"v_cvt_pk_f16_f32 v{O+5}, v{A4+1}, v{A4+2}")
        P(f"v_cvt_pk_f16_f32 v{O+6}, v{A4+2}, v{A4+2}")
        P(f"v_cvt_pk_f16_f32 v{O+7}, v{A4+3}, v{NX}")
        P(f"ds_write_b128 v{EA}, v[{O+4}:{O+7}] offset:512")
        for a in range(4):
            o = O + 4 * (a & 1)
            w, wn = ACC + 8 + a, NX + 4 + a
            P(f"v_cndmask_b32 v{T+1}, v{w}, v{wn}, vcc")
            P(f"v_cvt_pk_f16_f32 v{o}, v{w}, v{w}")
            P(f"v_mov_b32 v{o+1}, v{o}")
            P(f"v_cvt_pk_f16_f32 v{o+2}, v{T+1}, v{wn}")
            P(f"v_cvt_pk_f16_f32 v{o+3}, v{wn}, v{wn}")
            P(f"ds_write_b128 v{EA}, v[{o}:{o+3}] offset:{2048 + 512*a}")
        P("s_mov_b32 exec_lo, 0")
        P("s_mov_b32 exec_hi, -1")
        for k in range(2):
            o = O + 4 * k
            u0, u1, un = ACC + 4 + 2 * k, ACC + 5 + 2 * k, NX + 2 * k
            P(f"v_cvt_pk_f16_f32 v{o}, v{u0}, v{u0}")
            P(f"v_cvt_pk_f16_f32 v{o+1}, v{u0}, v{u1}")
            P(f"v_cvt_pk_f16_f32 v{o+2}, v{u1}, v{u1}")
            P(f"v_cvt_pk_f16_f32 v{o+3}, v{un}, v{un}")
            P(f"ds_write_b128 v{EA}, v[{o}:{o+3}] offset:{1024 + 512*k}")
        P("s_mov_b64 exec, -1")
        P(f"v_lshlrev_b32 v{T}, 4, v0")
        P(f"v_add_u32 v{T+1}, s54, v{T}")
        P(f"s_add_u32 s58, s52, {c}")
        P(f"s_mul_i32 s58, s58, {KR_STRIDE}")
        P("s_waitcnt lgkmcnt(0)")
        EB = 32
        for r in range(4):
            P(f"ds_read_b128 v[{EB+8*r}:{EB+8*r+3}], v{T+1} offset:{1024*r}")
            P(f"ds_read_b32 v{EB+8*r+4}, v{T+1} offset:{1024*r+16}")
        P("s_waitcnt lgkmcnt(0)")
        for r in range(4):
            b = EB + 8 * r
            P(f"buffer_store_dwordx4 v[{b}:{b+3}], v{T}, s[32:35], s58 offen offset:{32 + 1024*r} sc1")
        P(f"v_readlane_b32 s59, v{EB}, 0")
        P("s_lshl_b32 s59, s59, 16")
        P(f"s_add_u32 s60, s58, 4288")
        for r in range(4):
            b = EB + 8 * r; o = 64 + 4 * r
            for k in range(4):
                P(f"v_alignbit_b32 v{o+k}, v{b+k+1}, v{b+k}, 16")
            P(f"buffer_store_dwordx4 v[{o}:{o+3}], v{T}, s[32:35], s60 offen offset:{32 + 1024*r} sc1")
        P(f"v_mov_b32 v{T+2}, 0")
        P(f"v_writelane_b32 v{T+2}, s59, 15")
        P(f"v_writelane_b32 v{T+2}, s57, 16")
        P(f"v_lshrrev_b32 v{T+3}, 3, v0")
        P(f"v_and_b32 v{T+4}, 7, v0")
        P("s_movk_i32 s53, 4288")
        P(f"v_mul_u32_u24 v{T+3}, s53, v{T+3}")
        P(f"v_lshl_add_u32 v{T+3}, v{T+4}, 2, v{T+3}")
        P("s_mov_b64 exec, 0x1ffff")
        P(f"buffer_store_dword v{T+2}, v{T+3}, s[32:35], s58 offen sc1")
        P("s_mov_b64 exec, -1")
        prof(P, 2 + c, pr)
    P("s_endpgm")
```

```python
import re

REG_RE = re.compile(r'\b([vsa])(\d+)\b|\b([vsa])\[(\d+):(\d+)\]|\b(vcc|exec|m0|scc)\b')

def regs_of(op):
    out = set()
    for m in REG_RE.finditer(op):
        if m.group(1):
            out.add((m.group(1), int(m.group(2))))
        elif m.group(3):
            for i in range(int(m.group(4)), int(m.group(5)) + 1):
                out.add((m.group(3), i))
        else:
            n = m.group(6)
            if n == 'vcc':
                out.add(('s', 106)); out.add(('s', 107))
            elif n == 'exec':
                out.add(('s', 126)); out.add(('s', 127))
            elif n == 'm0':
                out.add(('s', 124))
    return out

TRANS = ('v_exp_f32', 'v_log_f32', 'v_rcp_f32', 'v_rsq_f32', 'v_sqrt_f32', 'v_sin_f32', 'v_cos_f32', 'v_rcp_iflag_f32')

class Ins:
    def __init__(self, text):
        self.text = text
        t = text.split(';')[0].strip()
        self.is_label = t.endswith(':')
        self.is_dir = t.startswith('.')
        self.op = '' if (self.is_label or self.is_dir or not t) else t.split()[0]
        rest = t[len(self.op):].strip() if self.op else ''
        ops, depth, cur = [], 0, ''
        for ch in rest:
            if ch == '[': depth += 1
            if ch == ']': depth -= 1
            if ch == ',' and depth == 0:
                ops.append(cur.strip()); cur = ''
            else:
                cur += ch
        if cur.strip(): ops.append(cur.strip())
        self.ops = ops
        op = self.op
        self.kind = 'other'
        self.dst = set(); self.src = set()
        self.srcC = set(); self.srcAB = set()
        self.passes = 0
        self.dpp = ('_dpp' in op) or any(k in t for k in ('quad_perm', 'row_shr', 'row_shl', 'row_ror', 'row_bcast', 'row_mirror', 'row_half_mirror', 'wave_shr', 'wave_shl', 'wave_ror', 'wave_rol'))
        if not op:
            return
        def R(x): return regs_of(x)
        if op.startswith('v_mfma'):
            self.kind = 'mfma'
            self.dst = R(ops[0]); self.srcAB = R(ops[1]) | R(ops[2]); self.srcC = R(ops[3])
            self.src = self.srcAB | self.srcC
            self.passes = 8 if '32x32' in op else 4
        elif op.startswith('v_cmp'):
            self.kind = 'valu'
            self.dst = R(ops[0]); self.src = set().union(*[R(o) for o in ops[1:]])
            if op.startswith('v_cmpx'): self.dst |= R('exec')
        elif op in ('v_readfirstlane_b32', 'v_readlane_b32'):
            self.kind = 'valu'; self.dst = R(ops[0]); self.src = set().union(*[R(o) for o in ops[1:]])
        elif op.startswith('v_permlane') and 'swap' in op:
            self.kind = 'valu'; self.dst = R(ops[0]) | R(ops[1]); self.src = set(self.dst)
        elif op.startswith('v_'):
            self.kind = 'valu'
            self.dst = R(ops[0]); srcs = ops[1:]
            if op.startswith(('v_add_co', 'v_sub_co', 'v_subrev_co', 'v_addc_co', 'v_subb_co', 'v_mad_u64', 'v_mad_i64', 'v_div_scale')):
                self.dst |= R(ops[1]); srcs = ops[2:]
            self.src = set().union(*[R(o) for o in srcs]) if srcs else set()
            if op.startswith(('v_fmac', 'v_dot2c', 'v_pk_fmac', 'v_dot4c')) or 'dst_unused:UNUSED_PRESERVE' in t or self.dpp or op.startswith('v_writelane') or '_d16' in op:
                self.src |= R(ops[0])
            if op.startswith('v_cndmask') and len(ops) == 3: self.src |= R('vcc')
        elif op.startswith('ds_'):
            self.kind = 'ds'
            if op.startswith(('ds_read', 'ds_bpermute', 'ds_permute', 'ds_swizzle')) or '_rtn' in op:
                self.dst = R(ops[0]); self.src = set().union(*[R(o) for o in ops[1:]])
                if 'd16' in op: self.src |= R(ops[0])
            else:
                self.src = set().union(*[R(o) for o in ops])
        elif op.startswith(('buffer_', 'global_', 'flat_')):
            self.kind = 'vmem'
            is_lds = (' lds' in t) or ('_lds_' in op)
            self.is_lds = is_lds
            if 'load' in op and not is_lds:
                self.dst = R(ops[0]); self.src = set().union(*[R(o) for o in ops[1:]])
            elif 'atomic' in op and ' sc0' in t:
                self.dst = R(ops[0]); self.src = set().union(*[R(o) for o in ops])
            else:
                self.src = set().union(*[R(o) for o in ops]) if ops else set()
            if is_lds: self.src |= R('m0')
            self.wide_store = ('store' in op) and op.endswith(('x3', 'x4'))
            if self.wide_store:
                self.store_data = R(ops[0]) if op.startswith('buffer') else R(ops[1])
        elif op.startswith('s_'):
            self.kind = 'salu'
            if op in ('s_waitcnt', 's_barrier', 's_nop', 's_endpgm', 's_branch', 's_sleep', 's_setprio') or op.startswith(('s_cbranch', 's_cmp', 's_bitcmp')):
                self.src = set().union(*[R(o) for o in ops]) if ops else set()
            else:
                self.dst = R(ops[0]) if ops else set()
                self.src = set().union(*[R(o) for o in ops[1:]]) if len(ops) > 1 else set()
                if 'saveexec' in op: self.dst |= R('exec')
        self.trans = op.replace('_e32', '').replace('_e64', '') in TRANS
        self.dlop = op.startswith('v_dot')
    def states(self):
        if self.op == 's_nop': return int(self.ops[0], 0) + 1
        if not self.op: return 0
        return 1

def vg(s): return {r for r in s if r[0] in 'va'}
def sg(s): return {r for r in s if r[0] == 's'}

def need(p, c):
    n = 0
    if p.kind == 'valu':
        w = vg(p.dst); ws = sg(p.dst)
        if c.kind == 'mfma' and (w & c.src): n = max(n, 2)
        if getattr(p, 'trans', False) and (w & c.src) and not getattr(c, 'trans', False): n = max(n, 1)
        if getattr(p, 'trans', False) and (w & c.src): n = max(n, 1)
        if c.kind == 'valu':
            if c.op in ('v_readfirstlane_b32', 'v_readlane_b32') and (w & c.src): n = max(n, 1)
            if c.dpp and (w & c.src): n = max(n, 2)
            if c.op.startswith('v_permlane') and (w & c.src): n = max(n, 2)
            if ws & c.src: n = max(n, 4 if c.op in ('v_readlane_b32', 'v_writelane_b32', 'v_div_fmas_f32') else 2)
            if ('s', 126) in ws and c.dpp: n = max(n, 5)
            if ('s', 126) in ws and (c.op.startswith(('v_readlane', 'v_readfirstlane', 'v_writelane', 'v_permlane'))): n = max(n, 4)
            if ('sdwa' in p.text or 'op_sel' in p.text) and (w & (c.src | c.dst)): n = max(n, 1)
        if ('s', 126) in ws and c.kind == 'mfma': n = max(n, 4)
        if c.kind == 'vmem' and (ws & c.src): n = max(n, 5)
        if getattr(p, 'dlop', False) and (w & (c.src | c.dst)):
            same = (c.op == p.op)
            if same and c.op.startswith('v_dot2c') and (w & vg(c.dst)) and not (w & set().union(*[regs_of(o) for o in c.ops[1:]])): pass
            elif same and len(c.ops) == 4 and (w & regs_of(c.ops[3])) and not (w & (regs_of(c.ops[1]) | regs_of(c.ops[2]))): pass
            else: n = max(n, 3)
    if p.kind == 'mfma':
        D = p.dst
        big = {4: 8, 8: 12}[p.passes]; ovl = {4: 6, 8: 10}[p.passes]
        if c.kind == 'mfma':
            if D & c.srcAB: n = max(n, big)
            if D & c.srcC:
                if not (c.srcC == D and c.passes == p.passes): n = max(n, ovl)
            elif D & c.dst: n = max(n, ovl)
        elif c.kind in ('valu', 'vmem', 'ds'):
            if D & (c.src | c.dst): n = max(n, big)
        if c.kind == 'valu' and (p.srcC & c.dst): n = max(n, {4: 3, 8: 7}[p.passes])
    if p.kind == 'salu' and ('s', 124) in p.dst:
        if c.kind == 'vmem' and getattr(c, 'is_lds', False): n = max(n, 1)
    if p.kind == 'vmem' and getattr(p, 'wide_store', False):
        if p.store_data & c.dst: n = max(n, 2 if c.kind == 'valu' else 1)
    return n

class Prog:
    def __init__(self):
        self.lines = []
    def __call__(self, text):
        for l in text.strip('\n').split('\n'):
            if l.strip(): self.lines.append(Ins(l.strip()))
    def label(self, name): self.lines.append(Ins(name + ':'))
    def finish(self):
        out = []
        L = self.lines
        labels = {l.text.split(':')[0].strip(): i for i, l in enumerate(L) if l.is_label}
        branch_src = {}
        for i, l in enumerate(L):
            if l.op.startswith(('s_cbranch', 's_branch')):
                branch_src.setdefault(l.ops[0], []).append(i)
        res = []
        pos_of = {}
        for i, c in enumerate(L):
            if c.op:
                req = 0
                def scan(seq):
                    d = 0; r = 0
                    for p in reversed(seq):
                        if d >= 24: break
                        if p.op:
                            k = need(p, c)
                            if k > d: r = max(r, k - d)
                        d += p.states()
                    return r
                req = scan(res[-60:])
                d = 0
                for jdx in range(len(res) - 1, max(-1, len(res) - 60), -1):
                    p = res[jdx]
                    if d >= 24: break
                    if p.is_label:
                        nm = p.text.split(':')[0].strip()
                        for bi in branch_src.get(nm, []):
                            seq = L[max(0, bi - 40):bi + 1] + res[jdx:]
                            req = max(req, scan(seq))
                    d += p.states()
                while req > 0:
                    k = min(req, 16)
                    res.append(Ins('s_nop %d' % (k - 1))); req -= k
            res.append(c)
        return '\n'.join(('' if (l.is_label or l.is_dir) else '  ') + l.text for l in res) + '\n'
```

```python
from dsl import Prog
from k2 import *
import math

XB = 96 * 1024

def bf16_round_v(P, dst, src, tmp):
    P(f"v_cvt_pk_bf16_f32 v{tmp}, v{src}, v{src}")
    P(f"v_lshlrev_b32 v{dst}, 16, v{tmp}")

def ln1(P, X, T, srd_x, s_rowbase):
    S, Q = T, T + 1
    P(f"v_mov_b32 v{S}, 0")
    P(f"v_mov_b32 v{Q}, 0")
    P(f"v_mov_b32 v{T+2}, 0")
    P(f"v_mov_b32 v{T+3}, 0")
    for r in range(32):
        a = (r & 1) * 2
        P(f"v_dot2c_f32_bf16 v{S+a}, s62, v{X+r}")
        P(f"v_dot2c_f32_bf16 v{Q+a}, v{X+r}, v{X+r}")
    P(f"v_add_f32 v{S}, v{S}, v{T+2}")
    P(f"v_add_f32 v{Q}, v{Q}, v{T+3}")
    for m in ("quad_perm:[1,0,3,2]", "quad_perm:[2,3,0,1]", "row_half_mirror"):
        P(f"v_add_f32_dpp v{S}, v{S}, v{S} {m} row_mask:0xf bank_mask:0xf")
        P(f"v_add_f32_dpp v{Q}, v{Q}, v{Q} {m} row_mask:0xf bank_mask:0xf")
    P(f"v_mul_f32 v{S}, 0x3b000000, v{S}")
    P(f"v_mul_f32 v{Q}, 0x3b000000, v{Q}")
    P(f"v_fma_f32 v{Q}, -v{S}, v{S}, v{Q}")
    P(f"v_max_f32 v{Q}, 0, v{Q}")
    bf16_round_v(P, S, S, T + 2)
    bf16_round_v(P, Q, Q, T + 2)
    P(f"v_add_f32 v{Q}, 0x3727c5ac, v{Q}")
    bf16_round_v(P, Q, Q, T + 2)
    P(f"v_sqrt_f32 v{Q}, v{Q}")
    bf16_round_v(P, Q, Q, T + 2)
    P(f"v_rcp_f32 v{Q}, v{Q}")
    for r in range(32):
        a, b = T + 4 + (r & 1) * 2, T + 5 + (r & 1) * 2
        P(f"v_lshlrev_b32 v{a}, 16, v{X+r}")
        P(f"v_and_b32 v{b}, 0xffff0000, v{X+r}")
        P(f"v_sub_f32 v{a}, v{a}, v{S}")
        P(f"v_sub_f32 v{b}, v{b}, v{S}")
        P(f"v_cvt_pk_bf16_f32 v{X+r}, v{a}, v{b}")
        P(f"v_lshlrev_b32 v{a}, 16, v{X+r}")
        P(f"v_and_b32 v{b}, 0xffff0000, v{X+r}")
        P(f"v_mul_f32 v{a}, v{a}, v{Q}")
        P(f"v_mul_f32 v{b}, v{b}, v{Q}")
        P(f"v_cvt_pk_bf16_f32 v{X+r}, v{a}, v{b}")

GK0 = -2.0 * 0.7978845608028654 * math.log2(math.e)
GK1 = GK0 * 0.044715
import struct
def fbits(x): return "0x%08x" % struct.unpack("<I", struct.pack("<f", x))[0]

def gelu_pack(P, A, OUT, T):
    for q in range(8):
        a, b = A + 2 * q, A + 2 * q + 1
        t0, t1, t2, t3 = T + (q & 1) * 4, T + 1 + (q & 1) * 4, T + 2 + (q & 1) * 4, T + 3 + (q & 1) * 4
        P(f"v_cvt_pk_bf16_f32 v{t0}, v{a}, v{b}")
        P(f"v_lshlrev_b32 v{a}, 16, v{t0}")
        P(f"v_and_b32 v{b}, 0xffff0000, v{t0}")
        P(f"v_mul_f32 v{t0}, v{a}, v{a}")
        P(f"v_mul_f32 v{t1}, v{b}, v{b}")
        P(f"v_fma_f32 v{t0}, v{t0}, s64, v{T+8}")
        P(f"v_fma_f32 v{t1}, v{t1}, s64, v{T+8}")
        P(f"v_mul_f32 v{t0}, v{t0}, v{a}")
        P(f"v_mul_f32 v{t1}, v{t1}, v{b}")
        P(f"v_exp_f32 v{t0}, v{t0}")
        P(f"v_exp_f32 v{t1}, v{t1}")
        P(f"v_add_f32 v{t0}, 1.0, v{t0}")
        P(f"v_add_f32 v{t1}, 1.0, v{t1}")
        P(f"v_rcp_f32 v{t0}, v{t0}")
        P(f"v_rcp_f32 v{t1}, v{t1}")
        P(f"v_mul_f32 v{a}, v{a}, v{t0}")
        P(f"v_mul_f32 v{b}, v{b}, v{t1}")
        P(f"v_cvt_pk_bf16_f32 v{OUT+q}, v{a}, v{b}")

def gen_k1(P, aux=None, pr=False):
    P.label("k1_kernel")
    P("s_cmp_ge_u32 s2, 256")
    P("s_cbranch_scc1 k1_end")
    P("s_load_dwordx2 s[4:5], s[0:1], 0")
    P("s_load_dwordx2 s[6:7], s[0:1], 80")
    P("s_load_dwordx2 s[8:9], s[0:1], 128")
    P("s_load_dwordx2 s[10:11], s[0:1], 120")
    P("v_lshrrev_b32 v1, 6, v0")
    P("v_and_b32 v0, 63, v0")
    P("v_readfirstlane_b32 s3, v1")
    P("s_mov_b32 s62, 0x3f803f80")
    P(f"s_mov_b32 s63, {fbits(GK0)}")
    P(f"s_mov_b32 s64, {fbits(GK1)}")
    P("s_and_b32 s12, s2, 7")
    P("s_lshr_b32 s13, s2, 3")
    P("s_lshl_b32 s14, s12, 2")
    P("s_and_b32 s15, s13, 3")
    P("s_add_u32 s14, s14, s15")
    P("s_lshr_b32 s15, s13, 2")
    P("s_waitcnt lgkmcnt(0)")
    srd(P, 16, 4, 2048 * 512 * 2)
    srd(P, 20, 6, 512 * 1792 * 2)
    srd(P, 24, 8, 0x400000, WS_Z2F)
    srd(P, 28, 8, 0x400000, WS_Z1F)
    srd(P, 32, 8, 32 * 7 * 64 * 8, WS_ST)
    prof(P, 0, pr)
    X = 32
    T = 2
    VB = 16
    P(f"v_lshrrev_b32 v{T}, 3, v0")
    P(f"v_and_b32 v{T+1}, 7, v0")
    P(f"v_lshlrev_b32 v{T+2}, 4, v{T+1}")
    P(f"v_lshl_add_u32 v{T+2}, v{T}, 10, v{T+2}")
    P("s_lshl_b32 s52, s14, 16")
    P("s_lshl_b32 s53, s3, 13")
    P("s_add_u32 s52, s52, s53")
    issued = []
    for e in range(8):
        P(f"buffer_load_dwordx4 v[{X+4*e}:{X+4*e+3}], v{T+2}, s[16:19], s52 offen offset:{128*e}")
        issued.append(('X', 0))
    VXW = 17
    P("s_and_b32 s53, s3, 1")
    P("s_lshl_b32 s53, s53, 3")
    P(f"v_add_u32 v{T+3}, s53, v{T}")
    P(f"v_xor_b32 v{T+3}, v{T+3}, v{T+1}")
    P(f"v_lshlrev_b32 v{T+3}, 4, v{T+3}")
    P(f"v_lshl_add_u32 v{T+3}, v{T}, 10, v{T+3}")
    P("s_lshl_b32 s53, s3, 13")
    P(f"s_add_u32 s53, s53, {XB}")
    P(f"v_add_u32 v{VXW}, s53, v{T+3}")
    P(f"v_xor_b32 v{VXW+1}, 128, v{VXW}")
    if aux is not None:
        P("s_cmp_eq_u32 s15, 7")
        P("s_cbranch_scc1 k1_aux")
    P(f"v_lshrrev_b32 v{T}, 4, v0")
    P(f"v_and_b32 v{T+1}, 15, v0")
    P(f"v_lshlrev_b32 v{T+2}, 2, v{T}")
    P(f"v_xor_b32 v{T+1}, v{T+1}, v{T+2}")
    P(f"v_lshlrev_b32 v{T+1}, 4, v{T+1}")
    P("s_lshl_b32 s53, s3, 2")
    P(f"v_add_u32 v{T}, s53, v{T}")
    P("s_movk_i32 s53, 3584")
    P(f"v_mad_u32_u24 v{VB}, v{T}, s53, v{T+1}")
    P("s_lshl_b32 s54, s15, 8")
    P("s_add_u32 s55, s54, 1792")
    P("s_lshl_b32 s56, s3, 10")
    def bdma(u):
        half, ku = u // 16, u % 16
        P(f"s_add_u32 m0, s56, {(u % 20) * 8192}")
        P(f"s_add_u32 s57, s{55 if half == 0 else 54}, {ku * 32 * 3584}")
        P(f"buffer_load_dwordx4 v{VB}, s[20:23], s57 offen lds")
        issued.append(('B', u))
    def wait_for(tags):
        last = max(k for k, t in enumerate(issued) if t in tags)
        n = len(issued) - 1 - last
        P(f"s_waitcnt vmcnt({min(n,63)})")
    for u in range(12): bdma(u)
    VT = 19
    P("s_and_b32 s58, s3, 3")
    P("s_lshr_b32 s59, s3, 2")
    P(f"v_lshrrev_b32 v{T}, 4, v0")
    P(f"v_bfe_u32 v{T+1}, v0, 2, 2")
    P(f"v_and_b32 v{T+2}, 3, v0")
    P(f"v_and_b32 v{T+3}, 1, v{T}")
    P(f"v_lshl_add_u32 v{T+2}, v{T+3}, 2, v{T+2}")
    P(f"v_lshrrev_b32 v{T+3}, 1, v{T+2}")
    P(f"v_and_b32 v{T+4}, 1, v{T+2}")
    P(f"v_lshrrev_b32 v{T}, 1, v{T}")
    P(f"v_lshl_add_u32 v{T}, v{T}, 3, v{T+1}")
    P(f"v_lshlrev_b32 v{T}, 8, v{T}")
    P(f"v_lshlrev_b32 v{T+1}, 6, v{T+1}")
    P("s_lshl_b32 s53, s58, 6")
    P(f"v_lshlrev_b32 v{T+5}, 5, v{T+4}")
    P(f"v_lshl_add_u32 v{T+5}, v{T+3}, 3, v{T+5}")
    P(f"v_add_u32 v{T+5}, s53, v{T+5}")
    P(f"v_xor_b32 v{T+5}, v{T+5}, v{T+1}")
    P(f"v_add_u32 v{VT}, v{T+5}, v{T}")
    P(f"v_and_b32 v{T+5}, 1, v{T+3}")
    P(f"v_lshlrev_b32 v{T+5}, 5, v{T+5}")
    P(f"v_lshl_add_u32 v{T+5}, v{T+4}, 4, v{T+5}")
    P(f"v_lshrrev_b32 v{T+6}, 1, v{T+3}")
    P(f"v_lshl_add_u32 v{T+5}, v{T+6}, 3, v{T+5}")
    P(f"v_add_u32 v{T+5}, s53, v{T+5}")
    P(f"v_xor_b32 v{T+5}, v{T+5}, v{T+1}")
    P(f"v_add_u32 v{VT+1}, v{T+5}, v{T}")
    for m in range(2):
        P(f"v_add_u32 v{VT+2+m}, 0x10000, v{VT+m}")
        P(f"v_add_u32 v{VT+4+m}, 0x20000, v{VT+m}")
    wait_for({('X', 0)})
    ln1(P, X, T, 16, 52)
    for e in range(8):
        P(f"ds_write_b128 v{VXW+(e&1)}, v[{X+4*e}:{X+4*e+3}] offset:{256*(e>>1)}")
    P(f"v_and_b32 v{T}, 31, v0")
    P(f"v_lshrrev_b32 v{T+1}, 5, v0")
    P(f"v_and_b32 v{T+2}, 15, v0")
    P(f"v_xor_b32 v{T+1}, v{T+1}, v{T+2}")
    P(f"v_lshlrev_b32 v{T+1}, 4, v{T+1}")
    P(f"v_lshl_add_u32 v{T+1}, v{T}, 10, v{T+1}")
    P("s_lshl_b32 s53, s59, 15")
    P(f"s_add_u32 s53, s53, {XB}")
    P(f"v_add_u32 v{T+1}, s53, v{T+1}")
    P("s_waitcnt lgkmcnt(0)")
    P("s_barrier")
    for q in range(8):
        P(f"v_xor_b32 v{T+2+(q&1)}, {32*q}, v{T+1}")
        for hi in range(4):
            k16 = hi * 8 + q
            P(f"ds_read_b128 a[{4*k16}:{4*k16+3}], v{T+2+(q&1)} offset:{256*hi}")
    ACC2 = 64
    ACC1 = 80
    WFR = 96
    for r in range(32): P(f"v_mov_b32 v{ACC2+r}, 0")
    P("s_waitcnt lgkmcnt(0)")
    def group(gm):
        half = gm // 4
        wait_for({('B', 4 * gm + i) for i in range(4)})
        P("s_barrier")
        if gm == 0:
            for u in range(12, 20): bdma(u)
        if 1 <= gm <= 3:
            for u in range(20 + 4 * (gm - 1), 24 + 4 * (gm - 1)): bdma(u)
        acc = ACC2 if half == 0 else ACC1
        def rd(i):
            u = 4 * gm + i
            addr = (u % 20) * 8192
            vb = VT + half + 2 * (addr >> 16); off = addr & 0xffff
            for kap in range(2):
                for rr in range(2):
                    d = WFR + 8 * i + 4 * kap + 2 * rr
                    P(f"ds_read_b64_tr_b16 v[{d}:{d+1}], v{vb} offset:{off + 4096*kap + 1024*rr}")
        for i in range(4): rd(i)
        for i in range(4):
            u = 4 * gm + i
            for kap in range(2):
                P(f"s_waitcnt lgkmcnt({14 - 4*i - 2*kap})")
                k16 = 2 * (u % 16) + kap
                d = WFR + 8 * i + 4 * kap
                P(f"v_mfma_f32_32x32x16_bf16 v[{acc}:{acc+15}], v[{d}:{d+3}], a[{4*k16}:{4*k16+3}], v[{acc}:{acc+15}]")
    prof(P, 1, pr)
    for gm in range(4): group(gm)
    prof(P, 2, pr)
    Z2 = X
    P(f"v_mov_b32 v{T+8}, s63")
    gelu_pack(P, ACC2, Z2, T)
    S, Q = T, T + 1
    P(f"v_mov_b32 v{S}, 0")
    P(f"v_mov_b32 v{Q}, 0")
    for q in range(8):
        P(f"v_dot2c_f32_bf16 v{S}, s62, v{Z2+q}")
        P(f"v_dot2c_f32_bf16 v{Q}, v{Z2+q}, v{Z2+q}")
    P(f"v_mov_b32 v{T+2}, v{S}")
    P(f"v_mov_b32 v{T+3}, v{Q}")
    P(f"v_permlane32_swap_b32 v{S}, v{T+2}")
    P(f"v_permlane32_swap_b32 v{Q}, v{T+3}")
    P(f"v_add_f32 v{S}, v{S}, v{T+2}")
    P(f"v_add_f32 v{Q}, v{Q}, v{T+3}")
    P(f"v_and_b32 v{T+2}, 31, v0")
    P(f"v_lshlrev_b32 v{T+2}, 3, v{T+2}")
    P("s_lshl_b32 s53, s58, 9")
    P("s_lshl_b32 s60, s59, 8")
    P("s_add_u32 s53, s53, s60")
    P(f"s_add_u32 s53, s53, {XB}")
    P(f"v_add_u32 v{T+2}, s53, v{T+2}")
    P("s_barrier")
    P(f"ds_write_b64 v{T+2}, v[{S}:{Q}]")
    P("s_waitcnt lgkmcnt(0)")
    P("s_barrier")
    P("s_cmp_lg_u32 s3, 0")
    P("s_cbranch_scc1 k1_nopub")
    P(f"v_lshlrev_b32 v{T+2}, 3, v0")
    P(f"v_add_u32 v{T+3}, {XB}, v{T+2}")
    for c in range(4):
        P(f"ds_read_b64 v[{T+4+2*c}:{T+5+2*c}], v{T+3} offset:{512*c}")
    P("s_mul_i32 s53, s14, 7")
    P("s_add_u32 s53, s53, s15")
    P("s_lshl_b32 s53, s53, 9")
    P("s_waitcnt lgkmcnt(0)")
    P(f"v_add_f32 v{T+4}, v{T+4}, v{T+6}")
    P(f"v_add_f32 v{T+5}, v{T+5}, v{T+7}")
    P(f"v_add_f32 v{T+8}, v{T+8}, v{T+10}")
    P(f"v_add_f32 v{T+9}, v{T+9}, v{T+11}")
    P(f"v_add_f32 v{T+4}, v{T+4}, v{T+8}")
    P(f"v_add_f32 v{T+5}, v{T+5}, v{T+9}")
    P(f"buffer_store_dwordx2 v[{T+4}:{T+5}], v{T+2}, s[32:35], s53 offen sc0 sc1")
    P("s_waitcnt vmcnt(0)")
    P("s_lshl_b32 s53, s14, 2")
    P(f"v_mov_b32 v{T+2}, s53")
    P(f"v_mov_b32 v{T+3}, 1")
    P("s_mov_b64 exec, 1")
    P(f"global_atomic_add v{T+2}, v{T+3}, s[10:11] sc1")
    P("s_mov_b64 exec, -1")
    P.label("k1_nopub")
    prof(P, 3, pr)
    for gm in range(4, 8): group(gm)
    prof(P, 4, pr)
    Z1 = X + 8
    P(f"v_mov_b32 v{T+8}, s63")
    gelu_pack(P, ACC1, Z1, T)
    P(f"v_and_b32 v{T}, 15, v0")
    P(f"v_bfe_u32 v{T+1}, v0, 4, 1")
    P(f"v_lshrrev_b32 v{T+2}, 5, v0")
    P(f"v_lshlrev_b32 v{T}, 4, v{T}")
    P(f"v_lshl_add_u32 v{T}, v{T+1}, 10, v{T}")
    P(f"v_lshl_add_u32 v{T}, v{T+2}, 9, v{T}")
    P("s_mul_i32 s53, s14, 28")
    P("s_lshl_b32 s60, s15, 2")
    P("s_add_u32 s53, s53, s60")
    P("s_add_u32 s53, s53, s58")
    P("s_lshl_b32 s53, s53, 12")
    P("s_lshl_b32 s60, s59, 11")
    P("s_add_u32 s53, s53, s60")
    P(f"buffer_store_dwordx4 v[{Z1}:{Z1+3}], v{T}, s[28:31], s53 offen sc1")
    P(f"buffer_store_dwordx4 v[{Z1+4}:{Z1+7}], v{T}, s[28:31], s53 offen offset:256 sc1")
    prof(P, 5, pr)
    P("s_cmp_lg_u32 s3, 0")
    P("s_cbranch_scc1 k1_nopoll")
    P("s_lshl_b32 s53, s14, 2")
    P(f"v_mov_b32 v{T+2}, s53")
    P("s_mov_b32 s60, 0")
    P.label("k1_poll")
    P(f"global_load_dword v{T+3}, v{T+2}, s[10:11] sc1")
    P("s_add_u32 s60, s60, 1")
    P("s_waitcnt vmcnt(0)")
    P(f"v_readfirstlane_b32 s61, v{T+3}")
    P("s_cmp_ge_u32 s61, 7")
    P("s_cbranch_scc1 k1_nopoll")
    P("s_cmp_lt_u32 s60, 0x200000")
    P("s_cbranch_scc1 k1_poll")
    P.label("k1_nopoll")
    P("s_barrier")
    P(f"v_and_b32 v{T}, 31, v0")
    P(f"v_lshlrev_b32 v{T}, 3, v{T}")
    P("s_mul_i32 s53, s14, 3584")
    P("s_lshl_b32 s60, s59, 8")
    P("s_add_u32 s53, s53, s60")
    PS = ACC2
    for c in range(7):
        P(f"buffer_load_dwordx2 v[{PS+2*c}:{PS+2*c+1}], v{T}, s[32:35], s53 offen offset:{512*c} sc0 sc1")
    P("s_waitcnt vmcnt(0)")
    for c in range(1, 7):
        P(f"v_add_f32 v{PS}, v{PS}, v{PS+2*c}")
        P(f"v_add_f32 v{PS+1}, v{PS+1}, v{PS+2*c+1}")
    S, Q = PS, PS + 1
    P(f"v_mul_f32 v{S}, {fbits(1/896)}, v{S}")
    P(f"v_mul_f32 v{Q}, {fbits(1/896)}, v{Q}")
    P(f"v_fma_f32 v{Q}, -v{S}, v{S}, v{Q}")
    P(f"v_max_f32 v{Q}, 0, v{Q}")
    bf16_round_v(P, S, S, T + 2)
    bf16_round_v(P, Q, Q, T + 2)
    P(f"v_add_f32 v{Q}, 0x3727c5ac, v{Q}")
    bf16_round_v(P, Q, Q, T + 2)
    P(f"v_sqrt_f32 v{Q}, v{Q}")
    bf16_round_v(P, Q, Q, T + 2)
    P(f"v_rcp_f32 v{Q}, v{Q}")
    for r in range(8):
        a, b = T + 4 + (r & 1) * 2, T + 5 + (r & 1) * 2
        P(f"v_lshlrev_b32 v{a}, 16, v{Z2+r}")
        P(f"v_and_b32 v{b}, 0xffff0000, v{Z2+r}")
        P(f"v_sub_f32 v{a}, v{a}, v{S}")
        P(f"v_sub_f32 v{b}, v{b}, v{S}")
        P(f"v_cvt_pk_bf16_f32 v{Z2+r}, v{a}, v{b}")
        P(f"v_lshlrev_b32 v{a}, 16, v{Z2+r}")
        P(f"v_and_b32 v{b}, 0xffff0000, v{Z2+r}")
        P(f"v_mul_f32 v{a}, v{a}, v{Q}")
        P(f"v_mul_f32 v{b}, v{b}, v{Q}")
        P(f"v_cvt_pk_bf16_f32 v{Z2+r}, v{a}, v{b}")
    P(f"v_and_b32 v{T}, 31, v0")
    P(f"v_lshrrev_b32 v{T+1}, 5, v0")
    P(f"v_lshlrev_b32 v{T}, 6, v{T}")
    P(f"v_lshl_add_u32 v{T}, v{T+1}, 5, v{T}")
    P("s_lshl_b32 s53, s3, 11")
    P(f"s_add_u32 s53, s53, {XB + 8192}")
    P(f"v_add_u32 v{T}, s53, v{T}")
    P(f"ds_write_b128 v{T}, v[{Z2}:{Z2+3}]")
    P(f"ds_write_b128 v{T}, v[{Z2+4}:{Z2+7}] offset:16")
    P(f"v_lshrrev_b32 v{T+1}, 4, v0")
    P(f"v_bfe_u32 v{T+2}, v0, 2, 2")
    P(f"v_and_b32 v{T+3}, 3, v0")
    P(f"v_lshl_add_u32 v{T+1}, v{T+1}, 3, v{T+2}")
    P(f"v_lshlrev_b32 v{T+1}, 6, v{T+1}")
    P(f"v_lshl_add_u32 v{T+1}, v{T+3}, 3, v{T+1}")
    P(f"v_add_u32 v{T+1}, s53, v{T+1}")
    P("s_waitcnt lgkmcnt(0)")
    O = ACC1
    for tl in range(2):
        for rr in range(2):
            P(f"ds_read_b64_tr_b16 v[{O+4*tl+2*rr}:{O+4*tl+2*rr+1}], v{T+1} offset:{32*tl + 256*rr}")
    P(f"v_lshlrev_b32 v{T}, 4, v0")
    P("s_lshl_b32 s60, s14, 1")
    P("s_add_u32 s60, s60, s59")
    for tl in range(2):
        P("s_lshl_b32 s53, s15, 3")
        P("s_lshl_b32 s61, s58, 1")
        P("s_add_u32 s53, s53, s61")
        if tl: P("s_add_u32 s53, s53, 1")
        P("s_mul_i32 s61, s53, 37")
        P("s_lshr_b32 s61, s61, 8")
        P("s_mul_i32 s65, s61, 7")
        P("s_sub_u32 s53, s53, s65")
        P("s_add_u32 s65, s53, 6")
        P("s_sub_u32 s66, s53, 1")
        P("s_cmp_eq_u32 s53, 0")
        P("s_cselect_b32 s65, s65, s66")
        P("s_bitcmp1_b32 s61, 0")
        P("s_cselect_b32 s53, s65, s53")
        P("s_lshl_b32 s61, s61, 6")
        P("s_add_u32 s61, s61, s60")
        P("s_mul_i32 s61, s61, 7")
        P("s_add_u32 s61, s61, s53")
        P(f"s_lshl_b32 s{67+tl}, s61, 10")
    P("s_waitcnt lgkmcnt(0)")
    for tl in range(2):
        P(f"buffer_store_dwordx4 v[{O+4*tl}:{O+4*tl+3}], v{T}, s[24:27], s{67+tl} offen sc1")
    prof(P, 6, pr)
    if pr: P("s_waitcnt vmcnt(0)")
    prof(P, 7, pr)
    P("s_endpgm")
    if aux is not None:
        P.label("k1_aux")
        aux(P, X, T, VXW, pr)
    P.label("k1_end")
    P("s_endpgm")
    return dict(vgpr=128, agpr=128, lds=160 * 1024)
```

```python
from dsl import Prog
WS_Z2F = 0x0000000
WS_Z1F = 0x0400000
WS_HF  = 0x0800000
WS_XNT = 0x0C00000
WS_YAT = 0x0E00000
WS_KR  = 0x1000000
WS_WOF = 0x1800000
WS_ST  = 0x1900000
KR_STRIDE = 8704

def srd(P, d, base, nbytes, off=0):
    if off:
        P(f"s_add_u32 s{d}, s{base}, {off}")
        P(f"s_addc_u32 s{d+1}, s{base+1}, 0")
        P(f"s_and_b32 s{d+1}, s{d+1}, 0xffff")
    else:
        P(f"s_mov_b32 s{d}, s{base}")
        P(f"s_and_b32 s{d+1}, s{base+1}, 0xffff")
    P(f"s_mov_b32 s{d+2}, {nbytes}")
    P(f"s_mov_b32 s{d+3}, 0x00020000")

WS_PROF = 0x1A00000
def prof(P, idx, on):
    if not on: return
    P("s_memrealtime s[90:91]")
    P("s_lshl_b32 s92, s2, 3")
    P("s_add_u32 s92, s92, s3")
    P("s_lshl_b32 s92, s92, 6")
    P(f"s_add_u32 s92, s92, {WS_PROF + idx*8}")
    P("s_waitcnt lgkmcnt(0)")
    P("v_mov_b32 v26, s90")
    P("v_mov_b32 v27, s91")
    P("v_mov_b32 v25, s92")
    P("global_store_dwordx2 v25, v[26:27], s[8:9]")

CW_AREA = 13824
def gen_conv(P, CB, pr):
    prof(P, 0, pr)
    T = 2
    P("s_sub_u32 s52, s3, 4")
    P("s_lshr_b32 s53, s52, 1")
    P("s_lshl_b32 s54, s2, 1")
    P("s_add_u32 s54, s54, s53")
    P(f"s_mul_i32 s55, s52, {CW_AREA}")
    P(f"s_add_u32 s55, s55, {CB}")
    P(f"s_mul_i32 s56, s54, {KR_STRIDE}")
    P("s_lshl_b32 s57, s54, 12")
    P(f"v_lshlrev_b32 v{T}, 4, v0")
    for e in range(9):
        if e % 4 == 0:
            P(f"s_add_u32 m0, s55, {1024*e}")
            P(f"s_add_u32 s58, s56, {1024*e}")
        P(f"buffer_load_dwordx4 v{T}, s[44:47], s58 offen offset:{1024*(e&3)} lds")
    P(f"s_add_u32 m0, s55, {9216+512}")
    P("s_nop 0")
    for e in range(4):
        P(f"buffer_load_dwordx4 v{T}, s[36:39], s57 offen offset:{1024*e} lds")
    P("s_lshl_b32 s58, s54, 1")
    P(f"v_mov_b32 v{T+1}, 0")
    P(f"buffer_load_ushort v{T+8}, v{T+1}, s[48:51], s58 offen")
    P(f"v_mov_b32 v{T+2}, 0")
    P(f"v_mov_b32 v{T+3}, 0")
    P(f"v_lshlrev_b32 v{T+1}, 3, v0")
    P(f"v_add_u32 v{T+1}, s55, v{T+1}")
    P(f"ds_write_b64 v{T+1}, v[{T+2}:{T+3}] offset:9216")
    VA = 12
    P(f"v_and_b32 v{T}, 15, v0")
    P(f"v_lshrrev_b32 v{T+1}, 5, v0")
    P(f"v_bfe_u32 v{T+2}, v0, 4, 1")
    P(f"v_lshl_add_u32 v{T+3}, v{T+1}, 4, v{T}")
    P(f"v_add_u32 v{T+3}, 9, v{T+3}")
    P(f"v_lshlrev_b32 v{T+4}, 3, v{T+2}")
    P(f"v_sub_u32 v{T+3}, v{T+3}, v{T+4}")
    P(f"v_and_b32 v{T+4}, 1, v{T+3}")
    P(f"v_sub_u32 v{T+3}, v{T+3}, v{T+4}")
    P(f"v_lshlrev_b32 v{T+3}, 1, v{T+3}")
    P("s_movk_i32 s58, 4288")
    P(f"v_mad_u32_u24 v{T+3}, v{T+4}, s58, v{T+3}")
    P(f"v_add_u32 v{VA}, s55, v{T+3}")
    for k in range(1, 4):
        P(f"v_add_u32 v{VA+k}, {1024*k}, v{VA}")
    P(f"v_sub_u32 v{T+3}, v{T}, v{T+1}")
    P(f"v_lshlrev_b32 v{T+3}, 5, v{T+3}")
    P(f"v_lshl_add_u32 v{T+3}, v{T+2}, 4, v{T+3}")
    P(f"s_add_u32 s58, s55, 9216")
    P(f"v_add_u32 v{VA+4}, s58, v{T+3}")
    P(f"v_lshl_add_u32 v{T+3}, v{T}, 1, v{T+1}")
    P(f"v_lshlrev_b32 v{T+3}, 4, v{T+3}")
    P(f"v_xor_b32 v{T+4}, 1, v{T+2}")
    P(f"v_lshl_add_u32 v{T+3}, v{T+4}, 3, v{T+3}")
    P(f"v_add_u32 v{VA+5}, s58, v{T+3}")
    P(f"v_lshrrev_b32 v{T+3}, 4, v0")
    P(f"v_lshlrev_b32 v{T+3}, 3, v{T+3}")
    P(f"v_lshl_add_u32 v{VA+6}, v{T}, 5, v{T+3}")
    AF, BF, ACC = 20, 52, 84
    for r in range(20): P(f"v_mov_b32 v{ACC+r}, 0")
    P("s_waitcnt vmcnt(0) lgkmcnt(0)")
    P(f"v_mov_b32 v{T+1}, s55")
    P(f"ds_read_b32 v{T+9}, v{T+1} offset:8576")
    P("s_bitcmp1_b32 s52, 0")
    P("s_cbranch_scc1 k2_conv1")
    for part, U in enumerate(([7, 6, 2], [5, 4, 3, 1, 0])):
        if part: P.label("k2_conv1")
        um = max(U)
        P("s_mov_b32 s59, 0")
        P.label(f"k2_cloop{part}")
        for i in range(um + 1):
            o = 128 * (i & 1)
            P(f"ds_read2_b32 v[{AF+4*i}:{AF+4*i+1}], v{VA+(i>>1)} offset0:{o} offset1:{o+1}")
            P(f"ds_read2_b32 v[{AF+4*i+2}:{AF+4*i+3}], v{VA+(i>>1)} offset0:{o+2} offset1:{o+3}")
            P(f"ds_read_b128 v[{BF+4*i}:{BF+4*i+3}], v{VA+4} offset:{512+512*i}")
            if i % 4 == 3 and i != um: P("s_waitcnt lgkmcnt(3)")
        for k in range(4): P(f"v_add_u32 v{VA+k}, 64, v{VA+k}")
        P(f"v_subrev_u32 v{VA+4}, 64, v{VA+4}")
        P("s_waitcnt lgkmcnt(0)")
        work = []
        for step in range(um + 1):
            for k, u in enumerate(U):
                if step <= u: work.append((k, step, u - step))
        for (k, i, w) in work:
            a = ACC + 4 * k
            P(f"v_mfma_f32_16x16x32_f16 v[{a}:{a+3}], v[{AF+4*i}:{AF+4*i+3}], v[{BF+4*w}:{BF+4*w+3}], v[{a}:{a+3}]")
        P("s_add_u32 s59, s59, 1")
        P("s_cmp_lt_u32 s59, 8")
        P(f"s_cbranch_scc1 k2_cloop{part}")
        for k, u in enumerate(U):
            P(f"ds_read_b64 v[{AF+2*k}:{AF+2*k+1}], v{VA+5} offset:{512+512*u}")
        P(f"v_lshlrev_b32 v{T+8}, 16, v{T+8}")
        P("s_waitcnt lgkmcnt(0)")
        for k, u in enumerate(U):
            a = ACC + 4 * k; xl, xh = AF + 2 * k, AF + 2 * k + 1
            for i in range(4): P(f"v_mul_f32 v{a+i}, v{a+i}, v{T+9}")
            P(f"v_cvt_pk_bf16_f32 v{T}, v{a}, v{a+1}")
            P(f"v_cvt_pk_bf16_f32 v{T+1}, v{a+2}, v{a+3}")
            P(f"v_cvt_f32_f16_sdwa v{a}, v{xh} dst_sel:DWORD dst_unused:UNUSED_PAD src0_sel:WORD_1")
            P(f"v_cvt_f32_f16 v{a+1}, v{xh}")
            P(f"v_cvt_f32_f16_sdwa v{a+2}, v{xl} dst_sel:DWORD dst_unused:UNUSED_PAD src0_sel:WORD_1")
            P(f"v_cvt_f32_f16 v{a+3}, v{xl}")
            for i in range(4): P(f"v_mul_f32 v{a+i}, v{a+i}, v{T+8}")
            P(f"v_cvt_pk_bf16_f32 v{T+2}, v{a}, v{a+1}")
            P(f"v_cvt_pk_bf16_f32 v{T+3}, v{a+2}, v{a+3}")
            for hh in range(2):
                P(f"v_lshlrev_b32 v{a+2*hh}, 16, v{T+hh}")
                P(f"v_and_b32 v{a+2*hh+1}, 0xffff0000, v{T+hh}")
                P(f"v_lshlrev_b32 v{T+4}, 16, v{T+2+hh}")
                P(f"v_and_b32 v{T+5}, 0xffff0000, v{T+2+hh}")
                P(f"v_add_f32 v{a+2*hh}, v{a+2*hh}, v{T+4}")
                P(f"v_add_f32 v{a+2*hh+1}, v{a+2*hh+1}, v{T+5}")
            P(f"v_cvt_pk_bf16_f32 v{BF+2*k}, v{a}, v{a+1}")
            P(f"v_cvt_pk_bf16_f32 v{BF+2*k+1}, v{a+2}, v{a+3}")
            P(f"buffer_store_dwordx2 v[{BF+2*k}:{BF+2*k+1}], v{VA+6}, s[40:43], s57 offen offset:{512*u} sc1")
        prof(P, 1, pr)
        P("s_barrier")
        P("s_endpgm")

def gen_k2(P, NST=3, conv=True, nz=3, pr=False):
    STG = 8192
    AREA = NST * STG
    P.label("k2_kernel")
    P("s_cmp_ge_u32 s2, 256")
    P("s_cbranch_scc1 k2_end")
    P("s_load_dwordx2 s[4:5], s[0:1], 88")
    P("s_load_dwordx2 s[6:7], s[0:1], 96")
    P("s_load_dwordx2 s[8:9], s[0:1], 128")
    P("s_load_dwordx2 s[10:11], s[0:1], 64")
    P("v_lshrrev_b32 v1, 6, v0")
    P("v_and_b32 v0, 63, v0")
    P("v_readfirstlane_b32 s3, v1")
    P("s_and_b32 s12, s2, 7")
    P("s_lshr_b32 s13, s2, 3")
    P("s_lshr_b32 s14, s12, 1")
    P("s_lshl_b32 s14, s14, 3")
    P("s_and_b32 s15, s13, 7")
    P("s_add_u32 s14, s14, s15")
    P("s_and_b32 s15, s12, 1")
    P("s_lshl_b32 s15, s15, 2")
    P("s_lshr_b32 s13, s13, 3")
    P("s_add_u32 s15, s15, s13")
    P("s_waitcnt lgkmcnt(0)")
    srd(P, 16, 4, 2048 * 2048 * 2)
    srd(P, 20, 8, 0x400000, WS_Z2F)
    srd(P, 24, 8, 0x400000, WS_Z1F)
    srd(P, 28, 8, 0x400000, WS_HF)
    srd(P, 32, 6, 4096)
    srd(P, 36, 8, 0x200000, WS_XNT)
    srd(P, 40, 8, 0x200000, WS_YAT)
    srd(P, 44, 8, 512 * KR_STRIDE, WS_KR)
    srd(P, 48, 10, 1024)
    if conv:
        P("s_cmp_ge_u32 s3, 4")
        P("s_cbranch_scc1 k2_conv")
    prof(P, 0, pr)
    if pr: P("s_memtime s[82:83]")
    VW = 2
    VZ = 10
    VA = 12
    T = 20
    WF = 28
    ZB = 60
    P(f"v_lshrrev_b32 v{T}, 3, v0")
    P(f"v_and_b32 v{T+1}, 7, v0")
    P(f"v_lshrrev_b32 v{T+2}, 1, v{T}")
    P(f"v_xor_b32 v{T+1}, v{T+1}, v{T+2}")
    P(f"v_lshlrev_b32 v{T+1}, 4, v{T+1}")
    P(f"v_lshl_add_u32 v{T+1}, v{T}, 12, v{T+1}")
    P(f"v_xor_b32 v{T+2}, 64, v{T+1}")
    for e in range(8):
        P(f"v_add_u32 v{VW+e}, {8*e*4096 - 1024*(e&3)}, v{T+1+(e&1)}")
    P(f"v_lshlrev_b32 v{VZ}, 4, v0")
    P(f"v_add_u32 v{VZ+1}, 4096, v{VZ}")
    P(f"v_and_b32 v{T}, 15, v0")
    P(f"v_lshrrev_b32 v{T+1}, 4, v0")
    P(f"v_lshrrev_b32 v{T+2}, 1, v{T}")
    P(f"v_xor_b32 v{T+1}, v{T+1}, v{T+2}")
    P(f"v_lshlrev_b32 v{T+1}, 4, v{T+1}")
    P(f"v_lshl_add_u32 v{T+1}, v{T}, 7, v{T+1}")
    P(f"s_mul_i32 s52, s3, {AREA}")
    for tau in range(4):
        P(f"s_add_u32 s53, s3, {tau}")
        P(f"s_and_b32 s53, s53, 3")
        P(f"s_lshl_b32 s53, s53, 11")
        P(f"s_add_u32 s53, s53, s52")
        P(f"v_add_u32 v{VA+tau}, s53, v{T+1}")
        P(f"v_xor_b32 v{VA+4+tau}, 64, v{VA+tau}")
    P("s_lshl_b32 s54, s14, 18")
    P("s_lshl_b32 s53, s3, 10")
    P("s_add_u32 s54, s54, s53")
    P(f"s_mul_i32 s55, s15, {64*7168}")
    P(f"s_mul_i32 s53, s3, {16*7168}")
    P("s_add_u32 s55, s55, s53")
    def wdma(q):
        out = []
        st = q % NST
        for e in range(8):
            pre = []
            if e % 4 == 0:
                pre.append(f"s_add_u32 m0, s52, {st*STG + e*1024}")
                if e == 0: pre.append(f"s_add_u32 s56, s54, {q*128}")
                else: pre.append("s_nop 0")
            out.append("\n".join(pre + [f"buffer_load_dwordx4 v{VW+e}, s[16:19], s56 offen offset:{1024*(e&3)} lds"]))
        return out
    def zld(i):
        out = []
        b = ZB + 28 * (i % nz)
        for ft in range(7):
            pre = [f"s_add_u32 s57, s55, {i*7168}"] if ft == 0 else []
            out.append("\n".join(pre + [f"buffer_load_dwordx4 v[{b+4*ft}:{b+4*ft+3}], v{VZ+(ft>>2)}, s[20:23], s57 offen offset:{1024*(ft&3)}"]))
        return out
    def wrd(i):
        out = []
        st = (i // 2) % NST; h = i & 1
        b = WF + 16 * (i & 1)
        for tau in range(4):
            out.append(f"ds_read_b128 v[{b+4*tau}:{b+4*tau+3}], v{VA+4*h+tau} offset:{st*STG}")
        return out
    ZD = nz - 1
    WD = NST - 1
    issued = []
    def emit(lst, tag):
        for s in lst:
            P(s); issued.append(tag)
    for q in range(max(WD, (ZD + 1) // 2)):
        if q < WD: emit(wdma(q), ('W', q))
        for i in (2 * q, 2 * q + 1):
            if i < ZD: emit(zld(i), ('Z', i))
    for r in range(112):
        P(f"v_accvgpr_write_b32 a{r}, 0")
    def wait_for(tags):
        last = max(k for k, t in enumerate(issued) if t in tags)
        n = len(issued) - 1 - last
        P(f"s_waitcnt vmcnt({min(n,63)})")
    wait_for({('W', 0)})
    if pr: P('s_memrealtime s[80:81]')
    for s in wrd(0): P(s)
    for i in range(16):
        need_tags = {('Z', i)}
        if i + 1 < 16: need_tags.add(('W', (i + 1) // 2))
        wait_for(need_tags)
        P("s_waitcnt lgkmcnt(0)")
        side = []
        if i + 1 < 16: side += [(s, None) for s in wrd(i + 1)]
        if i + ZD < 16: side += [(s, ('Z', i + ZD)) for s in zld(i + ZD)]
        if i % 2 == 0 and i // 2 + WD < 8: side += [(s, ('W', i // 2 + WD)) for s in wdma(i // 2 + WD)]
        zb = ZB + 28 * (i % nz); wb = WF + 16 * (i & 1)
        k = 0
        for ft in range(7):
            for tau in range(4):
                a = 4 * (ft * 4 + tau)
                P(f"v_mfma_f32_16x16x32_bf16 a[{a}:{a+3}], v[{zb+4*ft}:{zb+4*ft+3}], v[{wb+4*tau}:{wb+4*tau+3}], a[{a}:{a+3}]")
                if k < len(side):
                    s, tag = side[k]; k += 1
                    P(s)
                    if tag: issued.append(tag)
        assert k == len(side)
    prof(P, 2, pr)
    if pr:
        P('v_mov_b32 v26, s80')
        P('v_mov_b32 v27, s81')
        P('global_store_dwordx2 v25, v[26:27], s[8:9] offset:-8')
    P("s_and_b32 s53, s15, 1")
    P("s_mul_i32 s58, s15, 7")
    P("s_add_u32 s58, s58, s53")
    P("s_lshr_b32 s58, s58, 1")
    P("s_lshl_b32 s59, s53, 2")
    P("s_sub_u32 s59, 3, s59")
    P("s_add_u32 s59, s59, s58")
    P("s_mul_i32 s60, s14, 28")
    P("s_add_u32 s58, s58, s60")
    P("s_add_u32 s59, s59, s60")
    P("s_lshl_b32 s58, s58, 2")
    P("s_lshl_b32 s59, s59, 2")
    P("s_add_u32 s58, s58, s3")
    P("s_add_u32 s59, s59, s3")
    P("s_lshl_b32 s58, s58, 10")
    P("s_lshl_b32 s59, s59, 10")
    P("s_lshl_b32 s53, s53, 3")
    P("s_add_u32 s59, s59, s53")
    Z1 = WF
    P(f"buffer_load_dwordx4 v[{Z1}:{Z1+3}], v{VZ}, s[24:27], s58 offen")
    P(f"buffer_load_dwordx4 v[{Z1+4}:{Z1+7}], v{VZ+1}, s[24:27], s58 offen")
    P(f"s_add_u32 s60, s58, 8192")
    P(f"buffer_load_dwordx4 v[{Z1+8}:{Z1+11}], v{VZ}, s[24:27], s60 offen")
    P(f"buffer_load_dwordx2 v[{Z1+12}:{Z1+13}], v{VZ}, s[24:27], s59 offen")
    P(f"v_and_b32 v{T}, 15, v0")
    P(f"v_lshlrev_b32 v{T}, 1, v{T}")
    P("s_lshl_b32 s61, s14, 7")
    P("s_lshl_b32 s53, s3, 5")
    P("s_add_u32 s61, s61, s53")
    P(f"buffer_load_ushort v{T+1}, v{T}, s[32:35], s61 offen")
    P(f"v_add_u32 v{T+2}, s52, v{VZ}")
    for tau in range(1, 4):
        for ft in range(7):
            a = 4 * (ft * 4 + tau)
            P(f"ds_write_b128 v{T+2}, a[{a}:{a+3}] offset:{(tau-1)*7168 + ft*1024}")
    P("s_waitcnt lgkmcnt(0)")
    P("s_barrier")
    R = ZB
    for dl in range(1, 4):
        P(f"s_sub_u32 s53, s3, {dl}")
        P("s_and_b32 s53, s53, 3")
        P(f"s_mul_i32 s53, s53, {AREA}")
        P(f"v_add_u32 v{T+2}, s53, v{VZ}")
        for ft in range(7):
            r = R + 28 * (dl - 1) + 4 * ft
            P(f"ds_read_b128 v[{r}:{r+3}], v{T+2} offset:{(dl-1)*7168 + ft*1024}")
    G = WF + 16
    P("s_waitcnt lgkmcnt(14)")
    for ft in range(7):
        for i in range(4):
            P(f"v_accvgpr_read_b32 v{G+i}, a{4*(ft*4)+i}")
        for i in range(4):
            P(f"v_add_f32 v{R+4*ft+i}, v{R+4*ft+i}, v{G+i}")
    P("s_waitcnt lgkmcnt(7)")
    for r in range(28):
        P(f"v_add_f32 v{R+r}, v{R+r}, v{R+28+r}")
    P("s_waitcnt lgkmcnt(0)")
    for r in range(28):
        P(f"v_add_f32 v{R+r}, v{R+r}, v{R+56+r}")
    P("s_waitcnt vmcnt(0)")
    P(f"v_lshlrev_b32 v{T+1}, 16, v{T+1}")
    H = R + 28
    for q in range(14):
        a, b = R + 2 * q, R + 2 * q + 1
        P(f"v_cvt_pk_bf16_f32 v{G}, v{a}, v{b}")
        P(f"v_lshlrev_b32 v{a}, 16, v{G}")
        P(f"v_and_b32 v{b}, 0xffff0000, v{G}")
        P(f"v_add_f32 v{a}, v{a}, v{T+1}")
        P(f"v_add_f32 v{b}, v{b}, v{T+1}")
        P(f"v_cvt_pk_bf16_f32 v{G}, v{a}, v{b}")
        P(f"v_lshlrev_b32 v{a}, 16, v{G}")
        P(f"v_and_b32 v{b}, 0xffff0000, v{G}")
        P(f"v_lshlrev_b32 v{G+1}, 16, v{Z1+q}")
        P(f"v_and_b32 v{G+2}, 0xffff0000, v{Z1+q}")
        P(f"v_mul_f32 v{a}, v{a}, v{G+1}")
        P(f"v_mul_f32 v{b}, v{b}, v{G+2}")
        P(f"v_cvt_pk_bf16_f32 v{H+q}, v{a}, v{b}")
    ST = " sc1"
    P(f"buffer_store_dwordx4 v[{H}:{H+3}], v{VZ}, s[28:31], s58 offen{ST}")
    P(f"buffer_store_dwordx4 v[{H+4}:{H+7}], v{VZ+1}, s[28:31], s58 offen{ST}")
    P(f"buffer_store_dwordx4 v[{H+8}:{H+11}], v{VZ}, s[28:31], s60 offen{ST}")
    P(f"buffer_store_dwordx2 v[{H+12}:{H+13}], v{VZ}, s[28:31], s59 offen{ST}")
    prof(P, 3, pr)
    if pr: P("s_waitcnt vmcnt(0)")
    prof(P, 4, pr)
    if pr:
        P("s_memtime s[84:85]")
        P("s_waitcnt lgkmcnt(0)")
        P("s_sub_u32 s84, s84, s82")
        P("v_mov_b32 v26, s84")
        P("v_mov_b32 v27, 0")
        P("global_store_dwordx2 v25, v[26:27], s[8:9] offset:8")
    P("s_endpgm")
    if conv:
        P.label("k2_conv")
        gen_conv(P, 4 * AREA, pr)
    P.label("k2_end")
    P("s_endpgm")
    return dict(vgpr=ZB + 28 * max(nz, 3), agpr=112, lds=4 * AREA + (4 * CW_AREA if conv else 0))
```

```python
from k2 import *
def gen_k3(P, pr=False):
    P.label("k3_kernel")
    P("s_cmp_ge_u32 s2, 256")
    P("s_cbranch_scc1 k3_end")
    P("s_load_dwordx2 s[4:5], s[0:1], 0")
    P("s_load_dwordx2 s[6:7], s[0:1], 112")
    P("s_load_dwordx2 s[8:9], s[0:1], 128")
    P("v_lshrrev_b32 v1, 6, v0")
    P("v_and_b32 v0, 63, v0")
    P("v_readfirstlane_b32 s3, v1")
    P("s_and_b32 s12, s2, 7")
    P("s_lshr_b32 s13, s2, 3")
    P("s_lshl_b32 s14, s12, 2")
    P("s_and_b32 s15, s13, 3")
    P("s_add_u32 s14, s14, s15")
    P("s_lshr_b32 s15, s13, 2")
    P("s_waitcnt lgkmcnt(0)")
    srd(P, 16, 4, 2048 * 512 * 2)
    srd(P, 20, 6, 2048 * 512 * 2)
    srd(P, 24, 8, 0x400000, WS_HF)
    srd(P, 28, 8, 896 * 1024, WS_WOF)
    srd(P, 32, 8, 0x200000, WS_YAT)
    prof(P, 0, pr)
    T = 2; VL = 10; VH = 12
    P(f"v_lshlrev_b32 v{VL}, 4, v0")
    for tau in range(4):
        P(f"s_add_u32 s53, s3, {tau}")
        P("s_and_b32 s53, s53, 3")
        P("s_lshl_b32 s53, s53, 10")
        P(f"v_add_u32 v{VH+tau}, s53, v{VL}")
    P("s_mul_i32 s52, s3, 7")
    P("s_mul_i32 s54, s14, 28")
    P("s_add_u32 s54, s54, s52")
    P("s_lshl_b32 s54, s54, 12")
    P("s_mul_i32 s55, s15, 28")
    P("s_add_u32 s55, s55, s52")
    P("s_lshl_b32 s55, s55, 12")
    for k in range(7):
        P(f"s_add_u32 s56, s54, {4096*k}")
        P(f"s_add_u32 s57, s55, {4096*k}")
        for q in range(4):
            P(f"buffer_load_dwordx4 a[{32*k+4*q}:{32*k+4*q+3}], v{VH+q}, s[24:27], s56 offen")
            P(f"buffer_load_dwordx4 a[{32*k+16+4*q}:{32*k+16+4*q+3}], v{VL}, s[28:31], s57 offen offset:{1024*q}")
    YB = 4 * 12288
    P(f"v_lshrrev_b32 v{T}, 3, v0")
    P(f"v_and_b32 v{T+1}, 7, v0")
    P(f"v_lshlrev_b32 v{T+1}, 4, v{T+1}")
    P(f"v_lshl_add_u32 v{T+1}, v{T}, 12, v{T+1}")
    P("s_lshl_b32 s56, s15, 18")
    P("s_lshl_b32 s57, s3, 16")
    P("s_add_u32 s56, s56, s57")
    P("s_lshl_b32 s57, s14, 7")
    P("s_add_u32 s56, s56, s57")
    P("s_lshl_b32 s57, s3, 11")
    P(f"s_add_u32 m0, s57, {YB}")
    P("s_add_u32 s58, s56, 32768")
    P(f"buffer_load_dwordx4 v{T+1}, s[32:35], s56 offen lds")
    P(f"s_add_u32 m0, s57, {YB+1024}")
    P("s_nop 0")
    P(f"buffer_load_dwordx4 v{T+1}, s[32:35], s58 offen lds")
    XR = 16
    P(f"v_and_b32 v{T}, 15, v0")
    P(f"v_lshrrev_b32 v{T+1}, 4, v0")
    P(f"v_lshlrev_b32 v{T}, 10, v{T}")
    P(f"v_lshl_add_u32 v{VL+1}, v{T+1}, 4, v{T}")
    P("s_lshl_b32 s58, s14, 16")
    P("s_lshl_b32 s57, s3, 14")
    P("s_add_u32 s58, s58, s57")
    P("s_lshl_b32 s57, s15, 7")
    P("s_add_u32 s58, s58, s57")
    P(f"buffer_load_dwordx4 v[{XR}:{XR+3}], v{VL+1}, s[16:19], s58 offen")
    P(f"buffer_load_dwordx4 v[{XR+4}:{XR+7}], v{VL+1}, s[16:19], s58 offen offset:64")
    ACC = 32
    for r in range(64): P(f"v_mov_b32 v{ACC+r}, 0")
    for k in range(7):
        P(f"s_waitcnt vmcnt({4 + 8*(6-k)})")
        for dt in range(4):
            for tau in range(4):
                a = ACC + 4 * (4 * dt + tau)
                P(f"v_mfma_f32_16x16x32_bf16 v[{a}:{a+3}], a[{32*k+16+4*dt}:{32*k+16+4*dt+3}], a[{32*k+4*tau}:{32*k+4*tau+3}], v[{a}:{a+3}]")
    prof(P, 1, pr)
    P("s_mul_i32 s52, s3, 12288")
    P(f"v_add_u32 v{T}, s52, v{VL}")
    for tau in range(1, 4):
        for dt in range(4):
            a = ACC + 4 * (4 * dt + tau)
            P(f"ds_write_b128 v{T}, v[{a}:{a+3}] offset:{(tau-1)*4096 + dt*1024}")
    P("s_waitcnt vmcnt(0) lgkmcnt(0)")
    P("s_barrier")
    R = 96
    for dl in range(1, 4):
        P(f"s_sub_u32 s53, s3, {dl}")
        P("s_and_b32 s53, s53, 3")
        P("s_mul_i32 s53, s53, 12288")
        P(f"v_add_u32 v{T}, s53, v{VL}")
        for dt in range(4):
            r = R + 16 * (dl - 1) + 4 * dt
            P(f"ds_read_b128 v[{r}:{r+3}], v{T} offset:{(dl-1)*4096 + dt*1024}")
    P(f"v_lshrrev_b32 v{T+1}, 4, v0")
    P(f"v_bfe_u32 v{T+2}, v0, 2, 2")
    P(f"v_and_b32 v{T+3}, 3, v0")
    P(f"v_lshl_add_u32 v{T+1}, v{T+1}, 3, v{T+2}")
    P(f"v_lshlrev_b32 v{T+1}, 7, v{T+1}")
    P(f"v_lshl_add_u32 v{T+1}, v{T+3}, 3, v{T+1}")
    P("s_lshl_b32 s53, s3, 5")
    P(f"s_add_u32 s53, s53, {YB}")
    P(f"v_add_u32 v{T+1}, s53, v{T+1}")
    YA = 24
    P("s_waitcnt lgkmcnt(0)")
    for Pp in range(2):
        for eta in range(2):
            d = YA + 4 * Pp + 2 * eta
            P(f"ds_read_b64_tr_b16 v[{d}:{d+1}], v{T+1} offset:{4096*Pp + 512*eta}")
    for dt in range(4):
        for i in range(4):
            a = ACC + 16 * dt + i
            P(f"v_add_f32 v{a}, v{a}, v{R+4*dt+i}")
            P(f"v_add_f32 v{R+16+4*dt+i}, v{R+16+4*dt+i}, v{R+32+4*dt+i}")
            P(f"v_add_f32 v{a}, v{a}, v{R+16+4*dt+i}")
    P("s_waitcnt lgkmcnt(0)")
    for q in range(8):
        a = ACC + 16 * (q >> 1) + 2 * (q & 1)
        P(f"v_cvt_pk_bf16_f32 v{T}, v{a}, v{a+1}")
        P(f"v_lshlrev_b32 v{T+2}, 16, v{XR+q}")
        P(f"v_and_b32 v{T+3}, 0xffff0000, v{XR+q}")
        P(f"v_lshlrev_b32 v{T+4}, 16, v{YA+q}")
        P(f"v_and_b32 v{T+5}, 0xffff0000, v{YA+q}")
        P(f"v_add_f32 v{T+2}, v{T+2}, v{T+4}")
        P(f"v_add_f32 v{T+3}, v{T+3}, v{T+5}")
        P(f"v_cvt_pk_bf16_f32 v{T+4}, v{T+2}, v{T+3}")
        P(f"v_lshlrev_b32 v{T+2}, 16, v{T+4}")
        P(f"v_and_b32 v{T+3}, 0xffff0000, v{T+4}")
        P(f"v_lshlrev_b32 v{T+4}, 16, v{T}")
        P(f"v_and_b32 v{T+5}, 0xffff0000, v{T}")
        P(f"v_add_f32 v{T+2}, v{T+2}, v{T+4}")
        P(f"v_add_f32 v{T+3}, v{T+3}, v{T+5}")
        P(f"v_cvt_pk_bf16_f32 v{R+q}, v{T+2}, v{T+3}")
    P(f"buffer_store_dwordx4 v[{R}:{R+3}], v{VL+1}, s[20:23], s58 offen")
    P(f"buffer_store_dwordx4 v[{R+4}:{R+7}], v{VL+1}, s[20:23], s58 offen offset:64")
    prof(P, 2, pr)
    if pr: P("s_waitcnt vmcnt(0)")
    prof(P, 3, pr)
    P.label("k3_end")
    P("s_endpgm")
    return dict(vgpr=144, agpr=224, lds=YB + 8192)
```

```python
import sys
from dsl import Prog
import k1, k2, k3, aux
HDR = open('parallel_sum__ssm_conv_s4__mixer_gmlp__prompt.s.ref').read().split('; Override launch')[0]
def build(pr=False, **kw):
    parts = []; launches = []; descs = []
    for name, fn, blk in (("k1_kernel", lambda P: k1.gen_k1(P, aux=aux.aux, pr=pr), 512),
                          ("k2_kernel", lambda P: k2.gen_k2(P, pr=pr, **kw), 512),
                          ("k3_kernel", lambda P: k3.gen_k3(P, pr=pr), 256)):
        P = Prog(); info = fn(P); body = P.finish()
        acc = (info['vgpr'] + 3) // 4 * 4
        launches.append(f"; @launch kernel={name} grid=(256,1,1) block=({blk},1,1) lds={info['lds']}")
        parts.append(f".globl {name}\n.p2align 8\n.type {name},@function\n{body}")
        descs.append(f""".p2align 6
.amdhsa_kernel {name}
  .amdhsa_next_free_vgpr {acc + info['agpr']}
  .amdhsa_next_free_sgpr 96
  .amdhsa_accum_offset {acc}
  .amdhsa_group_segment_fixed_size 0
  .amdhsa_kernarg_size 136
  .amdhsa_user_sgpr_count 2
  .amdhsa_user_sgpr_kernarg_segment_ptr 1
  .amdhsa_system_sgpr_workgroup_id_x 1
.end_amdhsa_kernel""")
    return HDR + "\n".join(launches) + '\n.amdgcn_target "amdgcn-amd-amdhsa--gfx950"\n.text\n' + "\n".join(parts) + '\n.section .rodata,"a"\n' + "\n".join(descs) + "\n"
if __name__ == "__main__":
    out = sys.argv[1] if len(sys.argv) > 1 else 'parallel_sum__ssm_conv_s4__mixer_gmlp__prompt.s'
    open(out, 'w').write(build(pr=('prof' in sys.argv)))
```

```python
from k1 import *

LOG2E = math.log2(math.e)
PROWS = [0,1,2,3,4,5,6,7, 256,258,260,262, 512,516,768,772, 1024,1280,1536,1792, 2048]
TROW = 272
QT0 = 21 * TROW
KW_AREA = 16384

def cmul(P, r, a, b, t):
    P(f"v_pk_mul_f32 v[{t}:{t+1}], v[{a}:{a+1}], v[{b}:{b+1}] op_sel:[0,0] op_sel_hi:[1,0]")
    P(f"v_pk_fma_f32 v[{r}:{r+1}], v[{a}:{a+1}], v[{b}:{b+1}], v[{t}:{t+1}] op_sel:[1,1,0] op_sel_hi:[0,1,1] neg_lo:[1,0,0]")

def aux(P, X, T, VXW, pr):
    P("s_load_dwordx2 s[82:83], s[0:1], 104")
    P("s_waitcnt lgkmcnt(0)")
    srd(P, 20, 82, 896 * 512 * 2)
    srd(P, 24, 8, 0x200000, WS_XNT)
    srd(P, 28, 8, 896 * 1024, WS_WOF)
    P("s_mul_i32 s54, s14, 7")
    P("s_add_u32 s54, s54, s3")
    P("s_mul_i32 s55, s54, 1171")
    P("s_lshr_b32 s55, s55, 15")
    P("s_mul_i32 s56, s55, 28")
    P("s_sub_u32 s56, s54, s56")
    P("s_lshl_b32 s56, s56, 15")
    P("s_lshl_b32 s55, s55, 7")
    P("s_add_u32 s56, s56, s55")
    P(f"v_lshrrev_b32 v{T}, 3, v0")
    P(f"v_and_b32 v{T+1}, 7, v0")
    P(f"v_lshlrev_b32 v{T+1}, 4, v{T+1}")
    P(f"v_lshl_add_u32 v{T+1}, v{T}, 10, v{T+1}")
    WO = 112
    for e in range(4):
        P(f"s_add_u32 s57, s56, {8192*e}")
        P(f"buffer_load_dwordx4 v[{WO+4*e}:{WO+4*e+3}], v{T+1}, s[20:23], s57 offen")
    P("v_lshlrev_b32 v30, 6, v0")
    P("s_lshl_b32 s56, s2, 15")
    P("s_lshl_b32 s57, s3, 12")
    P("s_add_u32 s56, s56, s57")
    P("buffer_load_dword v31, v30, s[36:39], s56 offen")
    P("s_waitcnt vmcnt(5)")
    ln1(P, X, T, 16, 52)
    for r in range(32):
        a, b = T + 4 + (r & 1) * 2, T + 5 + (r & 1) * 2
        P(f"v_lshlrev_b32 v{a}, 16, v{X+r}")
        P(f"v_and_b32 v{b}, 0xffff0000, v{X+r}")
        P(f"v_cvt_pk_f16_f32 v{X+r}, v{a}, v{b}")
    for e in range(8):
        P(f"ds_write_b128 v{VXW+(e&1)}, v[{X+4*e}:{X+4*e+3}] offset:{256*(e>>1)}")
    P(f"v_lshlrev_b32 v{T}, 4, v0")
    P("s_lshl_b32 s53, s3, 12")
    P(f"v_add_u32 v{T}, s53, v{T}")
    P("s_waitcnt vmcnt(1)")
    for e in range(4):
        P(f"ds_write_b128 v{T}, v[{WO+4*e}:{WO+4*e+3}] offset:{1024*e}")
    P(f"v_lshrrev_b32 v{T+1}, 2, v0")
    P(f"v_and_b32 v{T+2}, 3, v0")
    P(f"v_lshlrev_b32 v{T+1}, 7, v{T+1}")
    P(f"v_lshl_add_u32 v{T+1}, v{T+2}, 4, v{T+1}")
    P(f"v_add_u32 v{T+1}, s53, v{T+1}")
    P("s_waitcnt lgkmcnt(0)")
    for dt in range(4):
        for eta in range(2):
            d = WO + 4 * dt + 2 * eta
            P(f"ds_read_b64_tr_b16 v[{d}:{d+1}], v{T+1} offset:{2048*eta + 64*(dt>>1) + 8*(dt&1)}")
    P(f"v_lshlrev_b32 v{T}, 4, v0")
    P("s_lshl_b32 s53, s54, 12")
    P("s_waitcnt lgkmcnt(0)")
    P("s_cmp_eq_u32 s3, 7")
    P("s_cbranch_scc1 aux_nowo")
    for dt in range(4):
        P(f"buffer_store_dwordx4 v[{WO+4*dt}:{WO+4*dt+3}], v{T}, s[28:31], s53 offen offset:{1024*dt} sc1")
    P.label("aux_nowo")
    P("s_barrier")
    P(f"v_lshrrev_b32 v{T}, 4, v0")
    P(f"v_bfe_u32 v{T+1}, v0, 2, 2")
    P(f"v_and_b32 v{T+2}, 3, v0")
    P(f"v_lshlrev_b32 v{T}, 3, v{T}")
    P(f"v_add_u32 v{T}, 7, v{T}")
    P(f"v_sub_u32 v{T}, v{T}, v{T+1}")
    P(f"v_lshrrev_b32 v{T+3}, 1, v{T+2}")
    P(f"v_and_b32 v{T+2}, 1, v{T+2}")
    P("s_and_b32 s53, s3, 1")
    P("s_lshl_b32 s53, s53, 7")
    P("s_lshr_b32 s55, s3, 1")
    P("s_lshl_b32 s55, s55, 8")
    P(f"s_add_u32 s55, s55, {XB}")
    for rr in range(2):
        if rr: P(f"v_subrev_u32 v{T}, 4, v{T}")
        P(f"v_and_b32 v{T+4}, 15, v{T}")
        P(f"v_xor_b32 v{T+4}, v{T+4}, v{T+3}")
        P(f"v_lshlrev_b32 v{T+4}, 4, v{T+4}")
        P(f"v_xor_b32 v{T+4}, s53, v{T+4}")
        P(f"v_lshl_add_u32 v{T+4}, v{T+2}, 3, v{T+4}")
        P(f"v_lshl_add_u32 v{T+4}, v{T}, 10, v{T+4}")
        P(f"v_add_u32 v{T+5+rr}, s55, v{T+4}")
    P(f"v_and_b32 v{T}, 15, v0")
    P(f"v_lshrrev_b32 v{T+1}, 4, v0")
    P(f"v_lshlrev_b32 v{T}, 12, v{T}")
    P(f"v_lshl_add_u32 v{T}, v{T+1}, 4, v{T}")
    P("s_lshl_b32 s53, s3, 18")
    P("s_lshl_b32 s55, s14, 7")
    P("s_add_u32 s53, s53, s55")
    for D in range(4):
        for rr in range(2):
            P(f"v_xor_b32 v{T+7+rr}, {32*D}, v{T+5+rr}")
        for half in range(2):
            for rr in range(2):
                d = X + 8 * D + 4 * half + 2 * rr
                P(f"ds_read_b64_tr_b16 v[{d}:{d+1}], v{T+7+rr} offset:{32768*half}")
    P("s_waitcnt lgkmcnt(0)")
    for D in range(4):
        P(f"s_add_u32 s55, s53, {65536*D}")
        for half in range(2):
            d = X + 8 * D + 4 * half
            P(f"buffer_store_dwordx4 v[{d}:{d+3}], v{T}, s[24:27], s55 offen offset:{64*half} sc1")
    prof(P, 1, pr)
    P("s_endpgm")
```

```python
from dsl import Prog
from k2 import *
import math

XB = 96 * 1024

def bf16_round_v(P, dst, src, tmp):
    P(f"v_cvt_pk_bf16_f32 v{tmp}, v{src}, v{src}")
    P(f"v_lshlrev_b32 v{dst}, 16, v{tmp}")

def ln1(P, X, T, srd_x, s_rowbase):
    S, Q = T, T + 1
    P(f"v_mov_b32 v{S}, 0")
    P(f"v_mov_b32 v{Q}, 0")
    P(f"v_mov_b32 v{T+2}, 0")
    P(f"v_mov_b32 v{T+3}, 0")
    for r in range(32):
        a = (r & 1) * 2
        P(f"v_dot2c_f32_bf16 v{S+a}, s62, v{X+r}")
        P(f"v_dot2c_f32_bf16 v{Q+a}, v{X+r}, v{X+r}")
    P(f"v_add_f32 v{S}, v{S}, v{T+2}")
    P(f"v_add_f32 v{Q}, v{Q}, v{T+3}")
    for m in ("quad_perm:[1,0,3,2]", "quad_perm:[2,3,0,1]", "row_half_mirror"):
        P(f"v_add_f32_dpp v{S}, v{S}, v{S} {m} row_mask:0xf bank_mask:0xf")
        P(f"v_add_f32_dpp v{Q}, v{Q}, v{Q} {m} row_mask:0xf bank_mask:0xf")
    P(f"v_mul_f32 v{S}, 0x3b000000, v{S}")
    P(f"v_mul_f32 v{Q}, 0x3b000000, v{Q}")
    P(f"v_fma_f32 v{Q}, -v{S}, v{S}, v{Q}")
    P(f"v_max_f32 v{Q}, 0, v{Q}")
    bf16_round_v(P, S, S, T + 2)
    bf16_round_v(P, Q, Q, T + 2)
    P(f"v_add_f32 v{Q}, 0x3727c5ac, v{Q}")
    bf16_round_v(P, Q, Q, T + 2)
    P(f"v_sqrt_f32 v{Q}, v{Q}")
    bf16_round_v(P, Q, Q, T + 2)
    P(f"v_rcp_f32 v{Q}, v{Q}")
    for r in range(32):
        a, b = T + 4 + (r & 1) * 2, T + 5 + (r & 1) * 2
        P(f"v_lshlrev_b32 v{a}, 16, v{X+r}")
        P(f"v_and_b32 v{b}, 0xffff0000, v{X+r}")
        P(f"v_sub_f32 v{a}, v{a}, v{S}")
        P(f"v_sub_f32 v{b}, v{b}, v{S}")
        P(f"v_cvt_pk_bf16_f32 v{X+r}, v{a}, v{b}")
        P(f"v_lshlrev_b32 v{a}, 16, v{X+r}")
        P(f"v_and_b32 v{b}, 0xffff0000, v{X+r}")
        P(f"v_mul_f32 v{a}, v{a}, v{Q}")
        P(f"v_mul_f32 v{b}, v{b}, v{Q}")
        P(f"v_cvt_pk_bf16_f32 v{X+r}, v{a}, v{b}")

GK0 = -2.0 * 0.7978845608028654 * math.log2(math.e)
GK1 = GK0 * 0.044715
import struct
def fbits(x): return "0x%08x" % struct.unpack("<I", struct.pack("<f", x))[0]

def gelu_pack(P, A, OUT, T):
    for q in range(8):
        a, b = A + 2 * q, A + 2 * q + 1
        t0, t1, t2, t3 = T + (q & 1) * 4, T + 1 + (q & 1) * 4, T + 2 + (q & 1) * 4, T + 3 + (q & 1) * 4
        P(f"v_cvt_pk_bf16_f32 v{t0}, v{a}, v{b}")
        P(f"v_lshlrev_b32 v{a}, 16, v{t0}")
        P(f"v_and_b32 v{b}, 0xffff0000, v{t0}")
        P(f"v_mul_f32 v{t0}, v{a}, v{a}")
        P(f"v_mul_f32 v{t1}, v{b}, v{b}")
        P(f"v_fma_f32 v{t0}, v{t0}, s64, v{T+8}")
        P(f"v_fma_f32 v{t1}, v{t1}, s64, v{T+8}")
        P(f"v_mul_f32 v{t0}, v{t0}, v{a}")
        P(f"v_mul_f32 v{t1}, v{t1}, v{b}")
        P(f"v_exp_f32 v{t0}, v{t0}")
        P(f"v_exp_f32 v{t1}, v{t1}")
        P(f"v_add_f32 v{t0}, 1.0, v{t0}")
        P(f"v_add_f32 v{t1}, 1.0, v{t1}")
        P(f"v_rcp_f32 v{t0}, v{t0}")
        P(f"v_rcp_f32 v{t1}, v{t1}")
        P(f"v_mul_f32 v{a}, v{a}, v{t0}")
        P(f"v_mul_f32 v{b}, v{b}, v{t1}")
        P(f"v_cvt_pk_bf16_f32 v{OUT+q}, v{a}, v{b}")

def wpre(P, T):
    P("s_cmp_lt_u32 s3, 4")
    P(f"s_cbranch_scc1 k1_nopre{T}")
    P(f"v_lshlrev_b32 v30, 6, v0")
    P("s_lshl_b32 s56, s2, 15")
    P("s_and_b32 s57, s3, 3")
    P("s_lshl_b32 s57, s57, 13")
    P("s_add_u32 s56, s56, s57")
    P(f"buffer_load_dword v31, v30, s[36:39], s56 offen")
    P("s_add_u32 s56, s56, 4096")
    P(f"buffer_load_dword v31, v30, s[36:39], s56 offen")
    P.label(f"k1_nopre{T}")

def gen_k1(P, aux=None, pr=False):
    P.label("k1_kernel")
    P("s_cmp_ge_u32 s2, 256")
    P("s_cbranch_scc1 k1_end")
    P("s_load_dwordx2 s[4:5], s[0:1], 0")
    P("s_load_dwordx2 s[6:7], s[0:1], 80")
    P("s_load_dwordx2 s[8:9], s[0:1], 128")
    P("s_load_dwordx2 s[10:11], s[0:1], 120")
    P("s_load_dwordx2 s[40:41], s[0:1], 88")
    P("v_lshrrev_b32 v1, 6, v0")
    P("v_and_b32 v0, 63, v0")
    P("v_readfirstlane_b32 s3, v1")
    P("s_mov_b32 s62, 0x3f803f80")
    P(f"s_mov_b32 s63, {fbits(GK0)}")
    P(f"s_mov_b32 s64, {fbits(GK1)}")
    P("s_and_b32 s12, s2, 7")
    P("s_lshr_b32 s13, s2, 3")
    P("s_lshl_b32 s14, s12, 2")
    P("s_and_b32 s15, s13, 3")
    P("s_add_u32 s14, s14, s15")
    P("s_lshr_b32 s15, s13, 2")
    P("s_waitcnt lgkmcnt(0)")
    srd(P, 16, 4, 2048 * 512 * 2)
    srd(P, 20, 6, 512 * 1792 * 2)
    srd(P, 24, 8, 0x400000, WS_Z2F)
    srd(P, 28, 8, 0x400000, WS_Z1F)
    srd(P, 32, 8, 32 * 7 * 64 * 8, WS_ST)
    srd(P, 36, 40, 2048 * 2048 * 2)
    prof(P, 0, pr)
    X = 32
    T = 2
    VB = 16
    P(f"v_lshrrev_b32 v{T}, 3, v0")
    P(f"v_and_b32 v{T+1}, 7, v0")
    P(f"v_lshlrev_b32 v{T+2}, 4, v{T+1}")
    P(f"v_lshl_add_u32 v{T+2}, v{T}, 10, v{T+2}")
    P("s_lshl_b32 s52, s14, 16")
    P("s_lshl_b32 s53, s3, 13")
    P("s_add_u32 s52, s52, s53")
    issued = []
    for e in range(8):
        P(f"buffer_load_dwordx4 v[{X+4*e}:{X+4*e+3}], v{T+2}, s[16:19], s52 offen offset:{128*e}")
        issued.append(('X', 0))
    VXW = 17
    P("s_and_b32 s53, s3, 1")
    P("s_lshl_b32 s53, s53, 3")
    P(f"v_add_u32 v{T+3}, s53, v{T}")
    P(f"v_xor_b32 v{T+3}, v{T+3}, v{T+1}")
    P(f"v_lshlrev_b32 v{T+3}, 4, v{T+3}")
    P(f"v_lshl_add_u32 v{T+3}, v{T}, 10, v{T+3}")
    P("s_lshl_b32 s53, s3, 13")
    P(f"s_add_u32 s53, s53, {XB}")
    P(f"v_add_u32 v{VXW}, s53, v{T+3}")
    P(f"v_xor_b32 v{VXW+1}, 128, v{VXW}")
    if aux is not None:
        P("s_cmp_eq_u32 s15, 7")
        P("s_cbranch_scc1 k1_aux")
    P(f"v_lshrrev_b32 v{T}, 4, v0")
    P(f"v_and_b32 v{T+1}, 15, v0")
    P(f"v_lshlrev_b32 v{T+2}, 2, v{T}")
    P(f"v_xor_b32 v{T+1}, v{T+1}, v{T+2}")
    P(f"v_lshlrev_b32 v{T+1}, 4, v{T+1}")
    P("s_lshl_b32 s53, s3, 2")
    P(f"v_add_u32 v{T}, s53, v{T}")
    P("s_movk_i32 s53, 3584")
    P(f"v_mad_u32_u24 v{VB}, v{T}, s53, v{T+1}")
    P("s_lshl_b32 s54, s15, 8")
    P("s_add_u32 s55, s54, 1792")
    P("s_lshl_b32 s56, s3, 10")
    def bdma(u):
        half, ku = u // 16, u % 16
        P(f"s_add_u32 m0, s56, {(u % 20) * 8192}")
        P(f"s_add_u32 s57, s{55 if half == 0 else 54}, {ku * 32 * 3584}")
        P(f"buffer_load_dwordx4 v{VB}, s[20:23], s57 offen lds")
        issued.append(('B', u))
    def wait_for(tags):
        last = max(k for k, t in enumerate(issued) if t in tags)
        n = len(issued) - 1 - last
        P(f"s_waitcnt vmcnt({min(n,63)})")
    for u in range(12): bdma(u)
    VT = 19
    P("s_and_b32 s58, s3, 3")
    P("s_lshr_b32 s59, s3, 2")
    P(f"v_lshrrev_b32 v{T}, 4, v0")
    P(f"v_bfe_u32 v{T+1}, v0, 2, 2")
    P(f"v_and_b32 v{T+2}, 3, v0")
    P(f"v_and_b32 v{T+3}, 1, v{T}")
    P(f"v_lshl_add_u32 v{T+2}, v{T+3}, 2, v{T+2}")
    P(f"v_lshrrev_b32 v{T+3}, 1, v{T+2}")
    P(f"v_and_b32 v{T+4}, 1, v{T+2}")
    P(f"v_lshrrev_b32 v{T}, 1, v{T}")
    P(f"v_lshl_add_u32 v{T}, v{T}, 3, v{T+1}")
    P(f"v_lshlrev_b32 v{T}, 8, v{T}")
    P(f"v_lshlrev_b32 v{T+1}, 6, v{T+1}")
    P("s_lshl_b32 s53, s58, 6")
    P(f"v_lshlrev_b32 v{T+5}, 5, v{T+4}")
    P(f"v_lshl_add_u32 v{T+5}, v{T+3}, 3, v{T+5}")
    P(f"v_add_u32 v{T+5}, s53, v{T+5}")
    P(f"v_xor_b32 v{T+5}, v{T+5}, v{T+1}")
    P(f"v_add_u32 v{VT}, v{T+5}, v{T}")
    P(f"v_and_b32 v{T+5}, 1, v{T+3}")
    P(f"v_lshlrev_b32 v{T+5}, 5, v{T+5}")
    P(f"v_lshl_add_u32 v{T+5}, v{T+4}, 4, v{T+5}")
    P(f"v_lshrrev_b32 v{T+6}, 1, v{T+3}")
    P(f"v_lshl_add_u32 v{T+5}, v{T+6}, 3, v{T+5}")
    P(f"v_add_u32 v{T+5}, s53, v{T+5}")
    P(f"v_xor_b32 v{T+5}, v{T+5}, v{T+1}")
    P(f"v_add_u32 v{VT+1}, v{T+5}, v{T}")
    for m in range(2):
        P(f"v_add_u32 v{VT+2+m}, 0x10000, v{VT+m}")
        P(f"v_add_u32 v{VT+4+m}, 0x20000, v{VT+m}")
    wait_for({('X', 0)})
    ln1(P, X, T, 16, 52)
    for e in range(8):
        P(f"ds_write_b128 v{VXW+(e&1)}, v[{X+4*e}:{X+4*e+3}] offset:{256*(e>>1)}")
    P(f"v_and_b32 v{T}, 31, v0")
    P(f"v_lshrrev_b32 v{T+1}, 5, v0")
    P(f"v_and_b32 v{T+2}, 15, v0")
    P(f"v_xor_b32 v{T+1}, v{T+1}, v{T+2}")
    P(f"v_lshlrev_b32 v{T+1}, 4, v{T+1}")
    P(f"v_lshl_add_u32 v{T+1}, v{T}, 10, v{T+1}")
    P("s_lshl_b32 s53, s59, 15")
    P(f"s_add_u32 s53, s53, {XB}")
    P(f"v_add_u32 v{T+1}, s53, v{T+1}")
    P("s_waitcnt lgkmcnt(0)")
    P("s_barrier")
    for q in range(8):
        P(f"v_xor_b32 v{T+2+(q&1)}, {32*q}, v{T+1}")
        for hi in range(4):
            k16 = hi * 8 + q
            P(f"ds_read_b128 a[{4*k16}:{4*k16+3}], v{T+2+(q&1)} offset:{256*hi}")
    ACC2 = 64
    ACC1 = 80
    WFR = 96
    for r in range(32): P(f"v_mov_b32 v{ACC2+r}, 0")
    P("s_waitcnt lgkmcnt(0)")
    def group(gm):
        half = gm // 4
        wait_for({('B', 4 * gm + i) for i in range(4)})
        P("s_barrier")
        if gm == 0:
            for u in range(12, 20): bdma(u)
        if 1 <= gm <= 3:
            for u in range(20 + 4 * (gm - 1), 24 + 4 * (gm - 1)): bdma(u)
            if gm == 3: wpre(P, 0)
        acc = ACC2 if half == 0 else ACC1
        def rd(i):
            u = 4 * gm + i
            addr = (u % 20) * 8192
            vb = VT + half + 2 * (addr >> 16); off = addr & 0xffff
            for kap in range(2):
                for rr in range(2):
                    d = WFR + 8 * i + 4 * kap + 2 * rr
                    P(f"ds_read_b64_tr_b16 v[{d}:{d+1}], v{vb} offset:{off + 4096*kap + 1024*rr}")
        for i in range(4): rd(i)
        for i in range(4):
            u = 4 * gm + i
            for kap in range(2):
                P(f"s_waitcnt lgkmcnt({14 - 4*i - 2*kap})")
                k16 = 2 * (u % 16) + kap
                d = WFR + 8 * i + 4 * kap
                P(f"v_mfma_f32_32x32x16_bf16 v[{acc}:{acc+15}], v[{d}:{d+3}], a[{4*k16}:{4*k16+3}], v[{acc}:{acc+15}]")
    prof(P, 1, pr)
    for gm in range(4): group(gm)
    prof(P, 2, pr)
    Z2 = X
    P(f"v_mov_b32 v{T+8}, s63")
    gelu_pack(P, ACC2, Z2, T)
    S, Q = T, T + 1
    P(f"v_mov_b32 v{S}, 0")
    P(f"v_mov_b32 v{Q}, 0")
    for q in range(8):
        P(f"v_dot2c_f32_bf16 v{S}, s62, v{Z2+q}")
        P(f"v_dot2c_f32_bf16 v{Q}, v{Z2+q}, v{Z2+q}")
    P(f"v_mov_b32 v{T+2}, v{S}")
    P(f"v_mov_b32 v{T+3}, v{Q}")
    P(f"v_permlane32_swap_b32 v{S}, v{T+2}")
    P(f"v_permlane32_swap_b32 v{Q}, v{T+3}")
    P(f"v_add_f32 v{S}, v{S}, v{T+2}")
    P(f"v_add_f32 v{Q}, v{Q}, v{T+3}")
    P(f"v_and_b32 v{T+2}, 31, v0")
    P(f"v_lshlrev_b32 v{T+2}, 3, v{T+2}")
    P("s_lshl_b32 s53, s58, 9")
    P("s_lshl_b32 s60, s59, 8")
    P("s_add_u32 s53, s53, s60")
    P(f"s_add_u32 s53, s53, {XB}")
    P(f"v_add_u32 v{T+2}, s53, v{T+2}")
    P("s_barrier")
    P(f"ds_write_b64 v{T+2}, v[{S}:{Q}]")
    P("s_waitcnt lgkmcnt(0)")
    P("s_barrier")
    P("s_cmp_lg_u32 s3, 0")
    P("s_cbranch_scc1 k1_nopub")
    P(f"v_lshlrev_b32 v{T+2}, 3, v0")
    P(f"v_add_u32 v{T+3}, {XB}, v{T+2}")
    for c in range(4):
        P(f"ds_read_b64 v[{T+4+2*c}:{T+5+2*c}], v{T+3} offset:{512*c}")
    P("s_mul_i32 s53, s14, 7")
    P("s_add_u32 s53, s53, s15")
    P("s_lshl_b32 s53, s53, 9")
    P("s_waitcnt lgkmcnt(0)")
    P(f"v_add_f32 v{T+4}, v{T+4}, v{T+6}")
    P(f"v_add_f32 v{T+5}, v{T+5}, v{T+7}")
    P(f"v_add_f32 v{T+8}, v{T+8}, v{T+10}")
    P(f"v_add_f32 v{T+9}, v{T+9}, v{T+11}")
    P(f"v_add_f32 v{T+4}, v{T+4}, v{T+8}")
    P(f"v_add_f32 v{T+5}, v{T+5}, v{T+9}")
    P(f"buffer_store_dwordx2 v[{T+4}:{T+5}], v{T+2}, s[32:35], s53 offen sc0 sc1")
    P("s_waitcnt vmcnt(0)")
    P("s_lshl_b32 s53, s14, 2")
    P(f"v_mov_b32 v{T+2}, s53")
    P(f"v_mov_b32 v{T+3}, 1")
    P("s_mov_b64 exec, 1")
    P(f"global_atomic_add v{T+2}, v{T+3}, s[10:11] sc1")
    P("s_mov_b64 exec, -1")
    P.label("k1_nopub")
    prof(P, 3, pr)
    for gm in range(4, 8): group(gm)
    prof(P, 4, pr)
    Z1 = X + 8
    P(f"v_mov_b32 v{T+8}, s63")
    gelu_pack(P, ACC1, Z1, T)
    P(f"v_and_b32 v{T}, 15, v0")
    P(f"v_bfe_u32 v{T+1}, v0, 4, 1")
    P(f"v_lshrrev_b32 v{T+2}, 5, v0")
    P(f"v_lshlrev_b32 v{T}, 4, v{T}")
    P(f"v_lshl_add_u32 v{T}, v{T+1}, 10, v{T}")
    P(f"v_lshl_add_u32 v{T}, v{T+2}, 9, v{T}")
    P("s_mul_i32 s53, s14, 28")
    P("s_lshl_b32 s60, s15, 2")
    P("s_add_u32 s53, s53, s60")
    P("s_add_u32 s53, s53, s58")
    P("s_lshl_b32 s53, s53, 12")
    P("s_lshl_b32 s60, s59, 11")
    P("s_add_u32 s53, s53, s60")
    P(f"buffer_store_dwordx4 v[{Z1}:{Z1+3}], v{T}, s[28:31], s53 offen sc1")
    P(f"buffer_store_dwordx4 v[{Z1+4}:{Z1+7}], v{T}, s[28:31], s53 offen offset:256 sc1")
    prof(P, 5, pr)
    P("s_cmp_lg_u32 s3, 0")
    P("s_cbranch_scc1 k1_nopoll")
    P("s_lshl_b32 s53, s14, 2")
    P(f"v_mov_b32 v{T+2}, s53")
    P("s_mov_b32 s60, 0")
    P.label("k1_poll")
    P(f"global_load_dword v{T+3}, v{T+2}, s[10:11] sc1")
    P("s_add_u32 s60, s60, 1")
    P("s_waitcnt vmcnt(0)")
    P(f"v_readfirstlane_b32 s61, v{T+3}")
    P("s_cmp_ge_u32 s61, 7")
    P("s_cbranch_scc1 k1_nopoll")
    P("s_cmp_lt_u32 s60, 0x200000")
    P("s_cbranch_scc1 k1_poll")
    P.label("k1_nopoll")
    P("s_barrier")
    P(f"v_and_b32 v{T}, 31, v0")
    P(f"v_lshlrev_b32 v{T}, 3, v{T}")
    P("s_mul_i32 s53, s14, 3584")
    P("s_lshl_b32 s60, s59, 8")
    P("s_add_u32 s53, s53, s60")
    PS = ACC2
    for c in range(7):
        P(f"buffer_load_dwordx2 v[{PS+2*c}:{PS+2*c+1}], v{T}, s[32:35], s53 offen offset:{512*c} sc0 sc1")
    P("s_waitcnt vmcnt(0)")
    for c in range(1, 7):
        P(f"v_add_f32 v{PS}, v{PS}, v{PS+2*c}")
        P(f"v_add_f32 v{PS+1}, v{PS+1}, v{PS+2*c+1}")
    S, Q = PS, PS + 1
    P(f"v_mul_f32 v{S}, {fbits(1/896)}, v{S}")
    P(f"v_mul_f32 v{Q}, {fbits(1/896)}, v{Q}")
    P(f"v_fma_f32 v{Q}, -v{S}, v{S}, v{Q}")
    P(f"v_max_f32 v{Q}, 0, v{Q}")
    bf16_round_v(P, S, S, T + 2)
    bf16_round_v(P, Q, Q, T + 2)
    P(f"v_add_f32 v{Q}, 0x3727c5ac, v{Q}")
    bf16_round_v(P, Q, Q, T + 2)
    P(f"v_sqrt_f32 v{Q}, v{Q}")
    bf16_round_v(P, Q, Q, T + 2)
    P(f"v_rcp_f32 v{Q}, v{Q}")
    for r in range(8):
        a, b = T + 4 + (r & 1) * 2, T + 5 + (r & 1) * 2
        P(f"v_lshlrev_b32 v{a}, 16, v{Z2+r}")
        P(f"v_and_b32 v{b}, 0xffff0000, v{Z2+r}")
        P(f"v_sub_f32 v{a}, v{a}, v{S}")
        P(f"v_sub_f32 v{b}, v{b}, v{S}")
        P(f"v_cvt_pk_bf16_f32 v{Z2+r}, v{a}, v{b}")
        P(f"v_lshlrev_b32 v{a}, 16, v{Z2+r}")
        P(f"v_and_b32 v{b}, 0xffff0000, v{Z2+r}")
        P(f"v_mul_f32 v{a}, v{a}, v{Q}")
        P(f"v_mul_f32 v{b}, v{b}, v{Q}")
        P(f"v_cvt_pk_bf16_f32 v{Z2+r}, v{a}, v{b}")
    P(f"v_and_b32 v{T}, 31, v0")
    P(f"v_lshrrev_b32 v{T+1}, 5, v0")
    P(f"v_lshlrev_b32 v{T}, 6, v{T}")
    P(f"v_lshl_add_u32 v{T}, v{T+1}, 5, v{T}")
    P("s_lshl_b32 s53, s3, 11")
    P(f"s_add_u32 s53, s53, {XB + 8192}")
    P(f"v_add_u32 v{T}, s53, v{T}")
    P(f"ds_write_b128 v{T}, v[{Z2}:{Z2+3}]")
    P(f"ds_write_b128 v{T}, v[{Z2+4}:{Z2+7}] offset:16")
    P(f"v_lshrrev_b32 v{T+1}, 4, v0")
    P(f"v_bfe_u32 v{T+2}, v0, 2, 2")
    P(f"v_and_b32 v{T+3}, 3, v0")
    P(f"v_lshl_add_u32 v{T+1}, v{T+1}, 3, v{T+2}")
    P(f"v_lshlrev_b32 v{T+1}, 6, v{T+1}")
    P(f"v_lshl_add_u32 v{T+1}, v{T+3}, 3, v{T+1}")
    P(f"v_add_u32 v{T+1}, s53, v{T+1}")
    P("s_waitcnt lgkmcnt(0)")
    O = ACC1
    for tl in range(2):
        for rr in range(2):
            P(f"ds_read_b64_tr_b16 v[{O+4*tl+2*rr}:{O+4*tl+2*rr+1}], v{T+1} offset:{32*tl + 256*rr}")
    P(f"v_lshlrev_b32 v{T}, 4, v0")
    P("s_lshl_b32 s60, s14, 1")
    P("s_add_u32 s60, s60, s59")
    for tl in range(2):
        P("s_lshl_b32 s53, s15, 3")
        P("s_lshl_b32 s61, s58, 1")
        P("s_add_u32 s53, s53, s61")
        if tl: P("s_add_u32 s53, s53, 1")
        P("s_mul_i32 s61, s53, 37")
        P("s_lshr_b32 s61, s61, 8")
        P("s_mul_i32 s65, s61, 7")
        P("s_sub_u32 s53, s53, s65")
        P("s_add_u32 s65, s53, 6")
        P("s_sub_u32 s66, s53, 1")
        P("s_cmp_eq_u32 s53, 0")
        P("s_cselect_b32 s65, s65, s66")
        P("s_bitcmp1_b32 s61, 0")
        P("s_cselect_b32 s53, s65, s53")
        P("s_lshl_b32 s61, s61, 6")
        P("s_add_u32 s61, s61, s60")
        P("s_mul_i32 s61, s61, 7")
        P("s_add_u32 s61, s61, s53")
        P(f"s_lshl_b32 s{67+tl}, s61, 10")
    P("s_waitcnt lgkmcnt(0)")
    for tl in range(2):
        P(f"buffer_store_dwordx4 v[{O+4*tl}:{O+4*tl+3}], v{T}, s[24:27], s{67+tl} offen sc1")
    prof(P, 6, pr)
    if pr: P("s_waitcnt vmcnt(0)")
    prof(P, 7, pr)
    P("s_endpgm")
    if aux is not None:
        P.label("k1_aux")
        aux(P, X, T, VXW, pr)
    P.label("k1_end")
    P("s_endpgm")
    return dict(vgpr=128, agpr=128, lds=160 * 1024)
```

```python
from dsl import Prog
from k2 import *
from k1 import ln1, bf16_round_v, fbits, GK0, GK1, wpre, XB
import math

XS = 16 * 8192
SC = 12 * 8192
R1 = 0
class Buf:
    def __init__(self): self.l = []
    def __call__(self, t): self.l.append(t)

def gelu_stream(A, OUT, T, M, Rr, CS):
    B = Buf()
    for q in range(8):
        a, b = A + 2 * q, A + 2 * q + 1
        t0, t1 = T + (q & 1) * 2, T + 1 + (q & 1) * 2
        B(f"v_fmac_f32 v{a}, v{M}, v{CS+2*q}")
        B(f"v_fmac_f32 v{b}, v{M}, v{CS+2*q+1}")
        B(f"v_mul_f32 v{a}, v{a}, v{Rr}")
        B(f"v_mul_f32 v{b}, v{b}, v{Rr}")
        B(f"v_mul_f32 v{t0}, v{a}, v{a}")
        B(f"v_mul_f32 v{t1}, v{b}, v{b}")
        B(f"v_fma_f32 v{t0}, v{t0}, s64, v{T+4}")
        B(f"v_fma_f32 v{t1}, v{t1}, s64, v{T+4}")
        B(f"v_mul_f32 v{t0}, v{t0}, v{a}")
        B(f"v_mul_f32 v{t1}, v{t1}, v{b}")
        B(f"v_exp_f32 v{t0}, v{t0}")
        B(f"v_exp_f32 v{t1}, v{t1}")
        B(f"v_add_f32 v{t0}, 1.0, v{t0}")
        B(f"v_add_f32 v{t1}, 1.0, v{t1}")
        B(f"v_rcp_f32 v{t0}, v{t0}")
        B(f"v_rcp_f32 v{t1}, v{t1}")
        B(f"v_mul_f32 v{a}, v{a}, v{t0}")
        B(f"v_mul_f32 v{b}, v{b}, v{t1}")
        B(f"v_cvt_pk_bf16_f32 v{OUT+q}, v{a}, v{b}")
    return B.l

def gen_k1(P, aux=None, pr=False):
    P.label("k1_kernel")
    P("s_cmp_ge_u32 s2, 256")
    P("s_cbranch_scc1 k1_end")
    P("s_load_dwordx2 s[4:5], s[0:1], 0")
    P("s_load_dwordx2 s[6:7], s[0:1], 80")
    P("s_load_dwordx2 s[8:9], s[0:1], 128")
    P("s_load_dwordx2 s[10:11], s[0:1], 120")
    P("s_load_dwordx2 s[40:41], s[0:1], 88")
    P("v_lshrrev_b32 v1, 6, v0")
    P("v_and_b32 v0, 63, v0")
    P("v_readfirstlane_b32 s3, v1")
    P("s_mov_b32 s62, 0x3f803f80")
    P(f"s_mov_b32 s63, {fbits(GK0)}")
    P(f"s_mov_b32 s64, {fbits(GK1)}")
    P("s_and_b32 s12, s2, 7")
    P("s_lshr_b32 s13, s2, 3")
    P("s_lshl_b32 s14, s12, 2")
    P("s_and_b32 s15, s13, 3")
    P("s_add_u32 s14, s14, s15")
    P("s_lshr_b32 s15, s13, 2")
    X = 32; T = 2; VB = 16
    P(f"v_lshrrev_b32 v{T}, 3, v0")
    P(f"v_and_b32 v{T+1}, 7, v0")
    P(f"v_lshlrev_b32 v{T+2}, 4, v{T+1}")
    P(f"v_lshl_add_u32 v{T+2}, v{T}, 10, v{T+2}")
    P("s_lshl_b32 s52, s14, 16")
    P("s_lshl_b32 s53, s3, 13")
    P("s_add_u32 s52, s52, s53")
    P("s_waitcnt lgkmcnt(0)")
    srd(P, 16, 4, 2048 * 512 * 2)
    issued = []
    for e in range(8):
        P(f"buffer_load_dwordx4 v[{X+4*e}:{X+4*e+3}], v{T+2}, s[16:19], s52 offen offset:{128*e}")
        issued.append(('X', e))
    srd(P, 20, 6, 512 * 1792 * 2)
    srd(P, 24, 8, 0x400000, WS_Z2F)
    srd(P, 28, 8, 0x400000, WS_Z1F)
    srd(P, 32, 8, 32 * 7 * 64 * 8, WS_ST)
    srd(P, 36, 40, 2048 * 2048 * 2)
    prof(P, 0, pr)
    VXW = 17
    P("s_and_b32 s53, s3, 1")
    P("s_lshl_b32 s53, s53, 3")
    P(f"v_add_u32 v{T+3}, s53, v{T}")
    P(f"v_xor_b32 v{T+3}, v{T+3}, v{T+1}")
    P(f"v_lshlrev_b32 v{T+3}, 4, v{T+3}")
    if aux is not None:
        P("s_cmp_lg_u32 s15, 7")
        P("s_cbranch_scc1 k1_gemm")
        P(f"v_lshl_add_u32 v{T+3}, v{T}, 10, v{T+3}")
        P("s_lshl_b32 s53, s3, 13")
        P(f"s_add_u32 s53, s53, {XB}")
        P(f"v_add_u32 v{VXW}, s53, v{T+3}")
        P(f"v_xor_b32 v{VXW+1}, 128, v{VXW}")
        P("s_branch k1_aux")
        P.label("k1_gemm")
    P(f"v_lshl_add_u32 v{T+3}, v{T}, 9, v{T+3}")
    P("s_lshl_b32 s53, s3, 12")
    P(f"s_add_u32 s53, s53, {XS}")
    P(f"v_add_u32 v{VXW}, s53, v{T+3}")
    P(f"v_xor_b32 v{VXW+1}, 128, v{VXW}")
    P(f"v_lshrrev_b32 v{T}, 4, v0")
    P(f"v_and_b32 v{T+1}, 15, v0")
    P(f"v_lshlrev_b32 v{T+2}, 2, v{T}")
    P(f"v_xor_b32 v{T+1}, v{T+1}, v{T+2}")
    P(f"v_lshlrev_b32 v{T+1}, 4, v{T+1}")
    P("s_lshl_b32 s53, s3, 2")
    P(f"v_add_u32 v{T}, s53, v{T}")
    P("s_movk_i32 s53, 3584")
    P(f"v_mad_u32_u24 v{VB}, v{T}, s53, v{T+1}")
    P("s_lshl_b32 s54, s15, 8")
    P("s_add_u32 s55, s54, 1792")
    P("s_lshl_b32 s56, s3, 10")
    def bdma(u):
        half, ku = u // 16, u % 16
        P(f"s_add_u32 m0, s56, {(u % 20) * 8192}")
        P(f"s_add_u32 s57, s{55 if half == 0 else 54}, {ku * 32 * 3584}")
        P(f"buffer_load_dwordx4 v{VB}, s[20:23], s57 offen lds")
        issued.append(('B', u))
    def wait_for(tags):
        last = max(k for k, t in enumerate(issued) if t in tags)
        n = len(issued) - 1 - last
        P(f"s_waitcnt vmcnt({min(n,63)})")
    for u in range(16): bdma(u)
    P("s_and_b32 s58, s3, 3")
    P("s_lshr_b32 s59, s3, 2")
    VT = 19
    P(f"v_lshrrev_b32 v{T}, 4, v0")
    P(f"v_bfe_u32 v{T+1}, v0, 2, 2")
    P(f"v_and_b32 v{T+2}, 3, v0")
    P(f"v_and_b32 v{T+3}, 1, v{T}")
    P(f"v_lshl_add_u32 v{T+2}, v{T+3}, 2, v{T+2}")
    P(f"v_lshrrev_b32 v{T+3}, 1, v{T+2}")
    P(f"v_and_b32 v{T+4}, 1, v{T+2}")
    P(f"v_lshrrev_b32 v{T}, 1, v{T}")
    P(f"v_lshl_add_u32 v{T}, v{T}, 3, v{T+1}")
    P(f"v_lshlrev_b32 v{T}, 8, v{T}")
    P("s_lshl_b32 s53, s59, 12")
    P(f"v_add_u32 v{T}, s53, v{T}")
    P(f"v_lshlrev_b32 v{T+1}, 6, v{T+1}")
    P("s_lshl_b32 s53, s58, 6")
    P(f"v_lshlrev_b32 v{T+5}, 5, v{T+4}")
    P(f"v_lshl_add_u32 v{T+5}, v{T+3}, 3, v{T+5}")
    P(f"v_add_u32 v{T+5}, s53, v{T+5}")
    P(f"v_xor_b32 v{T+5}, v{T+5}, v{T+1}")
    P(f"v_add_u32 v{VT}, v{T+5}, v{T}")
    P(f"v_and_b32 v{T+5}, 1, v{T+3}")
    P(f"v_lshlrev_b32 v{T+5}, 5, v{T+5}")
    P(f"v_lshl_add_u32 v{T+5}, v{T+4}, 4, v{T+5}")
    P(f"v_lshrrev_b32 v{T+6}, 1, v{T+3}")
    P(f"v_lshl_add_u32 v{T+5}, v{T+6}, 3, v{T+5}")
    P(f"v_add_u32 v{T+5}, s53, v{T+5}")
    P(f"v_xor_b32 v{T+5}, v{T+5}, v{T+1}")
    P(f"v_add_u32 v1, v{T+5}, v{T}")
    def expand_vt():
        out = [f"v_xor_b32 v{VT+1}, 0x1000, v{VT}"]
        for sg_ in (1, 2):
            out.append(f"v_add_u32 v{VT+2*sg_}, {0x10000*sg_}, v{VT}")
            out.append(f"v_add_u32 v{VT+2*sg_+1}, {0x10000*sg_}, v{VT+1}")
        return out
    for s_ in expand_vt(): P(s_)
    VXR = 31
    P(f"v_and_b32 v{T}, 31, v0")
    P(f"v_lshrrev_b32 v{T+1}, 5, v0")
    P(f"v_and_b32 v{T+2}, 15, v0")
    P(f"v_xor_b32 v{T+1}, v{T+1}, v{T+2}")
    P(f"v_lshlrev_b32 v{T+1}, 4, v{T+1}")
    P("s_lshl_b32 s53, s59, 5")
    P(f"v_xor_b32 v{T+1}, s53, v{T+1}")
    P(f"v_lshl_add_u32 v{T+1}, v{T}, 9, v{T+1}")
    P("s_lshl_b32 s53, s59, 14")
    P(f"s_add_u32 s53, s53, {XS}")
    P(f"v_add_u32 v{VXR}, s53, v{T+1}")
    ACC2, ACC1 = 64, 80
    WFR = 96
    SEL = 12
    CSA = 8
    P(f"v_lshrrev_b32 v{T}, 4, v0")
    P(f"v_xor_b32 v{T}, v{T}, v0")
    P(f"v_and_b32 v{T}, 1, v{T}")
    P(f"v_subrev_u32 v{T}, 1, v{T}")
    P(f"v_and_b32 v{SEL}, s62, v{T}")
    for r in range(1, 4): P(f"v_mov_b32 v{SEL+r}, v{SEL}")
    for rho in range(2):
        wait_for({('X', 4 * rho + 3)})
        if rho: P("s_barrier")
        for e in range(4):
            P(f"ds_write_b128 v{VXW+(e&1)}, v[{X+16*rho+4*e}:{X+16*rho+4*e+3}] offset:{256*(e>>1)}")
        P("s_waitcnt lgkmcnt(0)")
        P("s_barrier")
        for q in range(8):
            P(f"v_xor_b32 v{T+(q&1)}, {32*q}, v{VXR}")
            for hi in range(2):
                k16 = 16 * rho + hi * 8 + q
                P(f"ds_read_b128 a[{4*k16}:{4*k16+3}], v{T+(q&1)} offset:{256*hi}")
        P("s_waitcnt lgkmcnt(0)")
    prof(P, 1, pr)
    def freg(st, i, sl, k0, n):
        r = WFR + 16 * st + 8 * i + 4 * sl + k0
        return f"v[{r}:{r+n-1}]"
    def rds(sp):
        out = []
        if sp == 8: out += [f"v_mov_b32 v{VT}, v1"] + expand_vt()
        for i in range(2):
            u = 2 * sp + i
            addr = (u % 20) * 8192
            for sl in range(2):
                vb = VT + 2 * (addr >> 16) + sl
                for rr in range(2):
                    out.append(f"ds_read_b64_tr_b16 {freg(sp & 1, i, sl, 2*rr, 2)}, v{vb} offset:{(addr & 0xffff) + 1024*rr}")
        return out
    S, Q = T, T + 1
    ST = Buf()
    for r in range(4): ST(f"v_mov_b32 v{T+r}, 0")
    for r in range(32):
        a = (r & 1) * 2
        ST(f"v_dot2c_f32_bf16 v{S+a}, s62, v{X+r}")
        ST(f"v_dot2c_f32_bf16 v{Q+a}, v{X+r}, v{X+r}")
    ST(f"v_add_f32 v{S}, v{S}, v{T+2}")
    ST(f"v_add_f32 v{Q}, v{Q}, v{T+3}")
    for m in ("quad_perm:[1,0,3,2]", "quad_perm:[2,3,0,1]", "row_half_mirror"):
        ST(f"v_add_f32_dpp v{S}, v{S}, v{S} {m} row_mask:0xf bank_mask:0xf")
        ST(f"v_add_f32_dpp v{Q}, v{Q}, v{Q} {m} row_mask:0xf bank_mask:0xf")
    ST(f"v_mul_f32 v{S}, 0x3b000000, v{S}")
    ST(f"v_mul_f32 v{Q}, 0x3b000000, v{Q}")
    ST(f"v_fma_f32 v{Q}, -v{S}, v{S}, v{Q}")
    ST(f"v_max_f32 v{Q}, 0, v{Q}")
    bf16_round_v(ST, S, S, T + 2)
    bf16_round_v(ST, Q, Q, T + 2)
    ST(f"v_add_f32 v{Q}, 0x3727c5ac, v{Q}")
    bf16_round_v(ST, Q, Q, T + 2)
    ST(f"v_sqrt_f32 v{Q}, v{Q}")
    bf16_round_v(ST, Q, Q, T + 2)
    ST(f"v_rcp_f32 v{Q}, v{Q}")
    ST(f"v_sub_f32 v{S}, 0, v{S}")
    ST(f"v_lshrrev_b32 v{T+2}, 3, v0")
    ST(f"v_lshlrev_b32 v{T+2}, 3, v{T+2}")
    ST("s_lshl_b32 s53, s3, 6")
    ST(f"s_add_u32 s53, s53, {SC}")
    ST(f"v_add_u32 v{T+2}, s53, v{T+2}")
    stat_stream = ST.l
    def step(sp, vside=()):
        if sp % 2 == 1 and sp < 15:
            gn = (sp + 1) // 2
            wait_for({('B', 4 * gn + i) for i in range(4)})
            P("s_waitcnt lgkmcnt(0)")
            P("s_barrier")
            gf = gn - 1
            if gf <= 2:
                for u in range(20 + 4 * gf, 24 + 4 * gf): bdma(u)
                if gf == 2: wpre(P, 0)
        else:
            P("s_waitcnt lgkmcnt(0)")
        if sp in hooks: hooks[sp]()
        half = sp // 8
        acc = ACC2 if half == 0 else ACC1
        rd = rds(sp + 1) if sp < 15 else []
        nrd = (len(rd) + 3) // 4
        vside = list(vside)
        per = (len(vside) + 3) // 4
        for i in range(2):
            u = 2 * sp + i
            for sl in range(2):
                k16 = 2 * (u % 16) + sl
                first = (u % 16 == 0 and sl == 0)
                P(f"v_mfma_f32_32x32x16_bf16 v[{acc}:{acc+15}], {freg(sp & 1, i, sl, 0, 4)}, a[{4*k16}:{4*k16+3}], {'0' if first else f'v[{acc}:{acc+15}]'}")
                for _ in range(nrd):
                    if rd: P(rd.pop(0))
                if sl == 0:
                    P(f"v_mfma_f32_16x16x32_bf16 v[{CSA}:{CSA+3}], {freg(sp & 1, i, 0, 0, 4)}, v[{SEL}:{SEL+3}], {'0' if first else f'v[{CSA}:{CSA+3}]'}")
                for _ in range(per):
                    if vside: P(vside.pop(0))
        assert not rd and not vside
    hooks = {}
    def split(lst, n):
        k = (len(lst) + n - 1) // n
        return [lst[i*k:(i+1)*k] for i in range(n)]
    def cs_write(half):
        P(f"v_and_b32 v{T+5}, 15, v0")
        P(f"v_lshlrev_b32 v{T+5}, 6, v{T+5}")
        P(f"v_and_b32 v{T+4}, 48, v0")
        P(f"v_add_u32 v{T+5}, v{T+5}, v{T+4}")
        P("s_lshl_b32 s53, s3, 7")
        P(f"s_add_u32 s53, s53, {SC + 1024 + 2048*half}")
        P(f"v_add_u32 v{T+5}, s53, v{T+5}")
        P("s_mov_b32 exec_lo, 0x00030003")
        P("s_mov_b32 exec_hi, 0x00030003")
        P(f"ds_write_b128 v{T+5}, v[{CSA}:{CSA+3}]")
        P("s_mov_b64 exec, -1")
    CS = X + 16
    def cs_read(half, tmp):
        P(f"v_lshrrev_b32 v{T+5}, 5, v0")
        P(f"v_lshlrev_b32 v{T+5}, 4, v{T+5}")
        P("s_lshl_b32 s53, s58, 7")
        P(f"s_add_u32 s53, s53, {SC + 1024 + 2048*half}")
        P(f"v_add_u32 v{T+5}, s53, v{T+5}")
        for i in range(4):
            P(f"ds_read_b128 v[{CS+4*i}:{CS+4*i+3}], v{T+5} offset:{32*i}")
            P(f"ds_read_b128 v[{tmp+4*i}:{tmp+4*i+3}], v{T+5} offset:{512+32*i}")
    wait_for({('B', i) for i in range(4)})
    P("s_barrier")
    for u in range(16, 20): bdma(u)
    for s_ in rds(0): P(s_)
    MR = 28
    def h7():
        P("s_mov_b32 exec_lo, 0x01010101")
        P("s_mov_b32 exec_hi, 0x01010101")
        P(f"ds_write_b64 v{T+2}, v[{S}:{Q}]")
        P("s_mov_b64 exec, -1")
    hooks[7] = h7
    sp4 = split(stat_stream, 4)
    for sp in range(8): step(sp, sp4[sp] if sp < 4 else ())
    prof(P, 2, pr)
    cs_write(0)
    step(8)
    def h9():
        P(f"v_and_b32 v{T}, 31, v0")
        P(f"v_lshlrev_b32 v{T}, 3, v{T}")
        P("s_lshl_b32 s53, s59, 8")
        P(f"s_add_u32 s53, s53, {SC}")
        P(f"v_add_u32 v{T}, s53, v{T}")
        cs_read(0, X)
        P(f"ds_read_b64 v[{MR}:{MR+1}], v{T}")
        P("s_waitcnt lgkmcnt(0)")
        for r in range(16): P(f"v_add_f32 v{CS+r}, v{CS+r}, v{X+r}")
        P(f"v_mov_b32 v{T+4}, s63")
    hooks[9] = h9
    Z2 = X
    GT = T
    gs = gelu_stream(ACC2, Z2, GT, MR, MR + 1, CS)
    SS = Buf()
    S2, Q2 = X + 8, X + 9
    SS(f"v_mov_b32 v{S2}, 0")
    SS(f"v_mov_b32 v{Q2}, 0")
    for q in range(8):
        SS(f"v_dot2c_f32_bf16 v{S2}, s62, v{Z2+q}")
        SS(f"v_dot2c_f32_bf16 v{Q2}, v{Z2+q}, v{Z2+q}")
    SS(f"v_mov_b32 v{S2+2}, v{S2}")
    SS(f"v_mov_b32 v{S2+3}, v{Q2}")
    SS(f"v_permlane32_swap_b32 v{S2}, v{S2+2}")
    SS(f"v_permlane32_swap_b32 v{Q2}, v{S2+3}")
    SS(f"v_add_f32 v{S2}, v{S2}, v{S2+2}")
    SS(f"v_add_f32 v{Q2}, v{Q2}, v{S2+3}")
    SS(f"v_and_b32 v{S2+2}, 31, v0")
    SS(f"v_lshlrev_b32 v{S2+2}, 3, v{S2+2}")
    SS("s_lshl_b32 s53, s58, 9")
    SS("s_lshl_b32 s60, s59, 8")
    SS("s_add_u32 s53, s53, s60")
    SS(f"s_add_u32 s53, s53, {SC + 6144}")
    SS(f"v_add_u32 v{S2+2}, s53, v{S2+2}")
    SS(f"ds_write_b64 v{S2+2}, v[{S2}:{Q2}]")
    av = split(gs + SS.l, 4)
    for k in range(4): step(9 + k, av[k])
    def h13():
        P("s_cmp_lg_u32 s3, 0")
        P("s_cbranch_scc1 k1_nopub")
        PB = X + 8
        P(f"v_lshlrev_b32 v{T}, 3, v0")
        P(f"v_add_u32 v{T+1}, {SC + 6144}, v{T}")
        for c in range(4):
            P(f"ds_read_b64 v[{PB+2*c}:{PB+2*c+1}], v{T+1} offset:{512*c}")
        P("s_mul_i32 s53, s14, 7")
        P("s_add_u32 s53, s53, s15")
        P("s_lshl_b32 s53, s53, 9")
        P("s_waitcnt lgkmcnt(0)")
        P(f"v_add_f32 v{PB}, v{PB}, v{PB+2}")
        P(f"v_add_f32 v{PB+1}, v{PB+1}, v{PB+3}")
        P(f"v_add_f32 v{PB+4}, v{PB+4}, v{PB+6}")
        P(f"v_add_f32 v{PB+5}, v{PB+5}, v{PB+7}")
        P(f"v_add_f32 v{PB}, v{PB}, v{PB+4}")
        P(f"v_add_f32 v{PB+1}, v{PB+1}, v{PB+5}")
        P(f"buffer_store_dwordx2 v[{PB}:{PB+1}], v{T}, s[32:35], s53 offen sc0 sc1")
        P.label("k1_nopub")
        prof(P, 3, pr)
    hooks[13] = h13
    step(13)
    step(14)
    P("s_cmp_lg_u32 s3, 0")
    P("s_cbranch_scc1 k1_nopub2")
    P("s_waitcnt vmcnt(0)")
    P("s_lshl_b32 s53, s14, 2")
    P(f"v_mov_b32 v{T}, s53")
    P(f"v_mov_b32 v{T+1}, 1")
    P("s_mov_b64 exec, 1")
    P(f"global_atomic_add v{T}, v{T+1}, s[10:11] sc1")
    P("s_mov_b64 exec, -1")
    P.label("k1_nopub2")
    step(15)
    prof(P, 4, pr)
    cs_write(1)
    P("s_waitcnt lgkmcnt(0)")
    P("s_barrier")
    cs_read(1, WFR)
    P("s_waitcnt lgkmcnt(0)")
    for r in range(16): P(f"v_add_f32 v{CS+r}, v{CS+r}, v{WFR+r}")
    Z1 = X + 8
    P(f"v_mov_b32 v{GT+4}, s63")
    for s_ in gelu_stream(ACC1, Z1, GT, MR, MR + 1, CS): P(s_)
    P(f"v_and_b32 v{T}, 15, v0")
    P(f"v_bfe_u32 v{T+1}, v0, 4, 1")
    P(f"v_lshrrev_b32 v{T+2}, 5, v0")
    P(f"v_lshlrev_b32 v{T}, 4, v{T}")
    P(f"v_lshl_add_u32 v{T}, v{T+1}, 10, v{T}")
    P(f"v_lshl_add_u32 v{T}, v{T+2}, 9, v{T}")
    P("s_mul_i32 s53, s14, 28")
    P("s_lshl_b32 s60, s15, 2")
    P("s_add_u32 s53, s53, s60")
    P("s_add_u32 s53, s53, s58")
    P("s_lshl_b32 s53, s53, 12")
    P("s_lshl_b32 s60, s59, 11")
    P("s_add_u32 s53, s53, s60")
    P(f"buffer_store_dwordx4 v[{Z1}:{Z1+3}], v{T}, s[28:31], s53 offen sc1")
    P(f"buffer_store_dwordx4 v[{Z1+4}:{Z1+7}], v{T}, s[28:31], s53 offen offset:256 sc1")
    prof(P, 5, pr)
    P("s_cmp_lg_u32 s3, 0")
    P("s_cbranch_scc1 k1_nopoll")
    P("s_lshl_b32 s53, s14, 2")
    P(f"v_mov_b32 v{T+2}, s53")
    P("s_mov_b32 s60, 0")
    P.label("k1_poll")
    P(f"global_load_dword v{T+3}, v{T+2}, s[10:11] sc1")
    P("s_add_u32 s60, s60, 1")
    P("s_waitcnt vmcnt(0)")
    P(f"v_readfirstlane_b32 s61, v{T+3}")
    P("s_cmp_ge_u32 s61, 7")
    P("s_cbranch_scc1 k1_nopoll")
    P("s_cmp_lt_u32 s60, 0x200000")
    P("s_cbranch_scc1 k1_poll")
    P.label("k1_nopoll")
    P("s_barrier")
    P(f"v_and_b32 v{T}, 31, v0")
    P(f"v_lshlrev_b32 v{T}, 3, v{T}")
    P("s_mul_i32 s53, s14, 3584")
    P("s_lshl_b32 s60, s59, 8")
    P("s_add_u32 s53, s53, s60")
    PS = ACC2
    for c in range(7):
        P(f"buffer_load_dwordx2 v[{PS+2*c}:{PS+2*c+1}], v{T}, s[32:35], s53 offen offset:{512*c} sc0 sc1")
    P(f"v_and_b32 v{T}, 31, v0")
    P(f"v_lshrrev_b32 v{T+1}, 5, v0")
    P(f"v_lshlrev_b32 v{T}, 6, v{T}")
    P(f"v_lshl_add_u32 v{T}, v{T+1}, 5, v{T}")
    P("s_lshl_b32 s53, s3, 11")
    P(f"s_add_u32 s53, s53, {13*8192}")
    P(f"v_add_u32 v{VT}, s53, v{T}")
    P(f"v_lshrrev_b32 v{T+1}, 4, v0")
    P(f"v_bfe_u32 v{T+2}, v0, 2, 2")
    P(f"v_and_b32 v{T+3}, 3, v0")
    P(f"v_lshl_add_u32 v{T+1}, v{T+1}, 3, v{T+2}")
    P(f"v_lshlrev_b32 v{T+1}, 6, v{T+1}")
    P(f"v_lshl_add_u32 v{T+1}, v{T+3}, 3, v{T+1}")
    P(f"v_add_u32 v{VT+1}, s53, v{T+1}")
    P(f"v_lshlrev_b32 v{VT+2}, 4, v0")
    P("s_lshl_b32 s60, s14, 1")
    P("s_add_u32 s60, s60, s59")
    for tl in range(2):
        P("s_lshl_b32 s53, s15, 3")
        P("s_lshl_b32 s61, s58, 1")
        P("s_add_u32 s53, s53, s61")
        if tl: P("s_add_u32 s53, s53, 1")
        P("s_mul_i32 s61, s53, 37")
        P("s_lshr_b32 s61, s61, 8")
        P("s_mul_i32 s65, s61, 7")
        P("s_sub_u32 s53, s53, s65")
        P("s_add_u32 s65, s53, 6")
        P("s_sub_u32 s66, s53, 1")
        P("s_cmp_eq_u32 s53, 0")
        P("s_cselect_b32 s65, s65, s66")
        P("s_bitcmp1_b32 s61, 0")
        P("s_cselect_b32 s53, s65, s53")
        P("s_lshl_b32 s61, s61, 6")
        P("s_add_u32 s61, s61, s60")
        P("s_mul_i32 s61, s61, 7")
        P("s_add_u32 s61, s61, s53")
        P(f"s_lshl_b32 s{67+tl}, s61, 10")
    P("s_waitcnt vmcnt(0)")
    for c in range(1, 7):
        P(f"v_add_f32 v{PS}, v{PS}, v{PS+2*c}")
        P(f"v_add_f32 v{PS+1}, v{PS+1}, v{PS+2*c+1}")
    S, Q = PS, PS + 1
    P(f"v_mul_f32 v{S}, {fbits(1/896)}, v{S}")
    P(f"v_mul_f32 v{Q}, {fbits(1/896)}, v{Q}")
    P(f"v_fma_f32 v{Q}, -v{S}, v{S}, v{Q}")
    P(f"v_max_f32 v{Q}, 0, v{Q}")
    bf16_round_v(P, S, S, T + 2)
    bf16_round_v(P, Q, Q, T + 2)
    P(f"v_add_f32 v{Q}, 0x3727c5ac, v{Q}")
    bf16_round_v(P, Q, Q, T + 2)
    P(f"v_sqrt_f32 v{Q}, v{Q}")
    bf16_round_v(P, Q, Q, T + 2)
    P(f"v_rcp_f32 v{Q}, v{Q}")
    for r in range(8):
        a, b = T + (r & 1) * 2, T + 1 + (r & 1) * 2
        P(f"v_lshlrev_b32 v{a}, 16, v{Z2+r}")
        P(f"v_and_b32 v{b}, 0xffff0000, v{Z2+r}")
        P(f"v_sub_f32 v{a}, v{a}, v{S}")
        P(f"v_sub_f32 v{b}, v{b}, v{S}")
        P(f"v_cvt_pk_bf16_f32 v{Z2+r}, v{a}, v{b}")
        P(f"v_lshlrev_b32 v{a}, 16, v{Z2+r}")
        P(f"v_and_b32 v{b}, 0xffff0000, v{Z2+r}")
        P(f"v_mul_f32 v{a}, v{a}, v{Q}")
        P(f"v_mul_f32 v{b}, v{b}, v{Q}")
        P(f"v_cvt_pk_bf16_f32 v{Z2+r}, v{a}, v{b}")
    P(f"ds_write_b128 v{VT}, v[{Z2}:{Z2+3}]")
    P(f"ds_write_b128 v{VT}, v[{Z2+4}:{Z2+7}] offset:16")
    P("s_waitcnt lgkmcnt(0)")
    O = ACC1
    for tl in range(2):
        for rr in range(2):
            P(f"ds_read_b64_tr_b16 v[{O+4*tl+2*rr}:{O+4*tl+2*rr+1}], v{VT+1} offset:{32*tl + 256*rr}")
    P("s_waitcnt lgkmcnt(0)")
    for tl in range(2):
        P(f"buffer_store_dwordx4 v[{O+4*tl}:{O+4*tl+3}], v{VT+2}, s[24:27], s{67+tl} offen sc1")
    prof(P, 6, pr)
    if pr: P("s_waitcnt vmcnt(0)")
    prof(P, 7, pr)
    P("s_endpgm")
    if aux is not None:
        P.label("k1_aux")
        aux(P, X, T, VXW, pr)
    P.label("k1_end")
    P("s_endpgm")
    return dict(vgpr=128, agpr=128, lds=160 * 1024)
```

```python
from dsl import Prog
from k2 import *
from k1 import ln1, bf16_round_v, fbits, GK0, GK1, wpre, XB
from k1b import Buf
import math
SC = XB

def gelu_stream(A, T, M, Rr, CS):
    B = Buf()
    for q in range(8):
        a, b = A + 2 * q, A + 2 * q + 1
        t0, t1 = T + (q & 1) * 2, T + 1 + (q & 1) * 2
        B(f"v_fmac_f32 v{a}, v{M}, v{CS+2*q}")
        B(f"v_fmac_f32 v{b}, v{M}, v{CS+2*q+1}")
        B(f"v_mul_f32 v{a}, v{a}, v{Rr}")
        B(f"v_mul_f32 v{b}, v{b}, v{Rr}")
        B(f"v_mul_f32 v{t0}, v{a}, v{a}")
        B(f"v_mul_f32 v{t1}, v{b}, v{b}")
        B(f"v_fma_f32 v{t0}, v{t0}, s64, v{T+4}")
        B(f"v_fma_f32 v{t1}, v{t1}, s64, v{T+4}")
        B(f"v_mul_f32 v{t0}, v{t0}, v{a}")
        B(f"v_mul_f32 v{t1}, v{t1}, v{b}")
        B(f"v_exp_f32 v{t0}, v{t0}")
        B(f"v_exp_f32 v{t1}, v{t1}")
        B(f"v_add_f32 v{t0}, 1.0, v{t0}")
        B(f"v_add_f32 v{t1}, 1.0, v{t1}")
        B(f"v_rcp_f32 v{t0}, v{t0}")
        B(f"v_rcp_f32 v{t1}, v{t1}")
        B(f"v_mul_f32 v{a}, v{a}, v{t0}")
        B(f"v_mul_f32 v{b}, v{b}, v{t1}")
        B(f"v_cvt_pk_bf16_f32 v{A+q}, v{a}, v{b}")
    return B.l

def gen_k1(P, aux=None, pr=False):
    P.label("k1_kernel")
    P("s_cmp_ge_u32 s2, 256")
    P("s_cbranch_scc1 k1_end")
    P("s_load_dwordx2 s[4:5], s[0:1], 0")
    P("s_load_dwordx2 s[6:7], s[0:1], 80")
    P("s_load_dwordx2 s[8:9], s[0:1], 128")
    P("s_load_dwordx2 s[10:11], s[0:1], 120")
    P("s_load_dwordx2 s[40:41], s[0:1], 88")
    P("v_lshrrev_b32 v1, 6, v0")
    P("v_and_b32 v0, 63, v0")
    P("v_readfirstlane_b32 s3, v1")
    P("s_mov_b32 s62, 0x3f803f80")
    P(f"s_mov_b32 s63, {fbits(GK0)}")
    P(f"s_mov_b32 s64, {fbits(GK1)}")
    P("s_and_b32 s12, s2, 7")
    P("s_lshr_b32 s13, s2, 3")
    P("s_lshl_b32 s14, s12, 2")
    P("s_and_b32 s15, s13, 3")
    P("s_add_u32 s14, s14, s15")
    P("s_lshr_b32 s15, s13, 2")
    X = 32; T = 2; VB = 16
    P(f"v_lshrrev_b32 v{T}, 3, v0")
    P(f"v_and_b32 v{T+1}, 7, v0")
    P(f"v_lshlrev_b32 v{T+2}, 4, v{T+1}")
    P(f"v_lshl_add_u32 v{T+2}, v{T}, 10, v{T+2}")
    P("s_lshl_b32 s52, s14, 16")
    P("s_lshl_b32 s53, s3, 13")
    P("s_add_u32 s52, s52, s53")
    P(f"v_lshrrev_b32 v{T+4}, 4, v0")
    P(f"v_and_b32 v{T+5}, 15, v0")
    P("s_lshl_b32 s53, s3, 2")
    P(f"v_add_u32 v{VB}, s53, v{T+4}")
    P("s_movk_i32 s53, 3584")
    P(f"v_mul_u32_u24 v{VB}, s53, v{VB}")
    P(f"v_lshl_add_u32 v{VB}, v{T+5}, 4, v{VB}")
    P("s_lshl_b32 s54, s15, 8")
    P("s_add_u32 s55, s54, 1792")
    P("s_waitcnt lgkmcnt(0)")
    srd(P, 16, 4, 2048 * 512 * 2)
    issued = []
    for e in range(8):
        P(f"buffer_load_dwordx4 v[{X+4*e}:{X+4*e+3}], v{T+2}, s[16:19], s52 offen offset:{128*e}")
        issued.append(('X', e))
    srd(P, 20, 6, 512 * 1792 * 2)
    srd(P, 24, 8, 0x400000, WS_Z2F)
    srd(P, 28, 8, 0x400000, WS_Z1F)
    srd(P, 32, 8, 32 * 7 * 64 * 8, WS_ST)
    srd(P, 36, 40, 2048 * 2048 * 2)
    VXW = 23
    P("s_and_b32 s53, s3, 1")
    P("s_lshl_b32 s53, s53, 3")
    P(f"v_add_u32 v{T+3}, s53, v{T}")
    P(f"v_xor_b32 v{T+3}, v{T+3}, v{T+1}")
    P(f"v_lshlrev_b32 v{T+3}, 4, v{T+3}")
    P(f"v_lshl_add_u32 v{T+3}, v{T}, 10, v{T+3}")
    P("s_lshl_b32 s53, s3, 13")
    P(f"s_add_u32 s53, s53, {XB}")
    P(f"v_add_u32 v{VXW}, s53, v{T+3}")
    P(f"v_xor_b32 v{VXW+1}, 128, v{VXW}")
    if aux is not None:
        P("s_cmp_eq_u32 s15, 7")
        P("s_cbranch_scc1 k1_aux")
    ACC2, ACC1 = 64, 96
    def land(u):
        if u < 8: return f"a[{96+4*u}:{99+4*u}]"
        if u < 16: return f"v[{ACC1+4*(u-8)}:{ACC1+4*(u-8)+3}]"
        if u < 24: return f"v[{X+4*(u-16)}:{X+4*(u-16)+3}]"
        return f"a[{96+4*(u-24)}:{99+4*(u-24)}]"
    def bld(u):
        half, ku = u // 16, u % 16
        P(f"s_add_u32 s57, s{55 if half == 0 else 54}, {ku * 32 * 3584}")
        P(f"buffer_load_dwordx4 {land(u)}, v{VB}, s[20:23], s57 offen")
        issued.append(('B', u))
    def wait_for(tags):
        last = max(k for k, t in enumerate(issued) if t in tags)
        n = len(issued) - 1 - last
        P(f"s_waitcnt vmcnt({min(n,63)})")
    for u in range(4): bld(u)
    prof(P, 0, pr)
    VLW = 17
    P(f"v_lshlrev_b32 v{T}, 2, v{T+4}")
    P(f"v_xor_b32 v{T}, v{T}, v{T+5}")
    P(f"v_lshlrev_b32 v{T}, 4, v{T}")
    P(f"v_lshl_add_u32 v{T}, v{T+4}, 8, v{T}")
    P("s_lshl_b32 s53, s3, 10")
    P(f"v_add_u32 v{VLW}, s53, v{T}")
    P(f"v_add_u32 v{VLW+1}, 0x10000, v{VLW}")
    def bwr(u):
        addr = (u % 12) * 8192
        wait_for({('B', u)})
        P(f"ds_write_b128 v{VLW+(addr>>16)}, {land(u)} offset:{addr & 0xffff}")
    P("s_lshr_b32 s59, s3, 2")
    P("s_bfe_u32 s60, s3, 0x10001")
    P("s_and_b32 s61, s3, 1")
    P("s_xor_b32 s58, s61, s59")
    P("s_lshl_b32 s53, s60, 1")
    P("s_add_u32 s58, s58, s53")
    VT = 19
    P(f"v_lshrrev_b32 v{T}, 4, v0")
    P(f"v_bfe_u32 v{T+1}, v0, 2, 2")
    P(f"v_and_b32 v{T+2}, 3, v0")
    P(f"v_and_b32 v{T+3}, 1, v{T}")
    P(f"v_lshl_add_u32 v{T+2}, v{T+3}, 2, v{T+2}")
    P(f"v_lshrrev_b32 v{T+3}, 1, v{T+2}")
    P(f"v_and_b32 v{T+4}, 1, v{T+2}")
    P(f"v_lshrrev_b32 v{T}, 1, v{T}")
    P(f"v_lshl_add_u32 v{T}, v{T}, 3, v{T+1}")
    P(f"v_lshlrev_b32 v{T}, 8, v{T}")
    P("s_lshl_b32 s53, s61, 12")
    P(f"v_add_u32 v{T}, s53, v{T}")
    P(f"v_lshlrev_b32 v{T+1}, 6, v{T+1}")
    P("s_lshl_b32 s53, s58, 6")
    P(f"v_lshlrev_b32 v{T+5}, 5, v{T+4}")
    P(f"v_lshl_add_u32 v{T+5}, v{T+3}, 3, v{T+5}")
    P(f"v_add_u32 v{T+5}, s53, v{T+5}")
    P(f"v_xor_b32 v{T+5}, v{T+5}, v{T+1}")
    P(f"v_add_u32 v{VT}, v{T+5}, v{T}")
    P(f"v_and_b32 v{T+5}, 1, v{T+3}")
    P(f"v_lshlrev_b32 v{T+5}, 5, v{T+5}")
    P(f"v_lshl_add_u32 v{T+5}, v{T+4}, 4, v{T+5}")
    P(f"v_lshrrev_b32 v{T+3}, 1, v{T+3}")
    P(f"v_lshl_add_u32 v{T+5}, v{T+3}, 3, v{T+5}")
    P(f"v_add_u32 v{T+5}, s53, v{T+5}")
    P(f"v_xor_b32 v{T+5}, v{T+5}, v{T+1}")
    P(f"v_add_u32 v1, v{T+5}, v{T}")
    def expand_vt():
        return [f"v_xor_b32 v{VT+1}, 64, v{VT}", f"v_add_u32 v{VT+2}, 0x10000, v{VT}", f"v_add_u32 v{VT+3}, 0x10000, v{VT+1}"]
    for s_ in expand_vt(): P(s_)
    VXR = 31
    P(f"v_and_b32 v{T}, 31, v0")
    P(f"v_lshrrev_b32 v{T+1}, 5, v0")
    P(f"v_and_b32 v{T+2}, 15, v0")
    P(f"v_xor_b32 v{T+1}, v{T+1}, v{T+2}")
    P(f"v_lshlrev_b32 v{T+1}, 4, v{T+1}")
    P("s_lshl_b32 s53, s61, 5")
    P(f"v_xor_b32 v{T+1}, s53, v{T+1}")
    P(f"v_lshl_add_u32 v{T+1}, v{T}, 10, v{T+1}")
    P("s_lshl_b32 s53, s59, 15")
    P(f"s_add_u32 s53, s53, {XB}")
    P(f"v_add_u32 v{VXR}, s53, v{T+1}")
    SEL = 12; CSA = 8
    P(f"v_lshrrev_b32 v{T}, 4, v0")
    P(f"v_xor_b32 v{T}, v{T}, v0")
    P(f"v_and_b32 v{T}, 1, v{T}")
    P(f"v_subrev_u32 v{T}, 1, v{T}")
    P(f"v_and_b32 v{SEL}, s62, v{T}")
    for r in range(1, 4): P(f"v_mov_b32 v{SEL+r}, v{SEL}")
    def freg(st, i, sl, k0, n):
        r = 64 + 16 * st + 8 * i + 4 * sl + k0
        return f"a[{r}:{r+n-1}]"
    def rds(sp):
        out = []
        if sp == 8: out += [f"v_mov_b32 v{VT}, v1"] + expand_vt()
        for i in range(2):
            u = 2 * sp + i
            addr = (u % 12) * 8192
            for sl in range(2):
                vb = VT + 2 * (addr >> 16) + sl
                for rr in range(2):
                    out.append(f"ds_read_b64_tr_b16 {freg(sp & 1, i, sl, 2*rr, 2)}, v{vb} offset:{(addr & 0xffff) + 1024*rr}")
        return out
    S, Q = T, T + 1
    for r in range(4): P(f"v_mov_b32 v{T+r}, 0")
    for e in range(8):
        wait_for({('X', e)})
        P(f"ds_write_b128 v{VXW+(e&1)}, v[{X+4*e}:{X+4*e+3}] offset:{256*(e>>1)}")
        for r in range(4 * e, 4 * e + 4):
            a = (r & 1) * 2
            P(f"v_dot2c_f32_bf16 v{S+a}, s62, v{X+r}")
            P(f"v_dot2c_f32_bf16 v{Q+a}, v{X+r}, v{X+r}")
        bld(4 + e)
    ST = Buf()
    ST(f"v_add_f32 v{S}, v{S}, v{T+2}")
    ST(f"v_add_f32 v{Q}, v{Q}, v{T+3}")
    for m in ("quad_perm:[1,0,3,2]", "quad_perm:[2,3,0,1]", "row_half_mirror"):
        ST(f"v_add_f32_dpp v{S}, v{S}, v{S} {m} row_mask:0xf bank_mask:0xf")
        ST(f"v_add_f32_dpp v{Q}, v{Q}, v{Q} {m} row_mask:0xf bank_mask:0xf")
    ST(f"v_mul_f32 v{S}, 0x3b000000, v{S}")
    ST(f"v_mul_f32 v{Q}, 0x3b000000, v{Q}")
    ST(f"v_fma_f32 v{Q}, -v{S}, v{S}, v{Q}")
    ST(f"v_max_f32 v{Q}, 0, v{Q}")
    bf16_round_v(ST, S, S, T + 2)
    bf16_round_v(ST, Q, Q, T + 2)
    ST(f"v_add_f32 v{Q}, 0x3727c5ac, v{Q}")
    bf16_round_v(ST, Q, Q, T + 2)
    ST(f"v_sqrt_f32 v{Q}, v{Q}")
    bf16_round_v(ST, Q, Q, T + 2)
    ST(f"v_rcp_f32 v{Q}, v{Q}")
    ST(f"v_sub_f32 v{S}, 0, v{S}")
    ST(f"v_and_b32 v{T+2}, 56, v0")
    ST("s_lshl_b32 s53, s3, 6")
    ST(f"s_add_u32 s53, s53, {SC}")
    ST(f"v_add_u32 v{T+2}, s53, v{T+2}")
    ST("s_mov_b32 exec_lo, 0x01010101\ns_mov_b32 exec_hi, 0x01010101\n" + f"ds_write_b64 v{T+2}, v[{S}:{Q}]\ns_mov_b64 exec, -1")
    stat_stream = ST.l
    for u in range(4): bwr(u)
    P("s_waitcnt lgkmcnt(0)")
    P("s_barrier")
    for s_ in rds(0): P(s_)
    for q in range(4):
        P(f"v_xor_b32 v{T+4+(q&1)}, {64*q}, v{VXR}")
        for hi in range(4):
            ku = 4 * hi + q
            P(f"ds_read_b128 a[{4*ku}:{4*ku+3}], v{T+4+(q&1)} offset:{256*hi}")
        bld(12 + q)
    bwr(4); bwr(5)
    prof(P, 1, pr)
    hooks = {}
    def step(sp, vside=()):
        if FINE[0] and sp < 12: P(f"s_memtime s[{68+2*sp}:{69+2*sp}]")
        if sp % 2 == 1 and sp < 15:
            P("s_waitcnt lgkmcnt(0)")
            P("s_barrier")
        elif 0 < sp <= 12 and not FINE[0] and sp != 8:
            P("s_waitcnt lgkmcnt(2)")
        else:
            P("s_waitcnt lgkmcnt(0)")
        if sp in hooks: hooks[sp]()
        half = sp // 8
        acc = ACC2 if half == 0 else ACC1
        rd = rds(sp + 1) if sp < 15 else []
        vside = list(vside)
        per = (len(vside) + 3) // 4
        k = 0
        for i in range(2):
            u = 2 * sp + i
            ku = u % 16
            first = (ku == 0)
            for sl in range(2):
                a = acc + 16 * sl
                P(f"v_mfma_f32_32x32x16_bf16 v[{a}:{a+15}], {freg(sp & 1, i, sl, 0, 4)}, a[{4*ku}:{4*ku+3}], {'0' if first else f'v[{a}:{a+15}]'}")
                if k == 0:
                    for x_ in rd: P(x_)
                if k in (1, 2) and 2 * sp + 5 + k < 32: bwr(2 * sp + 5 + k)
                if sl == 0:
                    P(f"v_mfma_f32_16x16x32_bf16 v[{CSA}:{CSA+3}], {freg(sp & 1, i, 0, 0, 4)}, v[{SEL}:{SEL+3}], {'0' if first else f'v[{CSA}:{CSA+3}]'}")
                if k in (1, 3) and sp < 8: bld(16 + 2 * sp + (k >> 1))
                if k == 3 and sp == 8: wpre(P, 0)
                for _ in range(per):
                    if vside: P(vside.pop(0))
                k += 1
        assert not vside
    def split(lst, n):
        k = (len(lst) + n - 1) // n
        return [lst[i*k:(i+1)*k] for i in range(n)]
    EX = SC + 8192
    def xchg_write(half):
        acc = ACC2 if half == 0 else ACC1
        P(f"v_and_b32 v{T+5}, 15, v0")
        P(f"v_lshlrev_b32 v{T+5}, 6, v{T+5}")
        P(f"v_and_b32 v{T+4}, 48, v0")
        P(f"v_add_u32 v{T+5}, v{T+5}, v{T+4}")
        P("s_lshl_b32 s53, s58, 8")
        P("s_lshl_b32 s56, s61, 7")
        P("s_add_u32 s53, s53, s56")
        P(f"s_add_u32 s53, s53, {SC + 1024 + 1024*half}")
        P(f"v_add_u32 v{T+5}, s53, v{T+5}")
        P(f"v_lshlrev_b32 v{T+4}, 4, v0")
        P("s_lshl_b32 s53, s3, 12")
        P(f"s_add_u32 s53, s53, {EX}")
        P(f"v_add_u32 v{T+4}, s53, v{T+4}")
        P("s_mov_b32 exec_lo, 0x00030003")
        P("s_mov_b32 exec_hi, 0x00030003")
        P(f"ds_write_b128 v{T+5}, v[{CSA}:{CSA+3}]")
        P("s_mov_b64 exec, -1")
        for i in range(4):
            P(f"ds_write_b128 v{T+4}, v[{acc+16+4*i}:{acc+16+4*i+3}] offset:{1024*i}")
    MR = 28
    def xchg_read(half):
        acc = ACC2 if half == 0 else ACC1
        CS = acc + 16
        P(f"v_lshlrev_b32 v{T+4}, 4, v0")
        P("s_xor_b32 s53, s3, 1")
        P("s_lshl_b32 s53, s53, 12")
        P(f"s_add_u32 s53, s53, {EX}")
        P(f"v_add_u32 v{T+4}, s53, v{T+4}")
        for i in range(4):
            P(f"ds_read_b128 v[{CS+4*i}:{CS+4*i+3}], v{T+4} offset:{1024*i}")
        P(f"v_lshrrev_b32 v{T+5}, 5, v0")
        P(f"v_lshlrev_b32 v{T+5}, 4, v{T+5}")
        P("s_lshl_b32 s53, s58, 8")
        P(f"s_add_u32 s53, s53, {SC + 1024 + 1024*half}")
        P(f"v_add_u32 v{T+5}, s53, v{T+5}")
        if half == 0:
            P(f"v_and_b32 v{T}, 31, v0")
            P(f"v_lshlrev_b32 v{T}, 3, v{T}")
            P("s_lshl_b32 s53, s59, 8")
            P(f"s_add_u32 s53, s53, {SC}")
            P(f"v_add_u32 v{T}, s53, v{T}")
            P(f"ds_read_b64 v[{MR}:{MR+1}], v{T}")
        P("s_waitcnt lgkmcnt(0)")
        for r in range(16): P(f"v_add_f32 v{acc+r}, v{acc+r}, v{CS+r}")
        for i in range(4):
            P(f"ds_read_b128 v[{CS+4*i}:{CS+4*i+3}], v{T+5} offset:{32*i}")
        P("s_waitcnt lgkmcnt(0)")
        for r in range(16): P(f"v_fmac_f32 v{acc+r}, v{MR}, v{CS+r}")
        for i in range(4):
            P(f"ds_read_b128 v[{CS+4*i}:{CS+4*i+3}], v{T+5} offset:{128+32*i}")
        P(f"v_mov_b32 v{T+4}, s63")
        P("s_waitcnt lgkmcnt(0)")
    sp4 = split(stat_stream, 2)
    for sp in range(8): step(sp, sp4[sp - 1] if 1 <= sp < 3 else ())
    prof(P, 2, pr)
    xchg_write(0)
    step(8)
    hooks[9] = lambda: xchg_read(0)
    Z2 = ACC2
    gs = gelu_stream(ACC2, T, MR, MR + 1, ACC2 + 16)
    SS = Buf()
    S2, Q2 = ACC2 + 8, ACC2 + 9
    SS(f"v_mov_b32 v{S2}, 0")
    SS(f"v_mov_b32 v{Q2}, 0")
    for q in range(8):
        SS(f"v_dot2c_f32_bf16 v{S2}, s62, v{Z2+q}")
        SS(f"v_dot2c_f32_bf16 v{Q2}, v{Z2+q}, v{Z2+q}")
    SS(f"v_mov_b32 v{S2+2}, v{S2}")
    SS(f"v_mov_b32 v{S2+3}, v{Q2}")
    SS(f"v_permlane32_swap_b32 v{S2}, v{S2+2}")
    SS(f"v_permlane32_swap_b32 v{Q2}, v{S2+3}")
    SS(f"v_add_f32 v{S2}, v{S2}, v{S2+2}")
    SS(f"v_add_f32 v{Q2}, v{Q2}, v{S2+3}")
    SS(f"v_and_b32 v{S2+2}, 31, v0")
    SS(f"v_lshlrev_b32 v{S2+2}, 3, v{S2+2}")
    SS("s_lshl_b32 s53, s58, 9")
    SS("s_lshl_b32 s56, s59, 8")
    SS("s_add_u32 s53, s53, s56")
    SS(f"s_add_u32 s53, s53, {SC + 4096}")
    SS(f"v_add_u32 v{S2+2}, s53, v{S2+2}")
    SS(f"ds_write_b64 v{S2+2}, v[{S2}:{Q2}]")
    av = split(gs + SS.l, GSPLIT[0])
    for k in range(GSPLIT[0]): step(9 + k, av[k])
    pubstep = 9 + GSPLIT[0]
    assert pubstep % 2 == 1
    def hpub():
        P("s_cmp_lg_u32 s3, 0")
        P("s_cbranch_scc1 k1_nopub")
        PB = ACC2 + 8
        P(f"v_lshlrev_b32 v{T}, 3, v0")
        P(f"v_add_u32 v{T+1}, {SC + 4096}, v{T}")
        for c in range(4):
            P(f"ds_read_b64 v[{PB+2*c}:{PB+2*c+1}], v{T+1} offset:{512*c}")
        P("s_mul_i32 s53, s14, 7")
        P("s_add_u32 s53, s53, s15")
        P("s_lshl_b32 s53, s53, 9")
        P("s_waitcnt lgkmcnt(0)")
        P(f"v_add_f32 v{PB}, v{PB}, v{PB+2}")
        P(f"v_add_f32 v{PB+1}, v{PB+1}, v{PB+3}")
        P(f"v_add_f32 v{PB+4}, v{PB+4}, v{PB+6}")
        P(f"v_add_f32 v{PB+5}, v{PB+5}, v{PB+7}")
        P(f"v_add_f32 v{PB}, v{PB}, v{PB+4}")
        P(f"v_add_f32 v{PB+1}, v{PB+1}, v{PB+5}")
        P(f"buffer_store_dwordx2 v[{PB}:{PB+1}], v{T}, s[32:35], s53 offen sc0 sc1")
        P.label("k1_nopub")
        prof(P, 3, pr)
    hooks[pubstep] = hpub
    step(pubstep); step(pubstep + 1)
    P("s_cmp_lg_u32 s3, 0")
    P("s_cbranch_scc1 k1_nopub2")
    P("s_waitcnt vmcnt(0)")
    P("s_lshl_b32 s53, s14, 2")
    P(f"v_mov_b32 v{T}, s53")
    P(f"v_mov_b32 v{T+1}, 1")
    P("s_mov_b64 exec, 1")
    P(f"global_atomic_add v{T}, v{T+1}, s[10:11] sc1")
    P("s_mov_b64 exec, -1")
    P.label("k1_nopub2")
    for sp in range(pubstep + 2, 16): step(sp)
    if FINE[0]:
        P("s_lshl_b32 s92, s2, 3")
        P("s_add_u32 s92, s92, s3")
        P("s_lshl_b32 s92, s92, 6")
        P(f"s_add_u32 s92, s92, {WS_PROF + 3*0x40000}")
        P("v_mov_b32 v25, s92")
        for k in range(12):
            P(f"v_mov_b32 v26, s{68+2*k}")
            P(f"global_store_dword v25, v26, s[8:9] offset:{4*k}")
    prof(P, 4, pr)
    xchg_write(1)
    P("s_waitcnt lgkmcnt(0)")
    P("s_barrier")
    xchg_read(1)
    Z1 = ACC1
    for s_ in gelu_stream(ACC1, T, MR, MR + 1, ACC1 + 16): P(s_)
    P(f"v_and_b32 v{T}, 15, v0")
    P(f"v_bfe_u32 v{T+1}, v0, 4, 1")
    P(f"v_lshrrev_b32 v{T+2}, 5, v0")
    P(f"v_lshlrev_b32 v{T}, 4, v{T}")
    P(f"v_lshl_add_u32 v{T}, v{T+1}, 10, v{T}")
    P(f"v_lshl_add_u32 v{T}, v{T+2}, 9, v{T}")
    P("s_mul_i32 s53, s14, 28")
    P("s_lshl_b32 s56, s15, 2")
    P("s_add_u32 s53, s53, s56")
    P("s_add_u32 s53, s53, s58")
    P("s_lshl_b32 s53, s53, 12")
    P("s_lshl_b32 s56, s59, 11")
    P("s_add_u32 s53, s53, s56")
    P(f"buffer_store_dwordx4 v[{Z1}:{Z1+3}], v{T}, s[28:31], s53 offen sc1")
    P(f"buffer_store_dwordx4 v[{Z1+4}:{Z1+7}], v{T}, s[28:31], s53 offen offset:256 sc1")
    prof(P, 5, pr)
    P("s_cmp_lg_u32 s3, 0")
    P("s_cbranch_scc1 k1_nopoll")
    P("s_lshl_b32 s53, s14, 2")
    P(f"v_mov_b32 v{T+2}, s53")
    P("s_mov_b32 s56, 0")
    P.label("k1_poll")
    P(f"global_load_dword v{T+3}, v{T+2}, s[10:11] sc1")
    P("s_add_u32 s56, s56, 1")
    P("s_waitcnt vmcnt(0)")
    P(f"v_readfirstlane_b32 s57, v{T+3}")
    P("s_cmp_ge_u32 s57, 7")
    P("s_cbranch_scc1 k1_nopoll")
    P("s_cmp_lt_u32 s56, 0x200000")
    P("s_cbranch_scc1 k1_poll")
    P.label("k1_nopoll")
    P("s_barrier")
    P(f"v_and_b32 v{T}, 31, v0")
    P(f"v_lshlrev_b32 v{T}, 3, v{T}")
    P("s_mul_i32 s53, s14, 3584")
    P("s_lshl_b32 s56, s59, 8")
    P("s_add_u32 s53, s53, s56")
    PS = ACC2 + 16
    for c in range(7):
        P(f"buffer_load_dwordx2 v[{PS+2*c}:{PS+2*c+1}], v{T}, s[32:35], s53 offen offset:{512*c} sc0 sc1")
    P(f"v_and_b32 v{T}, 31, v0")
    P(f"v_lshrrev_b32 v{T+1}, 5, v0")
    P(f"v_lshlrev_b32 v{T}, 6, v{T}")
    P(f"v_lshl_add_u32 v{T}, v{T+1}, 5, v{T}")
    P("s_lshl_b32 s53, s3, 11")
    P(f"v_add_u32 v{VT}, s53, v{T}")
    P(f"v_lshrrev_b32 v{T+1}, 4, v0")
    P(f"v_bfe_u32 v{T+2}, v0, 2, 2")
    P(f"v_and_b32 v{T+3}, 3, v0")
    P(f"v_lshl_add_u32 v{T+1}, v{T+1}, 3, v{T+2}")
    P(f"v_lshlrev_b32 v{T+1}, 6, v{T+1}")
    P(f"v_lshl_add_u32 v{T+1}, v{T+3}, 3, v{T+1}")
    P(f"v_add_u32 v{VT+1}, s53, v{T+1}")
    P(f"v_lshlrev_b32 v{VT+2}, 4, v0")
    P("s_lshl_b32 s60, s14, 1")
    P("s_add_u32 s60, s60, s59")
    for tl in range(2):
        P("s_lshl_b32 s53, s15, 3")
        P("s_lshl_b32 s61, s58, 1")
        P("s_add_u32 s53, s53, s61")
        if tl: P("s_add_u32 s53, s53, 1")
        P("s_mul_i32 s61, s53, 37")
        P("s_lshr_b32 s61, s61, 8")
        P("s_mul_i32 s65, s61, 7")
        P("s_sub_u32 s53, s53, s65")
        P("s_add_u32 s65, s53, 6")
        P("s_sub_u32 s66, s53, 1")
        P("s_cmp_eq_u32 s53, 0")
        P("s_cselect_b32 s65, s65, s66")
        P("s_bitcmp1_b32 s61, 0")
        P("s_cselect_b32 s53, s65, s53")
        P("s_lshl_b32 s61, s61, 6")
        P("s_add_u32 s61, s61, s60")
        P("s_mul_i32 s61, s61, 7")
        P("s_add_u32 s61, s61, s53")
        P(f"s_lshl_b32 s{67+tl}, s61, 10")
    P("s_waitcnt vmcnt(0)")
    for c in range(1, 7):
        P(f"v_add_f32 v{PS}, v{PS}, v{PS+2*c}")
        P(f"v_add_f32 v{PS+1}, v{PS+1}, v{PS+2*c+1}")
    S, Q = PS, PS + 1
    P(f"v_mul_f32 v{S}, {fbits(1/896)}, v{S}")
    P(f"v_mul_f32 v{Q}, {fbits(1/896)}, v{Q}")
    P(f"v_fma_f32 v{Q}, -v{S}, v{S}, v{Q}")
    P(f"v_max_f32 v{Q}, 0, v{Q}")
    bf16_round_v(P, S, S, T + 2)
    bf16_round_v(P, Q, Q, T + 2)
    P(f"v_add_f32 v{Q}, 0x3727c5ac, v{Q}")
    bf16_round_v(P, Q, Q, T + 2)
    P(f"v_sqrt_f32 v{Q}, v{Q}")
    bf16_round_v(P, Q, Q, T + 2)
    P(f"v_rcp_f32 v{Q}, v{Q}")
    for r in range(8):
        a, b = T + (r & 1) * 2, T + 1 + (r & 1) * 2
        P(f"v_lshlrev_b32 v{a}, 16, v{Z2+r}")
        P(f"v_and_b32 v{b}, 0xffff0000, v{Z2+r}")
        P(f"v_sub_f32 v{a}, v{a}, v{S}")
        P(f"v_sub_f32 v{b}, v{b}, v{S}")
        P(f"v_cvt_pk_bf16_f32 v{Z2+r}, v{a}, v{b}")
        P(f"v_lshlrev_b32 v{a}, 16, v{Z2+r}")
        P(f"v_and_b32 v{b}, 0xffff0000, v{Z2+r}")
        P(f"v_mul_f32 v{a}, v{a}, v{Q}")
        P(f"v_mul_f32 v{b}, v{b}, v{Q}")
        P(f"v_cvt_pk_bf16_f32 v{Z2+r}, v{a}, v{b}")
    P(f"ds_write_b128 v{VT}, v[{Z2}:{Z2+3}]")
    P(f"ds_write_b128 v{VT}, v[{Z2+4}:{Z2+7}] offset:16")
    P("s_waitcnt lgkmcnt(0)")
    O = X
    for tl in range(2):
        for rr in range(2):
            P(f"ds_read_b64_tr_b16 v[{O+4*tl+2*rr}:{O+4*tl+2*rr+1}], v{VT+1} offset:{32*tl + 256*rr}")
    P("s_waitcnt lgkmcnt(0)")
    for tl in range(2):
        P(f"buffer_store_dwordx4 v[{O+4*tl}:{O+4*tl+3}], v{VT+2}, s[24:27], s{67+tl} offen sc1")
    prof(P, 6, pr)
    if pr: P("s_waitcnt vmcnt(0)")
    prof(P, 7, pr)
    P("s_endpgm")
    if aux is not None:
        P.label("k1_aux")
        prof(P, 0, pr)
        aux(P, X, T, VXW, pr)
    P.label("k1_end")
    P("s_endpgm")
    return dict(vgpr=128, agpr=128, lds=160 * 1024)
GSPLIT = [2]
FINE = [0]
```

```python
from dsl import Prog
from k2 import *
from k1 import ln1, bf16_round_v, fbits, GK0, GK1, wpre, XB
from k1b import Buf
import math

def gelu_stream(A, T, Rr):
    B = Buf()
    for q in range(8):
        a, b = A + 2 * q, A + 2 * q + 1
        t0, t1 = T + (q & 1) * 2, T + 1 + (q & 1) * 2
        B(f"v_mul_f32 v{a}, v{a}, v{Rr}")
        B(f"v_mul_f32 v{b}, v{b}, v{Rr}")
        B(f"v_mul_f32 v{t0}, v{a}, v{a}")
        B(f"v_mul_f32 v{t1}, v{b}, v{b}")
        B(f"v_fma_f32 v{t0}, v{t0}, s64, v{T+4}")
        B(f"v_fma_f32 v{t1}, v{t1}, s64, v{T+4}")
        B(f"v_mul_f32 v{t0}, v{t0}, v{a}")
        B(f"v_mul_f32 v{t1}, v{t1}, v{b}")
        B(f"v_exp_f32 v{t0}, v{t0}")
        B(f"v_exp_f32 v{t1}, v{t1}")
        B(f"v_add_f32 v{t0}, 1.0, v{t0}")
        B(f"v_add_f32 v{t1}, 1.0, v{t1}")
        B(f"v_rcp_f32 v{t0}, v{t0}")
        B(f"v_rcp_f32 v{t1}, v{t1}")
        B(f"v_mul_f32 v{a}, v{a}, v{t0}")
        B(f"v_mul_f32 v{b}, v{b}, v{t1}")
        B(f"v_cvt_pk_bf16_f32 v{A+q}, v{a}, v{b}")
    return B.l

def gen_k1(P, aux=None, pr=False):
    P.label("k1_kernel")
    P("s_cmp_ge_u32 s2, 256")
    P("s_cbranch_scc1 k1_end")
    P("s_load_dwordx2 s[4:5], s[0:1], 0")
    P("s_load_dwordx2 s[6:7], s[0:1], 80")
    P("s_load_dwordx2 s[8:9], s[0:1], 128")
    P("s_load_dwordx2 s[10:11], s[0:1], 120")
    P("s_load_dwordx2 s[40:41], s[0:1], 88")
    P("v_lshrrev_b32 v1, 6, v0")
    P("v_and_b32 v0, 63, v0")
    P("v_readfirstlane_b32 s3, v1")
    P("s_mov_b32 s62, 0x3f803f80")
    P(f"s_mov_b32 s63, {fbits(GK0)}")
    P(f"s_mov_b32 s64, {fbits(GK1)}")
    P("s_and_b32 s12, s2, 7")
    P("s_lshr_b32 s13, s2, 3")
    P("s_lshl_b32 s14, s12, 2")
    P("s_and_b32 s15, s13, 3")
    P("s_add_u32 s14, s14, s15")
    P("s_lshr_b32 s15, s13, 2")
    X = 32; T = 2; VB = 16
    P(f"v_lshrrev_b32 v{T}, 3, v0")
    P(f"v_and_b32 v{T+1}, 7, v0")
    P(f"v_lshlrev_b32 v{T+2}, 4, v{T+1}")
    P(f"v_lshl_add_u32 v{T+2}, v{T}, 10, v{T+2}")
    P("s_lshl_b32 s52, s14, 16")
    P("s_lshl_b32 s53, s3, 13")
    P("s_add_u32 s52, s52, s53")
    P(f"v_lshrrev_b32 v{T+4}, 4, v0")
    P(f"v_and_b32 v{T+5}, 15, v0")
    P("s_lshl_b32 s53, s3, 2")
    P(f"v_add_u32 v{VB}, s53, v{T+4}")
    P("s_movk_i32 s53, 3584")
    P(f"v_mul_u32_u24 v{VB}, s53, v{VB}")
    P(f"v_lshl_add_u32 v{VB}, v{T+5}, 4, v{VB}")
    P("s_lshl_b32 s54, s15, 8")
    P("s_add_u32 s55, s54, 1792")
    P("s_waitcnt lgkmcnt(0)")
    srd(P, 16, 4, 2048 * 512 * 2)
    issued = []
    for e in range(8):
        P(f"buffer_load_dwordx4 v[{X+4*e}:{X+4*e+3}], v{T+2}, s[16:19], s52 offen offset:{128*e}")
        issued.append(('X', e))
    srd(P, 20, 6, 512 * 1792 * 2)
    srd(P, 24, 8, 0x400000, WS_Z2F)
    srd(P, 28, 8, 0x400000, WS_Z1F)
    srd(P, 32, 8, 32 * 2 * 28 * 512, WS_ST)
    srd(P, 36, 40, 2048 * 2048 * 2)
    VXW = 23
    P("s_and_b32 s53, s3, 1")
    P("s_lshl_b32 s53, s53, 3")
    P(f"v_add_u32 v{T+3}, s53, v{T}")
    P(f"v_xor_b32 v{T+3}, v{T+3}, v{T+1}")
    P(f"v_lshlrev_b32 v{T+3}, 4, v{T+3}")
    P(f"v_lshl_add_u32 v{T+3}, v{T}, 10, v{T+3}")
    P("s_lshl_b32 s53, s3, 13")
    P(f"s_add_u32 s53, s53, {XB}")
    P(f"v_add_u32 v{VXW}, s53, v{T+3}")
    P(f"v_xor_b32 v{VXW+1}, 128, v{VXW}")
    if aux is not None:
        P("s_cmp_eq_u32 s15, 7")
        P("s_cbranch_scc1 k1_aux")
    ACC2, ACC1, WFR = 64, 80, 96
    def land(u):
        if u < 8: return f"v[{WFR+4*u}:{WFR+4*u+3}]"
        if u < 12: return f"v[{ACC1+4*(u-8)}:{ACC1+4*(u-8)+3}]"
        if u < 16: return f"a[{112+4*(u-12)}:{115+4*(u-12)}]"
        return f"v[{X+4*(u%8)}:{X+4*(u%8)+3}]"
    def bld(u):
        half, ku = u // 16, u % 16
        P(f"s_add_u32 s57, s{55 if half == 0 else 54}, {ku * 32 * 3584}")
        P(f"buffer_load_dwordx4 {land(u)}, v{VB}, s[20:23], s57 offen")
        issued.append(('B', u))
    def wait_for(tags):
        last = max(k for k, t in enumerate(issued) if t in tags)
        n = len(issued) - 1 - last
        P(f"s_waitcnt vmcnt({min(n,63)})")
    for u in range(4): bld(u)
    prof(P, 0, pr)
    P("s_lshl_b32 s53, s14, 3")
    P("v_mov_b32 v13, s53")
    P("s_or_b32 s53, s15, s3")
    P("s_cmp_lg_u32 s53, 0")
    P("s_cbranch_scc1 k1_nolead")
    P("s_memrealtime s[70:71]")
    P("s_waitcnt lgkmcnt(0)")
    P("s_or_b32 s70, s70, 1")
    P("v_mov_b32 v14, s70")
    P("v_mov_b32 v15, s71")
    P("s_mov_b64 exec, 1")
    P("global_store_dwordx2 v13, v[14:15], s[10:11] sc0 sc1")
    P("s_mov_b64 exec, -1")
    P.label("k1_nolead")
    if PRI[0]:
        P("s_cmp_lt_u32 s3, 4")
        P("s_cbranch_scc1 k1_nopri")
        P("s_setprio 1")
        P.label("k1_nopri")
    VLW = 17
    P(f"v_lshlrev_b32 v{T}, 2, v{T+4}")
    P(f"v_xor_b32 v{T}, v{T}, v{T+5}")
    P(f"v_lshlrev_b32 v{T}, 4, v{T}")
    P(f"v_lshl_add_u32 v{T}, v{T+4}, 8, v{T}")
    P("s_lshl_b32 s53, s3, 10")
    P(f"v_add_u32 v{VLW}, s53, v{T}")
    P(f"v_add_u32 v{VLW+1}, 0x10000, v{VLW}")
    def bwr(u):
        addr = (u % 12) * 8192
        wait_for({('B', u)})
        P(f"ds_write_b128 v{VLW+(addr>>16)}, {land(u)} offset:{addr & 0xffff}")
    P("s_lshr_b32 s59, s3, 2")
    P("s_and_b32 s58, s3, 3")
    VT = 19
    P(f"v_lshrrev_b32 v{T}, 4, v0")
    P(f"v_bfe_u32 v{T+1}, v0, 2, 2")
    P(f"v_and_b32 v{T+2}, 3, v0")
    P(f"v_and_b32 v{T+3}, 1, v{T}")
    P(f"v_lshl_add_u32 v{T+2}, v{T+3}, 2, v{T+2}")
    P(f"v_lshrrev_b32 v{T+3}, 1, v{T+2}")
    P(f"v_and_b32 v{T+4}, 1, v{T+2}")
    P(f"v_lshrrev_b32 v{T}, 1, v{T}")
    P(f"v_lshl_add_u32 v{T}, v{T}, 3, v{T+1}")
    P(f"v_lshlrev_b32 v{T}, 8, v{T}")
    P(f"v_lshlrev_b32 v{T+1}, 6, v{T+1}")
    P("s_lshl_b32 s53, s58, 6")
    P(f"v_lshlrev_b32 v{T+5}, 5, v{T+4}")
    P(f"v_lshl_add_u32 v{T+5}, v{T+3}, 3, v{T+5}")
    P(f"v_add_u32 v{T+5}, s53, v{T+5}")
    P(f"v_xor_b32 v{T+5}, v{T+5}, v{T+1}")
    P(f"v_add_u32 v{VT}, v{T+5}, v{T}")
    P(f"v_add_u32 v{VT+1}, 0x10000, v{VT}")
    P(f"v_and_b32 v{T+5}, 1, v{T+3}")
    P(f"v_lshlrev_b32 v{T+5}, 5, v{T+5}")
    P(f"v_lshl_add_u32 v{T+5}, v{T+4}, 4, v{T+5}")
    P(f"v_lshrrev_b32 v{T+3}, 1, v{T+3}")
    P(f"v_lshl_add_u32 v{T+5}, v{T+3}, 3, v{T+5}")
    P(f"v_add_u32 v{T+5}, s53, v{T+5}")
    P(f"v_xor_b32 v{T+5}, v{T+5}, v{T+1}")
    P(f"v_add_u32 v{VT+2}, v{T+5}, v{T}")
    P(f"v_add_u32 v{VT+3}, 0x10000, v{VT+2}")
    VXR = 1
    P(f"v_and_b32 v{T}, 31, v0")
    P(f"v_lshrrev_b32 v{T+1}, 5, v0")
    P(f"v_and_b32 v{T+2}, 15, v0")
    P(f"v_xor_b32 v{T+1}, v{T+1}, v{T+2}")
    P(f"v_lshlrev_b32 v{T+1}, 4, v{T+1}")
    P(f"v_lshl_add_u32 v{T+1}, v{T}, 10, v{T+1}")
    P("s_lshl_b32 s53, s59, 15")
    P(f"s_add_u32 s53, s53, {XB}")
    P(f"v_add_u32 v{VXR}, s53, v{T+1}")
    RS = 8 * 8192
    P(f"v_lshlrev_b32 v{T}, 2, v{T}")
    P("s_lshl_b32 s53, s59, 7")
    P(f"s_add_u32 s53, s53, {RS}")
    P(f"v_add_u32 v28, s53, v{T}")
    P(f"v_lshrrev_b32 v{T}, 3, v0")
    P(f"v_lshlrev_b32 v{T}, 2, v{T}")
    P("s_lshl_b32 s53, s3, 5")
    P(f"s_add_u32 s53, s53, {RS}")
    P(f"v_add_u32 v29, s53, v{T}")
    def freg(st, i, sl, k0, n):
        r = WFR + 16 * st + 8 * i + 4 * sl + k0
        return f"v[{r}:{r+n-1}]"
    def rds(sp):
        out = []
        for i in range(2):
            u = 2 * sp + i
            addr = (u % 12) * 8192
            vb = VT + 2 * (sp // 8) + (addr >> 16)
            for sl in range(2):
                for rr in range(2):
                    out.append(f"ds_read_b64_tr_b16 {freg(sp & 1, i, sl, 2*rr, 2)}, v{vb} offset:{(addr & 0xffff) + 4096*sl + 1024*rr}")
        return out
    S, Q = 8, 9
    for r in range(4): P(f"v_mov_b32 v{S+r}, 0")
    for e in range(8):
        wait_for({('X', e)})
        for r in range(4 * e, 4 * e + 4):
            a = (r & 1) * 2
            P(f"v_dot2c_f32_bf16 v{S+a}, s62, v{X+r}")
            P(f"v_dot2c_f32_bf16 v{Q+a}, v{X+r}, v{X+r}")
        if e % 2 == 1: bld(4 + e // 2)
    P(f"v_add_f32 v{S}, v{S}, v{S+2}")
    P(f"v_add_f32 v{Q}, v{Q}, v{S+3}")
    for m in ("quad_perm:[1,0,3,2]", "quad_perm:[2,3,0,1]", "row_half_mirror"):
        P(f"v_add_f32_dpp v{S}, v{S}, v{S} {m} row_mask:0xf bank_mask:0xf")
        P(f"v_add_f32_dpp v{Q}, v{Q}, v{Q} {m} row_mask:0xf bank_mask:0xf")
    P(f"v_mul_f32 v{S}, 0x3b000000, v{S}")
    P(f"v_mul_f32 v{Q}, 0x3b000000, v{Q}")
    P(f"v_fma_f32 v{Q}, -v{S}, v{S}, v{Q}")
    bf16_round_v(P, S, S, S + 2)
    P("s_mov_b32 s65, 0xffff0000")
    for e in range(8):
        for r in range(4 * e, 4 * e + 4):
            a, b = T + (r & 1) * 2, T + 1 + (r & 1) * 2
            P(f"v_lshlrev_b32 v{a}, 16, v{X+r}")
            P(f"v_and_b32 v{b}, s65, v{X+r}")
            P(f"v_sub_f32 v{a}, v{a}, v{S}")
            P(f"v_sub_f32 v{b}, v{b}, v{S}")
            P(f"v_cvt_pk_bf16_f32 v{X+r}, v{a}, v{b}")
        P(f"ds_write_b128 v{VXW+(e&1)}, v[{X+4*e}:{X+4*e+3}] offset:{256*(e>>1)}")
        bld(8 + e)
    P(f"v_max_f32 v{Q}, 0, v{Q}")
    bf16_round_v(P, Q, Q, S + 2)
    P(f"v_add_f32 v{Q}, 0x3727c5ac, v{Q}")
    bf16_round_v(P, Q, Q, S + 2)
    P(f"v_sqrt_f32 v{Q}, v{Q}")
    bf16_round_v(P, Q, Q, S + 2)
    P(f"v_rcp_f32 v{Q}, v{Q}")
    for u in range(4): bwr(u)
    P(f"ds_write_b32 v29, v{Q}")
    P("s_waitcnt lgkmcnt(0)")
    P("s_barrier")
    for s_ in rds(0): P(s_)
    RR = 28
    P(f"ds_read_b32 v{RR}, v28")
    def xfr(q, his):
        P(f"v_xor_b32 v{T+(q&1)}, {32*q}, v{VXR}")
        for hi in his:
            k16 = 8 * hi + q
            P(f"ds_read_b128 a[{4*k16}:{4*k16+3}], v{T+(q&1)} offset:{256*hi}")
    for q in range(8):
        xfr(q, (0, 1))
        if q >= 4: bwr(q)
    prof(P, 1, pr)
    hooks = {}
    def step(sp, vside=()):
        if FINE[0] and sp < 12: P(f"s_memtime s[{68+2*sp}:{69+2*sp}]")
        P("s_waitcnt lgkmcnt(0)")
        if sp % 2 == 1 and sp < 15: P("s_barrier")
        if sp in hooks: hooks[sp]()
        acc = ACC2 if sp < 8 else ACC1
        rd = rds(sp + 1) if sp < 15 else []
        vside = list(vside)
        per = (len(vside) + 3) // 4
        k = 0
        for i in range(2):
            u = 2 * sp + i
            for sl in range(2):
                k16 = 2 * (u % 16) + sl
                P(f"v_mfma_f32_32x32x16_bf16 v[{acc}:{acc+15}], {freg(sp & 1, i, sl, 0, 4)}, a[{4*k16}:{4*k16+3}], {'0' if k16 == 0 else f'v[{acc}:{acc+15}]'}")
                if k == 0:
                    for x_ in rd: P(x_)
                if k in (1, 2) and sp >= 1 and 2 * sp + 5 + k < 32: bwr(2 * sp + 5 + k)
                if sp in (0, 1) and k in (1, 2, 3, 0): xfr(4 * sp + k, (2,))
                if sp == 2: xfr(k, (3,))
                if sp == 5: xfr(4 + k, (3,))
                if k in (1, 3) and sp < 4: bld(16 + 2 * sp + (k >> 1))
                if k in (0, 1) and 6 <= sp <= 9: bld(24 + 2 * (sp - 6) + k)
                if k == 3 and sp == 5:
                    P("global_load_dwordx2 v[14:15], v13, s[10:11] sc0 sc1"); issued.append(('N', 0))
                for _ in range(per):
                    if vside: P(vside.pop(0))
                k += 1
        assert not vside
    def split(lst, n):
        k = (len(lst) + n - 1) // n
        return [lst[i*k:(i+1)*k] for i in range(n)]
    for sp in range(8): step(sp)
    prof(P, 2, pr)
    Z2 = ACC2
    GT = 8
    P(f"v_mov_b32 v{GT+4}, s63")
    gs = gelu_stream(ACC2, GT, RR)
    SS = Buf()
    S2, Q2 = ACC2 + 8, ACC2 + 9
    SS(f"v_mov_b32 v{S2}, 0")
    SS(f"v_mov_b32 v{Q2}, 0")
    for q in range(8):
        SS(f"v_dot2c_f32_bf16 v{S2}, s62, v{Z2+q}")
        SS(f"v_dot2c_f32_bf16 v{Q2}, v{Z2+q}, v{Z2+q}")
    SS(f"v_mov_b32 v{S2+2}, v{S2}")
    SS(f"v_mov_b32 v{S2+3}, v{Q2}")
    SS(f"v_permlane32_swap_b32 v{S2}, v{S2+2}")
    SS(f"v_permlane32_swap_b32 v{Q2}, v{S2+3}")
    SS(f"v_add_f32 v{S2}, v{S2}, v{S2+2}")
    SS(f"v_add_f32 v{Q2}, v{Q2}, v{S2+3}")
    SS(f"v_lshlrev_b32 v{S2+4}, 4, v0")
    SS("s_lshl_b32 s53, s14, 1")
    SS("s_add_u32 s53, s53, s59")
    SS("s_mul_i32 s60, s53, 14336")
    SS("s_lshl_b32 s53, s15, 2")
    SS("s_add_u32 s53, s53, s58")
    SS("s_lshl_b32 s53, s53, 9")
    SS("s_add_u32 s53, s53, s60")
    av = split(gs + SS.l, GSPLIT[0])
    for k in range(GSPLIT[0]): step(8 + k, av[k])
    wait_for({('N', 0)})
    P("s_mov_b32 s56, 0")
    P.label("k1_nonce")
    P("v_readfirstlane_b32 s70, v14")
    P("v_readfirstlane_b32 s71, v15")
    P("s_cmp_lg_u32 s70, 0")
    P("s_cbranch_scc1 k1_nonce_ok")
    P("global_load_dwordx2 v[14:15], v13, s[10:11] sc0 sc1")
    P("s_add_u32 s56, s56, 1")
    P("s_waitcnt vmcnt(0)")
    P("s_cmp_lt_u32 s56, 0x200000")
    P("s_cbranch_scc1 k1_nonce")
    P.label("k1_nonce_ok")
    P(f"v_mov_b32 v{S2+2}, v14")
    P(f"v_mov_b32 v{S2+3}, v15")
    P("s_mov_b32 exec_hi, 0")
    P(f"buffer_store_dwordx4 v[{S2}:{S2+3}], v{S2+4}, s[32:35], s53 offen sc0 sc1")
    issued.append(('S', 0))
    P("v_lshlrev_b32 v30, 7, v0")
    P("s_lshl_b32 s56, s2, 15")
    P("s_lshl_b32 s57, s3, 12")
    P("s_add_u32 s56, s56, s57")
    P("buffer_load_dword v31, v30, s[36:39], s56 offen")
    issued.append(('P', 0))
    P("s_mov_b64 exec, -1")
    prof(P, 3, pr)
    for sp in range(8 + GSPLIT[0], 16): step(sp)
    if FINE[0]:
        P("s_lshl_b32 s92, s2, 3")
        P("s_add_u32 s92, s92, s3")
        P("s_lshl_b32 s92, s92, 6")
        P(f"s_add_u32 s92, s92, {WS_PROF + 3*0x40000}")
        P("v_mov_b32 v25, s92")
        for k in range(12):
            P(f"v_mov_b32 v26, s{68+2*k}")
            P(f"global_store_dword v25, v26, s[8:9] offset:{4*k}")
    prof(P, 4, pr)
    def gather():
        for c in range(14):
            if c % 4 == 0: P(f"s_add_u32 s61, s60, {1024*c}")
            P(f"buffer_load_dwordx4 a[{4*c}:{4*c+3}], v{S2+4}, s[32:35], s61 offen offset:{1024*(c%4)} sc0 sc1")
    P("s_cmp_lg_u32 s58, 0")
    P("s_cbranch_scc1 k1_nog1")
    gather()
    P.label("k1_nog1")
    Z1 = ACC1
    P(f"v_and_b32 v{T}, 15, v0")
    P(f"v_bfe_u32 v{T+1}, v0, 4, 1")
    P(f"v_lshrrev_b32 v{T+2}, 5, v0")
    P(f"v_lshlrev_b32 v{T}, 4, v{T}")
    P(f"v_lshl_add_u32 v{T}, v{T+1}, 10, v{T}")
    P(f"v_lshl_add_u32 v{T}, v{T+2}, 9, v{T}")
    P("s_mul_i32 s53, s14, 28")
    P("s_lshl_b32 s56, s15, 2")
    P("s_add_u32 s53, s53, s56")
    P("s_add_u32 s53, s53, s58")
    P("s_lshl_b32 s53, s53, 12")
    P("s_lshl_b32 s56, s59, 11")
    P("s_add_u32 s53, s53, s56")
    for s_ in gelu_stream(ACC1, GT, RR): P(s_)
    P(f"buffer_store_dwordx4 v[{Z1}:{Z1+3}], v{T}, s[28:31], s53 offen sc1")
    P(f"buffer_store_dwordx4 v[{Z1+4}:{Z1+7}], v{T}, s[28:31], s53 offen offset:256 sc1")
    prof(P, 5, pr)
    PS = WFR
    MS = 2 * 8192
    P("s_cmp_lg_u32 s58, 0")
    P("s_cbranch_scc1 k1_nopoll")
    P("s_mov_b32 s56, 0")
    P.label("k1_poll")
    P("s_waitcnt vmcnt(0)")
    for r in range(4): P(f"v_mov_b32 v{PS+r}, 0")
    for c in range(14):
        for r in range(4): P(f"v_accvgpr_read_b32 v{PS+4+r}, a{4*c+r}")
        P(f"v_add_f32 v{PS}, v{PS}, v{PS+4}")
        P(f"v_add_f32 v{PS+1}, v{PS+1}, v{PS+5}")
        P(f"v_xor_b32 v{PS+6}, v{PS+6}, v14")
        P(f"v_xor_b32 v{PS+7}, v{PS+7}, v15")
        P(f"v_or_b32 v{PS+2}, v{PS+2}, v{PS+6}")
        P(f"v_or_b32 v{PS+3}, v{PS+3}, v{PS+7}")
    P(f"v_or_b32 v{PS+2}, v{PS+2}, v{PS+3}")
    P(f"v_cmp_ne_u32 vcc, 0, v{PS+2}")
    P("s_add_u32 s56, s56, 1")
    P("s_cmp_eq_u64 vcc, 0")
    P("s_cbranch_scc1 k1_got")
    gather()
    P("s_cmp_lt_u32 s56, 0x100000")
    P("s_cbranch_scc1 k1_poll")
    P("s_waitcnt vmcnt(0)")
    P.label("k1_got")
    P(f"v_mov_b32 v{PS+2}, v{PS}")
    P(f"v_mov_b32 v{PS+3}, v{PS+1}")
    P(f"v_permlane32_swap_b32 v{PS}, v{PS+2}")
    P(f"v_permlane32_swap_b32 v{PS+1}, v{PS+3}")
    P(f"v_add_f32 v{PS}, v{PS}, v{PS+2}")
    P(f"v_add_f32 v{PS+1}, v{PS+1}, v{PS+3}")
    S, Q = PS, PS + 1
    P(f"v_mul_f32 v{S}, {fbits(1/896)}, v{S}")
    P(f"v_mul_f32 v{Q}, {fbits(1/896)}, v{Q}")
    P(f"v_fma_f32 v{Q}, -v{S}, v{S}, v{Q}")
    P(f"v_max_f32 v{Q}, 0, v{Q}")
    bf16_round_v(P, S, S, T + 2)
    bf16_round_v(P, Q, Q, T + 2)
    P(f"v_add_f32 v{Q}, 0x3727c5ac, v{Q}")
    bf16_round_v(P, Q, Q, T + 2)
    P(f"v_sqrt_f32 v{Q}, v{Q}")
    bf16_round_v(P, Q, Q, T + 2)
    P(f"v_rcp_f32 v{Q}, v{Q}")
    P(f"v_and_b32 v{T}, 31, v0")
    P(f"v_lshlrev_b32 v{T}, 3, v{T}")
    P("s_lshl_b32 s53, s59, 8")
    P(f"s_add_u32 s53, s53, {MS}")
    P(f"v_add_u32 v{T}, s53, v{T}")
    P(f"ds_write_b64 v{T}, v[{S}:{Q}]")
    P.label("k1_nopoll")
    P(f"v_and_b32 v{VT+3}, 31, v0")
    P(f"v_lshlrev_b32 v{VT+3}, 3, v{VT+3}")
    P("s_lshl_b32 s53, s59, 8")
    P(f"s_add_u32 s53, s53, {MS}")
    P(f"v_add_u32 v{VT+3}, s53, v{VT+3}")
    P(f"v_and_b32 v{T}, 31, v0")
    P(f"v_lshrrev_b32 v{T+1}, 5, v0")
    P(f"v_lshlrev_b32 v{T}, 6, v{T}")
    P(f"v_lshl_add_u32 v{T}, v{T+1}, 5, v{T}")
    P("s_lshl_b32 s53, s3, 11")
    P(f"v_add_u32 v{VT}, s53, v{T}")
    P(f"v_lshrrev_b32 v{T+1}, 4, v0")
    P(f"v_bfe_u32 v{T+2}, v0, 2, 2")
    P(f"v_and_b32 v{T+3}, 3, v0")
    P(f"v_lshl_add_u32 v{T+1}, v{T+1}, 3, v{T+2}")
    P(f"v_lshlrev_b32 v{T+1}, 6, v{T+1}")
    P(f"v_lshl_add_u32 v{T+1}, v{T+3}, 3, v{T+1}")
    P(f"v_add_u32 v{VT+1}, s53, v{T+1}")
    P(f"v_lshlrev_b32 v{VT+2}, 4, v0")
    P("s_lshl_b32 s60, s14, 1")
    P("s_add_u32 s60, s60, s59")
    for tl in range(2):
        P("s_lshl_b32 s53, s15, 3")
        P("s_lshl_b32 s61, s58, 1")
        P("s_add_u32 s53, s53, s61")
        if tl: P("s_add_u32 s53, s53, 1")
        P("s_mul_i32 s61, s53, 37")
        P("s_lshr_b32 s61, s61, 8")
        P("s_mul_i32 s65, s61, 7")
        P("s_sub_u32 s53, s53, s65")
        P("s_add_u32 s65, s53, 6")
        P("s_sub_u32 s66, s53, 1")
        P("s_cmp_eq_u32 s53, 0")
        P("s_cselect_b32 s65, s65, s66")
        P("s_bitcmp1_b32 s61, 0")
        P("s_cselect_b32 s53, s65, s53")
        P("s_lshl_b32 s61, s61, 6")
        P("s_add_u32 s61, s61, s60")
        P("s_mul_i32 s61, s61, 7")
        P("s_add_u32 s61, s61, s53")
        P(f"s_lshl_b32 s{67+tl}, s61, 10")
    U = X
    for r in range(8):
        P(f"v_lshlrev_b32 v{U+2*r}, 16, v{Z2+r}")
        P(f"v_and_b32 v{U+2*r+1}, 0xffff0000, v{Z2+r}")
    P("s_waitcnt lgkmcnt(0)")
    P("s_barrier")
    P(f"ds_read_b64 v[{S}:{Q}], v{VT+3}")
    P("s_waitcnt lgkmcnt(0)")
    for r in range(16): P(f"v_sub_f32 v{U+r}, v{U+r}, v{S}")
    for r in range(16): P(f"v_mul_f32 v{U+r}, v{U+r}, v{Q}")
    for r in range(8): P(f"v_cvt_pk_bf16_f32 v{Z2+r}, v{U+2*r}, v{U+2*r+1}")
    P(f"ds_write_b128 v{VT}, v[{Z2}:{Z2+3}]")
    P(f"ds_write_b128 v{VT}, v[{Z2+4}:{Z2+7}] offset:16")
    P("s_waitcnt lgkmcnt(0)")
    O = X + 16
    for tl in range(2):
        for rr in range(2):
            P(f"ds_read_b64_tr_b16 v[{O+4*tl+2*rr}:{O+4*tl+2*rr+1}], v{VT+1} offset:{32*tl + 256*rr}")
    P("s_waitcnt lgkmcnt(0)")
    for tl in range(2):
        P(f"buffer_store_dwordx4 v[{O+4*tl}:{O+4*tl+3}], v{VT+2}, s[24:27], s{67+tl} offen sc1")
    prof(P, 6, pr)
    if pr: P("s_waitcnt vmcnt(0)")
    prof(P, 7, pr)
    P("s_endpgm")
    if aux is not None:
        P.label("k1_aux")
        prof(P, 0, pr)
        aux(P, X, T, VXW, pr)
    P.label("k1_end")
    P("s_endpgm")
    return dict(vgpr=128, agpr=128, lds=160 * 1024)
GSPLIT = [3]
FINE = [0]
PRI = [0]
```

```python
from dsl import Prog
WS_Z2F = 0x0000000
WS_Z1F = 0x0400000
WS_HF  = 0x0800000
WS_XNT = 0x0C00000
WS_YAT = 0x0E00000
WS_KR  = 0x1000000
WS_WOF = 0x1800000
WS_ST  = 0x1900000
KR_STRIDE = 8704

def srd(P, d, base, nbytes, off=0):
    if off:
        P(f"s_add_u32 s{d}, s{base}, {off}")
        P(f"s_addc_u32 s{d+1}, s{base+1}, 0")
        P(f"s_and_b32 s{d+1}, s{d+1}, 0xffff")
    else:
        P(f"s_mov_b32 s{d}, s{base}")
        P(f"s_and_b32 s{d+1}, s{base+1}, 0xffff")
    P(f"s_mov_b32 s{d+2}, {nbytes}")
    P(f"s_mov_b32 s{d+3}, 0x00020000")

WS_PROF = 0x1A00000
PROF_K = [0]
PRIO = [0, 0]
LF = [0]
EXP = [0]
def prof(P, idx, on):
    if not on: return
    P("s_memrealtime s[90:91]")
    P("s_lshl_b32 s92, s2, 3")
    P("s_add_u32 s92, s92, s3")
    P("s_lshl_b32 s92, s92, 6")
    P(f"s_add_u32 s92, s92, {WS_PROF + PROF_K[0]*0x40000 + idx*8}")
    P("s_waitcnt lgkmcnt(0)")
    P("v_mov_b32 v26, s90")
    P("v_mov_b32 v27, s91")
    P("v_mov_b32 v25, s92")
    P("global_store_dwordx2 v25, v[26:27], s[8:9]")

CW_AREA = 16384
XPO = 8704
from kgen import kgen
def gen_conv(P, CB, pr):
    prof(P, 0, pr)
    if PRIO[1] == 9: P("s_endpgm")
    elif PRIO[1]: P(f's_setprio {PRIO[1]}')
    T = 2
    P("s_sub_u32 s52, s3, 4")
    P("s_lshr_b32 s53, s52, 1")
    P("s_lshl_b32 s54, s2, 1")
    P("s_add_u32 s54, s54, s53")
    P(f"s_mul_i32 s55, s52, {CW_AREA}")
    P(f"s_add_u32 s55, s55, {CB}")
    PAR = 104
    P("s_xor_b32 s60, s52, 1")
    P(f"s_mul_i32 s60, s60, {CW_AREA}")
    P(f"s_add_u32 s60, s60, {CB}")
    P("s_and_b32 s61, s52, 1")
    P(f"v_mov_b32 v{T}, s55")
    P(f"v_mov_b32 v{T+1}, 0")
    P(f"ds_write_b32 v{T}, v{T+1} offset:16380")
    P(f"v_lshlrev_b32 v{T}, 2, v0")
    P("s_lshl_b32 s53, s54, 8")
    P(f"v_add_u32 v{T}, s53, v{T}")
    P("s_lshl_b32 s53, s54, 1")
    P(f"v_mov_b32 v{T+1}, s53")
    P("s_waitcnt lgkmcnt(0)")
    for k in range(6):
        P(f"global_load_dword v{PAR+k}, v{T}, s[{68+2*k}:{69+2*k}]")
    P(f"global_load_ushort v{PAR+6}, v{T+1}, s[80:81]")
    P(f"global_load_ushort v{PAR+7}, v{T+1}, s[10:11]")
    P("s_barrier")
    P("s_waitcnt vmcnt(0)")
    P(f"v_lshlrev_b32 v{PAR+6}, 16, v{PAR+6}")
    prof(P, 3, pr)
    def xload():
        P("s_lshl_b32 s59, s54, 12")
        P(f"v_lshlrev_b32 v{T}, 4, v0")
        P(f"s_add_u32 m0, s55, {XPO+512}")
        P("s_nop 0")
        for e in range(4):
            P(f"buffer_load_dwordx4 v{T}, s[36:39], s59 offen offset:{1024*e} lds")
        P(f"v_mov_b32 v{T+2}, 0")
        P(f"v_mov_b32 v{T+3}, 0")
        P(f"v_lshlrev_b32 v{T+1}, 3, v0")
        P(f"v_add_u32 v{T+1}, s55, v{T+1}")
        P(f"ds_write_b64 v{T+1}, v[{T+2}:{T+3}] offset:{XPO}")
    kgen(P, PAR, 55, 60, 61, xload)
    prof(P, 2, pr)
    P(f"v_mov_b32 v{T+9}, s57")
    P(f"v_mov_b32 v{T+8}, v{PAR+7}")
    P("s_lshl_b32 s57, s54, 12")
    VA = 12
    P(f"v_and_b32 v{T}, 15, v0")
    P(f"v_lshrrev_b32 v{T+1}, 5, v0")
    P(f"v_bfe_u32 v{T+2}, v0, 4, 1")
    P(f"v_lshl_add_u32 v{T+3}, v{T+1}, 4, v{T}")
    P(f"v_add_u32 v{T+3}, 9, v{T+3}")
    P(f"v_lshlrev_b32 v{T+4}, 3, v{T+2}")
    P(f"v_sub_u32 v{T+3}, v{T+3}, v{T+4}")
    P(f"v_and_b32 v{T+4}, 1, v{T+3}")
    P(f"v_sub_u32 v{T+3}, v{T+3}, v{T+4}")
    P(f"v_lshlrev_b32 v{T+3}, 1, v{T+3}")
    P("s_movk_i32 s58, 4288")
    P(f"v_mad_u32_u24 v{T+3}, v{T+4}, s58, v{T+3}")
    P(f"v_add_u32 v{VA}, s55, v{T+3}")
    for k in range(1, 4):
        P(f"v_add_u32 v{VA+k}, {1024*k}, v{VA}")
    P(f"v_sub_u32 v{T+3}, v{T}, v{T+1}")
    P(f"v_lshlrev_b32 v{T+3}, 5, v{T+3}")
    P(f"v_lshl_add_u32 v{T+3}, v{T+2}, 4, v{T+3}")
    P(f"s_add_u32 s58, s55, {XPO}")
    P(f"v_add_u32 v{VA+4}, s58, v{T+3}")
    P(f"v_lshl_add_u32 v{T+3}, v{T}, 1, v{T+1}")
    P(f"v_lshlrev_b32 v{T+3}, 4, v{T+3}")
    P(f"v_xor_b32 v{T+4}, 1, v{T+2}")
    P(f"v_lshl_add_u32 v{T+3}, v{T+4}, 3, v{T+3}")
    P(f"v_add_u32 v{VA+5}, s58, v{T+3}")
    P(f"v_lshrrev_b32 v{T+3}, 4, v0")
    P(f"v_lshlrev_b32 v{T+3}, 3, v{T+3}")
    P(f"v_lshl_add_u32 v{VA+6}, v{T}, 5, v{T+3}")
    AF, BF, ACC = 20, 52, 84
    for r in range(20): P(f"v_mov_b32 v{ACC+r}, 0")
    P("s_waitcnt vmcnt(0) lgkmcnt(0)")
    P("s_bitcmp1_b32 s52, 0")
    P("s_cbranch_scc1 k2_conv1")
    for part, U in enumerate(([7, 6, 2], [5, 4, 3, 1, 0])):
        if part: P.label("k2_conv1")
        um = max(U)
        def rds(st, dl):
            out = []
            for i in range(um + 1):
                o = 128 * (i & 1) + 16 * dl
                ra = (lambda k: f"v[{AF+4*i+k}:{AF+4*i+k+1}]") if st == 0 else (lambda k: f"a[{4*i+k}:{4*i+k+1}]")
                rb = f"v[{BF+4*i}:{BF+4*i+3}]" if st == 0 else f"a[{32+4*i}:{32+4*i+3}]"
                out.append(f"ds_read2_b32 {ra(0)}, v{VA+(i>>1)} offset0:{o} offset1:{o+1}")
                out.append(f"ds_read2_b32 {ra(2)}, v{VA+(i>>1)} offset0:{o+2} offset1:{o+3}")
                out.append(f"ds_read_b128 {rb}, v{VA+4} offset:{512+512*i-64*dl}")
            return out
        work = []
        for step in range(um + 1):
            for k, u in enumerate(U):
                if step <= u: work.append((k, step, u - step))
        def mf(st, side):
            side = list(side)
            for n_, (k, i, w) in enumerate(work):
                a = ACC + 4 * k
                ra = f"v[{AF+4*i}:{AF+4*i+3}]" if st == 0 else f"a[{4*i}:{4*i+3}]"
                rb = f"v[{BF+4*w}:{BF+4*w+3}]" if st == 0 else f"a[{32+4*w}:{32+4*w+3}]"
                P(f"v_mfma_f32_16x16x32_f16 v[{a}:{a+3}], {ra}, {rb}, v[{a}:{a+3}]")
                for _ in range(2 if n_ < len(side) // 3 else 1):
                    if side: P(side.pop(0))
            for x_ in side: P(x_)
        for x_ in rds(0, 0): P(x_)
        P("s_mov_b32 s59, 0")
        P.label(f"k2_cloop{part}")
        P("s_waitcnt lgkmcnt(0)")
        mf(0, rds(1, 1))
        P("s_waitcnt lgkmcnt(0)")
        mf(1, rds(0, 2))
        for k in range(4): P(f"v_add_u32 v{VA+k}, 128, v{VA+k}")
        P(f"v_subrev_u32 v{VA+4}, 128, v{VA+4}")
        P("s_add_u32 s59, s59, 1")
        P("s_cmp_lt_u32 s59, 4")
        P(f"s_cbranch_scc1 k2_cloop{part}")
        P("s_waitcnt lgkmcnt(0)")
        for k, u in enumerate(U):
            P(f"ds_read_b64 v[{AF+2*k}:{AF+2*k+1}], v{VA+5} offset:{512+512*u}")
        P(f"v_lshlrev_b32 v{T+8}, 16, v{T+8}")
        P("s_waitcnt lgkmcnt(0)")
        for k, u in enumerate(U):
            a = ACC + 4 * k; xl, xh = AF + 2 * k, AF + 2 * k + 1
            for i in range(4): P(f"v_mul_f32 v{a+i}, v{a+i}, v{T+9}")
            P(f"v_cvt_pk_bf16_f32 v{T}, v{a}, v{a+1}")
            P(f"v_cvt_pk_bf16_f32 v{T+1}, v{a+2}, v{a+3}")
            P(f"v_cvt_f32_f16_sdwa v{a}, v{xh} dst_sel:DWORD dst_unused:UNUSED_PAD src0_sel:WORD_1")
            P(f"v_cvt_f32_f16 v{a+1}, v{xh}")
            P(f"v_cvt_f32_f16_sdwa v{a+2}, v{xl} dst_sel:DWORD dst_unused:UNUSED_PAD src0_sel:WORD_1")
            P(f"v_cvt_f32_f16 v{a+3}, v{xl}")
            for i in range(4): P(f"v_mul_f32 v{a+i}, v{a+i}, v{T+8}")
            P(f"v_cvt_pk_bf16_f32 v{T+2}, v{a}, v{a+1}")
            P(f"v_cvt_pk_bf16_f32 v{T+3}, v{a+2}, v{a+3}")
            for hh in range(2):
                P(f"v_lshlrev_b32 v{a+2*hh}, 16, v{T+hh}")
                P(f"v_and_b32 v{a+2*hh+1}, 0xffff0000, v{T+hh}")
                P(f"v_lshlrev_b32 v{T+4}, 16, v{T+2+hh}")
                P(f"v_and_b32 v{T+5}, 0xffff0000, v{T+2+hh}")
                P(f"v_add_f32 v{a+2*hh}, v{a+2*hh}, v{T+4}")
                P(f"v_add_f32 v{a+2*hh+1}, v{a+2*hh+1}, v{T+5}")
            P(f"v_cvt_pk_bf16_f32 v{BF+2*k}, v{a}, v{a+1}")
            P(f"v_cvt_pk_bf16_f32 v{BF+2*k+1}, v{a+2}, v{a+3}")
            P(f"buffer_store_dwordx2 v[{BF+2*k}:{BF+2*k+1}], v{VA+6}, s[40:43], s57 offen offset:{512*u} sc1")
        prof(P, 1, pr)
        P("s_barrier")
        P("s_endpgm")

def gen_k2(P, NST=3, conv=True, nz=3, pr=False):
    STG = 8192
    AREA = NST * STG
    P.label("k2_kernel")
    P("s_cmp_ge_u32 s2, 256")
    P("s_cbranch_scc1 k2_end")
    P("s_load_dwordx2 s[4:5], s[0:1], 88")
    P("s_load_dwordx2 s[6:7], s[0:1], 96")
    P("s_load_dwordx2 s[8:9], s[0:1], 128")
    P("s_load_dwordx2 s[10:11], s[0:1], 64")
    P("s_load_dwordx4 s[68:71], s[0:1], 8")
    P("s_load_dwordx4 s[72:75], s[0:1], 24")
    P("s_load_dwordx4 s[76:79], s[0:1], 40")
    P("s_load_dwordx2 s[80:81], s[0:1], 56")
    P("v_lshrrev_b32 v1, 6, v0")
    P("v_and_b32 v0, 63, v0")
    P("v_readfirstlane_b32 s3, v1")
    P("s_and_b32 s12, s2, 7")
    P("s_lshr_b32 s13, s2, 3")
    P("s_lshr_b32 s14, s12, 1")
    P("s_lshl_b32 s14, s14, 3")
    P("s_and_b32 s15, s13, 7")
    P("s_add_u32 s14, s14, s15")
    P("s_and_b32 s15, s12, 1")
    P("s_lshl_b32 s15, s15, 2")
    P("s_lshr_b32 s13, s13, 3")
    P("s_add_u32 s15, s15, s13")
    if EXP[0] in (5, 6):
        P("s_mov_b32 s14, 0")
        P("s_mov_b32 s15, 0")
    P("s_waitcnt lgkmcnt(0)")
    srd(P, 16, 4, 2048 * 2048 * 2)
    srd(P, 20, 8, 0x400000, WS_Z2F)
    srd(P, 24, 8, 0x400000, WS_Z1F)
    srd(P, 28, 8, 0x400000, WS_HF)
    srd(P, 32, 6, 4096)
    srd(P, 36, 8, 0x200000, WS_XNT)
    srd(P, 40, 8, 0x200000, WS_YAT)
    if conv:
        P("s_cmp_ge_u32 s3, 4")
        P("s_cbranch_scc1 k2_conv")
    if PRIO[0] == 9: P('s_endpgm')
    elif PRIO[0]: P(f's_setprio {PRIO[0]}')
    prof(P, 0, pr)
    if pr: P("s_memtime s[82:83]")
    VW = 2
    VZ = 10
    VA = 12
    T = 20
    WF = 28
    ZB = 60
    P(f"v_lshrrev_b32 v{T}, 3, v0")
    P(f"v_and_b32 v{T+1}, 7, v0")
    P(f"v_lshrrev_b32 v{T+2}, 1, v{T}")
    P(f"v_xor_b32 v{T+1}, v{T+1}, v{T+2}")
    P(f"v_lshlrev_b32 v{T+1}, 4, v{T+1}")
    P(f"v_lshl_add_u32 v{T+1}, v{T}, 12, v{T+1}")
    P(f"v_xor_b32 v{T+2}, 64, v{T+1}")
    for e in range(8):
        P(f"v_add_u32 v{VW+e}, {8*e*4096 - 1024*(e&3)}, v{T+1+(e&1)}")
    P(f"v_lshlrev_b32 v{VZ}, 4, v0")
    P(f"v_add_u32 v{VZ+1}, 4096, v{VZ}")
    P(f"v_and_b32 v{T}, 15, v0")
    P(f"v_lshrrev_b32 v{T+1}, 4, v0")
    P(f"v_lshrrev_b32 v{T+2}, 1, v{T}")
    P(f"v_xor_b32 v{T+1}, v{T+1}, v{T+2}")
    P(f"v_lshlrev_b32 v{T+1}, 4, v{T+1}")
    P(f"v_lshl_add_u32 v{T+1}, v{T}, 7, v{T+1}")
    P(f"s_mul_i32 s52, s3, {AREA}")
    for tau in range(4):
        P(f"s_add_u32 s53, s3, {tau}")
        P(f"s_and_b32 s53, s53, 3")
        P(f"s_lshl_b32 s53, s53, 11")
        P(f"s_add_u32 s53, s53, s52")
        P(f"v_add_u32 v{VA+tau}, s53, v{T+1}")
        P(f"v_xor_b32 v{VA+4+tau}, 64, v{VA+tau}")
    P("s_lshl_b32 s54, s14, 18")
    P("s_lshl_b32 s53, s3, 10")
    P("s_add_u32 s54, s54, s53")
    P(f"s_mul_i32 s55, s15, {64*7168}")
    P(f"s_mul_i32 s53, s3, {16*7168}")
    P("s_add_u32 s55, s55, s53")
    def wdma(q):
        out = []
        st = q % NST
        for e in range(8):
            pre = []
            if e % 4 == 0:
                pre.append(f"s_add_u32 m0, s52, {st*STG + e*1024}")
                if e == 0: pre.append(f"s_add_u32 s56, s54, {q*128}")
                else: pre.append("s_nop 0")
            out.append("\n".join(pre + [f"buffer_load_dwordx4 v{VW+e}, s[16:19], s56 offen offset:{1024*(e&3)} lds"]))
        return out
    def zld(i):
        out = []
        b = ZB + 28 * (i % nz)
        for ft in range(7):
            pre = [f"s_add_u32 s57, s55, {i*7168}"] if ft == 0 else []
            out.append("\n".join(pre + [f"buffer_load_dwordx4 v[{b+4*ft}:{b+4*ft+3}], v{VZ+(ft>>2)}, s[20:23], s57 offen offset:{1024*(ft&3)}"]))
        return out
    def wrd(i):
        out = []
        st = (i // 2) % NST; h = i & 1
        b = WF + 16 * (i & 1)
        for tau in range(4):
            out.append(f"ds_read_b128 v[{b+4*tau}:{b+4*tau+3}], v{VA+4*h+tau} offset:{st*STG}")
        return out
    ZD = nz - 1
    WD = NST - 1
    issued = []
    def emit(lst, tag):
        for s in lst:
            P(s); issued.append(tag)
    for q in range(max(WD, (ZD + 1) // 2)):
        if q < WD: emit(wdma(q), ('W', q))
        for i in (2 * q, 2 * q + 1):
            if i < ZD: emit(zld(i), ('Z', i))
    if conv: P('s_barrier')
    for r in range(112):
        P(f"v_accvgpr_write_b32 a{r}, 0")
    def wait_for(tags):
        if not any(t in tags for t in issued): return
        last = max(k for k, t in enumerate(issued) if t in tags)
        n = len(issued) - 1 - last
        P(f"s_waitcnt vmcnt({min(n,63)})")
    Z1 = ZB + 28 * ((15 - ZD) % nz)
    def epi_loads():
        P("s_and_b32 s53, s15, 1")
        P("s_mul_i32 s58, s15, 7")
        P("s_add_u32 s58, s58, s53")
        P("s_lshr_b32 s58, s58, 1")
        P("s_lshl_b32 s59, s53, 2")
        P("s_sub_u32 s59, 3, s59")
        P("s_add_u32 s59, s59, s58")
        P("s_mul_i32 s60, s14, 28")
        P("s_add_u32 s58, s58, s60")
        P("s_add_u32 s59, s59, s60")
        P("s_lshl_b32 s58, s58, 2")
        P("s_lshl_b32 s59, s59, 2")
        P("s_add_u32 s58, s58, s3")
        P("s_add_u32 s59, s59, s3")
        P("s_lshl_b32 s58, s58, 10")
        P("s_lshl_b32 s59, s59, 10")
        P("s_lshl_b32 s53, s53, 3")
        P("s_add_u32 s59, s59, s53")
        P(f"buffer_load_dwordx4 v[{Z1}:{Z1+3}], v{VZ}, s[24:27], s58 offen")
        P(f"buffer_load_dwordx4 v[{Z1+4}:{Z1+7}], v{VZ+1}, s[24:27], s58 offen")
        P(f"s_add_u32 s60, s58, 8192")
        P(f"buffer_load_dwordx4 v[{Z1+8}:{Z1+11}], v{VZ}, s[24:27], s60 offen")
        P(f"buffer_load_dwordx2 v[{Z1+12}:{Z1+13}], v{VZ}, s[24:27], s59 offen")
        P(f"v_and_b32 v{T}, 15, v0")
        P(f"v_lshlrev_b32 v{T}, 1, v{T}")
        P("s_lshl_b32 s61, s14, 7")
        P("s_lshl_b32 s53, s3, 5")
        P("s_add_u32 s61, s61, s53")
        P(f"buffer_load_ushort v{T+3}, v{T}, s[32:35], s61 offen")
    wait_for({('W', 0)})
    if pr: P('s_memrealtime s[80:81]')
    for s in wrd(0): P(s)
    for i in range(16):
        need_tags = {('Z', i)}
        if i + 1 < 16: need_tags.add(('W', (i + 1) // 2))
        wait_for(need_tags)
        P("s_waitcnt lgkmcnt(0)")
        side = []
        if i + 1 < 16: side += [(s, None) for s in wrd(i + 1)]
        if i + ZD < 16: side += [(s, ('Z', i + ZD)) for s in zld(i + ZD)]
        if i % 2 == 0 and i // 2 + WD < 8: side += [(s, ('W', i // 2 + WD)) for s in wdma(i // 2 + WD)]
        zb = ZB + 28 * (i % nz); wb = WF + 16 * (i & 1)
        if EXP[0] in (3, 4):
            drop = 'W' if EXP[0] == 3 else 'Z'
            side2 = []
            for x in side:
                if x[1] and x[1][0] == drop: side2.append(("s_nop 0", None))
                else: side2.append(x)
            side = side2
        if EXP[0] == 2:
            for x in side:
                if x[1]: issued.append(x[1])
            side = [x for x in side if not x[1]]
            P("s_sleep 7")
        k = 0
        if LF[0]:
            if LF[0] == 2: P("s_setprio 3")
            mem = [x for x in side if x[1]]; side = [x for x in side if not x[1]]
            for s_, tag in mem:
                P(s_); issued.append(tag)
            if LF[0] == 2: P("s_setprio 0")
        for ft in range(7):
            for tau in range(4):
                a = 4 * (ft * 4 + tau)
                if EXP[0] not in (1, 3, 4, 6): P(f"v_mfma_f32_16x16x32_bf16 a[{a}:{a+3}], v[{zb+4*ft}:{zb+4*ft+3}], v[{wb+4*tau}:{wb+4*tau+3}], a[{a}:{a+3}]")
                if k < len(side):
                    s, tag = side[k]; k += 1
                    P(s)
                    if tag: issued.append(tag)
        assert k == len(side)
        if i == 16 - ZD:
            epi_loads()
            for _ in range(5): issued.append(('E', 0))
    prof(P, 2, pr)
    if pr:
        P('v_mov_b32 v26, s80')
        P('v_mov_b32 v27, s81')
        P('global_store_dwordx2 v25, v[26:27], s[8:9] offset:-8')
    P(f"v_add_u32 v{T+2}, s52, v{VZ}")
    for tau in range(1, 4):
        for ft in range(7):
            a = 4 * (ft * 4 + tau)
            P(f"ds_write_b128 v{T+2}, a[{a}:{a+3}] offset:{(tau-1)*7168 + ft*1024}")
    P("s_waitcnt lgkmcnt(0)")
    P("s_barrier")
    RB = [ZB + 28 * ((15 - ZD + 1) % nz), ZB + 28 * ((15 - ZD + 2) % nz), WF]
    R = RB[0]
    for dl in range(1, 4):
        P(f"s_sub_u32 s53, s3, {dl}")
        P("s_and_b32 s53, s53, 3")
        P(f"s_mul_i32 s53, s53, {AREA}")
        P(f"v_add_u32 v{T+2}, s53, v{VZ}")
        for ft in range(7):
            r = RB[dl - 1] + 4 * ft
            P(f"ds_read_b128 v[{r}:{r+3}], v{T+2} offset:{(dl-1)*7168 + ft*1024}")
    G = T + 4
    P("s_waitcnt lgkmcnt(14)")
    for ft in range(7):
        for i in range(4):
            P(f"v_accvgpr_read_b32 v{G+i}, a{4*(ft*4)+i}")
        for i in range(4):
            P(f"v_add_f32 v{R+4*ft+i}, v{R+4*ft+i}, v{G+i}")
    P("s_waitcnt lgkmcnt(7)")
    for r in range(28):
        P(f"v_add_f32 v{R+r}, v{R+r}, v{RB[1]+r}")
    P("s_waitcnt lgkmcnt(0)")
    for r in range(28):
        P(f"v_add_f32 v{R+r}, v{R+r}, v{RB[2]+r}")
    P("s_waitcnt vmcnt(0)")
    P(f"v_lshlrev_b32 v{T+1}, 16, v{T+3}")
    H = RB[1]
    for q in range(14):
        a, b = R + 2 * q, R + 2 * q + 1
        P(f"v_cvt_pk_bf16_f32 v{G}, v{a}, v{b}")
        P(f"v_lshlrev_b32 v{a}, 16, v{G}")
        P(f"v_and_b32 v{b}, 0xffff0000, v{G}")
        P(f"v_add_f32 v{a}, v{a}, v{T+1}")
        P(f"v_add_f32 v{b}, v{b}, v{T+1}")
        P(f"v_cvt_pk_bf16_f32 v{G}, v{a}, v{b}")
        P(f"v_lshlrev_b32 v{a}, 16, v{G}")
        P(f"v_and_b32 v{b}, 0xffff0000, v{G}")
        P(f"v_lshlrev_b32 v{G+1}, 16, v{Z1+q}")
        P(f"v_and_b32 v{G+2}, 0xffff0000, v{Z1+q}")
        P(f"v_mul_f32 v{a}, v{a}, v{G+1}")
        P(f"v_mul_f32 v{b}, v{b}, v{G+2}")
        P(f"v_cvt_pk_bf16_f32 v{H+q}, v{a}, v{b}")
    ST = " sc1"
    P(f"buffer_store_dwordx4 v[{H}:{H+3}], v{VZ}, s[28:31], s58 offen{ST}")
    P(f"buffer_store_dwordx4 v[{H+4}:{H+7}], v{VZ+1}, s[28:31], s58 offen{ST}")
    P(f"buffer_store_dwordx4 v[{H+8}:{H+11}], v{VZ}, s[28:31], s60 offen{ST}")
    P(f"buffer_store_dwordx2 v[{H+12}:{H+13}], v{VZ}, s[28:31], s59 offen{ST}")
    prof(P, 3, pr)
    if pr: P("s_waitcnt vmcnt(0)")
    prof(P, 4, pr)
    if pr:
        P("s_memtime s[84:85]")
        P("s_waitcnt lgkmcnt(0)")
        P("s_sub_u32 s84, s84, s82")
        P("v_mov_b32 v26, s84")
        P("v_mov_b32 v27, 0")
        P("global_store_dwordx2 v25, v[26:27], s[8:9] offset:8")
    P("s_endpgm")
    if conv:
        P.label("k2_conv")
        gen_conv(P, 4 * AREA, pr)
    P.label("k2_end")
    P("s_endpgm")
    return dict(vgpr=ZB + 28 * max(nz, 3), agpr=112, lds=4 * AREA + (4 * CW_AREA if conv else 0))
```

```python
import math, struct
def fbits(x): return "0x%08x" % struct.unpack("<I", struct.pack("<f", x))[0]
LOG2E = math.log2(math.e)
TROW = 272
QT0 = 21 * TROW
C1 = 4288
def cmul(P, r, a, b, t):
    assert r not in (a, b)
    P(f"v_mul_f32 v{r}, v{a}, v{b}")
    P(f"v_mul_f32 v{r+1}, v{a}, v{b+1}")
    P(f"v_fma_f32 v{r}, -v{a+1}, v{b+1}, v{r}")
    P(f"v_fmac_f32 v{r+1}, v{a+1}, v{b}")
def bfr(P, dst, src, tmp):
    P(f"v_cvt_pk_bf16_f32 v{tmp}, v{src}, v{src}")
    P(f"v_lshlrev_b32 v{dst}, 16, v{tmp}")

DX = 13312
def pmul(P, r, a, b, t, conj_out=False, a_conj=False):
    sa = -1 if a_conj else 1
    so = -1 if conj_out else 1
    nh = 1 if sa * so < 0 else 0
    P(f"v_pk_mul_f16 v{t}, v{a}, v{b} op_sel:[0,0] op_sel_hi:[1,0] neg_hi:[{nh},0]")
    nl = 1 if sa > 0 else 0
    nh2 = 1 if so < 0 else 0
    P(f"v_pk_fma_f16 v{r}, v{a}, v{b}, v{t} op_sel:[1,1,0] op_sel_hi:[0,1,1] neg_lo:[{nl},0,0] neg_hi:[{nh2},0,0]")

def kgen(P, PAR, sA, sB, sPart, after_mfma=None):
    T = 2
    VW_, VR_ = 17, 18
    P(f"v_lshlrev_b32 v{VW_}, 2, v0")
    P(f"v_add_u32 v{VW_}, s{sA}, v{VW_}")
    P(f"v_and_b32 v{T}, 31, v0")
    P(f"v_lshrrev_b32 v{T+1}, 5, v0")
    P(f"s_movk_i32 s53, {TROW}")
    P(f"v_mul_u32_u24 v{T}, s53, v{T}")
    P(f"v_lshl_add_u32 v{T}, v{T+1}, 4, v{T}")
    P(f"v_add_u32 v{VR_}, s{sA}, v{T}")
    P(f"s_mov_b32 s65, {fbits(LOG2E)}")
    P(f"s_mov_b32 s66, {fbits(1/(2*math.pi))}")
    P(f"s_lshl_b32 s56, s{sPart}, 4")
    P(f"s_sub_u32 s58, 16, s56")
    P("s_mov_b32 s84, 0xffff0000")
    AL, BE = 20, 21
    CC = 22
    ACC = 64
    pa = PAR
    P(f"v_mul_f32 v{T}, s65, v{PAR+6}")
    P(f"v_exp_f32 v{T}, v{T}")
    bfr(P, T, T, T + 1)
    def unp(dst, src, sh):
        P(f"v_lshlrev_b32 v{dst}, s{sh}, v{src}")
        P(f"v_and_b32 v{dst}, s84, v{dst}")
    unp(T + 2, pa + 0, 58); unp(T + 3, pa + 1, 58)
    P(f"v_mul_f32 v{T+2}, v{T+2}, v{T}")
    P(f"v_mul_f32 v{T+3}, v{T+3}, v{T}")
    P(f"v_mul_f32 v{AL}, s65, v{T+2}")
    P(f"v_mul_f32 v{BE}, s66, v{T+3}")
    for k, sh in enumerate((58, 56)):
        unp(T + 2, pa + 2, sh); unp(T + 3, pa + 3, sh)
        P(f"v_mul_f32 v{T+2}, v{T+2}, v{T}")
        P(f"v_mul_f32 v{T+3}, v{T+3}, v{T}")
        unp(T + 4, pa + 4, sh); unp(T + 5, pa + 5, sh)
        cmul(P, CC + 2 * k, T + 2, T + 4, T + 6)
    P(f"v_max3_f32 v{T}, abs(v{CC}), abs(v{CC+1}), abs(v{CC+2})")
    P(f"v_max_f32 v{T}, abs(v{CC+3}), v{T}")
    def direct(dst, p, t):
        if p == 1:
            P(f"v_exp_f32 v{t}, v{AL}")
            P(f"v_fract_f32 v{t+1}, v{BE}")
        else:
            P(f"v_mul_f32 v{t}, {fbits(float(p))}, v{AL}")
            P(f"v_mul_f32 v{t+1}, {fbits(float(p))}, v{BE}")
            P(f"v_exp_f32 v{t}, v{t}")
            P(f"v_fract_f32 v{t+1}, v{t+1}")
        P(f"v_cos_f32 v{dst}, v{t+1}")
        P(f"v_sin_f32 v{dst+1}, v{t+1}")
        P(f"v_mul_f32 v{dst}, v{dst}, v{t}")
        P(f"v_mul_f32 v{dst+1}, v{dst+1}, v{t}")
    Z1r, Z8r, Z64, Z256, Z1k = 26, 28, 30, 32, 34
    ZA, ZB_, QA, QB = 36, 38, 40, 42
    Z512, Z768, TA, TB = 44, 46, 48, 50
    ZH = 80
    QH, AH, CH, MH = 88, 52, 52, 56
    dpp = ["quad_perm:[1,0,3,2]", "quad_perm:[2,3,0,1]", "row_half_mirror", "row_mirror"]
    for k, (dst, p) in enumerate(((Z1r, 1), (Z8r, 8), (Z64, 64), (Z256, 256), (Z1k, 1024))):
        direct(dst, p, T + 2 + 2 * (k & 1))
        if k < 4: P(f"v_max_f32_dpp v{T}, v{T}, v{T} {dpp[k]} row_mask:0xf bank_mask:0xf")
    P(f"v_readlane_b32 s84, v{T}, 0")
    P(f"v_readlane_b32 s56, v{T}, 16")
    P(f"v_readlane_b32 s57, v{T}, 32")
    P(f"v_readlane_b32 s58, v{T}, 48")
    P("s_max_u32 s84, s84, s56")
    P("s_max_u32 s57, s57, s58")
    P("s_max_u32 s84, s84, s57")
    P("s_lshr_b32 s84, s84, 23")
    P("s_max_u32 s84, s84, 6")
    P("s_min_u32 s84, s84, 250")
    P("s_sub_u32 s56, 259, s84")
    P("s_lshl_b32 s56, s56, 23")
    P("s_sub_u32 s57, s84, 5")
    P("s_lshl_b32 s57, s57, 23")
    for r in range(2):
        P(f"v_mul_f32 v{CC+r}, s56, v{CC+r}")
    def wP(row, reg): P(f"ds_write_b32 v{VW_}, v{reg} offset:{row*TROW}")
    def wQ(row, reg): P(f"ds_write_b32 v{VW_}, v{reg} offset:{QT0 + row*TROW}")
    def pk(dst, src, conj=False): P(f"v_cvt_pk_f16_f32 v{dst}, v{src}, {'-' if conj else ''}v{src+1}")
    pk(CH, CC, True); wP(0, CH)
    P(f"v_mov_b32 v{MH}, 0x3c00"); wQ(0, MH)
    pk(ZH + 1, Z1r); pk(QH + 1, Z8r); wQ(1, QH + 1)
    pk(AH + 1, Z64); wQ(8, AH + 1)
    zp, qp = Z1r, Z8r
    for j in range(2, 8):
        zn, qn = (ZA, QA) if j % 2 == 0 else (ZB_, QB)
        cmul(P, zn, zp, Z1r, 0); cmul(P, qn, qp, Z8r, 0)
        pk(ZH + j, zn); pk(QH + j, qn); wQ(j, QH + j)
        zp, qp = zn, qn
    cmul(P, TA, Z64, Z64, 0); cmul(P, Z512, Z256, Z256, 0)
    cmul(P, TB, TA, Z64, 0); cmul(P, Z768, Z512, Z256, 0)
    pk(AH + 2, TA); wQ(16, AH + 2); pk(AH + 3, TB); wQ(24, AH + 3)
    for m in range(1, 4):
        for j in range(1, 8):
            d = MH + (j & 3)
            pmul(P, d, QH + j, AH + m, MH + 4 + (j & 1)); wQ(8 * m + j, d)
    for j in range(1, 8):
        d = MH + (j & 3)
        pmul(P, d, CH, ZH + j, MH + 4 + (j & 1), conj_out=True, a_conj=True); wP(j, d)
    for k, (src, row, muls) in enumerate(((Z256, 8, (2, 4, 6)), (Z512, 12, (4,)), (Z768, 14, (4,)))):
        t = TA if k % 2 == 0 else TB
        cmul(P, t, src, CC, 0); pk(MH + 6, t, True); wP(row, MH + 6)
        for i, zz in enumerate(muls):
            d = MH + (i & 3)
            pmul(P, d, MH + 6, ZH + zz, MH + 4 + (i & 1), conj_out=True, a_conj=True); wP(row + 1 + i, d)
    pk(MH + 7, Z1k); pmul(P, MH, CH, MH + 7, MH + 4, conj_out=True, a_conj=True); wP(16, MH)
    for k, src in enumerate((Z256, Z512, Z768, Z1k)):
        t = TA if k % 2 == 0 else TB
        cmul(P, t, Z1k, src, 0); pk(MH + 6 + (k & 1), t)
        pmul(P, MH + 1 + (k & 1), CH, MH + 6 + (k & 1), MH + 4, conj_out=True, a_conj=True); wP(17 + k, MH + 1 + (k & 1))
    P("s_waitcnt lgkmcnt(0)")
    FR = 80
    def rdf(st):
        b = FR + 8 * (st & 1)
        P(f"ds_read_b128 v[{b}:{b+3}], v{VR_} offset:{32*st}")
        P(f"ds_read_b128 v[{b+4}:{b+7}], v{VR_} offset:{QT0 + 32*st}")
    rdf(0)
    for st in range(8):
        if st + 1 < 8: rdf(st + 1)
        P(f"s_waitcnt lgkmcnt({2 if st+1 < 8 else 0})")
        b = FR + 8 * (st & 1)
        P(f"v_mfma_f32_32x32x16_f16 v[{ACC}:{ACC+15}], v[{b}:{b+3}], v[{b+4}:{b+7}], {'0' if st == 0 else f'v[{ACC}:{ACC+15}]'}")
    if after_mfma: after_mfma()
    P(f"v_lshlrev_b32 v{T}, 4, v0")
    P(f"v_add_u32 v{T+1}, s{sA}, v{T}")
    P(f"v_add_u32 v{T+2}, s{sB}, v{T}")
    P(f"v_mov_b32 v{T+3}, s{sA}")
    P(f"v_mov_b32 v{T+4}, s{sB}")
    P(f"v_mov_b32 v{T+5}, 1")
    P(f"ds_write_b128 v{T+1}, v[{ACC}:{ACC+3}] offset:{DX}")
    P(f"ds_write_b128 v{T+1}, v[{ACC+4}:{ACC+7}] offset:{DX+1024}")
    P("s_mov_b32 exec_hi, 1")
    P(f"ds_write_b128 v{T+1}, v[{ACC+8}:{ACC+11}] offset:{DX+2048}")
    P("s_mov_b64 exec, -1")
    P("s_waitcnt lgkmcnt(0)")
    P(f"ds_write_b32 v{T+3}, v{T+5} offset:16380")
    P("s_mov_b32 s58, 0")
    P.label("kg_poll")
    P(f"ds_read_b32 v{T+5}, v{T+4} offset:16380")
    P("s_add_u32 s58, s58, 1")
    P("s_waitcnt lgkmcnt(0)")
    P(f"v_readfirstlane_b32 s56, v{T+5}")
    P("s_cmp_ge_u32 s56, 1")
    P("s_cbranch_scc1 kg_go")
    P("s_sleep 1")
    P("s_cmp_lt_u32 s58, 0x400000")
    P("s_cbranch_scc1 kg_poll")
    P.label("kg_go")
    for q in range(3):
        P(f"ds_read_b128 v[{32+4*q}:{35+4*q}], v{T+2} offset:{DX+1024*q}")
    P("s_waitcnt lgkmcnt(0)")
    for r in range(12):
        P(f"v_add_f32 v{ACC+r}, v{ACC+r}, v{32+r}")
    NX = 80
    for r in range(4, 12):
        P(f"v_mov_b32_dpp v{NX+r-4}, v{ACC+r} wave_shl:1 row_mask:0xf bank_mask:0xf")
    fixes = [(63, 4, 32, 6), (63, 6, 0, 8), (31, 8, 0, 9), (31, 9, 0, 10), (31, 10, 0, 11), (31, 11, 32, 8)]
    for k, (dl, dr, sl, sr) in enumerate(fixes):
        P(f"v_readlane_b32 s{84+k}, v{ACC+sr}, {sl}")
    for k, (dl, dr, sl, sr) in enumerate(fixes):
        P(f"v_writelane_b32 v{NX+dr-4}, s{84+k}, {dl}")
    EA = T + 8
    P(f"v_and_b32 v{T}, 31, v0")
    P(f"v_lshlrev_b32 v{EA}, 4, v{T}")
    P(f"v_add_u32 v{EA}, s{sA}, v{EA}")
    P(f"v_lshrrev_b32 v{T+1}, 5, v0")
    P(f"v_lshl_add_u32 v{EA+1}, v{T+1}, 3, v{EA}")
    O = 88
    P(f"v_cvt_pk_f16_f32 v{O}, v{ACC}, v{ACC+1}")
    P(f"v_cvt_pk_f16_f32 v{O+1}, v{ACC+2}, v{ACC+3}")
    P(f"ds_write_b64 v{EA+1}, v[{O}:{O+1}] offset:32")
    P(f"v_and_b32 v{T}, 1, v0")
    P(f"v_cmp_eq_u32 vcc, 1, v{T}")
    P("s_mov_b32 exec_lo, -1")
    P("s_mov_b32 exec_hi, 0")
    A4 = ACC + 4
    P(f"v_cvt_pk_f16_f32 v{O+4}, v{A4}, v{A4}")
    P(f"v_cvt_pk_f16_f32 v{O+5}, v{A4+1}, v{A4+2}")
    P(f"v_cvt_pk_f16_f32 v{O+6}, v{A4+2}, v{A4+2}")
    P(f"v_cvt_pk_f16_f32 v{O+7}, v{A4+3}, v{NX}")
    P(f"ds_write_b128 v{EA}, v[{O+4}:{O+7}] offset:{32+512}")
    for a in range(4):
        o = O + 4 * (a & 1)
        w, wn = ACC + 8 + a, NX + 4 + a
        P(f"v_cndmask_b32 v{T+1}, v{w}, v{wn}, vcc")
        P(f"v_cvt_pk_f16_f32 v{o}, v{w}, v{w}")
        P(f"v_mov_b32 v{o+1}, v{o}")
        P(f"v_cvt_pk_f16_f32 v{o+2}, v{T+1}, v{wn}")
        P(f"v_cvt_pk_f16_f32 v{o+3}, v{wn}, v{wn}")
        P(f"ds_write_b128 v{EA}, v[{o}:{o+3}] offset:{32 + 2048 + 512*a}")
    P("s_mov_b32 exec_lo, 0")
    P("s_mov_b32 exec_hi, -1")
    for k in range(2):
        o = O + 4 * k
        u0, u1, un = ACC + 4 + 2 * k, ACC + 5 + 2 * k, NX + 2 * k
        P(f"v_cvt_pk_f16_f32 v{o}, v{u0}, v{u0}")
        P(f"v_cvt_pk_f16_f32 v{o+1}, v{u0}, v{u1}")
        P(f"v_cvt_pk_f16_f32 v{o+2}, v{u1}, v{u1}")
        P(f"v_cvt_pk_f16_f32 v{o+3}, v{un}, v{un}")
        P(f"ds_write_b128 v{EA}, v[{o}:{o+3}] offset:{32 + 1024 + 512*k}")
    P("s_mov_b64 exec, 0xff")
    P(f"v_mov_b32 v{T+2}, 0")
    P(f"ds_write_b32 v{VW_}, v{T+2}")
    P("s_mov_b64 exec, -1")
    P(f"v_lshlrev_b32 v{T}, 4, v0")
    P(f"v_add_u32 v{T+1}, s{sA}, v{T}")
    P("s_waitcnt lgkmcnt(0)")
    EB = 32
    for r in range(5):
        P(f"ds_read_b128 v[{EB+8*r}:{EB+8*r+3}], v{T+1} offset:{1024*r}")
        P(f"ds_read_b32 v{EB+8*r+4}, v{T+1} offset:{1024*r+16}")
    for r in range(5):
        b = EB + 8 * r; o = 72 + 4 * r
        P(f"s_waitcnt lgkmcnt({8-2*r})")
        for k in range(4):
            P(f"v_alignbit_b32 v{o+k}, v{b+k+1}, v{b+k}, 16")
    for r in range(5):
        o = 72 + 4 * r
        if r == 4: P("s_mov_b64 exec, 3")
        P(f"ds_write_b128 v{T+1}, v[{o}:{o+3}] offset:{C1 + 1024*r}")
    P("s_mov_b64 exec, -1")
```

```python
import sys
from dsl import Prog
import k1, k1b, k1c, k1d, k2, k3, aux
HDR = open('parallel_sum__ssm_conv_s4__mixer_gmlp__prompt.s.ref').read().split('; Override launch')[0]
def build(pr=False, **kw):
    parts = []; launches = []; descs = []
    for name, fn, blk in (("k1_kernel", lambda P: k1d.gen_k1(P, aux=aux.aux, pr=pr), 512),
                          ("k2_kernel", lambda P: k2.gen_k2(P, pr=pr, **kw), 512),
                          ("k3_kernel", lambda P: k3.gen_k3(P, pr=pr), 256)):
        k2.PROF_K[0] = len(parts)
        P = Prog(); info = fn(P); body = P.finish()
        acc = (info['vgpr'] + 3) // 4 * 4
        launches.append(f"; @launch kernel={name} grid=(256,1,1) block=({blk},1,1) lds={info['lds']}")
        parts.append(f".globl {name}\n.p2align 8\n.type {name},@function\n{body}")
        descs.append(f""".p2align 6
.amdhsa_kernel {name}
  .amdhsa_next_free_vgpr {acc + info['agpr']}
  .amdhsa_next_free_sgpr 96
  .amdhsa_accum_offset {acc}
  .amdhsa_group_segment_fixed_size 0
  .amdhsa_kernarg_size 136
  .amdhsa_user_sgpr_count 2
  .amdhsa_user_sgpr_kernarg_segment_ptr 1
  .amdhsa_system_sgpr_workgroup_id_x 1
.end_amdhsa_kernel""")
    return HDR + "\n".join(launches) + '\n.amdgcn_target "amdgcn-amd-amdhsa--gfx950"\n.text\n' + "\n".join(parts) + '\n.section .rodata,"a"\n' + "\n".join(descs) + "\n"
import os
if os.environ.get("PRIO"): k2.PRIO[:] = [int(c) for c in os.environ["PRIO"]]
if os.environ.get("LF"): k2.LF[0] = int(os.environ["LF"])
if os.environ.get("EXP"): k2.EXP[0] = int(os.environ["EXP"])
if os.environ.get("FINE"): k1d.FINE[0] = 1
if os.environ.get("PRI"): k1d.PRI[0] = 1
if __name__ == "__main__":
    out = sys.argv[1] if len(sys.argv) > 1 else 'parallel_sum__ssm_conv_s4__mixer_gmlp__prompt.s'
    open(out, 'w').write(build(pr=('prof' in sys.argv)))
```

```python
from k1 import *
from reblk import rb_load, rb_store

LOG2E = math.log2(math.e)
PROWS = [0,1,2,3,4,5,6,7, 256,258,260,262, 512,516,768,772, 1024,1280,1536,1792, 2048]
TROW = 272
QT0 = 21 * TROW
KW_AREA = 16384

def cmul(P, r, a, b, t):
    P(f"v_pk_mul_f32 v[{t}:{t+1}], v[{a}:{a+1}], v[{b}:{b+1}] op_sel:[0,0] op_sel_hi:[1,0]")
    P(f"v_pk_fma_f32 v[{r}:{r+1}], v[{a}:{a+1}], v[{b}:{b+1}], v[{t}:{t+1}] op_sel:[1,1,0] op_sel_hi:[0,1,1] neg_lo:[1,0,0]")

def aux(P, X, T, VXW, pr):
    P("s_load_dwordx2 s[82:83], s[0:1], 104")
    P("s_waitcnt lgkmcnt(0)")
    srd(P, 20, 82, 896 * 512 * 2)
    srd(P, 24, 8, 0x200000, WS_XNT)
    srd(P, 28, 8, 896 * 1024, WS_WOF)
    P("s_mul_i32 s54, s14, 7")
    P("s_add_u32 s54, s54, s3")
    P("s_mul_i32 s55, s54, 1171")
    P("s_lshr_b32 s55, s55, 15")
    P("s_mul_i32 s56, s55, 28")
    P("s_sub_u32 s56, s54, s56")
    P("s_lshl_b32 s56, s56, 15")
    P("s_lshl_b32 s55, s55, 7")
    P("s_add_u32 s56, s56, s55")
    P(f"v_lshrrev_b32 v{T}, 3, v0")
    P(f"v_and_b32 v{T+1}, 7, v0")
    P(f"v_lshlrev_b32 v{T+1}, 4, v{T+1}")
    P(f"v_lshl_add_u32 v{T+1}, v{T}, 10, v{T+1}")
    WO = 112
    for e in range(4):
        P(f"s_add_u32 s57, s56, {8192*e}")
        P(f"buffer_load_dwordx4 v[{WO+4*e}:{WO+4*e+3}], v{T+1}, s[20:23], s57 offen")
    rb_load(P, 0, 30)
    P("s_waitcnt vmcnt(8)")
    ln1(P, X, T, 16, 52)
    for r in range(32):
        a, b = T + 4 + (r & 1) * 2, T + 5 + (r & 1) * 2
        P(f"v_lshlrev_b32 v{a}, 16, v{X+r}")
        P(f"v_and_b32 v{b}, 0xffff0000, v{X+r}")
        P(f"v_cvt_pk_f16_f32 v{X+r}, v{a}, v{b}")
    for e in range(8):
        P(f"ds_write_b128 v{VXW+(e&1)}, v[{X+4*e}:{X+4*e+3}] offset:{256*(e>>1)}")
    P(f"v_lshlrev_b32 v{T}, 4, v0")
    P("s_lshl_b32 s53, s3, 12")
    P(f"v_add_u32 v{T}, s53, v{T}")
    P("s_waitcnt vmcnt(4)")
    for e in range(4):
        P(f"ds_write_b128 v{T}, v[{WO+4*e}:{WO+4*e+3}] offset:{1024*e}")
    P(f"v_lshrrev_b32 v{T+1}, 2, v0")
    P(f"v_and_b32 v{T+2}, 3, v0")
    P(f"v_lshlrev_b32 v{T+1}, 7, v{T+1}")
    P(f"v_lshl_add_u32 v{T+1}, v{T+2}, 4, v{T+1}")
    P(f"v_add_u32 v{T+1}, s53, v{T+1}")
    P("s_waitcnt lgkmcnt(0)")
    for dt in range(4):
        for eta in range(2):
            d = WO + 4 * dt + 2 * eta
            P(f"ds_read_b64_tr_b16 v[{d}:{d+1}], v{T+1} offset:{2048*eta + 64*(dt>>1) + 8*(dt&1)}")
    P(f"v_lshlrev_b32 v{T}, 4, v0")
    P("s_lshl_b32 s53, s54, 12")
    P("s_waitcnt lgkmcnt(0)")
    P("s_cmp_eq_u32 s3, 7")
    P("s_cbranch_scc1 aux_nowo")
    for dt in range(4):
        P(f"buffer_store_dwordx4 v[{WO+4*dt}:{WO+4*dt+3}], v{T}, s[28:31], s53 offen offset:{1024*dt} sc1")
    P.label("aux_nowo")
    P("s_barrier")
    P(f"v_lshrrev_b32 v{T}, 4, v0")
    P(f"v_bfe_u32 v{T+1}, v0, 2, 2")
    P(f"v_and_b32 v{T+2}, 3, v0")
    P(f"v_lshlrev_b32 v{T}, 3, v{T}")
    P(f"v_add_u32 v{T}, 7, v{T}")
    P(f"v_sub_u32 v{T}, v{T}, v{T+1}")
    P(f"v_lshrrev_b32 v{T+3}, 1, v{T+2}")
    P(f"v_and_b32 v{T+2}, 1, v{T+2}")
    P("s_and_b32 s53, s3, 1")
    P("s_lshl_b32 s53, s53, 7")
    P("s_lshr_b32 s55, s3, 1")
    P("s_lshl_b32 s55, s55, 8")
    P(f"s_add_u32 s55, s55, {XB}")
    for rr in range(2):
        if rr: P(f"v_subrev_u32 v{T}, 4, v{T}")
        P(f"v_and_b32 v{T+4}, 15, v{T}")
        P(f"v_xor_b32 v{T+4}, v{T+4}, v{T+3}")
        P(f"v_lshlrev_b32 v{T+4}, 4, v{T+4}")
        P(f"v_xor_b32 v{T+4}, s53, v{T+4}")
        P(f"v_lshl_add_u32 v{T+4}, v{T+2}, 3, v{T+4}")
        P(f"v_lshl_add_u32 v{T+4}, v{T}, 10, v{T+4}")
        P(f"v_add_u32 v{T+5+rr}, s55, v{T+4}")
    P(f"v_and_b32 v{T}, 15, v0")
    P(f"v_lshrrev_b32 v{T+1}, 4, v0")
    P(f"v_lshlrev_b32 v{T}, 12, v{T}")
    P(f"v_lshl_add_u32 v{T}, v{T+1}, 4, v{T}")
    P("s_lshl_b32 s53, s3, 18")
    P("s_lshl_b32 s55, s14, 7")
    P("s_add_u32 s53, s53, s55")
    for D in range(4):
        for rr in range(2):
            P(f"v_xor_b32 v{T+7+rr}, {32*D}, v{T+5+rr}")
        for half in range(2):
            for rr in range(2):
                d = X + 8 * D + 4 * half + 2 * rr
                P(f"ds_read_b64_tr_b16 v[{d}:{d+1}], v{T+7+rr} offset:{32768*half}")
    P("s_waitcnt lgkmcnt(0)")
    for D in range(4):
        P(f"s_add_u32 s55, s53, {65536*D}")
        for half in range(2):
            d = X + 8 * D + 4 * half
            P(f"buffer_store_dwordx4 v[{d}:{d+3}], v{T}, s[24:27], s55 offen offset:{64*half} sc1")
    P("s_waitcnt vmcnt(8)")
    rb_store(P, 0, 32768, T, 64)
    prof(P, 1, pr)
    P("s_endpgm")
```

```python
from dsl import Prog
from k2 import *
from k1 import ln1, bf16_round_v, fbits, GK0, GK1, wpre, XB
from k1b import Buf
import math
from reblk import rb_load, rb_store

def gelu_stream(A, T, Rr):
    B = Buf()
    for q in range(8):
        a, b = A + 2 * q, A + 2 * q + 1
        t0, t1 = T + (q & 1) * 2, T + 1 + (q & 1) * 2
        B(f"v_mul_f32 v{a}, v{a}, v{Rr}")
        B(f"v_mul_f32 v{b}, v{b}, v{Rr}")
        B(f"v_mul_f32 v{t0}, v{a}, v{a}")
        B(f"v_mul_f32 v{t1}, v{b}, v{b}")
        B(f"v_fma_f32 v{t0}, v{t0}, s64, v{T+4}")
        B(f"v_fma_f32 v{t1}, v{t1}, s64, v{T+4}")
        B(f"v_mul_f32 v{t0}, v{t0}, v{a}")
        B(f"v_mul_f32 v{t1}, v{t1}, v{b}")
        B(f"v_exp_f32 v{t0}, v{t0}")
        B(f"v_exp_f32 v{t1}, v{t1}")
        B(f"v_add_f32 v{t0}, 1.0, v{t0}")
        B(f"v_add_f32 v{t1}, 1.0, v{t1}")
        B(f"v_rcp_f32 v{t0}, v{t0}")
        B(f"v_rcp_f32 v{t1}, v{t1}")
        B(f"v_mul_f32 v{a}, v{a}, v{t0}")
        B(f"v_mul_f32 v{b}, v{b}, v{t1}")
        B(f"v_cvt_pk_bf16_f32 v{A+q}, v{a}, v{b}")
    return B.l

def gen_k1(P, aux=None, pr=False):
    P.label("k1_kernel")
    P("s_cmp_ge_u32 s2, 256")
    P("s_cbranch_scc1 k1_end")
    P("s_load_dwordx2 s[4:5], s[0:1], 0")
    P("s_load_dwordx2 s[6:7], s[0:1], 80")
    P("s_load_dwordx2 s[8:9], s[0:1], 128")
    P("s_load_dwordx2 s[10:11], s[0:1], 120")
    P("s_load_dwordx2 s[40:41], s[0:1], 88")
    P("v_lshrrev_b32 v1, 6, v0")
    P("v_and_b32 v0, 63, v0")
    P("v_readfirstlane_b32 s3, v1")
    P("s_mov_b32 s62, 0x3f803f80")
    P(f"s_mov_b32 s63, {fbits(GK0)}")
    P(f"s_mov_b32 s64, {fbits(GK1)}")
    P("s_and_b32 s12, s2, 7")
    P("s_lshr_b32 s13, s2, 3")
    P("s_lshl_b32 s14, s12, 2")
    P("s_and_b32 s15, s13, 3")
    P("s_add_u32 s14, s14, s15")
    P("s_lshr_b32 s15, s13, 2")
    X = 32; T = 2; VB = 16
    P(f"v_lshrrev_b32 v{T}, 3, v0")
    P(f"v_and_b32 v{T+1}, 7, v0")
    P(f"v_lshlrev_b32 v{T+2}, 4, v{T+1}")
    P(f"v_lshl_add_u32 v{T+2}, v{T}, 10, v{T+2}")
    P("s_lshl_b32 s52, s14, 16")
    P("s_lshl_b32 s53, s3, 13")
    P("s_add_u32 s52, s52, s53")
    P(f"v_lshrrev_b32 v{T+4}, 4, v0")
    P(f"v_and_b32 v{T+5}, 15, v0")
    P("s_lshl_b32 s53, s3, 2")
    P(f"v_add_u32 v{VB}, s53, v{T+4}")
    P("s_movk_i32 s53, 3584")
    P(f"v_mul_u32_u24 v{VB}, s53, v{VB}")
    P(f"v_lshl_add_u32 v{VB}, v{T+5}, 4, v{VB}")
    P("s_lshl_b32 s54, s15, 8")
    P("s_add_u32 s55, s54, 1792")
    P("s_waitcnt lgkmcnt(0)")
    srd(P, 16, 4, 2048 * 512 * 2)
    issued = []
    for e in range(8):
        P(f"buffer_load_dwordx4 v[{X+4*e}:{X+4*e+3}], v{T+2}, s[16:19], s52 offen offset:{128*e}")
        issued.append(('X', e))
    srd(P, 20, 6, 512 * 1792 * 2)
    srd(P, 24, 8, 0x400000, WS_Z2F)
    srd(P, 28, 8, 0x400000, WS_Z1F)
    srd(P, 32, 8, 32 * 2 * 28 * 512, WS_ST)
    srd(P, 36, 40, 2048 * 2048 * 2)
    srd(P, 44, 8, 0x800000, WS_WF)
    VXW = 23
    P("s_and_b32 s53, s3, 1")
    P("s_lshl_b32 s53, s53, 3")
    P(f"v_add_u32 v{T+3}, s53, v{T}")
    P(f"v_xor_b32 v{T+3}, v{T+3}, v{T+1}")
    P(f"v_lshlrev_b32 v{T+3}, 4, v{T+3}")
    P(f"v_lshl_add_u32 v{T+3}, v{T}, 10, v{T+3}")
    P("s_lshl_b32 s53, s3, 13")
    P(f"s_add_u32 s53, s53, {XB}")
    P(f"v_add_u32 v{VXW}, s53, v{T+3}")
    P(f"v_xor_b32 v{VXW+1}, 128, v{VXW}")
    if aux is not None:
        P("s_cmp_eq_u32 s15, 7")
        P("s_cbranch_scc1 k1_aux")
    ACC2, ACC1, WFR = 64, 80, 96
    def land(u):
        if u < 8: return f"v[{WFR+4*u}:{WFR+4*u+3}]"
        if u < 12: return f"v[{ACC1+4*(u-8)}:{ACC1+4*(u-8)+3}]"
        if u < 16: return f"a[{112+4*(u-12)}:{115+4*(u-12)}]"
        return f"v[{X+4*(u%8)}:{X+4*(u%8)+3}]"
    def bld(u):
        half, ku = u // 16, u % 16
        P(f"s_add_u32 s57, s{55 if half == 0 else 54}, {ku * 32 * 3584}")
        P(f"buffer_load_dwordx4 {land(u)}, v{VB}, s[20:23], s57 offen")
        issued.append(('B', u))
    def wait_for(tags):
        last = max(k for k, t in enumerate(issued) if t in tags)
        n = len(issued) - 1 - last
        P(f"s_waitcnt vmcnt({min(n,63)})")
    for u in range(4): bld(u)
    prof(P, 0, pr)
    P("s_lshl_b32 s53, s14, 3")
    P("v_mov_b32 v13, s53")
    P("s_or_b32 s53, s15, s3")
    P("s_cmp_lg_u32 s53, 0")
    P("s_cbranch_scc1 k1_nolead")
    P("s_memrealtime s[70:71]")
    P("s_waitcnt lgkmcnt(0)")
    P("s_or_b32 s70, s70, 1")
    P("v_mov_b32 v14, s70")
    P("v_mov_b32 v15, s71")
    P("s_mov_b64 exec, 1")
    P("global_store_dwordx2 v13, v[14:15], s[10:11] sc0 sc1")
    P("s_mov_b64 exec, -1")
    P.label("k1_nolead")
    if PRI[0]:
        P("s_cmp_lt_u32 s3, 4")
        P("s_cbranch_scc1 k1_nopri")
        P("s_setprio 1")
        P.label("k1_nopri")
    VLW = 17
    P(f"v_lshlrev_b32 v{T}, 2, v{T+4}")
    P(f"v_xor_b32 v{T}, v{T}, v{T+5}")
    P(f"v_lshlrev_b32 v{T}, 4, v{T}")
    P(f"v_lshl_add_u32 v{T}, v{T+4}, 8, v{T}")
    P("s_lshl_b32 s53, s3, 10")
    P(f"v_add_u32 v{VLW}, s53, v{T}")
    P(f"v_add_u32 v{VLW+1}, 0x10000, v{VLW}")
    def bwr(u):
        addr = (u % 12) * 8192
        wait_for({('B', u)})
        P(f"ds_write_b128 v{VLW+(addr>>16)}, {land(u)} offset:{addr & 0xffff}")
    P("s_lshr_b32 s59, s3, 2")
    P("s_and_b32 s58, s3, 3")
    VT = 19
    P(f"v_lshrrev_b32 v{T}, 4, v0")
    P(f"v_bfe_u32 v{T+1}, v0, 2, 2")
    P(f"v_and_b32 v{T+2}, 3, v0")
    P(f"v_and_b32 v{T+3}, 1, v{T}")
    P(f"v_lshl_add_u32 v{T+2}, v{T+3}, 2, v{T+2}")
    P(f"v_lshrrev_b32 v{T+3}, 1, v{T+2}")
    P(f"v_and_b32 v{T+4}, 1, v{T+2}")
    P(f"v_lshrrev_b32 v{T}, 1, v{T}")
    P(f"v_lshl_add_u32 v{T}, v{T}, 3, v{T+1}")
    P(f"v_lshlrev_b32 v{T}, 8, v{T}")
    P(f"v_lshlrev_b32 v{T+1}, 6, v{T+1}")
    P("s_lshl_b32 s53, s58, 6")
    P(f"v_lshlrev_b32 v{T+5}, 5, v{T+4}")
    P(f"v_lshl_add_u32 v{T+5}, v{T+3}, 3, v{T+5}")
    P(f"v_add_u32 v{T+5}, s53, v{T+5}")
    P(f"v_xor_b32 v{T+5}, v{T+5}, v{T+1}")
    P(f"v_add_u32 v{VT}, v{T+5}, v{T}")
    P(f"v_add_u32 v{VT+1}, 0x10000, v{VT}")
    P(f"v_and_b32 v{T+5}, 1, v{T+3}")
    P(f"v_lshlrev_b32 v{T+5}, 5, v{T+5}")
    P(f"v_lshl_add_u32 v{T+5}, v{T+4}, 4, v{T+5}")
    P(f"v_lshrrev_b32 v{T+3}, 1, v{T+3}")
    P(f"v_lshl_add_u32 v{T+5}, v{T+3}, 3, v{T+5}")
    P(f"v_add_u32 v{T+5}, s53, v{T+5}")
    P(f"v_xor_b32 v{T+5}, v{T+5}, v{T+1}")
    P(f"v_add_u32 v{VT+2}, v{T+5}, v{T}")
    P(f"v_add_u32 v{VT+3}, 0x10000, v{VT+2}")
    VXR = 1
    P(f"v_and_b32 v{T}, 31, v0")
    P(f"v_lshrrev_b32 v{T+1}, 5, v0")
    P(f"v_and_b32 v{T+2}, 15, v0")
    P(f"v_xor_b32 v{T+1}, v{T+1}, v{T+2}")
    P(f"v_lshlrev_b32 v{T+1}, 4, v{T+1}")
    P(f"v_lshl_add_u32 v{T+1}, v{T}, 10, v{T+1}")
    P("s_lshl_b32 s53, s59, 15")
    P(f"s_add_u32 s53, s53, {XB}")
    P(f"v_add_u32 v{VXR}, s53, v{T+1}")
    RS = 8 * 8192
    P(f"v_lshlrev_b32 v{T}, 2, v{T}")
    P("s_lshl_b32 s53, s59, 7")
    P(f"s_add_u32 s53, s53, {RS}")
    P(f"v_add_u32 v28, s53, v{T}")
    P(f"v_lshrrev_b32 v{T}, 3, v0")
    P(f"v_lshlrev_b32 v{T}, 2, v{T}")
    P("s_lshl_b32 s53, s3, 5")
    P(f"s_add_u32 s53, s53, {RS}")
    P(f"v_add_u32 v29, s53, v{T}")
    def freg(st, i, sl, k0, n):
        r = WFR + 16 * st + 8 * i + 4 * sl + k0
        return f"v[{r}:{r+n-1}]"
    def rds(sp):
        out = []
        for i in range(2):
            u = 2 * sp + i
            addr = (u % 12) * 8192
            vb = VT + 2 * (sp // 8) + (addr >> 16)
            for sl in range(2):
                for rr in range(2):
                    out.append(f"ds_read_b64_tr_b16 {freg(sp & 1, i, sl, 2*rr, 2)}, v{vb} offset:{(addr & 0xffff) + 4096*sl + 1024*rr}")
        return out
    S, Q = 8, 9
    for r in range(4): P(f"v_mov_b32 v{S+r}, 0")
    for e in range(8):
        wait_for({('X', e)})
        for r in range(4 * e, 4 * e + 4):
            a = (r & 1) * 2
            P(f"v_dot2c_f32_bf16 v{S+a}, s62, v{X+r}")
            P(f"v_dot2c_f32_bf16 v{Q+a}, v{X+r}, v{X+r}")
        if e % 2 == 1: bld(4 + e // 2)
    P(f"v_add_f32 v{S}, v{S}, v{S+2}")
    P(f"v_add_f32 v{Q}, v{Q}, v{S+3}")
    for m in ("quad_perm:[1,0,3,2]", "quad_perm:[2,3,0,1]", "row_half_mirror"):
        P(f"v_add_f32_dpp v{S}, v{S}, v{S} {m} row_mask:0xf bank_mask:0xf")
        P(f"v_add_f32_dpp v{Q}, v{Q}, v{Q} {m} row_mask:0xf bank_mask:0xf")
    P(f"v_mul_f32 v{S}, 0x3b000000, v{S}")
    P(f"v_mul_f32 v{Q}, 0x3b000000, v{Q}")
    P(f"v_fma_f32 v{Q}, -v{S}, v{S}, v{Q}")
    bf16_round_v(P, S, S, S + 2)
    P("s_mov_b32 s65, 0xffff0000")
    for e in range(8):
        for r in range(4 * e, 4 * e + 4):
            a, b = T + (r & 1) * 2, T + 1 + (r & 1) * 2
            P(f"v_lshlrev_b32 v{a}, 16, v{X+r}")
            P(f"v_and_b32 v{b}, s65, v{X+r}")
            P(f"v_sub_f32 v{a}, v{a}, v{S}")
            P(f"v_sub_f32 v{b}, v{b}, v{S}")
            P(f"v_cvt_pk_bf16_f32 v{X+r}, v{a}, v{b}")
        P(f"ds_write_b128 v{VXW+(e&1)}, v[{X+4*e}:{X+4*e+3}] offset:{256*(e>>1)}")
        bld(8 + e)
    P(f"v_max_f32 v{Q}, 0, v{Q}")
    bf16_round_v(P, Q, Q, S + 2)
    P(f"v_add_f32 v{Q}, 0x3727c5ac, v{Q}")
    bf16_round_v(P, Q, Q, S + 2)
    P(f"v_sqrt_f32 v{Q}, v{Q}")
    bf16_round_v(P, Q, Q, S + 2)
    P(f"v_rcp_f32 v{Q}, v{Q}")
    for u in range(4): bwr(u)
    P(f"ds_write_b32 v29, v{Q}")
    P("s_waitcnt lgkmcnt(0)")
    P("s_barrier")
    for s_ in rds(0): P(s_)
    RR = 28
    P(f"ds_read_b32 v{RR}, v28")
    def xfr(q, his):
        P(f"v_xor_b32 v{T+(q&1)}, {32*q}, v{VXR}")
        for hi in his:
            k16 = 8 * hi + q
            P(f"ds_read_b128 a[{4*k16}:{4*k16+3}], v{T+(q&1)} offset:{256*hi}")
    for q in range(8):
        xfr(q, (0, 1))
        if q >= 4: bwr(q)
    prof(P, 1, pr)
    hooks = {}
    def step(sp, vside=()):
        if FINE[0] and sp < 12: P(f"s_memtime s[{68+2*sp}:{69+2*sp}]")
        P("s_waitcnt lgkmcnt(0)")
        if sp % 2 == 1 and sp < 15: P("s_barrier")
        if sp in hooks: hooks[sp]()
        acc = ACC2 if sp < 8 else ACC1
        rd = rds(sp + 1) if sp < 15 else []
        vside = list(vside)
        per = (len(vside) + 3) // 4
        k = 0
        for i in range(2):
            u = 2 * sp + i
            for sl in range(2):
                k16 = 2 * (u % 16) + sl
                P(f"v_mfma_f32_32x32x16_bf16 v[{acc}:{acc+15}], {freg(sp & 1, i, sl, 0, 4)}, a[{4*k16}:{4*k16+3}], {'0' if k16 == 0 else f'v[{acc}:{acc+15}]'}")
                if k == 0:
                    for x_ in rd: P(x_)
                if k in (1, 2) and sp >= 1 and 2 * sp + 5 + k < 32: bwr(2 * sp + 5 + k)
                if sp in (0, 1) and k in (1, 2, 3, 0): xfr(4 * sp + k, (2,))
                if sp == 2: xfr(k, (3,))
                if sp == 5: xfr(4 + k, (3,))
                if k in (1, 3) and sp < 4: bld(16 + 2 * sp + (k >> 1))
                if k in (0, 1) and 6 <= sp <= 9: bld(24 + 2 * (sp - 6) + k)
                if k == 3 and sp == 5:
                    P("global_load_dwordx2 v[14:15], v13, s[10:11] sc0 sc1"); issued.append(('N', 0))
                for _ in range(per):
                    if vside: P(vside.pop(0))
                k += 1
        assert not vside
    def split(lst, n):
        k = (len(lst) + n - 1) // n
        return [lst[i*k:(i+1)*k] for i in range(n)]
    for sp in range(8): step(sp)
    prof(P, 2, pr)
    Z2 = ACC2
    GT = 8
    P(f"v_mov_b32 v{GT+4}, s63")
    gs = gelu_stream(ACC2, GT, RR)
    SS = Buf()
    S2, Q2 = ACC2 + 8, ACC2 + 9
    SS(f"v_mov_b32 v{S2}, 0")
    SS(f"v_mov_b32 v{Q2}, 0")
    for q in range(8):
        SS(f"v_dot2c_f32_bf16 v{S2}, s62, v{Z2+q}")
        SS(f"v_dot2c_f32_bf16 v{Q2}, v{Z2+q}, v{Z2+q}")
    SS(f"v_mov_b32 v{S2+2}, v{S2}")
    SS(f"v_mov_b32 v{S2+3}, v{Q2}")
    SS(f"v_permlane32_swap_b32 v{S2}, v{S2+2}")
    SS(f"v_permlane32_swap_b32 v{Q2}, v{S2+3}")
    SS(f"v_add_f32 v{S2}, v{S2}, v{S2+2}")
    SS(f"v_add_f32 v{Q2}, v{Q2}, v{S2+3}")
    SS(f"v_lshlrev_b32 v{S2+4}, 4, v0")
    SS("s_lshl_b32 s53, s14, 1")
    SS("s_add_u32 s53, s53, s59")
    SS("s_mul_i32 s60, s53, 14336")
    SS("s_lshl_b32 s53, s15, 2")
    SS("s_add_u32 s53, s53, s58")
    SS("s_lshl_b32 s53, s53, 9")
    SS("s_add_u32 s53, s53, s60")
    av = split(gs + SS.l, GSPLIT[0])
    for k in range(GSPLIT[0]): step(8 + k, av[k])
    wait_for({('N', 0)})
    P("s_mov_b32 s56, 0")
    P.label("k1_nonce")
    P("v_readfirstlane_b32 s70, v14")
    P("v_readfirstlane_b32 s71, v15")
    P("s_cmp_lg_u32 s70, 0")
    P("s_cbranch_scc1 k1_nonce_ok")
    P("global_load_dwordx2 v[14:15], v13, s[10:11] sc0 sc1")
    P("s_add_u32 s56, s56, 1")
    P("s_waitcnt vmcnt(0)")
    P("s_cmp_lt_u32 s56, 0x200000")
    P("s_cbranch_scc1 k1_nonce")
    P.label("k1_nonce_ok")
    P(f"v_mov_b32 v{S2+2}, v14")
    P(f"v_mov_b32 v{S2+3}, v15")
    P("s_mov_b32 exec_hi, 0")
    P(f"buffer_store_dwordx4 v[{S2}:{S2+3}], v{S2+4}, s[32:35], s53 offen sc0 sc1")
    issued.append(('S', 0))
    P("s_mov_b64 exec, -1")
    rb_load(P, 0, 30)
    for _ in range(4): issued.append(('R', 0))
    prof(P, 3, pr)
    for sp in range(8 + GSPLIT[0], 16): step(sp)
    if FINE[0]:
        P("s_lshl_b32 s92, s2, 3")
        P("s_add_u32 s92, s92, s3")
        P("s_lshl_b32 s92, s92, 6")
        P(f"s_add_u32 s92, s92, {WS_PROF + 3*0x40000}")
        P("v_mov_b32 v25, s92")
        for k in range(12):
            P(f"v_mov_b32 v26, s{68+2*k}")
            P(f"global_store_dword v25, v26, s[8:9] offset:{4*k}")
    prof(P, 4, pr)
    def gather():
        for c in range(14):
            if c % 4 == 0: P(f"s_add_u32 s61, s60, {1024*c}")
            P(f"buffer_load_dwordx4 a[{16+4*c}:{19+4*c}], v{S2+4}, s[32:35], s61 offen offset:{1024*(c%4)} sc0 sc1")
    P("s_cmp_lg_u32 s58, 0")
    P("s_cbranch_scc1 k1_nog1")
    gather()
    P.label("k1_nog1")
    Z1 = ACC1
    P(f"v_and_b32 v{T}, 15, v0")
    P(f"v_bfe_u32 v{T+1}, v0, 4, 1")
    P(f"v_lshrrev_b32 v{T+2}, 5, v0")
    P(f"v_lshlrev_b32 v{T}, 4, v{T}")
    P(f"v_lshl_add_u32 v{T}, v{T+1}, 10, v{T}")
    P(f"v_lshl_add_u32 v{T}, v{T+2}, 9, v{T}")
    P("s_mul_i32 s53, s14, 28")
    P("s_lshl_b32 s56, s15, 2")
    P("s_add_u32 s53, s53, s56")
    P("s_add_u32 s53, s53, s58")
    P("s_lshl_b32 s53, s53, 12")
    P("s_lshl_b32 s56, s59, 11")
    P("s_add_u32 s53, s53, s56")
    for s_ in gelu_stream(ACC1, GT, RR): P(s_)
    P(f"buffer_store_dwordx4 v[{Z1}:{Z1+3}], v{T}, s[28:31], s53 offen sc1")
    P(f"buffer_store_dwordx4 v[{Z1+4}:{Z1+7}], v{T}, s[28:31], s53 offen offset:256 sc1")
    prof(P, 5, pr)
    P("s_cmp_lg_u32 s58, 0")
    P("s_cbranch_scc1 k1_rbw")
    P("s_waitcnt vmcnt(16)")
    P("s_branch k1_rbs")
    P.label("k1_rbw")
    P("s_waitcnt vmcnt(2)")
    P.label("k1_rbs")
    rb_store(P, 0, XB, T, X + 16)
    PS = WFR
    MS = 2 * 8192
    P("s_cmp_lg_u32 s58, 0")
    P("s_cbranch_scc1 k1_nopoll")
    P("s_mov_b32 s56, 0")
    P.label("k1_poll")
    P("s_waitcnt vmcnt(0)")
    for r in range(4): P(f"v_mov_b32 v{PS+r}, 0")
    for c in range(14):
        for r in range(4): P(f"v_accvgpr_read_b32 v{PS+4+r}, a{16+4*c+r}")
        P(f"v_add_f32 v{PS}, v{PS}, v{PS+4}")
        P(f"v_add_f32 v{PS+1}, v{PS+1}, v{PS+5}")
        P(f"v_xor_b32 v{PS+6}, v{PS+6}, v14")
        P(f"v_xor_b32 v{PS+7}, v{PS+7}, v15")
        P(f"v_or_b32 v{PS+2}, v{PS+2}, v{PS+6}")
        P(f"v_or_b32 v{PS+3}, v{PS+3}, v{PS+7}")
    P(f"v_or_b32 v{PS+2}, v{PS+2}, v{PS+3}")
    P(f"v_cmp_ne_u32 vcc, 0, v{PS+2}")
    P("s_add_u32 s56, s56, 1")
    P("s_cmp_eq_u64 vcc, 0")
    P("s_cbranch_scc1 k1_got")
    gather()
    P("s_cmp_lt_u32 s56, 0x100000")
    P("s_cbranch_scc1 k1_poll")
    P("s_waitcnt vmcnt(0)")
    P.label("k1_got")
    P(f"v_mov_b32 v{PS+2}, v{PS}")
    P(f"v_mov_b32 v{PS+3}, v{PS+1}")
    P(f"v_permlane32_swap_b32 v{PS}, v{PS+2}")
    P(f"v_permlane32_swap_b32 v{PS+1}, v{PS+3}")
    P(f"v_add_f32 v{PS}, v{PS}, v{PS+2}")
    P(f"v_add_f32 v{PS+1}, v{PS+1}, v{PS+3}")
    S, Q = PS, PS + 1
    P(f"v_mul_f32 v{S}, {fbits(1/896)}, v{S}")
    P(f"v_mul_f32 v{Q}, {fbits(1/896)}, v{Q}")
    P(f"v_fma_f32 v{Q}, -v{S}, v{S}, v{Q}")
    P(f"v_max_f32 v{Q}, 0, v{Q}")
    bf16_round_v(P, S, S, T + 2)
    bf16_round_v(P, Q, Q, T + 2)
    P(f"v_add_f32 v{Q}, 0x3727c5ac, v{Q}")
    bf16_round_v(P, Q, Q, T + 2)
    P(f"v_sqrt_f32 v{Q}, v{Q}")
    bf16_round_v(P, Q, Q, T + 2)
    P(f"v_rcp_f32 v{Q}, v{Q}")
    P(f"v_and_b32 v{T}, 31, v0")
    P(f"v_lshlrev_b32 v{T}, 3, v{T}")
    P("s_lshl_b32 s53, s59, 8")
    P(f"s_add_u32 s53, s53, {MS}")
    P(f"v_add_u32 v{T}, s53, v{T}")
    P(f"ds_write_b64 v{T}, v[{S}:{Q}]")
    P.label("k1_nopoll")
    P(f"v_and_b32 v{VT+3}, 31, v0")
    P(f"v_lshlrev_b32 v{VT+3}, 3, v{VT+3}")
    P("s_lshl_b32 s53, s59, 8")
    P(f"s_add_u32 s53, s53, {MS}")
    P(f"v_add_u32 v{VT+3}, s53, v{VT+3}")
    P(f"v_and_b32 v{T}, 31, v0")
    P(f"v_lshrrev_b32 v{T+1}, 5, v0")
    P(f"v_lshlrev_b32 v{T}, 6, v{T}")
    P(f"v_lshl_add_u32 v{T}, v{T+1}, 5, v{T}")
    P("s_lshl_b32 s53, s3, 11")
    P(f"v_add_u32 v{VT}, s53, v{T}")
    P(f"v_lshrrev_b32 v{T+1}, 4, v0")
    P(f"v_bfe_u32 v{T+2}, v0, 2, 2")
    P(f"v_and_b32 v{T+3}, 3, v0")
    P(f"v_lshl_add_u32 v{T+1}, v{T+1}, 3, v{T+2}")
    P(f"v_lshlrev_b32 v{T+1}, 6, v{T+1}")
    P(f"v_lshl_add_u32 v{T+1}, v{T+3}, 3, v{T+1}")
    P(f"v_add_u32 v{VT+1}, s53, v{T+1}")
    P(f"v_lshlrev_b32 v{VT+2}, 4, v0")
    P("s_lshl_b32 s60, s14, 1")
    P("s_add_u32 s60, s60, s59")
    for tl in range(2):
        P("s_lshl_b32 s53, s15, 3")
        P("s_lshl_b32 s61, s58, 1")
        P("s_add_u32 s53, s53, s61")
        if tl: P("s_add_u32 s53, s53, 1")
        P("s_mul_i32 s61, s53, 37")
        P("s_lshr_b32 s61, s61, 8")
        P("s_mul_i32 s65, s61, 7")
        P("s_sub_u32 s53, s53, s65")
        P("s_add_u32 s65, s53, 6")
        P("s_sub_u32 s66, s53, 1")
        P("s_cmp_eq_u32 s53, 0")
        P("s_cselect_b32 s65, s65, s66")
        P("s_bitcmp1_b32 s61, 0")
        P("s_cselect_b32 s53, s65, s53")
        P("s_lshl_b32 s61, s61, 6")
        P("s_add_u32 s61, s61, s60")
        P("s_mul_i32 s61, s61, 7")
        P("s_add_u32 s61, s61, s53")
        P(f"s_lshl_b32 s{67+tl}, s61, 10")
    U = X
    for r in range(8):
        P(f"v_lshlrev_b32 v{U+2*r}, 16, v{Z2+r}")
        P(f"v_and_b32 v{U+2*r+1}, 0xffff0000, v{Z2+r}")
    P("s_waitcnt lgkmcnt(0)")
    P("s_barrier")
    P(f"ds_read_b64 v[{S}:{Q}], v{VT+3}")
    P("s_waitcnt lgkmcnt(0)")
    for r in range(16): P(f"v_sub_f32 v{U+r}, v{U+r}, v{S}")
    for r in range(16): P(f"v_mul_f32 v{U+r}, v{U+r}, v{Q}")
    for r in range(8): P(f"v_cvt_pk_bf16_f32 v{Z2+r}, v{U+2*r}, v{U+2*r+1}")
    P(f"ds_write_b128 v{VT}, v[{Z2}:{Z2+3}]")
    P(f"ds_write_b128 v{VT}, v[{Z2+4}:{Z2+7}] offset:16")
    P("s_waitcnt lgkmcnt(0)")
    O = X + 16
    for tl in range(2):
        for rr in range(2):
            P(f"ds_read_b64_tr_b16 v[{O+4*tl+2*rr}:{O+4*tl+2*rr+1}], v{VT+1} offset:{32*tl + 256*rr}")
    P("s_waitcnt lgkmcnt(0)")
    for tl in range(2):
        P(f"buffer_store_dwordx4 v[{O+4*tl}:{O+4*tl+3}], v{VT+2}, s[24:27], s{67+tl} offen sc1")
    prof(P, 6, pr)
    if pr: P("s_waitcnt vmcnt(0)")
    prof(P, 7, pr)
    P("s_endpgm")
    if aux is not None:
        P.label("k1_aux")
        prof(P, 0, pr)
        aux(P, X, T, VXW, pr)
    P.label("k1_end")
    P("s_endpgm")
    return dict(vgpr=128, agpr=128, lds=160 * 1024)
GSPLIT = [3]
FINE = [0]
PRI = [0]
```

```python
from dsl import Prog
from k2 import *
import k2
from k1 import bf16_round_v, fbits, GK0, GK1, XB
from k1b import Buf
from k1d import gelu_stream
from reblk import rb_load, rb_store
EX = 64 * 1024
RS = 56 * 1024
NR = 7

def gen_k1(P, aux=None, pr=False):
    P.label("k1_kernel")
    P("s_cmp_ge_u32 s2, 256")
    P("s_cbranch_scc1 k1_end")
    P("s_load_dwordx2 s[4:5], s[0:1], 0")
    P("s_load_dwordx2 s[6:7], s[0:1], 80")
    P("s_load_dwordx2 s[8:9], s[0:1], 128")
    P("s_load_dwordx2 s[10:11], s[0:1], 120")
    P("s_load_dwordx2 s[40:41], s[0:1], 88")
    P("v_lshrrev_b32 v1, 6, v0")
    P("v_and_b32 v0, 63, v0")
    P("v_readfirstlane_b32 s3, v1")
    P("s_mov_b32 s62, 0x3f803f80")
    P(f"s_mov_b32 s63, {fbits(GK0)}")
    P(f"s_mov_b32 s64, {fbits(GK1)}")
    P("s_and_b32 s12, s2, 7")
    P("s_lshr_b32 s13, s2, 3")
    P("s_lshl_b32 s14, s12, 2")
    P("s_and_b32 s15, s13, 3")
    P("s_add_u32 s14, s14, s15")
    P("s_lshr_b32 s15, s13, 2")
    X = 32; T = 2; VB = 1
    P(f"v_lshrrev_b32 v{T}, 3, v0")
    P(f"v_and_b32 v{T+1}, 7, v0")
    P(f"v_lshlrev_b32 v{T+2}, 4, v{T+1}")
    P(f"v_lshl_add_u32 v{T+2}, v{T}, 10, v{T+2}")
    P("s_lshl_b32 s52, s14, 16")
    P("s_lshl_b32 s53, s3, 13")
    P("s_add_u32 s52, s52, s53")
    P("s_lshr_b32 s59, s3, 2")
    P("s_and_b32 s58, s3, 3")
    P(f"v_lshrrev_b32 v{T+4}, 2, v0")
    P(f"v_and_b32 v{T+5}, 3, v0")
    P("s_lshl_b32 s53, s59, 8")
    P(f"v_add_u32 v{VB}, s53, v{T+4}")
    P("s_movk_i32 s53, 3584")
    P(f"v_mul_u32_u24 v{VB}, s53, v{VB}")
    P(f"v_lshl_add_u32 v{VB}, v{T+5}, 4, v{VB}")
    P("s_lshl_b32 s53, s58, 6")
    P(f"v_add_u32 v{VB}, s53, v{VB}")
    P("s_lshl_b32 s54, s15, 8")
    P("s_add_u32 s55, s54, 1792")
    P("s_waitcnt lgkmcnt(0)")
    srd(P, 16, 4, 2048 * 512 * 2)
    issued = []
    for e in range(8):
        P(f"buffer_load_dwordx4 v[{X+4*e}:{X+4*e+3}], v{T+2}, s[16:19], s52 offen offset:{128*e}")
        issued.append(('X', e))
    srd(P, 20, 6, 512 * 1792 * 2)
    srd(P, 24, 8, 0x400000, WS_Z2F)
    srd(P, 28, 8, 0x400000, WS_Z1F)
    srd(P, 32, 8, 32 * 2 * 28 * 512, WS_ST)
    srd(P, 36, 40, 2048 * 2048 * 2)
    srd(P, 44, 8, 0x800000, WS_WF)
    VXW = 20
    P("s_and_b32 s53, s3, 1")
    P("s_lshl_b32 s53, s53, 3")
    P(f"v_add_u32 v{T+3}, s53, v{T}")
    P(f"v_xor_b32 v{T+3}, v{T+3}, v{T+1}")
    P(f"v_lshlrev_b32 v{T+3}, 4, v{T+3}")
    P(f"v_lshl_add_u32 v{T+3}, v{T}, 10, v{T+3}")
    P("s_lshl_b32 s53, s3, 13")
    P(f"s_add_u32 s53, s53, {XB}")
    P(f"v_add_u32 v{VXW}, s53, v{T+3}")
    P(f"v_xor_b32 v{VXW+1}, 128, v{VXW}")
    if aux is not None:
        P("s_cmp_eq_u32 s15, 7")
        P("s_cbranch_scc1 k1_aux")
    k2.PROF_V[0] = 4
    ACC2, ACC1 = 64, 96
    def land(u):
        if u < 8: return f"v[{ACC1+4*u}:{ACC1+4*u+3}]"
        if u < 12:
            r = (56, 60, 120, 124)[u - 8]; return f"a[{r}:{r+3}]"
        if u < 16: return f"v[{ACC1+4*(u-12)}:{ACC1+3+4*(u-12)}]"
        return f"v[{X+4*(u%8)}:{X+4*(u%8)+3}]"
    def bld(u):
        half, ku = u // 16, u % 16
        P(f"s_add_u32 s57, s{55 if half == 0 else 54}, {ku * 16 * 3584}")
        P(f"buffer_load_dwordx4 {land(u)}, v{VB}, s[20:23], s57 offen")
        issued.append(('B', u))
    def wait_for(tags):
        last = max(k for k, t in enumerate(issued) if t in tags)
        n = len(issued) - 1 - last
        P(f"s_waitcnt vmcnt({min(n,63)})")
    ldsq = []
    def L(text, tag=None):
        P(text); ldsq.append(tag)
    def lwait(tags):
        idx = [k for k, t in enumerate(ldsq) if t in tags]
        n = len(ldsq) - 1 - max(idx)
        P(f"s_waitcnt lgkmcnt({min(n, 15)})")
    for u in range(4): bld(u)
    if WARM[0]:
        P(f"v_lshrrev_b32 v{T}, 1, v0")
        P(f"v_and_b32 v{T+1}, 1, v0")
        P("s_movk_i32 s53, 3584")
        P(f"v_mul_u32_u24 v{T}, s53, v{T}")
        P(f"v_lshl_add_u32 v{T}, v{T+1}, 7, v{T}")
        P("s_and_b32 s53, s14, 3")
        P("s_lshl_b32 s53, s53, 3")
        P("s_add_u32 s53, s53, s3")
        P(f"s_mul_i32 s53, s53, {16*3584}")
        P("s_add_u32 s53, s53, s54")
        P("s_mov_b32 exec_hi, 0")
        P(f"buffer_load_dword v31, v{T}, s[20:23], s53 offen")
        P("s_mov_b64 exec, -1")
        issued.append(('P', 0))
    P("s_lshl_b32 s53, s14, 3")
    P("v_mov_b32 v13, s53")
    P("s_or_b32 s53, s15, s3")
    P("s_cmp_lg_u32 s53, 0")
    P("s_cbranch_scc1 k1_nolead")
    P("s_memrealtime s[70:71]")
    P("s_waitcnt lgkmcnt(0)")
    P("s_or_b32 s70, s70, 1")
    P("v_mov_b32 v14, s70")
    P("v_mov_b32 v15, s71")
    P("s_mov_b64 exec, 1")
    P("global_store_dwordx2 v13, v[14:15], s[10:11] sc0 sc1")
    P("s_mov_b64 exec, -1")
    P.label("k1_nolead")
    VLW, VT2, VT1, RR = 16, 17, 18, 19
    G = 8
    P(f"s_mul_i32 s56, s3, {NR*1024}")
    P(f"v_lshlrev_b32 v{VLW}, 4, v0")
    P(f"v_add_u32 v{VLW}, s56, v{VLW}")
    def bwr(u):
        wait_for({('B', u)})
        L(f"ds_write_b128 v{VLW}, {land(u)} offset:{(u % NR) * 1024}", ('W', u))
    P(f"v_lshrrev_b32 v{G}, 4, v0")
    P(f"v_bfe_u32 v{G+1}, v0, 2, 2")
    P(f"v_and_b32 v{G+2}, 3, v0")
    P(f"v_and_b32 v{G+3}, 1, v{G}")
    P(f"v_lshl_add_u32 v{G+2}, v{G+3}, 2, v{G+2}")
    P(f"v_lshrrev_b32 v{G+3}, 1, v{G+2}")
    P(f"v_and_b32 v{G+4}, 1, v{G+2}")
    P(f"v_lshrrev_b32 v{G}, 1, v{G}")
    P(f"v_lshl_add_u32 v{G}, v{G}, 3, v{G+1}")
    P(f"v_lshlrev_b32 v{G}, 6, v{G}")
    P(f"v_add_u32 v{G}, s56, v{G}")
    P(f"v_lshl_add_u32 v{VT2}, v{G+4}, 5, v{G}")
    P(f"v_lshl_add_u32 v{VT2}, v{G+3}, 3, v{VT2}")
    P(f"v_and_b32 v{G+1}, 1, v{G+3}")
    P(f"v_lshl_add_u32 v{VT1}, v{G+1}, 5, v{G}")
    P(f"v_lshl_add_u32 v{VT1}, v{G+4}, 4, v{VT1}")
    P(f"v_lshrrev_b32 v{G+3}, 1, v{G+3}")
    P(f"v_lshl_add_u32 v{VT1}, v{G+3}, 3, v{VT1}")
    VXR = 22
    P(f"v_and_b32 v{G}, 31, v0")
    P(f"v_lshrrev_b32 v{G+1}, 5, v0")
    P(f"v_and_b32 v{G+2}, 15, v0")
    P(f"v_xor_b32 v{G+1}, v{G+1}, v{G+2}")
    P(f"v_lshlrev_b32 v{G+1}, 4, v{G+1}")
    P(f"v_lshl_add_u32 v{G+1}, v{G}, 10, v{G+1}")
    P(f"s_mul_i32 s53, s59, {32768 + 512}")
    P(f"s_add_u32 s53, s53, {XB}")
    P(f"v_add_u32 v{VXR}, s53, v{G+1}")
    P(f"v_lshlrev_b32 v{G}, 2, v{G}")
    P("s_lshl_b32 s66, s59, 16")
    P("s_sub_u32 s66, 0x8000, s66")
    P("s_lshl_b32 s53, s59, 7")
    P(f"s_add_u32 s53, s53, {RS}")
    P(f"v_add_u32 v{RR}, s53, v{G}")
    P(f"v_lshrrev_b32 v{G}, 3, v0")
    P(f"v_lshlrev_b32 v{G}, 2, v{G}")
    P("s_lshl_b32 s53, s3, 5")
    P(f"s_add_u32 s53, s53, {RS}")
    P(f"v_add_u32 v23, s53, v{G}")
    S, Q = G, G + 1
    for r in range(4): P(f"v_mov_b32 v{G+r}, 0")
    for e in range(8):
        wait_for({('X', e)})
        for r in range(4 * e, 4 * e + 4):
            P(f"v_dot2c_f32_bf16 v{S+(r&1)*2}, s62, v{X+r}")
        if e % 2 == 1: bld(4 + e // 2)
    P(f"v_add_f32 v{S}, v{S}, v{S+2}")
    for m in ("quad_perm:[1,0,3,2]", "quad_perm:[2,3,0,1]", "row_half_mirror"):
        P(f"v_add_f32_dpp v{S}, v{S}, v{S} {m} row_mask:0xf bank_mask:0xf")
    P(f"v_mul_f32 v{S}, 0x3b000000, v{S}")
    bf16_round_v(P, S + 2, S, G + 4)
    P("s_mov_b32 s65, 0xffff0000")
    for e in range(8):
        for r in range(4 * e, 4 * e + 4):
            a, b = T + (r & 1) * 2, T + 1 + (r & 1) * 2
            P(f"v_lshlrev_b32 v{a}, 16, v{X+r}")
            P(f"v_and_b32 v{b}, s65, v{X+r}")
            P(f"v_sub_f32 v{a}, v{a}, v{S+2}")
            P(f"v_sub_f32 v{b}, v{b}, v{S+2}")
            P(f"v_cvt_pk_bf16_f32 v{X+r}, v{a}, v{b}")
        L(f"ds_write_b128 v{VXW+(e&1)}, v[{X+4*e}:{X+4*e+3}] offset:{256*(e>>1)}")
        if e % 2 == 1: bld(8 + e // 2)
    for u in range(4): bwr(u)
    for r in range(32):
        P(f"v_dot2c_f32_bf16 v{Q+(r&1)*2}, v{X+r}, v{X+r}")
    P(f"v_add_f32 v{Q}, v{Q}, v{Q+2}")
    for m in ("quad_perm:[1,0,3,2]", "quad_perm:[2,3,0,1]", "row_half_mirror"):
        P(f"v_add_f32_dpp v{Q}, v{Q}, v{Q} {m} row_mask:0xf bank_mask:0xf")
    P(f"v_sub_f32 v{S}, v{S}, v{S+2}")
    P(f"v_mul_f32 v{Q}, 0x3b000000, v{Q}")
    P(f"v_fma_f32 v{Q}, -v{S}, v{S}, v{Q}")
    P(f"v_max_f32 v{Q}, 0, v{Q}")
    bf16_round_v(P, Q, Q, S + 2)
    P(f"v_add_f32 v{Q}, 0x3727c5ac, v{Q}")
    bf16_round_v(P, Q, Q, S + 2)
    P(f"v_sqrt_f32 v{Q}, v{Q}")
    bf16_round_v(P, Q, Q, S + 2)
    P(f"v_rcp_f32 v{Q}, v{Q}")
    L(f"ds_write_b32 v23, v{Q}")
    P(f"v_mov_b32 v{G+4}, v{VXR}"); VXR = G + 4
    P("s_waitcnt lgkmcnt(0)")
    P("s_barrier")
    WF = 20
    def rds(s):
        vb = VT2 if s < 16 else VT1
        for rr in range(2):
            r = WF + 4 * (s % 3) + 2 * rr
            L(f"ds_read_b64_tr_b16 v[{r}:{r+1}], v{vb} offset:{(s % NR) * 1024 + 256 * rr}", ('R', s))
    def xfr(q, his):
        P(f"v_xor_b32 v{T+2*(q&1)}, {32*q}, v{VXR}")
        P(f"v_add_u32 v{T+1+2*(q&1)}, s66, v{T+2*(q&1)}")
        for hi in his:
            i = 8 * hi + q
            for sg_ in range(2):
                L(f"ds_read_b128 a[{64*sg_+4*i}:{64*sg_+4*i+3}], v{T+sg_+2*(q&1)} offset:{256*hi}", ('XF', i))
    rds(0); rds(1)
    L(f"ds_read_b32 v{RR}, v{RR}")
    for q in range(8):
        xfr(q, (0,))
    prof(P, 1, pr)
    def step(s, vside=()):
        i = s % 16
        tags = {('R', s)}
        if s < 16: tags.add(('XF', i))
        lwait(tags)
        acc = ACC2 if s < 16 else ACC1
        vside = list(vside); per = (len(vside) + 1) // 2
        for sl in range(2):
            a = acc + 16 * sl; f = WF + 4 * (s % 3)
            P(f"v_mfma_f32_32x32x16_bf16 v[{a}:{a+15}], v[{f}:{f+3}], a[{64*sl+4*i}:{64*sl+4*i+3}], {'0' if i == 0 else f'v[{a}:{a+15}]'}")
            if sl == 0:
                if s + 4 < 32: bwr(s + 4)
                if s < 6: xfr(s, (1,))
                if s in (8, 9): xfr(s - 2, (1,))
            else:
                if s + 2 < 32: rds(s + 2)
                if s < 12: bld(12 + s)
                if 13 <= s < 21:
                    lwait({('W', s + 3)}); bld(s + 11)
                if s == 10:
                    P("global_load_dwordx2 v[14:15], v13, s[10:11] sc0 sc1"); issued.append(('N', 0))
            for _ in range(per):
                if vside:
                    x_ = vside.pop(0)
                    if x_.startswith('ds_'): L(x_)
                    else: P(x_)
        assert not vside
    def split(lst, n):
        k = (len(lst) + n - 1) // n
        return [lst[i*k:(i+1)*k] for i in range(n)]
    def xw(acc):
        P(f"v_lshlrev_b32 v{T}, 4, v0")
        P("s_lshl_b32 s53, s3, 12")
        P(f"s_add_u32 s53, s53, {EX}")
        P(f"v_add_u32 v{T}, s53, v{T}")
        P(f"v_xor_b32 v{T+1}, 0x4000, v{T}")
        for i in range(4):
            L(f"ds_write_b128 v{T}, v[{acc+16+4*i}:{acc+19+4*i}] offset:{1024*i}", ('EW', acc))
    def xr(acc):
        lwait({('EW', acc)})
        P("s_barrier")
        for i in range(4):
            L(f"ds_read_b128 v[{acc+16+4*i}:{acc+19+4*i}], v{T+1} offset:{1024*i}", ('ER', acc))
    for s in range(16): step(s)
    prof(P, 2, pr)
    xw(ACC2)
    XD = XDELAY[0]
    for s in range(16, 16 + XD): step(s)
    xr(ACC2)
    step(16 + XD)
    lwait({('ER', ACC2)})
    P(f"v_mov_b32 v{G+4}, s63")
    Z2 = ACC2
    pre = [f"v_add_f32 v{ACC2+r}, v{ACC2+r}, v{ACC2+16+r}" for r in range(16)]
    gs = pre + gelu_stream(ACC2, G, RR)
    SS = Buf()
    S2, Q2 = ACC2 + 8, ACC2 + 9
    SS(f"v_mov_b32 v{S2}, 0")
    SS(f"v_mov_b32 v{Q2}, 0")
    for q in range(8):
        SS(f"v_dot2c_f32_bf16 v{S2}, s62, v{Z2+q}")
        SS(f"v_dot2c_f32_bf16 v{Q2}, v{Z2+q}, v{Z2+q}")
    SS(f"v_mov_b32 v{S2+2}, v{S2}")
    SS(f"v_mov_b32 v{S2+3}, v{Q2}")
    SS(f"v_permlane32_swap_b32 v{S2}, v{S2+2}")
    SS(f"v_permlane32_swap_b32 v{Q2}, v{S2+3}")
    SS(f"v_add_f32 v{S2}, v{S2}, v{S2+2}")
    SS(f"v_add_f32 v{Q2}, v{Q2}, v{S2+3}")
    SS(f"v_lshlrev_b32 v{S2+4}, 4, v0")
    SS("s_lshl_b32 s53, s14, 1")
    SS("s_add_u32 s53, s53, s59")
    SS("s_mul_i32 s60, s53, 14336")
    SS("s_lshl_b32 s53, s15, 2")
    SS("s_add_u32 s53, s53, s58")
    SS("s_lshl_b32 s53, s53, 9")
    SS("s_add_u32 s53, s53, s60")
    GS = GSPLIT[0]
    av = split(gs + SS.l, GS)
    s0 = 17 + XD
    for k in range(GS): step(s0 + k, av[k])
    wait_for({('N', 0)})
    P("s_mov_b32 s56, 0")
    P.label("k1_nonce")
    P("v_readfirstlane_b32 s70, v14")
    P("s_cmp_lg_u32 s70, 0")
    P("s_cbranch_scc1 k1_nonce_ok")
    P("global_load_dwordx2 v[14:15], v13, s[10:11] sc0 sc1")
    P("s_add_u32 s56, s56, 1")
    P("s_waitcnt vmcnt(0)")
    P("s_cmp_lt_u32 s56, 0x200000")
    P("s_cbranch_scc1 k1_nonce")
    P.label("k1_nonce_ok")
    P(f"v_mov_b32 v{S2+2}, v14")
    P(f"v_mov_b32 v{S2+3}, v15")
    P("s_mov_b32 exec_hi, 0")
    P(f"buffer_store_dwordx4 v[{S2}:{S2+3}], v{S2+4}, s[32:35], s53 offen sc0 sc1")
    P("s_mov_b64 exec, -1")
    issued.append(('S', 0))
    if REBLK[0] == 1:
        rb_load(P, 0, T + 2)
        for _ in range(4): issued.append(('R', 0))
    if REBLK[0] == 2:
        P(f"v_lshlrev_b32 v{T+2}, 7, v0")
        P("s_lshl_b32 s56, s2, 15")
        P("s_lshl_b32 s57, s3, 12")
        P("s_add_u32 s56, s56, s57")
        P("s_mov_b32 exec_hi, 0")
        P(f"buffer_load_dword a0, v{T+2}, s[36:39], s56 offen")
        P("s_mov_b64 exec, -1")
        issued.append(('R', 0))
    prof(P, 3, pr)
    for s in range(s0 + GS, 32): step(s)
    prof(P, 4, pr)
    xw(ACC1)
    def gather():
        for c in range(14):
            if c % 4 == 0: P(f"s_add_u32 s61, s60, {1024*c}")
            P(f"buffer_load_dwordx4 a[{64+4*c}:{67+4*c}], v{S2+4}, s[32:35], s61 offen offset:{1024*(c%4)} sc0 sc1")
    P("s_cmp_lg_u32 s58, 0")
    P("s_cbranch_scc1 k1_nog1")
    gather()
    P.label("k1_nog1")
    xr(ACC1)
    Z1 = ACC1
    P(f"v_and_b32 v{T+2}, 15, v0")
    P(f"v_bfe_u32 v{T+3}, v0, 4, 1")
    P(f"v_lshrrev_b32 v{T+4}, 5, v0")
    P(f"v_lshlrev_b32 v{T+2}, 4, v{T+2}")
    P(f"v_lshl_add_u32 v{T+2}, v{T+3}, 10, v{T+2}")
    P(f"v_lshl_add_u32 v{T+5}, v{T+4}, 9, v{T+2}")
    P("s_mul_i32 s53, s14, 28")
    P("s_lshl_b32 s56, s15, 2")
    P("s_add_u32 s53, s53, s56")
    P("s_add_u32 s53, s53, s58")
    P("s_lshl_b32 s53, s53, 12")
    P("s_lshl_b32 s56, s59, 11")
    P("s_add_u32 s53, s53, s56")
    P("s_waitcnt lgkmcnt(0)")
    for r in range(16): P(f"v_add_f32 v{ACC1+r}, v{ACC1+r}, v{ACC1+16+r}")
    for s_ in gelu_stream(ACC1, G, RR): P(s_)
    P(f"buffer_store_dwordx4 v[{Z1}:{Z1+3}], v{T+5}, s[28:31], s53 offen sc1")
    P(f"buffer_store_dwordx4 v[{Z1+4}:{Z1+7}], v{T+5}, s[28:31], s53 offen offset:256 sc1")
    prof(P, 5, pr)
    PS = ACC1 + 16
    MS = XB + 32768
    S, Q = PS, PS + 1
    P("s_cmp_lg_u32 s58, 0")
    P("s_cbranch_scc1 k1_nopoll")
    P("s_mov_b32 s56, 0")
    P.label("k1_poll")
    P("s_waitcnt vmcnt(0)")
    for r in range(4): P(f"v_mov_b32 v{PS+r}, 0")
    for c in range(14):
        for r in range(4): P(f"v_accvgpr_read_b32 v{PS+4+r}, a{64+4*c+r}")
        P(f"v_add_f32 v{PS}, v{PS}, v{PS+4}")
        P(f"v_add_f32 v{PS+1}, v{PS+1}, v{PS+5}")
        P(f"v_xor_b32 v{PS+6}, v{PS+6}, v14")
        P(f"v_xor_b32 v{PS+7}, v{PS+7}, v15")
        P(f"v_or_b32 v{PS+2}, v{PS+2}, v{PS+6}")
        P(f"v_or_b32 v{PS+3}, v{PS+3}, v{PS+7}")
    P(f"v_or_b32 v{PS+2}, v{PS+2}, v{PS+3}")
    P(f"v_cmp_ne_u32 vcc, 0, v{PS+2}")
    P("s_add_u32 s56, s56, 1")
    P("s_cmp_eq_u64 vcc, 0")
    P("s_cbranch_scc1 k1_got")
    gather()
    P("s_cmp_lt_u32 s56, 0x100000")
    P("s_cbranch_scc1 k1_poll")
    P("s_waitcnt vmcnt(0)")
    P.label("k1_got")
    P(f"v_mov_b32 v{PS+2}, v{PS}")
    P(f"v_mov_b32 v{PS+3}, v{PS+1}")
    P(f"v_permlane32_swap_b32 v{PS}, v{PS+2}")
    P(f"v_permlane32_swap_b32 v{PS+1}, v{PS+3}")
    P(f"v_add_f32 v{PS}, v{PS}, v{PS+2}")
    P(f"v_add_f32 v{PS+1}, v{PS+1}, v{PS+3}")
    P(f"v_mul_f32 v{S}, {fbits(1/896)}, v{S}")
    P(f"v_mul_f32 v{Q}, {fbits(1/896)}, v{Q}")
    P(f"v_fma_f32 v{Q}, -v{S}, v{S}, v{Q}")
    P(f"v_max_f32 v{Q}, 0, v{Q}")
    bf16_round_v(P, S, S, T + 2)
    bf16_round_v(P, Q, Q, T + 2)
    P(f"v_add_f32 v{Q}, 0x3727c5ac, v{Q}")
    bf16_round_v(P, Q, Q, T + 2)
    P(f"v_sqrt_f32 v{Q}, v{Q}")
    bf16_round_v(P, Q, Q, T + 2)
    P(f"v_rcp_f32 v{Q}, v{Q}")
    P(f"v_and_b32 v{T}, 31, v0")
    P(f"v_lshlrev_b32 v{T}, 3, v{T}")
    P("s_lshl_b32 s53, s59, 8")
    P(f"s_add_u32 s53, s53, {MS}")
    P(f"v_add_u32 v{T}, s53, v{T}")
    P(f"ds_write_b64 v{T}, v[{S}:{Q}]")
    P.label("k1_nopoll")
    if REBLK[0] == 1:
        P("s_waitcnt vmcnt(2)")
        rb_store(P, 0, XB, T, X + 16)
    VT = 20
    P(f"v_and_b32 v{VT+3}, 31, v0")
    P(f"v_lshlrev_b32 v{VT+3}, 3, v{VT+3}")
    P("s_lshl_b32 s53, s59, 8")
    P(f"s_add_u32 s53, s53, {MS}")
    P(f"v_add_u32 v{VT+3}, s53, v{VT+3}")
    P(f"v_and_b32 v{T}, 31, v0")
    P(f"v_lshrrev_b32 v{T+1}, 5, v0")
    P(f"v_lshlrev_b32 v{T}, 6, v{T}")
    P(f"v_lshl_add_u32 v{T}, v{T+1}, 5, v{T}")
    P(f"s_mul_i32 s53, s3, {NR*1024}")
    P(f"v_add_u32 v{VT}, s53, v{T}")
    P(f"v_lshrrev_b32 v{T+1}, 4, v0")
    P(f"v_bfe_u32 v{T+2}, v0, 2, 2")
    P(f"v_and_b32 v{T+3}, 3, v0")
    P(f"v_lshl_add_u32 v{T+1}, v{T+1}, 3, v{T+2}")
    P(f"v_lshlrev_b32 v{T+1}, 6, v{T+1}")
    P(f"v_lshl_add_u32 v{T+1}, v{T+3}, 3, v{T+1}")
    P(f"v_add_u32 v{VT+1}, s53, v{T+1}")
    P(f"v_lshlrev_b32 v{VT+2}, 4, v0")
    P("s_lshl_b32 s60, s14, 1")
    P("s_add_u32 s60, s60, s59")
    for tl in range(2):
        P("s_lshl_b32 s53, s15, 3")
        P("s_lshl_b32 s61, s58, 1")
        P("s_add_u32 s53, s53, s61")
        if tl: P("s_add_u32 s53, s53, 1")
        P("s_mul_i32 s61, s53, 37")
        P("s_lshr_b32 s61, s61, 8")
        P("s_mul_i32 s65, s61, 7")
        P("s_sub_u32 s53, s53, s65")
        P("s_add_u32 s65, s53, 6")
        P("s_sub_u32 s66, s53, 1")
        P("s_cmp_eq_u32 s53, 0")
        P("s_cselect_b32 s65, s65, s66")
        P("s_bitcmp1_b32 s61, 0")
        P("s_cselect_b32 s53, s65, s53")
        P("s_lshl_b32 s61, s61, 6")
        P("s_add_u32 s61, s61, s60")
        P("s_mul_i32 s61, s61, 7")
        P("s_add_u32 s61, s61, s53")
        P(f"s_lshl_b32 s{67+tl}, s61, 10")
    U = X
    for r in range(8):
        P(f"v_lshlrev_b32 v{U+2*r}, 16, v{Z2+r}")
        P(f"v_and_b32 v{U+2*r+1}, 0xffff0000, v{Z2+r}")
    P("s_waitcnt lgkmcnt(0)")
    P("s_barrier")
    P(f"ds_read_b64 v[{S}:{Q}], v{VT+3}")
    P("s_waitcnt lgkmcnt(0)")
    for r in range(16): P(f"v_sub_f32 v{U+r}, v{U+r}, v{S}")
    for r in range(16): P(f"v_mul_f32 v{U+r}, v{U+r}, v{Q}")
    for r in range(8): P(f"v_cvt_pk_bf16_f32 v{Z2+r}, v{U+2*r}, v{U+2*r+1}")
    P(f"ds_write_b128 v{VT}, v[{Z2}:{Z2+3}]")
    P(f"ds_write_b128 v{VT}, v[{Z2+4}:{Z2+7}] offset:16")
    P("s_waitcnt lgkmcnt(0)")
    O = ACC2 + 16
    for tl in range(2):
        for rr in range(2):
            P(f"ds_read_b64_tr_b16 v[{O+4*tl+2*rr}:{O+4*tl+2*rr+1}], v{VT+1} offset:{32*tl + 256*rr}")
    P("s_waitcnt lgkmcnt(0)")
    for tl in range(2):
        P(f"buffer_store_dwordx4 v[{O+4*tl}:{O+4*tl+3}], v{VT+2}, s[24:27], s{67+tl} offen sc1")
    prof(P, 6, pr)
    if pr: P("s_waitcnt vmcnt(0)")
    prof(P, 7, pr)
    P("s_endpgm")
    k2.PROF_V[0] = 26
    if aux is not None:
        P.label("k1_aux")
        prof(P, 0, pr)
        aux(P, X, T, VXW, pr)
    P.label("k1_end")
    P("s_endpgm")
    return dict(vgpr=128, agpr=128, lds=160 * 1024)
GSPLIT = [6]
XDELAY = [2]
WARM = [0]
REBLK = [1]
```

```python
from dsl import Prog
WS_Z2F = 0x0000000
WS_Z1F = 0x0400000
WS_HF  = 0x0800000
WS_XNT = 0x0C00000
WS_YAT = 0x0E00000
WS_KR  = 0x1000000
WS_WOF = 0x1800000
WS_ST  = 0x1900000
WS_WF  = 0x2000000
KR_STRIDE = 8704

def srd(P, d, base, nbytes, off=0):
    if off:
        P(f"s_add_u32 s{d}, s{base}, {off}")
        P(f"s_addc_u32 s{d+1}, s{base+1}, 0")
        P(f"s_and_b32 s{d+1}, s{d+1}, 0xffff")
    else:
        P(f"s_mov_b32 s{d}, s{base}")
        P(f"s_and_b32 s{d+1}, s{base+1}, 0xffff")
    P(f"s_mov_b32 s{d+2}, {nbytes}")
    P(f"s_mov_b32 s{d+3}, 0x00020000")

WS_PROF = 0x1A00000
PROF_K = [0]
PROF_V = [26]
PRIO = [0, 0]
LF = [0]
EXP = [0]
def prof(P, idx, on):
    if not on: return
    P("s_memrealtime s[90:91]")
    P("s_lshl_b32 s92, s2, 3")
    P("s_add_u32 s92, s92, s3")
    P("s_lshl_b32 s92, s92, 6")
    P(f"s_add_u32 s92, s92, {WS_PROF + PROF_K[0]*0x40000 + idx*8}")
    P("s_waitcnt lgkmcnt(0)")
    b_ = PROF_V[0]
    P(f"v_mov_b32 v{b_}, s90")
    P(f"v_mov_b32 v{b_+1}, s91")
    P(f"v_mov_b32 v{b_-1}, s92")
    P(f"global_store_dwordx2 v{b_-1}, v[{b_}:{b_+1}], s[8:9]")

CW_AREA = 16384
XPO = 8704
from kgen import kgen
def gen_conv(P, CB, pr):
    prof(P, 0, pr)
    if PRIO[1] == 9: P("s_endpgm")
    elif PRIO[1]: P(f's_setprio {PRIO[1]}')
    T = 2
    P("s_sub_u32 s52, s3, 4")
    P("s_lshr_b32 s53, s52, 1")
    P("s_lshl_b32 s54, s2, 1")
    P("s_add_u32 s54, s54, s53")
    P(f"s_mul_i32 s55, s52, {CW_AREA}")
    P(f"s_add_u32 s55, s55, {CB}")
    PAR = 104
    P("s_xor_b32 s60, s52, 1")
    P(f"s_mul_i32 s60, s60, {CW_AREA}")
    P(f"s_add_u32 s60, s60, {CB}")
    P("s_and_b32 s61, s52, 1")
    P(f"v_mov_b32 v{T}, s55")
    P(f"v_mov_b32 v{T+1}, 0")
    P(f"ds_write_b32 v{T}, v{T+1} offset:16380")
    P(f"v_lshlrev_b32 v{T}, 2, v0")
    P("s_lshl_b32 s53, s54, 8")
    P(f"v_add_u32 v{T}, s53, v{T}")
    P("s_lshl_b32 s53, s54, 1")
    P(f"v_mov_b32 v{T+1}, s53")
    P("s_waitcnt lgkmcnt(0)")
    for k in range(6):
        P(f"global_load_dword v{PAR+k}, v{T}, s[{68+2*k}:{69+2*k}]")
    P(f"global_load_ushort v{PAR+6}, v{T+1}, s[80:81]")
    P(f"global_load_ushort v{PAR+7}, v{T+1}, s[10:11]")
    P("s_barrier")
    P("s_waitcnt vmcnt(0)")
    P(f"v_lshlrev_b32 v{PAR+6}, 16, v{PAR+6}")
    prof(P, 3, pr)
    def xload():
        P("s_lshl_b32 s59, s54, 12")
        P(f"v_lshlrev_b32 v{T}, 4, v0")
        P(f"s_add_u32 m0, s55, {XPO+512}")
        P("s_nop 0")
        for e in range(4):
            P(f"buffer_load_dwordx4 v{T}, s[36:39], s59 offen offset:{1024*e} lds")
        P(f"v_mov_b32 v{T+2}, 0")
        P(f"v_mov_b32 v{T+3}, 0")
        P(f"v_lshlrev_b32 v{T+1}, 3, v0")
        P(f"v_add_u32 v{T+1}, s55, v{T+1}")
        P(f"ds_write_b64 v{T+1}, v[{T+2}:{T+3}] offset:{XPO}")
    kgen(P, PAR, 55, 60, 61, xload)
    prof(P, 2, pr)
    P(f"v_mov_b32 v{T+9}, s57")
    P(f"v_mov_b32 v{T+8}, v{PAR+7}")
    P("s_lshl_b32 s57, s54, 12")
    VA = 12
    P(f"v_and_b32 v{T}, 15, v0")
    P(f"v_lshrrev_b32 v{T+1}, 5, v0")
    P(f"v_bfe_u32 v{T+2}, v0, 4, 1")
    P(f"v_lshl_add_u32 v{T+3}, v{T+1}, 4, v{T}")
    P(f"v_add_u32 v{T+3}, 9, v{T+3}")
    P(f"v_lshlrev_b32 v{T+4}, 3, v{T+2}")
    P(f"v_sub_u32 v{T+3}, v{T+3}, v{T+4}")
    P(f"v_and_b32 v{T+4}, 1, v{T+3}")
    P(f"v_sub_u32 v{T+3}, v{T+3}, v{T+4}")
    P(f"v_lshlrev_b32 v{T+3}, 1, v{T+3}")
    P("s_movk_i32 s58, 4288")
    P(f"v_mad_u32_u24 v{T+3}, v{T+4}, s58, v{T+3}")
    P(f"v_add_u32 v{VA}, s55, v{T+3}")
    for k in range(1, 4):
        P(f"v_add_u32 v{VA+k}, {1024*k}, v{VA}")
    P(f"v_sub_u32 v{T+3}, v{T}, v{T+1}")
    P(f"v_lshlrev_b32 v{T+3}, 5, v{T+3}")
    P(f"v_lshl_add_u32 v{T+3}, v{T+2}, 4, v{T+3}")
    P(f"s_add_u32 s58, s55, {XPO}")
    P(f"v_add_u32 v{VA+4}, s58, v{T+3}")
    P(f"v_lshl_add_u32 v{T+3}, v{T}, 1, v{T+1}")
    P(f"v_lshlrev_b32 v{T+3}, 4, v{T+3}")
    P(f"v_xor_b32 v{T+4}, 1, v{T+2}")
    P(f"v_lshl_add_u32 v{T+3}, v{T+4}, 3, v{T+3}")
    P(f"v_add_u32 v{VA+5}, s58, v{T+3}")
    P(f"v_lshrrev_b32 v{T+3}, 4, v0")
    P(f"v_lshlrev_b32 v{T+3}, 3, v{T+3}")
    P(f"v_lshl_add_u32 v{VA+6}, v{T}, 5, v{T+3}")
    AF, BF, ACC = 20, 52, 84
    for r in range(20): P(f"v_mov_b32 v{ACC+r}, 0")
    P("s_waitcnt vmcnt(0) lgkmcnt(0)")
    P("s_bitcmp1_b32 s52, 0")
    P("s_cbranch_scc1 k2_conv1")
    for part, U in enumerate(([7, 6, 2], [5, 4, 3, 1, 0])):
        if part: P.label("k2_conv1")
        um = max(U)
        def rds(st, dl):
            out = []
            for i in range(um + 1):
                o = 128 * (i & 1) + 16 * dl
                ra = (lambda k: f"v[{AF+4*i+k}:{AF+4*i+k+1}]") if st == 0 else (lambda k: f"a[{4*i+k}:{4*i+k+1}]")
                rb = f"v[{BF+4*i}:{BF+4*i+3}]" if st == 0 else f"a[{32+4*i}:{32+4*i+3}]"
                out.append(f"ds_read2_b32 {ra(0)}, v{VA+(i>>1)} offset0:{o} offset1:{o+1}")
                out.append(f"ds_read2_b32 {ra(2)}, v{VA+(i>>1)} offset0:{o+2} offset1:{o+3}")
                out.append(f"ds_read_b128 {rb}, v{VA+4} offset:{512+512*i-64*dl}")
            return out
        work = []
        for step in range(um + 1):
            for k, u in enumerate(U):
                if step <= u: work.append((k, step, u - step))
        def mf(st, side):
            side = list(side)
            for n_, (k, i, w) in enumerate(work):
                a = ACC + 4 * k
                ra = f"v[{AF+4*i}:{AF+4*i+3}]" if st == 0 else f"a[{4*i}:{4*i+3}]"
                rb = f"v[{BF+4*w}:{BF+4*w+3}]" if st == 0 else f"a[{32+4*w}:{32+4*w+3}]"
                P(f"v_mfma_f32_16x16x32_f16 v[{a}:{a+3}], {ra}, {rb}, v[{a}:{a+3}]")
                for _ in range(2 if n_ < len(side) // 3 else 1):
                    if side: P(side.pop(0))
            for x_ in side: P(x_)
        for x_ in rds(0, 0): P(x_)
        P("s_mov_b32 s59, 0")
        P.label(f"k2_cloop{part}")
        P("s_waitcnt lgkmcnt(0)")
        mf(0, rds(1, 1))
        P("s_waitcnt lgkmcnt(0)")
        mf(1, rds(0, 2))
        for k in range(4): P(f"v_add_u32 v{VA+k}, 128, v{VA+k}")
        P(f"v_subrev_u32 v{VA+4}, 128, v{VA+4}")
        P("s_add_u32 s59, s59, 1")
        P("s_cmp_lt_u32 s59, 4")
        P(f"s_cbranch_scc1 k2_cloop{part}")
        P("s_waitcnt lgkmcnt(0)")
        for k, u in enumerate(U):
            P(f"ds_read_b64 v[{AF+2*k}:{AF+2*k+1}], v{VA+5} offset:{512+512*u}")
        P(f"v_lshlrev_b32 v{T+8}, 16, v{T+8}")
        P("s_waitcnt lgkmcnt(0)")
        for k, u in enumerate(U):
            a = ACC + 4 * k; xl, xh = AF + 2 * k, AF + 2 * k + 1
            for i in range(4): P(f"v_mul_f32 v{a+i}, v{a+i}, v{T+9}")
            P(f"v_cvt_pk_bf16_f32 v{T}, v{a}, v{a+1}")
            P(f"v_cvt_pk_bf16_f32 v{T+1}, v{a+2}, v{a+3}")
            P(f"v_cvt_f32_f16_sdwa v{a}, v{xh} dst_sel:DWORD dst_unused:UNUSED_PAD src0_sel:WORD_1")
            P(f"v_cvt_f32_f16 v{a+1}, v{xh}")
            P(f"v_cvt_f32_f16_sdwa v{a+2}, v{xl} dst_sel:DWORD dst_unused:UNUSED_PAD src0_sel:WORD_1")
            P(f"v_cvt_f32_f16 v{a+3}, v{xl}")
            for i in range(4): P(f"v_mul_f32 v{a+i}, v{a+i}, v{T+8}")
            P(f"v_cvt_pk_bf16_f32 v{T+2}, v{a}, v{a+1}")
            P(f"v_cvt_pk_bf16_f32 v{T+3}, v{a+2}, v{a+3}")
            for hh in range(2):
                P(f"v_lshlrev_b32 v{a+2*hh}, 16, v{T+hh}")
                P(f"v_and_b32 v{a+2*hh+1}, 0xffff0000, v{T+hh}")
                P(f"v_lshlrev_b32 v{T+4}, 16, v{T+2+hh}")
                P(f"v_and_b32 v{T+5}, 0xffff0000, v{T+2+hh}")
                P(f"v_add_f32 v{a+2*hh}, v{a+2*hh}, v{T+4}")
                P(f"v_add_f32 v{a+2*hh+1}, v{a+2*hh+1}, v{T+5}")
            P(f"v_cvt_pk_bf16_f32 v{BF+2*k}, v{a}, v{a+1}")
            P(f"v_cvt_pk_bf16_f32 v{BF+2*k+1}, v{a+2}, v{a+3}")
            P(f"buffer_store_dwordx2 v[{BF+2*k}:{BF+2*k+1}], v{VA+6}, s[40:43], s57 offen offset:{512*u} sc1")
        prof(P, 1, pr)
        P("s_barrier")
        P("s_endpgm")

def gen_k2(P, NST=3, conv=True, nz=3, pr=False):
    STG = 8192
    AREA = NST * STG
    P.label("k2_kernel")
    P("s_cmp_ge_u32 s2, 256")
    P("s_cbranch_scc1 k2_end")
    P("s_load_dwordx2 s[4:5], s[0:1], 88")
    P("s_load_dwordx2 s[6:7], s[0:1], 96")
    P("s_load_dwordx2 s[8:9], s[0:1], 128")
    P("s_load_dwordx2 s[10:11], s[0:1], 64")
    P("s_load_dwordx4 s[68:71], s[0:1], 8")
    P("s_load_dwordx4 s[72:75], s[0:1], 24")
    P("s_load_dwordx4 s[76:79], s[0:1], 40")
    P("s_load_dwordx2 s[80:81], s[0:1], 56")
    P("v_lshrrev_b32 v1, 6, v0")
    P("v_and_b32 v0, 63, v0")
    P("v_readfirstlane_b32 s3, v1")
    P("s_and_b32 s12, s2, 7")
    P("s_lshr_b32 s13, s2, 3")
    P("s_lshr_b32 s14, s12, 1")
    P("s_lshl_b32 s14, s14, 3")
    P("s_and_b32 s15, s13, 7")
    P("s_add_u32 s14, s14, s15")
    P("s_and_b32 s15, s12, 1")
    P("s_lshl_b32 s15, s15, 2")
    P("s_lshr_b32 s13, s13, 3")
    P("s_add_u32 s15, s15, s13")
    if EXP[0] in (5, 6):
        P("s_mov_b32 s14, 0")
        P("s_mov_b32 s15, 0")
    P("s_waitcnt lgkmcnt(0)")
    srd(P, 16, 4, 2048 * 2048 * 2)
    srd(P, 20, 8, 0x400000, WS_Z2F)
    srd(P, 24, 8, 0x400000, WS_Z1F)
    srd(P, 28, 8, 0x400000, WS_HF)
    srd(P, 32, 6, 4096)
    srd(P, 36, 8, 0x200000, WS_XNT)
    srd(P, 40, 8, 0x200000, WS_YAT)
    if conv:
        P("s_cmp_ge_u32 s3, 4")
        P("s_cbranch_scc1 k2_conv")
    if PRIO[0] == 9: P('s_endpgm')
    elif PRIO[0]: P(f's_setprio {PRIO[0]}')
    prof(P, 0, pr)
    if pr: P("s_memtime s[82:83]")
    VW = 2
    VZ = 10
    VA = 12
    T = 20
    WF = 28
    ZB = 60
    P(f"v_lshrrev_b32 v{T}, 3, v0")
    P(f"v_and_b32 v{T+1}, 7, v0")
    P(f"v_lshrrev_b32 v{T+2}, 1, v{T}")
    P(f"v_xor_b32 v{T+1}, v{T+1}, v{T+2}")
    P(f"v_lshlrev_b32 v{T+1}, 4, v{T+1}")
    P(f"v_lshl_add_u32 v{T+1}, v{T}, 12, v{T+1}")
    P(f"v_xor_b32 v{T+2}, 64, v{T+1}")
    for e in range(8):
        P(f"v_add_u32 v{VW+e}, {8*e*4096 - 1024*(e&3)}, v{T+1+(e&1)}")
    P(f"v_lshlrev_b32 v{VZ}, 4, v0")
    P(f"v_add_u32 v{VZ+1}, 4096, v{VZ}")
    P(f"v_and_b32 v{T}, 15, v0")
    P(f"v_lshrrev_b32 v{T+1}, 4, v0")
    P(f"v_lshrrev_b32 v{T+2}, 1, v{T}")
    P(f"v_xor_b32 v{T+1}, v{T+1}, v{T+2}")
    P(f"v_lshlrev_b32 v{T+1}, 4, v{T+1}")
    P(f"v_lshl_add_u32 v{T+1}, v{T}, 7, v{T+1}")
    P(f"s_mul_i32 s52, s3, {AREA}")
    for tau in range(4):
        P(f"s_add_u32 s53, s3, {tau}")
        P(f"s_and_b32 s53, s53, 3")
        P(f"s_lshl_b32 s53, s53, 11")
        P(f"s_add_u32 s53, s53, s52")
        P(f"v_add_u32 v{VA+tau}, s53, v{T+1}")
        P(f"v_xor_b32 v{VA+4+tau}, 64, v{VA+tau}")
    P("s_lshl_b32 s54, s14, 18")
    P("s_lshl_b32 s53, s3, 10")
    P("s_add_u32 s54, s54, s53")
    P(f"s_mul_i32 s55, s15, {64*7168}")
    P(f"s_mul_i32 s53, s3, {16*7168}")
    P("s_add_u32 s55, s55, s53")
    def wdma(q):
        out = []
        st = q % NST
        for e in range(8):
            pre = []
            if e % 4 == 0:
                pre.append(f"s_add_u32 m0, s52, {st*STG + e*1024}")
                if e == 0: pre.append(f"s_add_u32 s56, s54, {q*128}")
                else: pre.append("s_nop 0")
            out.append("\n".join(pre + [f"buffer_load_dwordx4 v{VW+e}, s[16:19], s56 offen offset:{1024*(e&3)} lds"]))
        return out
    def zld(i):
        out = []
        b = ZB + 28 * (i % nz)
        for ft in range(7):
            pre = [f"s_add_u32 s57, s55, {i*7168}"] if ft == 0 else []
            out.append("\n".join(pre + [f"buffer_load_dwordx4 v[{b+4*ft}:{b+4*ft+3}], v{VZ+(ft>>2)}, s[20:23], s57 offen offset:{1024*(ft&3)}"]))
        return out
    def wrd(i):
        out = []
        st = (i // 2) % NST; h = i & 1
        b = WF + 16 * (i & 1)
        for tau in range(4):
            out.append(f"ds_read_b128 v[{b+4*tau}:{b+4*tau+3}], v{VA+4*h+tau} offset:{st*STG}")
        return out
    ZD = nz - 1
    WD = NST - 1
    issued = []
    def emit(lst, tag):
        for s in lst:
            P(s); issued.append(tag)
    for q in range(max(WD, (ZD + 1) // 2)):
        if q < WD: emit(wdma(q), ('W', q))
        for i in (2 * q, 2 * q + 1):
            if i < ZD: emit(zld(i), ('Z', i))
    if conv: P('s_barrier')
    for r in range(112):
        P(f"v_accvgpr_write_b32 a{r}, 0")
    def wait_for(tags):
        if not any(t in tags for t in issued): return
        last = max(k for k, t in enumerate(issued) if t in tags)
        n = len(issued) - 1 - last
        P(f"s_waitcnt vmcnt({min(n,63)})")
    Z1 = ZB + 28 * ((15 - ZD) % nz)
    def epi_loads():
        P("s_and_b32 s53, s15, 1")
        P("s_mul_i32 s58, s15, 7")
        P("s_add_u32 s58, s58, s53")
        P("s_lshr_b32 s58, s58, 1")
        P("s_lshl_b32 s59, s53, 2")
        P("s_sub_u32 s59, 3, s59")
        P("s_add_u32 s59, s59, s58")
        P("s_mul_i32 s60, s14, 28")
        P("s_add_u32 s58, s58, s60")
        P("s_add_u32 s59, s59, s60")
        P("s_lshl_b32 s58, s58, 2")
        P("s_lshl_b32 s59, s59, 2")
        P("s_add_u32 s58, s58, s3")
        P("s_add_u32 s59, s59, s3")
        P("s_lshl_b32 s58, s58, 10")
        P("s_lshl_b32 s59, s59, 10")
        P("s_lshl_b32 s53, s53, 3")
        P("s_add_u32 s59, s59, s53")
        P(f"buffer_load_dwordx4 v[{Z1}:{Z1+3}], v{VZ}, s[24:27], s58 offen")
        P(f"buffer_load_dwordx4 v[{Z1+4}:{Z1+7}], v{VZ+1}, s[24:27], s58 offen")
        P(f"s_add_u32 s60, s58, 8192")
        P(f"buffer_load_dwordx4 v[{Z1+8}:{Z1+11}], v{VZ}, s[24:27], s60 offen")
        P(f"buffer_load_dwordx2 v[{Z1+12}:{Z1+13}], v{VZ}, s[24:27], s59 offen")
        P(f"v_and_b32 v{T}, 15, v0")
        P(f"v_lshlrev_b32 v{T}, 1, v{T}")
        P("s_lshl_b32 s61, s14, 7")
        P("s_lshl_b32 s53, s3, 5")
        P("s_add_u32 s61, s61, s53")
        P(f"buffer_load_ushort v{T+3}, v{T}, s[32:35], s61 offen")
    wait_for({('W', 0)})
    if pr: P('s_memrealtime s[80:81]')
    for s in wrd(0): P(s)
    for i in range(16):
        need_tags = {('Z', i)}
        if i + 1 < 16: need_tags.add(('W', (i + 1) // 2))
        wait_for(need_tags)
        P("s_waitcnt lgkmcnt(0)")
        side = []
        if i + 1 < 16: side += [(s, None) for s in wrd(i + 1)]
        if i + ZD < 16: side += [(s, ('Z', i + ZD)) for s in zld(i + ZD)]
        if i % 2 == 0 and i // 2 + WD < 8: side += [(s, ('W', i // 2 + WD)) for s in wdma(i // 2 + WD)]
        zb = ZB + 28 * (i % nz); wb = WF + 16 * (i & 1)
        if EXP[0] in (3, 4):
            drop = 'W' if EXP[0] == 3 else 'Z'
            side2 = []
            for x in side:
                if x[1] and x[1][0] == drop: side2.append(("s_nop 0", None))
                else: side2.append(x)
            side = side2
        if EXP[0] == 2:
            for x in side:
                if x[1]: issued.append(x[1])
            side = [x for x in side if not x[1]]
            P("s_sleep 7")
        k = 0
        if LF[0]:
            if LF[0] == 2: P("s_setprio 3")
            mem = [x for x in side if x[1]]; side = [x for x in side if not x[1]]
            for s_, tag in mem:
                P(s_); issued.append(tag)
            if LF[0] == 2: P("s_setprio 0")
        for ft in range(7):
            for tau in range(4):
                a = 4 * (ft * 4 + tau)
                if EXP[0] not in (1, 3, 4, 6): P(f"v_mfma_f32_16x16x32_bf16 a[{a}:{a+3}], v[{zb+4*ft}:{zb+4*ft+3}], v[{wb+4*tau}:{wb+4*tau+3}], a[{a}:{a+3}]")
                if k < len(side):
                    s, tag = side[k]; k += 1
                    P(s)
                    if tag: issued.append(tag)
        assert k == len(side)
        if i == 16 - ZD:
            epi_loads()
            for _ in range(5): issued.append(('E', 0))
    prof(P, 2, pr)
    if pr:
        P('v_mov_b32 v26, s80')
        P('v_mov_b32 v27, s81')
        P('global_store_dwordx2 v25, v[26:27], s[8:9] offset:-8')
    P(f"v_add_u32 v{T+2}, s52, v{VZ}")
    for tau in range(1, 4):
        for ft in range(7):
            a = 4 * (ft * 4 + tau)
            P(f"ds_write_b128 v{T+2}, a[{a}:{a+3}] offset:{(tau-1)*7168 + ft*1024}")
    P("s_waitcnt lgkmcnt(0)")
    P("s_barrier")
    RB = [ZB + 28 * ((15 - ZD + 1) % nz), ZB + 28 * ((15 - ZD + 2) % nz), WF]
    R = RB[0]
    for dl in range(1, 4):
        P(f"s_sub_u32 s53, s3, {dl}")
        P("s_and_b32 s53, s53, 3")
        P(f"s_mul_i32 s53, s53, {AREA}")
        P(f"v_add_u32 v{T+2}, s53, v{VZ}")
        for ft in range(7):
            r = RB[dl - 1] + 4 * ft
            P(f"ds_read_b128 v[{r}:{r+3}], v{T+2} offset:{(dl-1)*7168 + ft*1024}")
    G = T + 4
    P("s_waitcnt lgkmcnt(14)")
    for ft in range(7):
        for i in range(4):
            P(f"v_accvgpr_read_b32 v{G+i}, a{4*(ft*4)+i}")
        for i in range(4):
            P(f"v_add_f32 v{R+4*ft+i}, v{R+4*ft+i}, v{G+i}")
    P("s_waitcnt lgkmcnt(7)")
    for r in range(28):
        P(f"v_add_f32 v{R+r}, v{R+r}, v{RB[1]+r}")
    P("s_waitcnt lgkmcnt(0)")
    for r in range(28):
        P(f"v_add_f32 v{R+r}, v{R+r}, v{RB[2]+r}")
    P("s_waitcnt vmcnt(0)")
    P(f"v_lshlrev_b32 v{T+1}, 16, v{T+3}")
    H = RB[1]
    for q in range(14):
        a, b = R + 2 * q, R + 2 * q + 1
        P(f"v_cvt_pk_bf16_f32 v{G}, v{a}, v{b}")
        P(f"v_lshlrev_b32 v{a}, 16, v{G}")
        P(f"v_and_b32 v{b}, 0xffff0000, v{G}")
        P(f"v_add_f32 v{a}, v{a}, v{T+1}")
        P(f"v_add_f32 v{b}, v{b}, v{T+1}")
        P(f"v_cvt_pk_bf16_f32 v{G}, v{a}, v{b}")
        P(f"v_lshlrev_b32 v{a}, 16, v{G}")
        P(f"v_and_b32 v{b}, 0xffff0000, v{G}")
        P(f"v_lshlrev_b32 v{G+1}, 16, v{Z1+q}")
        P(f"v_and_b32 v{G+2}, 0xffff0000, v{Z1+q}")
        P(f"v_mul_f32 v{a}, v{a}, v{G+1}")
        P(f"v_mul_f32 v{b}, v{b}, v{G+2}")
        P(f"v_cvt_pk_bf16_f32 v{H+q}, v{a}, v{b}")
    ST = " sc1"
    P(f"buffer_store_dwordx4 v[{H}:{H+3}], v{VZ}, s[28:31], s58 offen{ST}")
    P(f"buffer_store_dwordx4 v[{H+4}:{H+7}], v{VZ+1}, s[28:31], s58 offen{ST}")
    P(f"buffer_store_dwordx4 v[{H+8}:{H+11}], v{VZ}, s[28:31], s60 offen{ST}")
    P(f"buffer_store_dwordx2 v[{H+12}:{H+13}], v{VZ}, s[28:31], s59 offen{ST}")
    prof(P, 3, pr)
    if pr: P("s_waitcnt vmcnt(0)")
    prof(P, 4, pr)
    if pr:
        P("s_memtime s[84:85]")
        P("s_waitcnt lgkmcnt(0)")
        P("s_sub_u32 s84, s84, s82")
        P("v_mov_b32 v26, s84")
        P("v_mov_b32 v27, 0")
        P("global_store_dwordx2 v25, v[26:27], s[8:9] offset:8")
    P("s_endpgm")
    if conv:
        P.label("k2_conv")
        gen_conv(P, 4 * AREA, pr)
    P.label("k2_end")
    P("s_endpgm")
    return dict(vgpr=ZB + 28 * max(nz, 3), agpr=112, lds=4 * AREA + (4 * CW_AREA if conv else 0))
```

```python
from k2 import *
import k2
def gen_k2(P, pr=False, nz=3):
    AREA = 21 * 1024 + 3 * 1024
    P.label("k2_kernel")
    P("s_cmp_ge_u32 s2, 256")
    P("s_cbranch_scc1 k2_end")
    P("s_load_dwordx2 s[8:9], s[0:1], 128")
    P("s_load_dwordx2 s[6:7], s[0:1], 96")
    P("s_load_dwordx2 s[10:11], s[0:1], 64")
    P("s_load_dwordx4 s[68:71], s[0:1], 8")
    P("s_load_dwordx4 s[72:75], s[0:1], 24")
    P("s_load_dwordx4 s[76:79], s[0:1], 40")
    P("s_load_dwordx2 s[80:81], s[0:1], 56")
    P("v_lshrrev_b32 v1, 6, v0")
    P("v_and_b32 v0, 63, v0")
    P("v_readfirstlane_b32 s3, v1")
    P("s_and_b32 s12, s2, 7")
    P("s_lshr_b32 s13, s2, 3")
    P("s_lshr_b32 s14, s12, 1")
    P("s_lshl_b32 s14, s14, 3")
    P("s_and_b32 s15, s13, 7")
    P("s_add_u32 s14, s14, s15")
    P("s_and_b32 s15, s12, 1")
    P("s_lshl_b32 s15, s15, 2")
    P("s_lshr_b32 s13, s13, 3")
    P("s_add_u32 s15, s15, s13")
    VZ = 2; VW = 4; T = 8; SB = 12
    P(f"v_lshlrev_b32 v{VZ}, 4, v0")
    P(f"v_add_u32 v{VZ+1}, 4096, v{VZ}")
    for tau in range(4):
        P(f"s_add_u32 s53, s3, {tau}")
        P("s_and_b32 s53, s53, 3")
        P("s_lshl_b32 s53, s53, 10")
        P(f"v_add_u32 v{VW+tau}, s53, v{VZ}")
    P("s_lshl_b32 s54, s14, 18")
    P("s_lshl_b32 s53, s3, 16")
    P("s_add_u32 s54, s54, s53")
    P(f"s_mul_i32 s55, s15, {64*7168}")
    P(f"s_mul_i32 s53, s3, {16*7168}")
    P("s_add_u32 s55, s55, s53")
    P("s_waitcnt lgkmcnt(0)")
    srd(P, 16, 8, 0x800000, WS_WF)
    srd(P, 20, 8, 0x400000, WS_Z2F)
    srd(P, 24, 8, 0x400000, WS_Z1F)
    srd(P, 28, 8, 0x400000, WS_HF)
    srd(P, 32, 6, 4096)
    srd(P, 36, 8, 0x200000, WS_XNT)
    srd(P, 40, 8, 0x200000, WS_YAT)
    P("s_cmp_ge_u32 s3, 4")
    P("s_cbranch_scc1 k2_conv")
    if k2.PRIO[0]: P(f"s_setprio {k2.PRIO[0]}")
    issued = []
    def lds_(i):
        out = []
        b = SB + 44 * (i % nz)
        for tau in range(4):
            pre = [f"s_add_u32 s56, s54, {i*4096}"] if tau == 0 else []
            out.append("\n".join(pre + [f"buffer_load_dwordx4 v[{b+28+4*tau}:{b+31+4*tau}], v{VW+tau}, s[16:19], s56 offen"]))
        for ft in range(7):
            pre = [f"s_add_u32 s57, s55, {i*7168}"] if ft == 0 else []
            out.append("\n".join(pre + [f"buffer_load_dwordx4 v[{b+4*ft}:{b+4*ft+3}], v{VZ+(ft>>2)}, s[20:23], s57 offen offset:{1024*(ft&3)}"]))
        return out
    ZD = nz - 1
    for i in range(ZD):
        for s_ in lds_(i):
            P(s_); issued.append(('Z', i))
    P("s_barrier")
    P(f"s_mul_i32 s52, s3, {AREA}")
    def wait_for(tags):
        last = max(k for k, t in enumerate(issued) if t in tags)
        n = len(issued) - 1 - last
        P(f"s_waitcnt vmcnt({min(n,63)})")
    if pr: P("s_memrealtime s[82:83]")
    Z1 = SB + 44 * ((15 - ZD) % nz)
    def epi_loads():
        P("s_and_b32 s53, s15, 1")
        P("s_mul_i32 s58, s15, 7")
        P("s_add_u32 s58, s58, s53")
        P("s_lshr_b32 s58, s58, 1")
        P("s_lshl_b32 s59, s53, 2")
        P("s_sub_u32 s59, 3, s59")
        P("s_add_u32 s59, s59, s58")
        P("s_mul_i32 s60, s14, 28")
        P("s_add_u32 s58, s58, s60")
        P("s_add_u32 s59, s59, s60")
        P("s_lshl_b32 s58, s58, 2")
        P("s_lshl_b32 s59, s59, 2")
        P("s_add_u32 s58, s58, s3")
        P("s_add_u32 s59, s59, s3")
        P("s_lshl_b32 s58, s58, 10")
        P("s_lshl_b32 s59, s59, 10")
        P("s_lshl_b32 s53, s53, 3")
        P("s_add_u32 s59, s59, s53")
        P(f"buffer_load_dwordx4 v[{Z1}:{Z1+3}], v{VZ}, s[24:27], s58 offen")
        P(f"buffer_load_dwordx4 v[{Z1+4}:{Z1+7}], v{VZ+1}, s[24:27], s58 offen")
        P(f"s_add_u32 s60, s58, 8192")
        P(f"buffer_load_dwordx4 v[{Z1+8}:{Z1+11}], v{VZ}, s[24:27], s60 offen")
        P(f"buffer_load_dwordx2 v[{Z1+12}:{Z1+13}], v{VZ}, s[24:27], s59 offen")
        P(f"v_and_b32 v{T}, 15, v0")
        P(f"v_lshlrev_b32 v{T}, 1, v{T}")
        P("s_lshl_b32 s61, s14, 7")
        P("s_lshl_b32 s53, s3, 5")
        P("s_add_u32 s61, s61, s53")
        P(f"buffer_load_ushort v{Z1+14}, v{T}, s[32:35], s61 offen")
    for i in range(16):
        wait_for({('Z', i)})
        if pr and i == 0: P("s_memrealtime s[84:85]")
        side = lds_(i + ZD) if i + ZD < 16 else []
        b = SB + 44 * (i % nz)
        k = 0; n = 0
        for ft in range(7):
            for tau in range(4):
                a = 4 * (ft * 4 + tau)
                P(f"v_mfma_f32_16x16x32_bf16 a[{a}:{a+3}], v[{b+4*ft}:{b+4*ft+3}], v[{b+28+4*tau}:{b+31+4*tau}], {'0' if i == 0 else f'a[{a}:{a+3}]'}")
                if k < len(side) and n % SPREAD[0] == 0:
                    P(side[k]); k += 1; issued.append(('Z', i + ZD))
                n += 1
        assert k == len(side)
        if i == 16 - ZD:
            epi_loads()
            for _ in range(5): issued.append(('E', 0))
    PT = Z1 + 16
    def prof2(idx, sreg=None):
        if not pr: return
        if sreg is None:
            P("s_memrealtime s[90:91]"); sreg = 90
        P("s_lshl_b32 s92, s2, 3")
        P("s_add_u32 s92, s92, s3")
        P("s_lshl_b32 s92, s92, 6")
        P(f"s_add_u32 s92, s92, {WS_PROF + PROF_K[0]*0x40000 + idx*8}")
        P("s_waitcnt lgkmcnt(0)")
        P(f"v_mov_b32 v{PT}, s{sreg}")
        P(f"v_mov_b32 v{PT+1}, s{sreg+1}")
        P(f"v_mov_b32 v{PT+2}, s92")
        P(f"global_store_dwordx2 v{PT+2}, v[{PT}:{PT+1}], s[8:9]")
    prof2(2); prof2(0, 82); prof2(1, 84)
    P(f"v_add_u32 v{T+2}, s52, v{VZ}")
    for tau in range(1, 4):
        for ft in range(7):
            a = 4 * (ft * 4 + tau)
            P(f"ds_write_b128 v{T+2}, a[{a}:{a+3}] offset:{(tau-1)*7168 + ft*1024}")
    P("s_waitcnt lgkmcnt(0)")
    P("s_barrier")
    B1, B2 = SB + 44 * ((15 - ZD + 1) % nz), SB + 44 * ((15 - ZD + 2) % nz)
    RB = [B1, B2, None]
    def rreg(dl, ft):
        if dl < 2: return RB[dl] + 4 * ft
        return (B1 + 28 + 4 * ft) if ft < 4 else (B2 + 28 + 4 * (ft - 4))
    R = B1
    for dl in range(1, 4):
        P(f"s_sub_u32 s53, s3, {dl}")
        P("s_and_b32 s53, s53, 3")
        P(f"s_mul_i32 s53, s53, {AREA}")
        P(f"v_add_u32 v{T+2}, s53, v{VZ}")
        for ft in range(7):
            r = rreg(dl - 1, ft)
            P(f"ds_read_b128 v[{r}:{r+3}], v{T+2} offset:{(dl-1)*7168 + ft*1024}")
    G = T
    P("s_waitcnt lgkmcnt(14)")
    for ft in range(7):
        for i in range(4): P(f"v_accvgpr_read_b32 v{G+i}, a{16*ft+i}")
        for i in range(4): P(f"v_add_f32 v{R+4*ft+i}, v{R+4*ft+i}, v{G+i}")
    P("s_waitcnt lgkmcnt(0)")
    for ft in range(7):
        for i in range(4): P(f"v_add_f32 v{B2+4*ft+i}, v{B2+4*ft+i}, v{rreg(2, ft)+i}")
    for r in range(28): P(f"v_add_f32 v{R+r}, v{R+r}, v{B2+r}")
    P("s_waitcnt vmcnt(0)")
    BI = Z1 + 15
    P(f"v_lshlrev_b32 v{BI}, 16, v{Z1+14}")
    P("s_mov_b32 s62, 0xffff0000")
    H = B2
    for q in range(14):
        a, b = R + 2 * q, R + 2 * q + 1
        P(f"v_cvt_pk_bf16_f32 v{G}, v{a}, v{b}")
        P(f"v_lshlrev_b32 v{a}, 16, v{G}")
        P(f"v_and_b32 v{b}, s62, v{G}")
        P(f"v_add_f32 v{a}, v{a}, v{BI}")
        P(f"v_add_f32 v{b}, v{b}, v{BI}")
        P(f"v_cvt_pk_bf16_f32 v{G}, v{a}, v{b}")
        P(f"v_lshlrev_b32 v{a}, 16, v{G}")
        P(f"v_and_b32 v{b}, s62, v{G}")
        P(f"v_lshlrev_b32 v{G+1}, 16, v{Z1+q}")
        P(f"v_and_b32 v{G+2}, s62, v{Z1+q}")
        P(f"v_mul_f32 v{a}, v{a}, v{G+1}")
        P(f"v_mul_f32 v{b}, v{b}, v{G+2}")
        P(f"v_cvt_pk_bf16_f32 v{H+q}, v{a}, v{b}")
    ST = " sc1"
    P(f"buffer_store_dwordx4 v[{H}:{H+3}], v{VZ}, s[28:31], s58 offen{ST}")
    P(f"buffer_store_dwordx4 v[{H+4}:{H+7}], v{VZ+1}, s[28:31], s58 offen{ST}")
    P(f"buffer_store_dwordx4 v[{H+8}:{H+11}], v{VZ}, s[28:31], s60 offen{ST}")
    P(f"buffer_store_dwordx2 v[{H+12}:{H+13}], v{VZ}, s[28:31], s59 offen{ST}")
    prof2(3)
    if pr: P("s_waitcnt vmcnt(0)")
    prof2(4)
    P("s_endpgm")
    P.label("k2_conv")
    gen_conv(P, 4 * AREA, pr)
    P.label("k2_end")
    P("s_endpgm")
    return dict(vgpr=SB + 44 * nz, agpr=112, lds=4 * AREA + 4 * CW_AREA)
SPREAD = [2]
```

```python
from k2 import *
import k2
from kgen import kgen

class Rec:
    def __init__(self):
        self.items = []; self.cur = None; self.mode = None
    def _push(self, t):
        if self.cur is not None: self.cur.append(t)
        else: self.items.append([t])
    def begin(self): self.cur = []; self.mode = 'manual'
    def end(self): self.items.append(self.cur); self.cur = None; self.mode = None
    def __call__(self, t):
        for l in t.strip().split('\n'):
            l = l.strip()
            wr_exec = l.startswith('s_mov') and 'exec' in l.split(',')[0]
            if self.cur is None and wr_exec and l != 's_mov_b64 exec, -1':
                self.cur = []; self.mode = 'exec'
            self._push(l)
            if self.mode == 'exec' and l == 's_mov_b64 exec, -1':
                self.items.append(self.cur); self.cur = None; self.mode = None
    def label(self, n):
        if self.cur is None:
            self.cur = [n + ':']; self.mode = 'loop'
        else:
            self.cur.append(n + ':'); self.items.append(self.cur); self.cur = None; self.mode = None

def gen_k2(P, pr=False, nz=4):
    AREA = 24 * 1024
    CB = 4 * AREA
    P.label("k2_kernel")
    P("s_cmp_ge_u32 s2, 256")
    P("s_cbranch_scc1 k2_end")
    P("s_load_dwordx2 s[8:9], s[0:1], 128")
    P("s_load_dwordx4 s[68:71], s[0:1], 8")
    P("s_load_dwordx4 s[72:75], s[0:1], 24")
    P("s_load_dwordx4 s[76:79], s[0:1], 40")
    P("s_load_dwordx4 s[80:83], s[0:1], 56")
    P("s_load_dwordx2 s[6:7], s[0:1], 96")
    P("v_lshrrev_b32 v1, 6, v0")
    P("v_and_b32 v0, 63, v0")
    P("v_readfirstlane_b32 s3, v1")
    if pr: P("s_memrealtime s[44:45]")
    P("s_and_b32 s12, s2, 7")
    P("s_lshr_b32 s13, s2, 3")
    P("s_lshr_b32 s14, s12, 1")
    P("s_lshl_b32 s14, s14, 3")
    P("s_and_b32 s15, s13, 7")
    P("s_add_u32 s14, s14, s15")
    P("s_and_b32 s15, s12, 1")
    P("s_lshl_b32 s15, s15, 2")
    P("s_lshr_b32 s13, s13, 3")
    P("s_add_u32 s15, s15, s13")
    VZ = 180; VW = 182; GT = 186
    P(f"v_lshlrev_b32 v{VZ}, 4, v0")
    P(f"v_add_u32 v{VZ+1}, 4096, v{VZ}")
    for tau in range(4):
        P(f"s_add_u32 s53, s3, {tau}")
        P("s_and_b32 s53, s53, 3")
        P("s_lshl_b32 s53, s53, 10")
        P(f"v_add_u32 v{VW+tau}, s53, v{VZ}")
    P("s_lshl_b32 s48, s14, 18")
    P("s_lshl_b32 s53, s3, 16")
    P("s_add_u32 s48, s48, s53")
    P(f"s_mul_i32 s49, s15, {64*7168}")
    P(f"s_mul_i32 s53, s3, {16*7168}")
    P("s_add_u32 s49, s49, s53")
    T = 2; PAR = 104
    P("s_lshr_b32 s53, s3, 1")
    P("s_lshl_b32 s54, s2, 1")
    P("s_add_u32 s54, s54, s53")
    P(f"s_mul_i32 s55, s3, {CW_AREA}")
    P(f"s_add_u32 s55, s55, {CB}")
    P("s_xor_b32 s60, s3, 1")
    P(f"s_mul_i32 s60, s60, {CW_AREA}")
    P(f"s_add_u32 s60, s60, {CB}")
    P("s_and_b32 s61, s3, 1")
    P(f"v_mov_b32 v{T}, s55")
    P(f"v_mov_b32 v{T+1}, 0")
    P(f"ds_write_b32 v{T}, v{T+1} offset:16380")
    P(f"v_lshlrev_b32 v{T}, 2, v0")
    P("s_lshl_b32 s53, s54, 8")
    P(f"v_add_u32 v{T}, s53, v{T}")
    P("s_lshl_b32 s53, s54, 1")
    P(f"v_mov_b32 v{T+1}, s53")
    P("s_waitcnt lgkmcnt(0)")
    issued = []
    for k in range(6):
        P(f"global_load_dword v{PAR+k}, v{T}, s[{68+2*k}:{69+2*k}]"); issued.append(('PAR', 0))
    P(f"global_load_ushort v{PAR+6}, v{T+1}, s[80:81]"); issued.append(('PAR', 0))
    P(f"global_load_ushort v{PAR+7}, v{T+1}, s[82:83]"); issued.append(('PAR', 0))
    srd(P, 16, 8, 0x800000, WS_WF)
    srd(P, 20, 8, 0x400000, WS_Z2F)
    def sreg(i, off, n):
        st = i % nz
        if st < 3: return f"a[{112+44*st+off}:{112+44*st+off+n-1}]"
        return f"v[{192+off}:{192+off+n-1}]"
    def lds_(i):
        out = []
        for tau in range(4):
            pre = [f"s_add_u32 s50, s48, {i*4096}"] if tau == 0 else []
            out.append("\n".join(pre + [f"buffer_load_dwordx4 {sreg(i, 28+4*tau, 4)}, v{VW+tau}, s[16:19], s50 offen"]))
        for ft in range(7):
            pre = [f"s_add_u32 s51, s49, {i*7168}"] if ft == 0 else []
            out.append("\n".join(pre + [f"buffer_load_dwordx4 {sreg(i, 4*ft, 4)}, v{VZ+(ft>>2)}, s[20:23], s51 offen offset:{1024*(ft&3)}"]))
        return out
    ZD = nz - 1
    for s_ in lds_(0):
        P(s_); issued.append(('Z', 0))
    srd(P, 24, 8, 0x400000, WS_Z1F)
    srd(P, 28, 8, 0x400000, WS_HF)
    srd(P, 32, 6, 4096)
    srd(P, 36, 8, 0x200000, WS_XNT)
    srd(P, 40, 8, 0x200000, WS_YAT)
    P("s_barrier")
    def wait_for(tags):
        last = max(k for k, t in enumerate(issued) if t in tags)
        n = len(issued) - 1 - last
        P(f"s_waitcnt vmcnt({min(n,63)})")
    R_ = Rec()
    R_.items.append(('WAIT', 'PAR'))
    R_(f"v_lshlrev_b32 v{PAR+6}, 16, v{PAR+6}")
    def xload():
        R_("s_lshl_b32 s59, s54, 12")
        R_(f"v_lshlrev_b32 v{T}, 4, v0")
        R_.begin()
        R_(f"s_add_u32 m0, s55, {XPO+512}")
        R_("s_nop 0")
        for e in range(4):
            R_(f"buffer_load_dwordx4 v{T}, s[36:39], s59 offen offset:{1024*e} lds")
        R_.end()
        R_(f"v_mov_b32 v{T+2}, 0")
        R_(f"v_mov_b32 v{T+3}, 0")
        R_(f"v_lshlrev_b32 v{T+1}, 3, v0")
        R_(f"v_add_u32 v{T+1}, s55, v{T+1}")
        R_(f"ds_write_b64 v{T+1}, v[{T+2}:{T+3}] offset:{XPO}")
    kgen(R_, PAR, 55, 60, 61, xload)
    VA = 12
    R_(f"v_mov_b32 v{T+9}, s57")
    R_(f"v_lshlrev_b32 v{T+8}, 16, v{PAR+7}")
    R_(f"v_and_b32 v{T}, 15, v0")
    R_(f"v_lshrrev_b32 v{T+1}, 5, v0")
    R_(f"v_bfe_u32 v{T+2}, v0, 4, 1")
    R_(f"v_lshl_add_u32 v{T+3}, v{T+1}, 4, v{T}")
    R_(f"v_add_u32 v{T+3}, 9, v{T+3}")
    R_(f"v_lshlrev_b32 v{T+4}, 3, v{T+2}")
    R_(f"v_sub_u32 v{T+3}, v{T+3}, v{T+4}")
    R_(f"v_and_b32 v{T+4}, 1, v{T+3}")
    R_(f"v_sub_u32 v{T+3}, v{T+3}, v{T+4}")
    R_(f"v_lshlrev_b32 v{T+3}, 1, v{T+3}")
    R_("s_movk_i32 s58, 4288")
    R_(f"v_mad_u32_u24 v{T+3}, v{T+4}, s58, v{T+3}")
    R_("s_lshl_b32 s56, s61, 8")
    R_("s_add_u32 s58, s55, s56")
    R_(f"v_add_u32 v{VA}, s58, v{T+3}")
    for k in range(1, 4): R_(f"v_add_u32 v{VA+k}, {1024*k}, v{VA}")
    R_(f"v_sub_u32 v{T+3}, v{T}, v{T+1}")
    R_(f"v_lshlrev_b32 v{T+3}, 5, v{T+3}")
    R_(f"v_lshl_add_u32 v{T+3}, v{T+2}, 4, v{T+3}")
    R_(f"s_add_u32 s58, s55, {XPO}")
    R_("s_sub_u32 s56, s58, s56")
    R_(f"v_add_u32 v{VA+4}, s56, v{T+3}")
    R_(f"v_lshl_add_u32 v{T+3}, v{T}, 1, v{T+1}")
    R_(f"v_lshlrev_b32 v{T+3}, 4, v{T+3}")
    R_(f"v_xor_b32 v{T+4}, 1, v{T+2}")
    R_(f"v_lshl_add_u32 v{T+3}, v{T+4}, 3, v{T+3}")
    R_("s_lshl_b32 s56, s61, 11")
    R_("s_add_u32 s58, s58, s56")
    R_(f"v_add_u32 v{VA+5}, s58, v{T+3}")
    R_(f"v_lshrrev_b32 v{T+3}, 4, v0")
    R_(f"v_lshlrev_b32 v{T+3}, 3, v{T+3}")
    R_(f"v_lshl_add_u32 v{VA+6}, v{T}, 5, v{T+3}")
    R_(f"v_add_u32 v{VA+6}, s56, v{VA+6}")
    R_.items.append(('WAIT', 'XP'))
    R_("s_waitcnt lgkmcnt(0)")
    FB = 20; CACC = 148
    def rds(rho):
        out = []; b = FB + 64 * (rho & 1)
        for i in range(8):
            o = 128 * (i & 1) + 16 * rho
            out.append(f"ds_read2_b32 v[{b+4*i}:{b+4*i+1}], v{VA+(i>>1)} offset0:{o} offset1:{o+1}")
            out.append(f"ds_read2_b32 v[{b+4*i+2}:{b+4*i+3}], v{VA+(i>>1)} offset0:{o+2} offset1:{o+3}")
            out.append(f"ds_read_b128 v[{b+32+4*i}:{b+35+4*i}], v{VA+4} offset:{512+512*i-64*rho}")
        return out
    for x_ in rds(0): R_(x_)
    for rho in range(4):
        R_("s_waitcnt lgkmcnt(0)")
        nxt = rds(rho + 1) if rho < 3 else []
        b = FB + 64 * (rho & 1)
        seen = set()
        for i in range(8):
            for w in range(8 - i):
                u = i + w; a = CACC + 4 * u
                c = '0' if (rho == 0 and u not in seen) else f"v[{a}:{a+3}]"
                seen.add(u)
                R_(f"v_mfma_f32_16x16x32_f16 v[{a}:{a+3}], v[{b+4*i}:{b+4*i+3}], v[{b+32+4*w}:{b+35+4*w}], {c}")
                if nxt: R_(nxt.pop(0))
    R_(f"v_add_u32 v{T}, s55, v{VZ}")
    for u in range(8):
        R_(f"ds_write_b128 v{T}, v[{CACC+4*u}:{CACC+4*u+3}] offset:{1024*u}")
    ssm = R_.items
    def emit_item(it):
        if isinstance(it, tuple):
            wait_for({(it[1], 0)}); return
        for l in it:
            if l.endswith(':'): P.label(l[:-1])
            else: P(l)
            if l.startswith('buffer_load') and ' lds' in l: issued.append(('XP', 0))
    Z1 = 236
    def epi_loads():
        P("s_and_b32 s50, s15, 1")
        P("s_mul_i32 s62, s15, 7")
        P("s_add_u32 s62, s62, s50")
        P("s_lshr_b32 s62, s62, 1")
        P("s_lshl_b32 s63, s50, 2")
        P("s_sub_u32 s63, 3, s63")
        P("s_add_u32 s63, s63, s62")
        P("s_mul_i32 s64, s14, 28")
        P("s_add_u32 s62, s62, s64")
        P("s_add_u32 s63, s63, s64")
        P("s_lshl_b32 s62, s62, 2")
        P("s_lshl_b32 s63, s63, 2")
        P("s_add_u32 s62, s62, s3")
        P("s_add_u32 s63, s63, s3")
        P("s_lshl_b32 s62, s62, 10")
        P("s_lshl_b32 s63, s63, 10")
        P("s_lshl_b32 s50, s50, 3")
        P("s_add_u32 s63, s63, s50")
        P(f"buffer_load_dwordx4 v[{Z1}:{Z1+3}], v{VZ}, s[24:27], s62 offen")
        P(f"buffer_load_dwordx4 v[{Z1+4}:{Z1+7}], v{VZ+1}, s[24:27], s62 offen")
        P(f"s_add_u32 s64, s62, 8192")
        P(f"buffer_load_dwordx4 v[{Z1+8}:{Z1+11}], v{VZ}, s[24:27], s64 offen")
        P(f"buffer_load_dwordx2 v[{Z1+12}:{Z1+13}], v{VZ}, s[24:27], s63 offen")
        P(f"v_and_b32 v{GT}, 15, v0")
        P(f"v_lshlrev_b32 v{GT}, 1, v{GT}")
        P("s_lshl_b32 s51, s14, 7")
        P("s_lshl_b32 s50, s3, 5")
        P("s_add_u32 s51, s51, s50")
        P(f"buffer_load_ushort v{Z1+14}, v{GT}, s[32:35], s51 offen")
        for _ in range(5): issued.append(('E', 0))
    def cost(it): return 1 if isinstance(it, tuple) else len(it)
    total = sum(cost(x) for x in ssm)
    pos = 0; done = 0
    pre = [(s_, i) for i in range(1, ZD) for s_ in lds_(i)]
    for s_, i in pre:
        P(s_); issued.append(('Z', i))
    NS = SSM_STEPS[0]
    head = total // (NS + 1)
    while done < head:
        emit_item(ssm[pos]); done += cost(ssm[pos]); pos += 1
    for i in range(16):
        wait_for({('Z', i)})
        if pr and i == 0:
            P("s_memrealtime s[46:47]")
            P("s_memtime s[94:95]")
        side = lds_(i + ZD) if i + ZD < 16 else []
        target = min(total, head + (total - head) * (i + 1) // NS)
        k = 0; n = 0
        for ft in range(7 if not X32[0] else 4):
            for tau in range(4):
                a = 4 * (ft * 4 + tau)
                if X32[0]:
                    a = 16 * ((ft * 4 + tau) % 7)
                    P(f"v_mfma_f32_32x32x16_bf16 a[{a}:{a+15}], {sreg(i, 4*((2*ft+(tau&1))%7), 4)}, {sreg(i, 28+4*tau, 4)}, a[{a}:{a+15}]")
                else:
                    P(f"v_mfma_f32_16x16x32_bf16 a[{a}:{a+3}], {sreg(i, 4*ft, 4)}, {sreg(i, 28+4*tau, 4)}, {'0' if i == 0 else f'a[{a}:{a+3}]'}")
                room = INSLOT[0]
                if k < len(side) and (n % 2 == 0 or X32[0]):
                    P(side[k]); k += 1; issued.append(('Z', i + ZD)); room -= 1
                while room > 0 and done < target and cost(ssm[pos]) == 1:
                    it = ssm[pos]
                    is_s = (not isinstance(it, tuple)) and it[0].startswith('s_') and not it[0].startswith('s_waitcnt')
                    is_m = (not isinstance(it, tuple)) and it[0].startswith('v_mfma')
                    emit_item(it); done += 1; pos += 1
                    if is_m: room = 2
                    elif not is_s: room -= 1
                n += 1
        assert k == len(side)
        if i == 16 - ZD: epi_loads()
        while done < target:
            emit_item(ssm[pos]); done += cost(ssm[pos]); pos += 1
    assert pos == len(ssm)
    PT = 252
    def prof2(idx, sr=None):
        if not pr: return
        if sr is None:
            P("s_memrealtime s[90:91]"); sr = 90
        P("s_lshl_b32 s92, s2, 3")
        P("s_add_u32 s92, s92, s3")
        P("s_lshl_b32 s92, s92, 6")
        P(f"s_add_u32 s92, s92, {WS_PROF + PROF_K[0]*0x40000 + idx*8}")
        P("s_waitcnt lgkmcnt(0)")
        P(f"v_mov_b32 v{PT}, s{sr}")
        P(f"v_mov_b32 v{PT+1}, s{sr+1}")
        P(f"v_mov_b32 v{PT+2}, s92")
        P(f"global_store_dwordx2 v{PT+2}, v[{PT}:{PT+1}], s[8:9]")
    if pr:
        P("s_memtime s[88:89]")
        P("s_waitcnt lgkmcnt(0)")
        P("s_sub_u32 s88, s88, s94")
        P("s_mov_b32 s89, 0")
    prof2(2); prof2(0, 44); prof2(1, 46); prof2(5, 88)
    P(f"s_mul_i32 s52, s3, {AREA}")
    P(f"v_add_u32 v{GT+2}, s52, v{VZ}")
    for tau in range(1, 4):
        for ft in range(7):
            a = 4 * (ft * 4 + tau)
            P(f"ds_write_b128 v{GT+2}, a[{a}:{a+3}] offset:{(tau-1)*7168 + ft*1024}")
    RB = [20, 48, 76]; R = 104
    for ft in range(7):
        for i in range(4): P(f"v_accvgpr_read_b32 v{R+4*ft+i}, a{16*ft+i}")
    P("s_waitcnt lgkmcnt(0)")
    P("s_barrier")
    for dl in range(1, 4):
        P(f"s_sub_u32 s53, s3, {dl}")
        P("s_and_b32 s53, s53, 3")
        P(f"s_mul_i32 s53, s53, {AREA}")
        P(f"v_add_u32 v{GT+2}, s53, v{VZ}")
        for ft in range(7):
            r = RB[dl - 1] + 4 * ft
            P(f"ds_read_b128 v[{r}:{r+3}], v{GT+2} offset:{(dl-1)*7168 + ft*1024}")
    P("s_waitcnt lgkmcnt(14)")
    for r in range(28): P(f"v_add_f32 v{R+r}, v{R+r}, v{RB[0]+r}")
    P("s_waitcnt lgkmcnt(0)")
    P("s_lshl_b32 s56, s61, 12")
    P("s_add_u32 s57, s56, s55")
    P("s_add_u32 s58, s56, s60")
    P(f"v_add_u32 v{GT}, s57, v{VZ}")
    P(f"v_add_u32 v{GT+1}, s58, v{VZ}")
    for k in range(4):
        P(f"ds_read_b128 v[{CACC+4*k}:{CACC+4*k+3}], v{GT} offset:{1024*k}")
        P(f"ds_read_b128 v[{CACC+16+4*k}:{CACC+19+4*k}], v{GT+1} offset:{1024*k}")
        P(f"ds_read_b64 v[{192+2*k}:{193+2*k}], v{VA+5} offset:{512+512*k}")
    for r in range(28): P(f"v_add_f32 v{RB[1]+r}, v{RB[1]+r}, v{RB[2]+r}")
    for r in range(28): P(f"v_add_f32 v{R+r}, v{R+r}, v{RB[1]+r}")
    P("s_waitcnt vmcnt(0)")
    BI = Z1 + 15
    P(f"v_lshlrev_b32 v{BI}, 16, v{Z1+14}")
    P("s_mov_b32 s65, 0xffff0000")
    H = 20; G = GT
    for q in range(14):
        a, b = R + 2 * q, R + 2 * q + 1
        P(f"v_cvt_pk_bf16_f32 v{G}, v{a}, v{b}")
        P(f"v_lshlrev_b32 v{a}, 16, v{G}")
        P(f"v_and_b32 v{b}, s65, v{G}")
        P(f"v_add_f32 v{a}, v{a}, v{BI}")
        P(f"v_add_f32 v{b}, v{b}, v{BI}")
        P(f"v_cvt_pk_bf16_f32 v{G}, v{a}, v{b}")
        P(f"v_lshlrev_b32 v{a}, 16, v{G}")
        P(f"v_and_b32 v{b}, s65, v{G}")
        P(f"v_lshlrev_b32 v{G+1}, 16, v{Z1+q}")
        P(f"v_and_b32 v{G+2}, s65, v{Z1+q}")
        P(f"v_mul_f32 v{a}, v{a}, v{G+1}")
        P(f"v_mul_f32 v{b}, v{b}, v{G+2}")
        P(f"v_cvt_pk_bf16_f32 v{H+q}, v{a}, v{b}")
        if q == 3: P(f"buffer_store_dwordx4 v[{H}:{H+3}], v{VZ}, s[28:31], s62 offen sc1")
        if q == 7: P(f"buffer_store_dwordx4 v[{H+4}:{H+7}], v{VZ+1}, s[28:31], s62 offen sc1")
        if q == 11: P(f"buffer_store_dwordx4 v[{H+8}:{H+11}], v{VZ}, s[28:31], s64 offen sc1")
    P(f"buffer_store_dwordx2 v[{H+12}:{H+13}], v{VZ}, s[28:31], s63 offen sc1")
    P("s_lshl_b32 s57, s54, 12")
    P("s_waitcnt lgkmcnt(0)")
    for k in range(4):
        a = CACC + 4 * k; xl, xh = 192 + 2 * k, 193 + 2 * k; O = 40 + 2 * k
        for i in range(4): P(f"v_add_f32 v{a+i}, v{a+i}, v{a+16+i}")
        for i in range(4): P(f"v_mul_f32 v{a+i}, v{a+i}, v{T+9}")
        P(f"v_cvt_pk_bf16_f32 v{T}, v{a}, v{a+1}")
        P(f"v_cvt_pk_bf16_f32 v{T+1}, v{a+2}, v{a+3}")
        P(f"v_cvt_f32_f16_sdwa v{a}, v{xh} dst_sel:DWORD dst_unused:UNUSED_PAD src0_sel:WORD_1")
        P(f"v_cvt_f32_f16 v{a+1}, v{xh}")
        P(f"v_cvt_f32_f16_sdwa v{a+2}, v{xl} dst_sel:DWORD dst_unused:UNUSED_PAD src0_sel:WORD_1")
        P(f"v_cvt_f32_f16 v{a+3}, v{xl}")
        for i in range(4): P(f"v_mul_f32 v{a+i}, v{a+i}, v{T+8}")
        P(f"v_cvt_pk_bf16_f32 v{T+2}, v{a}, v{a+1}")
        P(f"v_cvt_pk_bf16_f32 v{T+3}, v{a+2}, v{a+3}")
        for hh in range(2):
            P(f"v_lshlrev_b32 v{a+2*hh}, 16, v{T+hh}")
            P(f"v_and_b32 v{a+2*hh+1}, s65, v{T+hh}")
            P(f"v_lshlrev_b32 v{T+4}, 16, v{T+2+hh}")
            P(f"v_and_b32 v{T+5}, s65, v{T+2+hh}")
            P(f"v_add_f32 v{a+2*hh}, v{a+2*hh}, v{T+4}")
            P(f"v_add_f32 v{a+2*hh+1}, v{a+2*hh+1}, v{T+5}")
        P(f"v_cvt_pk_bf16_f32 v{O}, v{a}, v{a+1}")
        P(f"v_cvt_pk_bf16_f32 v{O+1}, v{a+2}, v{a+3}")
        P(f"buffer_store_dwordx2 v[{O}:{O+1}], v{VA+6}, s[40:43], s57 offen offset:{512*k} sc1")
    prof2(3)
    if pr: P("s_waitcnt vmcnt(0)")
    prof2(4)
    P.label("k2_end")
    P("s_endpgm")
    return dict(vgpr=256, agpr=244, lds=4 * AREA + 4 * CW_AREA)
SSM_STEPS = [15]
INSLOT = [1]
X32 = [0]
```

```python
from k2 import *
def rb_load(P, dst, va, is_a=True):
    P(f"v_lshrrev_b32 v{va}, 3, v0")
    P(f"v_and_b32 v{va+1}, 7, v0")
    P(f"v_lshlrev_b32 v{va+1}, 4, v{va+1}")
    P(f"v_lshl_add_u32 v{va}, v{va}, 12, v{va+1}")
    P("s_lshr_b32 s56, s2, 1")
    P("s_lshl_b32 s56, s56, 16")
    P("s_and_b32 s57, s3, 1")
    P("s_lshl_b32 s57, s57, 15")
    P("s_add_u32 s56, s56, s57")
    P("s_and_b32 s57, s2, 1")
    P("s_lshl_b32 s57, s57, 11")
    P("s_add_u32 s56, s56, s57")
    P("s_lshr_b32 s57, s3, 1")
    P("s_lshl_b32 s57, s57, 9")
    P("s_add_u32 s56, s56, s57")
    r = 'a' if is_a else 'v'
    for e in range(4):
        P(f"buffer_load_dwordx4 {r}[{dst+4*e}:{dst+4*e+3}], v{va}, s[36:39], s56 offen offset:{128*e}")
def rb_store(P, src, lds_base, va, tmp, is_a=True):
    r = 'a' if is_a else 'v'
    P(f"v_lshlrev_b32 v{va}, 4, v0")
    P("s_lshl_b32 s56, s3, 12")
    P(f"s_add_u32 s56, s56, {lds_base}")
    P(f"v_add_u32 v{va}, s56, v{va}")
    for e in range(4):
        P(f"ds_write_b128 v{va}, {r}[{src+4*e}:{src+4*e+3}] offset:{1024*e}")
    P(f"v_and_b32 v{va}, 7, v0")
    P(f"v_lshrrev_b32 v{va+1}, 3, v0")
    P(f"v_lshl_add_u32 v{va+2}, v{va}, 3, v{va+1}")
    P(f"v_lshlrev_b32 v{va+2}, 4, v{va+2}")
    P(f"v_add_u32 v{va+2}, s56, v{va+2}")
    P(f"v_lshlrev_b32 v{va}, 4, v{va}")
    P(f"v_and_b32 v{va+1}, 3, v{va+1}")
    P(f"v_lshl_add_u32 v{va}, v{va+1}, 8, v{va}")
    P(f"v_lshrrev_b32 v{va+1}, 5, v0")
    P(f"v_lshl_add_u32 v{va}, v{va+1}, 12, v{va}")
    P("s_lshr_b32 s56, s2, 3")
    P("s_lshl_b32 s56, s56, 6")
    P("s_and_b32 s57, s2, 1")
    P("s_lshl_b32 s57, s57, 5")
    P("s_add_u32 s56, s56, s57")
    P("s_lshr_b32 s57, s3, 1")
    P("s_lshl_b32 s57, s57, 3")
    P("s_add_u32 s56, s56, s57")
    P("s_lshl_b32 s56, s56, 12")
    P("s_bfe_u32 s57, s2, 0x20001")
    P("s_lshl_b32 s57, s57, 10")
    P("s_add_u32 s56, s56, s57")
    P("s_and_b32 s57, s3, 1")
    P("s_lshl_b32 s57, s57, 7")
    P("s_add_u32 s56, s56, s57")
    P("s_waitcnt lgkmcnt(0)")
    for e in range(4):
        P(f"ds_read_b128 v[{tmp+4*e}:{tmp+4*e+3}], v{va+2} offset:{1024*e}")
    for e in range(4):
        P(f"s_waitcnt lgkmcnt({3-e})")
        P(f"buffer_store_dwordx4 v[{tmp+4*e}:{tmp+4*e+3}], v{va}, s[44:47], s56 offen sc1")
        if e < 3: P("s_add_u32 s56, s56, 8192")
```

```python
import sys
from dsl import Prog
import k1, k1b, k1c, k1d, k1e, k2, k2b, k2c, k3, aux
HDR = open('parallel_sum__ssm_conv_s4__mixer_gmlp__prompt.s.ref').read().split('; Override launch')[0]
import os
K2V = os.environ.get("K2V", "c")
K2F = {"a": lambda P, pr: k2.gen_k2(P, pr=pr), "b": lambda P, pr: k2b.gen_k2(P, pr=pr), "c": lambda P, pr: k2c.gen_k2(P, pr=pr)}[K2V]
K2B = 256 if K2V == "c" else 512
def build(pr=False, **kw):
    parts = []; launches = []; descs = []
    for name, fn, blk in (("k1_kernel", lambda P: k1e.gen_k1(P, aux=aux.aux, pr=pr), 512),
                          ("k2_kernel", lambda P: K2F(P, pr), K2B),
                          ("k3_kernel", lambda P: k3.gen_k3(P, pr=pr), 256)):
        k2.PROF_K[0] = len(parts)
        P = Prog(); info = fn(P); body = P.finish()
        acc = (info['vgpr'] + 3) // 4 * 4
        launches.append(f"; @launch kernel={name} grid=(256,1,1) block=({blk},1,1) lds={info['lds']}")
        parts.append(f".globl {name}\n.p2align 8\n.type {name},@function\n{body}")
        descs.append(f""".p2align 6
.amdhsa_kernel {name}
  .amdhsa_next_free_vgpr {acc + info['agpr']}
  .amdhsa_next_free_sgpr 100
  .amdhsa_accum_offset {acc}
  .amdhsa_group_segment_fixed_size 0
  .amdhsa_kernarg_size 136
  .amdhsa_user_sgpr_count 2
  .amdhsa_user_sgpr_kernarg_segment_ptr 1
  .amdhsa_system_sgpr_workgroup_id_x 1
.end_amdhsa_kernel""")
    return HDR + "\n".join(launches) + '\n.amdgcn_target "amdgcn-amd-amdhsa--gfx950"\n.text\n' + "\n".join(parts) + '\n.section .rodata,"a"\n' + "\n".join(descs) + "\n"
import os
if os.environ.get("PRIO"): k2.PRIO[:] = [int(c) for c in os.environ["PRIO"]]
if os.environ.get("LF"): k2.LF[0] = int(os.environ["LF"])
if os.environ.get("EXP"): k2.EXP[0] = int(os.environ["EXP"])
if os.environ.get("FINE"): k1d.FINE[0] = 1
if os.environ.get("PRI"): k1d.PRI[0] = 1
if os.environ.get("INSLOT"): k2c.INSLOT[0] = int(os.environ["INSLOT"])
if os.environ.get("NS"): k2c.SSM_STEPS[0] = int(os.environ["NS"])
if os.environ.get("X32"): k2c.X32[0] = 1
for nm in ("GSPLIT", "XDELAY", "WARM", "REBLK"):
    if os.environ.get(nm): getattr(k1e, nm)[0] = int(os.environ[nm])
if __name__ == "__main__":
    out = sys.argv[1] if len(sys.argv) > 1 else 'parallel_sum__ssm_conv_s4__mixer_gmlp__prompt.s'
    open(out, 'w').write(build(pr=('prof' in sys.argv)))
```

```python
from k1 import *
from reblk import rb_load, rb_store

LOG2E = math.log2(math.e)
PROWS = [0,1,2,3,4,5,6,7, 256,258,260,262, 512,516,768,772, 1024,1280,1536,1792, 2048]
TROW = 272
QT0 = 21 * TROW
KW_AREA = 16384

def cmul(P, r, a, b, t):
    P(f"v_pk_mul_f32 v[{t}:{t+1}], v[{a}:{a+1}], v[{b}:{b+1}] op_sel:[0,0] op_sel_hi:[1,0]")
    P(f"v_pk_fma_f32 v[{r}:{r+1}], v[{a}:{a+1}], v[{b}:{b+1}], v[{t}:{t+1}] op_sel:[1,1,0] op_sel_hi:[0,1,1] neg_lo:[1,0,0]")

AUXRB = [0]
def aux(P, X, T, VXW, pr):
    P("s_load_dwordx2 s[82:83], s[0:1], 104")
    P("s_waitcnt lgkmcnt(0)")
    srd(P, 20, 82, 896 * 512 * 2)
    srd(P, 24, 8, 0x200000, WS_XNT)
    srd(P, 28, 8, 896 * 1024, WS_WOF)
    P("s_mul_i32 s54, s14, 7")
    P("s_add_u32 s54, s54, s3")
    P("s_mul_i32 s55, s54, 1171")
    P("s_lshr_b32 s55, s55, 15")
    P("s_mul_i32 s56, s55, 28")
    P("s_sub_u32 s56, s54, s56")
    P("s_lshl_b32 s56, s56, 15")
    P("s_lshl_b32 s55, s55, 7")
    P("s_add_u32 s56, s56, s55")
    P(f"v_lshrrev_b32 v{T}, 3, v0")
    P(f"v_and_b32 v{T+1}, 7, v0")
    P(f"v_lshlrev_b32 v{T+1}, 4, v{T+1}")
    P(f"v_lshl_add_u32 v{T+1}, v{T}, 10, v{T+1}")
    WO = 112
    for e in range(4):
        P(f"s_add_u32 s57, s56, {8192*e}")
        P(f"buffer_load_dwordx4 v[{WO+4*e}:{WO+4*e+3}], v{T+1}, s[20:23], s57 offen")
    if AUXRB[0]: rb_load(P, 0, 30)
    P(f"s_waitcnt vmcnt({8 if AUXRB[0] else 4})")
    ln1(P, X, T, 16, 52)
    for r in range(32):
        a, b = T + 4 + (r & 1) * 2, T + 5 + (r & 1) * 2
        P(f"v_lshlrev_b32 v{a}, 16, v{X+r}")
        P(f"v_and_b32 v{b}, 0xffff0000, v{X+r}")
        P(f"v_cvt_pk_f16_f32 v{X+r}, v{a}, v{b}")
    for e in range(8):
        P(f"ds_write_b128 v{VXW+(e&1)}, v[{X+4*e}:{X+4*e+3}] offset:{256*(e>>1)}")
    P(f"v_lshlrev_b32 v{T}, 4, v0")
    P("s_lshl_b32 s53, s3, 12")
    P(f"v_add_u32 v{T}, s53, v{T}")
    P(f"s_waitcnt vmcnt({4 if AUXRB[0] else 0})")
    for e in range(4):
        P(f"ds_write_b128 v{T}, v[{WO+4*e}:{WO+4*e+3}] offset:{1024*e}")
    P(f"v_lshrrev_b32 v{T+1}, 2, v0")
    P(f"v_and_b32 v{T+2}, 3, v0")
    P(f"v_lshlrev_b32 v{T+1}, 7, v{T+1}")
    P(f"v_lshl_add_u32 v{T+1}, v{T+2}, 4, v{T+1}")
    P(f"v_add_u32 v{T+1}, s53, v{T+1}")
    P("s_waitcnt lgkmcnt(0)")
    for dt in range(4):
        for eta in range(2):
            d = WO + 4 * dt + 2 * eta
            P(f"ds_read_b64_tr_b16 v[{d}:{d+1}], v{T+1} offset:{2048*eta + 64*(dt>>1) + 8*(dt&1)}")
    P(f"v_lshlrev_b32 v{T}, 4, v0")
    P("s_lshl_b32 s53, s54, 12")
    P("s_waitcnt lgkmcnt(0)")
    P("s_cmp_eq_u32 s3, 7")
    P("s_cbranch_scc1 aux_nowo")
    for dt in range(4):
        P(f"buffer_store_dwordx4 v[{WO+4*dt}:{WO+4*dt+3}], v{T}, s[28:31], s53 offen offset:{1024*dt} sc1")
    P.label("aux_nowo")
    P("s_barrier")
    P(f"v_lshrrev_b32 v{T}, 4, v0")
    P(f"v_bfe_u32 v{T+1}, v0, 2, 2")
    P(f"v_and_b32 v{T+2}, 3, v0")
    P(f"v_lshlrev_b32 v{T}, 3, v{T}")
    P(f"v_add_u32 v{T}, 7, v{T}")
    P(f"v_sub_u32 v{T}, v{T}, v{T+1}")
    P(f"v_lshrrev_b32 v{T+3}, 1, v{T+2}")
    P(f"v_and_b32 v{T+2}, 1, v{T+2}")
    P("s_and_b32 s53, s3, 1")
    P("s_lshl_b32 s53, s53, 7")
    P("s_lshr_b32 s55, s3, 1")
    P("s_lshl_b32 s55, s55, 8")
    P(f"s_add_u32 s55, s55, {XB}")
    for rr in range(2):
        if rr: P(f"v_subrev_u32 v{T}, 4, v{T}")
        P(f"v_and_b32 v{T+4}, 15, v{T}")
        P(f"v_xor_b32 v{T+4}, v{T+4}, v{T+3}")
        P(f"v_lshlrev_b32 v{T+4}, 4, v{T+4}")
        P(f"v_xor_b32 v{T+4}, s53, v{T+4}")
        P(f"v_lshl_add_u32 v{T+4}, v{T+2}, 3, v{T+4}")
        P(f"v_lshl_add_u32 v{T+4}, v{T}, 10, v{T+4}")
        P(f"v_add_u32 v{T+5+rr}, s55, v{T+4}")
    P(f"v_and_b32 v{T}, 15, v0")
    P(f"v_lshrrev_b32 v{T+1}, 4, v0")
    P(f"v_lshlrev_b32 v{T}, 12, v{T}")
    P(f"v_lshl_add_u32 v{T}, v{T+1}, 4, v{T}")
    P("s_lshl_b32 s53, s3, 18")
    P("s_lshl_b32 s55, s14, 7")
    P("s_add_u32 s53, s53, s55")
    for D in range(4):
        for rr in range(2):
            P(f"v_xor_b32 v{T+7+rr}, {32*D}, v{T+5+rr}")
        for half in range(2):
            for rr in range(2):
                d = X + 8 * D + 4 * half + 2 * rr
                P(f"ds_read_b64_tr_b16 v[{d}:{d+1}], v{T+7+rr} offset:{32768*half}")
    P("s_waitcnt lgkmcnt(0)")
    for D in range(4):
        P(f"s_add_u32 s55, s53, {65536*D}")
        for half in range(2):
            d = X + 8 * D + 4 * half
            P(f"buffer_store_dwordx4 v[{d}:{d+3}], v{T}, s[24:27], s55 offen offset:{64*half} sc1")
    if AUXRB[0]:
        P("s_waitcnt vmcnt(8)")
        rb_store(P, 0, 32768, T, 64)
    prof(P, 1, pr)
    P("s_endpgm")
```

```python
from dsl import Prog
from k2 import *
from k1 import ln1, bf16_round_v, fbits, GK0, GK1, wpre, XB
from k1b import Buf
import math
from reblk import rb_load, rb_store

def gelu_stream(A, T, Rr):
    B = Buf()
    for q in range(8):
        a, b = A + 2 * q, A + 2 * q + 1
        t0, t1 = T + (q & 1) * 2, T + 1 + (q & 1) * 2
        B(f"v_mul_f32 v{a}, v{a}, v{Rr}")
        B(f"v_mul_f32 v{b}, v{b}, v{Rr}")
        B(f"v_mul_f32 v{t0}, v{a}, v{a}")
        B(f"v_mul_f32 v{t1}, v{b}, v{b}")
        B(f"v_fma_f32 v{t0}, v{t0}, s64, v{T+4}")
        B(f"v_fma_f32 v{t1}, v{t1}, s64, v{T+4}")
        B(f"v_mul_f32 v{t0}, v{t0}, v{a}")
        B(f"v_mul_f32 v{t1}, v{t1}, v{b}")
        B(f"v_exp_f32 v{t0}, v{t0}")
        B(f"v_exp_f32 v{t1}, v{t1}")
        B(f"v_add_f32 v{t0}, 1.0, v{t0}")
        B(f"v_add_f32 v{t1}, 1.0, v{t1}")
        B(f"v_rcp_f32 v{t0}, v{t0}")
        B(f"v_rcp_f32 v{t1}, v{t1}")
        B(f"v_mul_f32 v{a}, v{a}, v{t0}")
        B(f"v_mul_f32 v{b}, v{b}, v{t1}")
        B(f"v_cvt_pk_bf16_f32 v{A+q}, v{a}, v{b}")
    return B.l

def gen_k1(P, aux=None, pr=False):
    P.label("k1_kernel")
    P("s_cmp_ge_u32 s2, 256")
    P("s_cbranch_scc1 k1_end")
    P("s_load_dwordx2 s[4:5], s[0:1], 0")
    P("s_load_dwordx2 s[6:7], s[0:1], 80")
    P("s_load_dwordx2 s[8:9], s[0:1], 128")
    P("s_load_dwordx2 s[10:11], s[0:1], 120")
    P("s_load_dwordx2 s[40:41], s[0:1], 88")
    P("v_lshrrev_b32 v1, 6, v0")
    P("v_and_b32 v0, 63, v0")
    P("v_readfirstlane_b32 s3, v1")
    P("s_mov_b32 s62, 0x3f803f80")
    P(f"s_mov_b32 s63, {fbits(GK0)}")
    P(f"s_mov_b32 s64, {fbits(GK1)}")
    P("s_and_b32 s12, s2, 7")
    P("s_lshr_b32 s13, s2, 3")
    P("s_lshl_b32 s14, s12, 2")
    P("s_and_b32 s15, s13, 3")
    P("s_add_u32 s14, s14, s15")
    P("s_lshr_b32 s15, s13, 2")
    X = 32; T = 2; VB = 16
    P(f"v_lshrrev_b32 v{T}, 3, v0")
    P(f"v_and_b32 v{T+1}, 7, v0")
    P(f"v_lshlrev_b32 v{T+2}, 4, v{T+1}")
    P(f"v_lshl_add_u32 v{T+2}, v{T}, 10, v{T+2}")
    P("s_lshl_b32 s52, s14, 16")
    P("s_lshl_b32 s53, s3, 13")
    P("s_add_u32 s52, s52, s53")
    P(f"v_lshrrev_b32 v{T+4}, 4, v0")
    P(f"v_and_b32 v{T+5}, 15, v0")
    P("s_lshl_b32 s53, s3, 2")
    P(f"v_add_u32 v{VB}, s53, v{T+4}")
    P("s_movk_i32 s53, 3584")
    P(f"v_mul_u32_u24 v{VB}, s53, v{VB}")
    P(f"v_lshl_add_u32 v{VB}, v{T+5}, 4, v{VB}")
    P("s_lshl_b32 s54, s15, 8")
    P("s_add_u32 s55, s54, 1792")
    P("s_waitcnt lgkmcnt(0)")
    srd(P, 16, 4, 2048 * 512 * 2)
    issued = []
    for e in range(8):
        P(f"buffer_load_dwordx4 v[{X+4*e}:{X+4*e+3}], v{T+2}, s[16:19], s52 offen offset:{128*e}")
        issued.append(('X', e))
    srd(P, 20, 6, 512 * 1792 * 2)
    srd(P, 24, 8, 0x400000, WS_Z2F)
    srd(P, 28, 8, 0x400000, WS_Z1F)
    srd(P, 32, 8, 32 * 2 * 28 * 512, WS_ST)
    srd(P, 36, 40, 2048 * 2048 * 2)
    srd(P, 44, 8, 0x800000, WS_WF)
    VXW = 23
    P("s_and_b32 s53, s3, 1")
    P("s_lshl_b32 s53, s53, 3")
    P(f"v_add_u32 v{T+3}, s53, v{T}")
    P(f"v_xor_b32 v{T+3}, v{T+3}, v{T+1}")
    P(f"v_lshlrev_b32 v{T+3}, 4, v{T+3}")
    P(f"v_lshl_add_u32 v{T+3}, v{T}, 10, v{T+3}")
    P("s_lshl_b32 s53, s3, 13")
    P(f"s_add_u32 s53, s53, {XB}")
    P(f"v_add_u32 v{VXW}, s53, v{T+3}")
    P(f"v_xor_b32 v{VXW+1}, 128, v{VXW}")
    if aux is not None:
        P("s_cmp_eq_u32 s15, 7")
        P("s_cbranch_scc1 k1_aux")
    ACC2, ACC1, WFR = 64, 80, 96
    def land(u):
        if u < 8: return f"v[{WFR+4*u}:{WFR+4*u+3}]"
        if u < 12: return f"v[{ACC1+4*(u-8)}:{ACC1+4*(u-8)+3}]"
        if u < 16: return f"a[{112+4*(u-12)}:{115+4*(u-12)}]"
        return f"v[{X+4*(u%8)}:{X+4*(u%8)+3}]"
    def bld(u):
        half, ku = u // 16, u % 16
        P(f"s_add_u32 s57, s{55 if half == 0 else 54}, {ku * 32 * 3584}")
        P(f"buffer_load_dwordx4 {land(u)}, v{VB}, s[20:23], s57 offen")
        issued.append(('B', u))
    def wait_for(tags):
        last = max(k for k, t in enumerate(issued) if t in tags)
        n = len(issued) - 1 - last
        P(f"s_waitcnt vmcnt({min(n,63)})")
    for u in range(4): bld(u)
    prof(P, 0, pr)
    P("s_lshl_b32 s53, s14, 3")
    P("v_mov_b32 v13, s53")
    P("s_or_b32 s53, s15, s3")
    P("s_cmp_lg_u32 s53, 0")
    P("s_cbranch_scc1 k1_nolead")
    P("s_memrealtime s[70:71]")
    P("s_waitcnt lgkmcnt(0)")
    P("s_or_b32 s70, s70, 1")
    P("v_mov_b32 v14, s70")
    P("v_mov_b32 v15, s71")
    P("s_mov_b64 exec, 1")
    P("global_store_dwordx2 v13, v[14:15], s[10:11] sc0 sc1")
    P("s_mov_b64 exec, -1")
    P.label("k1_nolead")
    if PRI[0]:
        P("s_cmp_lt_u32 s3, 4")
        P("s_cbranch_scc1 k1_nopri")
        P("s_setprio 1")
        P.label("k1_nopri")
    VLW = 17
    P(f"v_lshlrev_b32 v{T}, 2, v{T+4}")
    P(f"v_xor_b32 v{T}, v{T}, v{T+5}")
    P(f"v_lshlrev_b32 v{T}, 4, v{T}")
    P(f"v_lshl_add_u32 v{T}, v{T+4}, 8, v{T}")
    P("s_lshl_b32 s53, s3, 10")
    P(f"v_add_u32 v{VLW}, s53, v{T}")
    P(f"v_add_u32 v{VLW+1}, 0x10000, v{VLW}")
    def bwr(u):
        addr = (u % 12) * 8192
        wait_for({('B', u)})
        P(f"ds_write_b128 v{VLW+(addr>>16)}, {land(u)} offset:{addr & 0xffff}")
    P("s_lshr_b32 s59, s3, 2")
    P("s_and_b32 s58, s3, 3")
    VT = 19
    P(f"v_lshrrev_b32 v{T}, 4, v0")
    P(f"v_bfe_u32 v{T+1}, v0, 2, 2")
    P(f"v_and_b32 v{T+2}, 3, v0")
    P(f"v_and_b32 v{T+3}, 1, v{T}")
    P(f"v_lshl_add_u32 v{T+2}, v{T+3}, 2, v{T+2}")
    P(f"v_lshrrev_b32 v{T+3}, 1, v{T+2}")
    P(f"v_and_b32 v{T+4}, 1, v{T+2}")
    P(f"v_lshrrev_b32 v{T}, 1, v{T}")
    P(f"v_lshl_add_u32 v{T}, v{T}, 3, v{T+1}")
    P(f"v_lshlrev_b32 v{T}, 8, v{T}")
    P(f"v_lshlrev_b32 v{T+1}, 6, v{T+1}")
    P("s_lshl_b32 s53, s58, 6")
    P(f"v_lshlrev_b32 v{T+5}, 5, v{T+4}")
    P(f"v_lshl_add_u32 v{T+5}, v{T+3}, 3, v{T+5}")
    P(f"v_add_u32 v{T+5}, s53, v{T+5}")
    P(f"v_xor_b32 v{T+5}, v{T+5}, v{T+1}")
    P(f"v_add_u32 v{VT}, v{T+5}, v{T}")
    P(f"v_add_u32 v{VT+1}, 0x10000, v{VT}")
    P(f"v_and_b32 v{T+5}, 1, v{T+3}")
    P(f"v_lshlrev_b32 v{T+5}, 5, v{T+5}")
    P(f"v_lshl_add_u32 v{T+5}, v{T+4}, 4, v{T+5}")
    P(f"v_lshrrev_b32 v{T+3}, 1, v{T+3}")
    P(f"v_lshl_add_u32 v{T+5}, v{T+3}, 3, v{T+5}")
    P(f"v_add_u32 v{T+5}, s53, v{T+5}")
    P(f"v_xor_b32 v{T+5}, v{T+5}, v{T+1}")
    P(f"v_add_u32 v{VT+2}, v{T+5}, v{T}")
    P(f"v_add_u32 v{VT+3}, 0x10000, v{VT+2}")
    VXR = 1
    P(f"v_and_b32 v{T}, 31, v0")
    P(f"v_lshrrev_b32 v{T+1}, 5, v0")
    P(f"v_and_b32 v{T+2}, 15, v0")
    P(f"v_xor_b32 v{T+1}, v{T+1}, v{T+2}")
    P(f"v_lshlrev_b32 v{T+1}, 4, v{T+1}")
    P(f"v_lshl_add_u32 v{T+1}, v{T}, 10, v{T+1}")
    P("s_lshl_b32 s53, s59, 15")
    P(f"s_add_u32 s53, s53, {XB}")
    P(f"v_add_u32 v{VXR}, s53, v{T+1}")
    RS = 8 * 8192
    P(f"v_lshlrev_b32 v{T}, 2, v{T}")
    P("s_lshl_b32 s53, s59, 7")
    P(f"s_add_u32 s53, s53, {RS}")
    P(f"v_add_u32 v28, s53, v{T}")
    P(f"v_lshrrev_b32 v{T}, 3, v0")
    P(f"v_lshlrev_b32 v{T}, 2, v{T}")
    P("s_lshl_b32 s53, s3, 5")
    P(f"s_add_u32 s53, s53, {RS}")
    P(f"v_add_u32 v29, s53, v{T}")
    def freg(st, i, sl, k0, n):
        r = WFR + 16 * st + 8 * i + 4 * sl + k0
        return f"v[{r}:{r+n-1}]"
    def rds(sp):
        out = []
        for i in range(2):
            u = 2 * sp + i
            addr = (u % 12) * 8192
            vb = VT + 2 * (sp // 8) + (addr >> 16)
            for sl in range(2):
                for rr in range(2):
                    out.append(f"ds_read_b64_tr_b16 {freg(sp & 1, i, sl, 2*rr, 2)}, v{vb} offset:{(addr & 0xffff) + 4096*sl + 1024*rr}")
        return out
    S, Q = 8, 9
    for r in range(4): P(f"v_mov_b32 v{S+r}, 0")
    for e in range(8):
        wait_for({('X', e)})
        for r in range(4 * e, 4 * e + 4):
            a = (r & 1) * 2
            P(f"v_dot2c_f32_bf16 v{S+a}, s62, v{X+r}")
            P(f"v_dot2c_f32_bf16 v{Q+a}, v{X+r}, v{X+r}")
        if e % 2 == 1: bld(4 + e // 2)
    P(f"v_add_f32 v{S}, v{S}, v{S+2}")
    P(f"v_add_f32 v{Q}, v{Q}, v{S+3}")
    for m in ("quad_perm:[1,0,3,2]", "quad_perm:[2,3,0,1]", "row_half_mirror"):
        P(f"v_add_f32_dpp v{S}, v{S}, v{S} {m} row_mask:0xf bank_mask:0xf")
        P(f"v_add_f32_dpp v{Q}, v{Q}, v{Q} {m} row_mask:0xf bank_mask:0xf")
    P(f"v_mul_f32 v{S}, 0x3b000000, v{S}")
    P(f"v_mul_f32 v{Q}, 0x3b000000, v{Q}")
    P(f"v_fma_f32 v{Q}, -v{S}, v{S}, v{Q}")
    bf16_round_v(P, S, S, S + 2)
    P("s_mov_b32 s65, 0xffff0000")
    for e in range(8):
        for r in range(4 * e, 4 * e + 4):
            a, b = T + (r & 1) * 2, T + 1 + (r & 1) * 2
            P(f"v_lshlrev_b32 v{a}, 16, v{X+r}")
            P(f"v_and_b32 v{b}, s65, v{X+r}")
            P(f"v_sub_f32 v{a}, v{a}, v{S}")
            P(f"v_sub_f32 v{b}, v{b}, v{S}")
            P(f"v_cvt_pk_bf16_f32 v{X+r}, v{a}, v{b}")
        P(f"ds_write_b128 v{VXW+(e&1)}, v[{X+4*e}:{X+4*e+3}] offset:{256*(e>>1)}")
        bld(8 + e)
    P(f"v_max_f32 v{Q}, 0, v{Q}")
    bf16_round_v(P, Q, Q, S + 2)
    P(f"v_add_f32 v{Q}, 0x3727c5ac, v{Q}")
    bf16_round_v(P, Q, Q, S + 2)
    P(f"v_sqrt_f32 v{Q}, v{Q}")
    bf16_round_v(P, Q, Q, S + 2)
    P(f"v_rcp_f32 v{Q}, v{Q}")
    for u in range(4): bwr(u)
    P(f"ds_write_b32 v29, v{Q}")
    P("s_waitcnt lgkmcnt(0)")
    P("s_barrier")
    for s_ in rds(0): P(s_)
    RR = 28
    P(f"ds_read_b32 v{RR}, v28")
    def xfr(q, his):
        P(f"v_xor_b32 v{T+(q&1)}, {32*q}, v{VXR}")
        for hi in his:
            k16 = 8 * hi + q
            P(f"ds_read_b128 a[{4*k16}:{4*k16+3}], v{T+(q&1)} offset:{256*hi}")
    for q in range(8):
        xfr(q, (0, 1))
        if q >= 4: bwr(q)
    prof(P, 1, pr)
    hooks = {}
    def step(sp, vside=()):
        if FINE[0] and sp < 12: P(f"s_memtime s[{68+2*sp}:{69+2*sp}]")
        P("s_waitcnt lgkmcnt(0)")
        if sp % 2 == 1 and sp < 15: P("s_barrier")
        if sp in hooks: hooks[sp]()
        acc = ACC2 if sp < 8 else ACC1
        rd = rds(sp + 1) if sp < 15 else []
        vside = list(vside)
        per = (len(vside) + 3) // 4
        k = 0
        for i in range(2):
            u = 2 * sp + i
            for sl in range(2):
                k16 = 2 * (u % 16) + sl
                P(f"v_mfma_f32_32x32x16_bf16 v[{acc}:{acc+15}], {freg(sp & 1, i, sl, 0, 4)}, a[{4*k16}:{4*k16+3}], {'0' if k16 == 0 else f'v[{acc}:{acc+15}]'}")
                if k == 0:
                    for x_ in rd: P(x_)
                if k in (1, 2) and sp >= 1 and 2 * sp + 5 + k < 32: bwr(2 * sp + 5 + k)
                if sp in (0, 1) and k in (1, 2, 3, 0): xfr(4 * sp + k, (2,))
                if sp == 2: xfr(k, (3,))
                if sp == 5: xfr(4 + k, (3,))
                if k in (1, 3) and sp < 4: bld(16 + 2 * sp + (k >> 1))
                if k in (0, 1) and 6 <= sp <= 9: bld(24 + 2 * (sp - 6) + k)
                if k == 3 and sp == 5:
                    P("global_load_dwordx2 v[14:15], v13, s[10:11] sc0 sc1"); issued.append(('N', 0))
                for _ in range(per):
                    if vside: P(vside.pop(0))
                k += 1
        assert not vside
    def split(lst, n):
        k = (len(lst) + n - 1) // n
        return [lst[i*k:(i+1)*k] for i in range(n)]
    for sp in range(8): step(sp)
    prof(P, 2, pr)
    Z2 = ACC2
    GT = 8
    P(f"v_mov_b32 v{GT+4}, s63")
    gs = gelu_stream(ACC2, GT, RR)
    SS = Buf()
    S2, Q2 = ACC2 + 8, ACC2 + 9
    SS(f"v_mov_b32 v{S2}, 0")
    SS(f"v_mov_b32 v{Q2}, 0")
    for q in range(8):
        SS(f"v_dot2c_f32_bf16 v{S2}, s62, v{Z2+q}")
        SS(f"v_dot2c_f32_bf16 v{Q2}, v{Z2+q}, v{Z2+q}")
    SS(f"v_mov_b32 v{S2+2}, v{S2}")
    SS(f"v_mov_b32 v{S2+3}, v{Q2}")
    SS(f"v_permlane32_swap_b32 v{S2}, v{S2+2}")
    SS(f"v_permlane32_swap_b32 v{Q2}, v{S2+3}")
    SS(f"v_add_f32 v{S2}, v{S2}, v{S2+2}")
    SS(f"v_add_f32 v{Q2}, v{Q2}, v{S2+3}")
    SS(f"v_lshlrev_b32 v{S2+4}, 4, v0")
    SS("s_lshl_b32 s53, s14, 1")
    SS("s_add_u32 s53, s53, s59")
    SS("s_mul_i32 s60, s53, 14336")
    SS("s_lshl_b32 s53, s15, 2")
    SS("s_add_u32 s53, s53, s58")
    SS("s_lshl_b32 s53, s53, 9")
    SS("s_add_u32 s53, s53, s60")
    av = split(gs + SS.l, GSPLIT[0])
    for k in range(GSPLIT[0]): step(8 + k, av[k])
    wait_for({('N', 0)})
    P("s_mov_b32 s56, 0")
    P.label("k1_nonce")
    P("v_readfirstlane_b32 s70, v14")
    P("v_readfirstlane_b32 s71, v15")
    P("s_cmp_lg_u32 s70, 0")
    P("s_cbranch_scc1 k1_nonce_ok")
    P("global_load_dwordx2 v[14:15], v13, s[10:11] sc0 sc1")
    P("s_add_u32 s56, s56, 1")
    P("s_waitcnt vmcnt(0)")
    P("s_cmp_lt_u32 s56, 0x200000")
    P("s_cbranch_scc1 k1_nonce")
    P.label("k1_nonce_ok")
    P(f"v_mov_b32 v{S2+2}, v14")
    P(f"v_mov_b32 v{S2+3}, v15")
    P("s_mov_b32 exec_hi, 0")
    P(f"buffer_store_dwordx4 v[{S2}:{S2+3}], v{S2+4}, s[32:35], s53 offen sc0 sc1")
    issued.append(('S', 0))
    P("s_mov_b64 exec, -1")
    if REBLK[0] == 1:
        rb_load(P, 0, 30)
        for _ in range(4): issued.append(('R', 0))
    prof(P, 3, pr)
    for sp in range(8 + GSPLIT[0], 16): step(sp)
    if FINE[0]:
        P("s_lshl_b32 s92, s2, 3")
        P("s_add_u32 s92, s92, s3")
        P("s_lshl_b32 s92, s92, 6")
        P(f"s_add_u32 s92, s92, {WS_PROF + 3*0x40000}")
        P("v_mov_b32 v25, s92")
        for k in range(12):
            P(f"v_mov_b32 v26, s{68+2*k}")
            P(f"global_store_dword v25, v26, s[8:9] offset:{4*k}")
    prof(P, 4, pr)
    def gather():
        for c in range(14):
            if c % 4 == 0: P(f"s_add_u32 s61, s60, {1024*c}")
            P(f"buffer_load_dwordx4 a[{16+4*c}:{19+4*c}], v{S2+4}, s[32:35], s61 offen offset:{1024*(c%4)} sc0 sc1")
    P("s_cmp_lg_u32 s58, 0")
    P("s_cbranch_scc1 k1_nog1")
    gather()
    P.label("k1_nog1")
    Z1 = ACC1
    P(f"v_and_b32 v{T}, 15, v0")
    P(f"v_bfe_u32 v{T+1}, v0, 4, 1")
    P(f"v_lshrrev_b32 v{T+2}, 5, v0")
    P(f"v_lshlrev_b32 v{T}, 4, v{T}")
    P(f"v_lshl_add_u32 v{T}, v{T+1}, 10, v{T}")
    P(f"v_lshl_add_u32 v{T}, v{T+2}, 9, v{T}")
    P("s_mul_i32 s53, s14, 28")
    P("s_lshl_b32 s56, s15, 2")
    P("s_add_u32 s53, s53, s56")
    P("s_add_u32 s53, s53, s58")
    P("s_lshl_b32 s53, s53, 12")
    P("s_lshl_b32 s56, s59, 11")
    P("s_add_u32 s53, s53, s56")
    for s_ in gelu_stream(ACC1, GT, RR): P(s_)
    P(f"buffer_store_dwordx4 v[{Z1}:{Z1+3}], v{T}, s[28:31], s53 offen sc1")
    P(f"buffer_store_dwordx4 v[{Z1+4}:{Z1+7}], v{T}, s[28:31], s53 offen offset:256 sc1")
    prof(P, 5, pr)
    if REBLK[0] == 1:
        P("s_cmp_lg_u32 s58, 0")
        P("s_cbranch_scc1 k1_rbw")
        P("s_waitcnt vmcnt(16)")
        P("s_branch k1_rbs")
        P.label("k1_rbw")
        P("s_waitcnt vmcnt(2)")
        P.label("k1_rbs")
        rb_store(P, 0, XB, T, X + 16)
    PS = WFR
    MS = 2 * 8192
    P("s_cmp_lg_u32 s58, 0")
    P("s_cbranch_scc1 k1_nopoll")
    P("s_mov_b32 s56, 0")
    P.label("k1_poll")
    P("s_waitcnt vmcnt(0)")
    for r in range(4): P(f"v_mov_b32 v{PS+r}, 0")
    for c in range(14):
        for r in range(4): P(f"v_accvgpr_read_b32 v{PS+4+r}, a{16+4*c+r}")
        P(f"v_add_f32 v{PS}, v{PS}, v{PS+4}")
        P(f"v_add_f32 v{PS+1}, v{PS+1}, v{PS+5}")
        P(f"v_xor_b32 v{PS+6}, v{PS+6}, v14")
        P(f"v_xor_b32 v{PS+7}, v{PS+7}, v15")
        P(f"v_or_b32 v{PS+2}, v{PS+2}, v{PS+6}")
        P(f"v_or_b32 v{PS+3}, v{PS+3}, v{PS+7}")
    P(f"v_or_b32 v{PS+2}, v{PS+2}, v{PS+3}")
    P(f"v_cmp_ne_u32 vcc, 0, v{PS+2}")
    P("s_add_u32 s56, s56, 1")
    P("s_cmp_eq_u64 vcc, 0")
    P("s_cbranch_scc1 k1_got")
    gather()
    P("s_cmp_lt_u32 s56, 0x100000")
    P("s_cbranch_scc1 k1_poll")
    P("s_waitcnt vmcnt(0)")
    P.label("k1_got")
    P(f"v_mov_b32 v{PS+2}, v{PS}")
    P(f"v_mov_b32 v{PS+3}, v{PS+1}")
    P(f"v_permlane32_swap_b32 v{PS}, v{PS+2}")
    P(f"v_permlane32_swap_b32 v{PS+1}, v{PS+3}")
    P(f"v_add_f32 v{PS}, v{PS}, v{PS+2}")
    P(f"v_add_f32 v{PS+1}, v{PS+1}, v{PS+3}")
    S, Q = PS, PS + 1
    P(f"v_mul_f32 v{S}, {fbits(1/896)}, v{S}")
    P(f"v_mul_f32 v{Q}, {fbits(1/896)}, v{Q}")
    P(f"v_fma_f32 v{Q}, -v{S}, v{S}, v{Q}")
    P(f"v_max_f32 v{Q}, 0, v{Q}")
    bf16_round_v(P, S, S, T + 2)
    bf16_round_v(P, Q, Q, T + 2)
    P(f"v_add_f32 v{Q}, 0x3727c5ac, v{Q}")
    bf16_round_v(P, Q, Q, T + 2)
    P(f"v_sqrt_f32 v{Q}, v{Q}")
    bf16_round_v(P, Q, Q, T + 2)
    P(f"v_rcp_f32 v{Q}, v{Q}")
    P(f"v_and_b32 v{T}, 31, v0")
    P(f"v_lshlrev_b32 v{T}, 3, v{T}")
    P("s_lshl_b32 s53, s59, 8")
    P(f"s_add_u32 s53, s53, {MS}")
    P(f"v_add_u32 v{T}, s53, v{T}")
    P(f"ds_write_b64 v{T}, v[{S}:{Q}]")
    P.label("k1_nopoll")
    P(f"v_and_b32 v{VT+3}, 31, v0")
    P(f"v_lshlrev_b32 v{VT+3}, 3, v{VT+3}")
    P("s_lshl_b32 s53, s59, 8")
    P(f"s_add_u32 s53, s53, {MS}")
    P(f"v_add_u32 v{VT+3}, s53, v{VT+3}")
    P(f"v_and_b32 v{T}, 31, v0")
    P(f"v_lshrrev_b32 v{T+1}, 5, v0")
    P(f"v_lshlrev_b32 v{T}, 6, v{T}")
    P(f"v_lshl_add_u32 v{T}, v{T+1}, 5, v{T}")
    P("s_lshl_b32 s53, s3, 11")
    P(f"v_add_u32 v{VT}, s53, v{T}")
    P(f"v_lshrrev_b32 v{T+1}, 4, v0")
    P(f"v_bfe_u32 v{T+2}, v0, 2, 2")
    P(f"v_and_b32 v{T+3}, 3, v0")
    P(f"v_lshl_add_u32 v{T+1}, v{T+1}, 3, v{T+2}")
    P(f"v_lshlrev_b32 v{T+1}, 6, v{T+1}")
    P(f"v_lshl_add_u32 v{T+1}, v{T+3}, 3, v{T+1}")
    P(f"v_add_u32 v{VT+1}, s53, v{T+1}")
    P(f"v_lshlrev_b32 v{VT+2}, 4, v0")
    P("s_lshl_b32 s60, s14, 1")
    P("s_add_u32 s60, s60, s59")
    for tl in range(2):
        P("s_lshl_b32 s53, s15, 3")
        P("s_lshl_b32 s61, s58, 1")
        P("s_add_u32 s53, s53, s61")
        if tl: P("s_add_u32 s53, s53, 1")
        P("s_mul_i32 s61, s53, 37")
        P("s_lshr_b32 s61, s61, 8")
        P("s_mul_i32 s65, s61, 7")
        P("s_sub_u32 s53, s53, s65")
        P("s_add_u32 s65, s53, 6")
        P("s_sub_u32 s66, s53, 1")
        P("s_cmp_eq_u32 s53, 0")
        P("s_cselect_b32 s65, s65, s66")
        P("s_bitcmp1_b32 s61, 0")
        P("s_cselect_b32 s53, s65, s53")
        P("s_lshl_b32 s61, s61, 6")
        P("s_add_u32 s61, s61, s60")
        P("s_mul_i32 s61, s61, 7")
        P("s_add_u32 s61, s61, s53")
        P(f"s_lshl_b32 s{67+tl}, s61, 10")
    U = X
    for r in range(8):
        P(f"v_lshlrev_b32 v{U+2*r}, 16, v{Z2+r}")
        P(f"v_and_b32 v{U+2*r+1}, 0xffff0000, v{Z2+r}")
    P("s_waitcnt lgkmcnt(0)")
    P("s_barrier")
    P(f"ds_read_b64 v[{S}:{Q}], v{VT+3}")
    P("s_waitcnt lgkmcnt(0)")
    for r in range(16): P(f"v_sub_f32 v{U+r}, v{U+r}, v{S}")
    for r in range(16): P(f"v_mul_f32 v{U+r}, v{U+r}, v{Q}")
    for r in range(8): P(f"v_cvt_pk_bf16_f32 v{Z2+r}, v{U+2*r}, v{U+2*r+1}")
    P(f"ds_write_b128 v{VT}, v[{Z2}:{Z2+3}]")
    P(f"ds_write_b128 v{VT}, v[{Z2+4}:{Z2+7}] offset:16")
    P("s_waitcnt lgkmcnt(0)")
    O = X + 16
    for tl in range(2):
        for rr in range(2):
            P(f"ds_read_b64_tr_b16 v[{O+4*tl+2*rr}:{O+4*tl+2*rr+1}], v{VT+1} offset:{32*tl + 256*rr}")
    P("s_waitcnt lgkmcnt(0)")
    for tl in range(2):
        P(f"buffer_store_dwordx4 v[{O+4*tl}:{O+4*tl+3}], v{VT+2}, s[24:27], s{67+tl} offen sc1")
    prof(P, 6, pr)
    if pr: P("s_waitcnt vmcnt(0)")
    prof(P, 7, pr)
    P("s_endpgm")
    if aux is not None:
        P.label("k1_aux")
        prof(P, 0, pr)
        aux(P, X, T, VXW, pr)
    P.label("k1_end")
    P("s_endpgm")
    return dict(vgpr=128, agpr=128, lds=160 * 1024)
GSPLIT = [3]
FINE = [0]
PRI = [0]
REBLK = [0]
```

```python
from dsl import Prog
WS_Z2F = 0x0000000
WS_Z1F = 0x0400000
WS_HF  = 0x0800000
WS_XNT = 0x0C00000
WS_YAT = 0x0E00000
WS_KR  = 0x1000000
WS_WOF = 0x1800000
WS_ST  = 0x1900000
WS_WF  = 0x2000000
KR_STRIDE = 8704

def srd(P, d, base, nbytes, off=0):
    if off:
        P(f"s_add_u32 s{d}, s{base}, {off}")
        P(f"s_addc_u32 s{d+1}, s{base+1}, 0")
        P(f"s_and_b32 s{d+1}, s{d+1}, 0xffff")
    else:
        P(f"s_mov_b32 s{d}, s{base}")
        P(f"s_and_b32 s{d+1}, s{base+1}, 0xffff")
    P(f"s_mov_b32 s{d+2}, {nbytes}")
    P(f"s_mov_b32 s{d+3}, 0x00020000")

WS_PROF = 0x1A00000
PROF_K = [0]
PROF_V = [26]
PRIO = [0, 0]
LF = [0]
K2PRE = [0]
EXP = [0]
def prof(P, idx, on):
    if not on: return
    P("s_memrealtime s[90:91]")
    P("s_lshl_b32 s92, s2, 3")
    P("s_add_u32 s92, s92, s3")
    P("s_lshl_b32 s92, s92, 6")
    P(f"s_add_u32 s92, s92, {WS_PROF + PROF_K[0]*0x40000 + idx*8}")
    P("s_waitcnt lgkmcnt(0)")
    b_ = PROF_V[0]
    P(f"v_mov_b32 v{b_}, s90")
    P(f"v_mov_b32 v{b_+1}, s91")
    P(f"v_mov_b32 v{b_-1}, s92")
    P(f"global_store_dwordx2 v{b_-1}, v[{b_}:{b_+1}], s[8:9]")

CW_AREA = 16384
XPO = 8704
from kgen import kgen
def gen_conv(P, CB, pr):
    prof(P, 0, pr)
    if PRIO[1] == 9: P("s_endpgm")
    elif PRIO[1]: P(f's_setprio {PRIO[1]}')
    T = 2
    P("s_sub_u32 s52, s3, 4")
    P("s_lshr_b32 s53, s52, 1")
    P("s_lshl_b32 s54, s2, 1")
    P("s_add_u32 s54, s54, s53")
    P(f"s_mul_i32 s55, s52, {CW_AREA}")
    P(f"s_add_u32 s55, s55, {CB}")
    PAR = 104
    P("s_xor_b32 s60, s52, 1")
    P(f"s_mul_i32 s60, s60, {CW_AREA}")
    P(f"s_add_u32 s60, s60, {CB}")
    P("s_and_b32 s61, s52, 1")
    P(f"v_mov_b32 v{T}, s55")
    P(f"v_mov_b32 v{T+1}, 0")
    P(f"ds_write_b32 v{T}, v{T+1} offset:16380")
    P(f"v_lshlrev_b32 v{T}, 2, v0")
    P("s_lshl_b32 s53, s54, 8")
    P(f"v_add_u32 v{T}, s53, v{T}")
    P("s_lshl_b32 s53, s54, 1")
    P(f"v_mov_b32 v{T+1}, s53")
    P("s_waitcnt lgkmcnt(0)")
    for k in range(6):
        P(f"global_load_dword v{PAR+k}, v{T}, s[{68+2*k}:{69+2*k}]")
    P(f"global_load_ushort v{PAR+6}, v{T+1}, s[80:81]")
    P(f"global_load_ushort v{PAR+7}, v{T+1}, s[10:11]")
    if K2PRE[0]:
        P("s_and_b32 s56, s2, 7")
        P("s_lshl_b32 s56, s56, 5")
        P("s_lshr_b32 s57, s2, 3")
        P("s_add_u32 s56, s56, s57")
        P("s_lshl_b32 s56, s56, 15")
        P("s_lshl_b32 s57, s52, 13")
        P("s_add_u32 s56, s56, s57")
        P(f"v_lshlrev_b32 v{T+2}, 7, v0")
        P(f"buffer_load_dword v{PAR+8}, v{T+2}, s[16:19], s56 offen")
    P("s_barrier")
    P("s_waitcnt vmcnt(1)" if K2PRE[0] else "s_waitcnt vmcnt(0)")
    P(f"v_lshlrev_b32 v{PAR+6}, 16, v{PAR+6}")
    prof(P, 3, pr)
    def xload():
        P("s_lshl_b32 s59, s54, 12")
        P(f"v_lshlrev_b32 v{T}, 4, v0")
        P(f"s_add_u32 m0, s55, {XPO+512}")
        P("s_nop 0")
        for e in range(4):
            P(f"buffer_load_dwordx4 v{T}, s[36:39], s59 offen offset:{1024*e} lds")
        P(f"v_mov_b32 v{T+2}, 0")
        P(f"v_mov_b32 v{T+3}, 0")
        P(f"v_lshlrev_b32 v{T+1}, 3, v0")
        P(f"v_add_u32 v{T+1}, s55, v{T+1}")
        P(f"ds_write_b64 v{T+1}, v[{T+2}:{T+3}] offset:{XPO}")
    kgen(P, PAR, 55, 60, 61, xload)
    prof(P, 2, pr)
    P(f"v_mov_b32 v{T+9}, s57")
    P(f"v_mov_b32 v{T+8}, v{PAR+7}")
    P("s_lshl_b32 s57, s54, 12")
    VA = 12
    P(f"v_and_b32 v{T}, 15, v0")
    P(f"v_lshrrev_b32 v{T+1}, 5, v0")
    P(f"v_bfe_u32 v{T+2}, v0, 4, 1")
    P(f"v_lshl_add_u32 v{T+3}, v{T+1}, 4, v{T}")
    P(f"v_add_u32 v{T+3}, 9, v{T+3}")
    P(f"v_lshlrev_b32 v{T+4}, 3, v{T+2}")
    P(f"v_sub_u32 v{T+3}, v{T+3}, v{T+4}")
    P(f"v_and_b32 v{T+4}, 1, v{T+3}")
    P(f"v_sub_u32 v{T+3}, v{T+3}, v{T+4}")
    P(f"v_lshlrev_b32 v{T+3}, 1, v{T+3}")
    P("s_movk_i32 s58, 4288")
    P(f"v_mad_u32_u24 v{T+3}, v{T+4}, s58, v{T+3}")
    P(f"v_add_u32 v{VA}, s55, v{T+3}")
    for k in range(1, 4):
        P(f"v_add_u32 v{VA+k}, {1024*k}, v{VA}")
    P(f"v_sub_u32 v{T+3}, v{T}, v{T+1}")
    P(f"v_lshlrev_b32 v{T+3}, 5, v{T+3}")
    P(f"v_lshl_add_u32 v{T+3}, v{T+2}, 4, v{T+3}")
    P(f"s_add_u32 s58, s55, {XPO}")
    P(f"v_add_u32 v{VA+4}, s58, v{T+3}")
    P(f"v_lshl_add_u32 v{T+3}, v{T}, 1, v{T+1}")
    P(f"v_lshlrev_b32 v{T+3}, 4, v{T+3}")
    P(f"v_xor_b32 v{T+4}, 1, v{T+2}")
    P(f"v_lshl_add_u32 v{T+3}, v{T+4}, 3, v{T+3}")
    P(f"v_add_u32 v{VA+5}, s58, v{T+3}")
    P(f"v_lshrrev_b32 v{T+3}, 4, v0")
    P(f"v_lshlrev_b32 v{T+3}, 3, v{T+3}")
    P(f"v_lshl_add_u32 v{VA+6}, v{T}, 5, v{T+3}")
    AF, BF, ACC = 20, 52, 84
    for r in range(20): P(f"v_mov_b32 v{ACC+r}, 0")
    P("s_waitcnt vmcnt(0) lgkmcnt(0)")
    P("s_bitcmp1_b32 s52, 0")
    P("s_cbranch_scc1 k2_conv1")
    for part, U in enumerate(([7, 6, 2], [5, 4, 3, 1, 0])):
        if part: P.label("k2_conv1")
        um = max(U)
        def rds(st, dl):
            out = []
            for i in range(um + 1):
                o = 128 * (i & 1) + 16 * dl
                ra = (lambda k: f"v[{AF+4*i+k}:{AF+4*i+k+1}]") if st == 0 else (lambda k: f"a[{4*i+k}:{4*i+k+1}]")
                rb = f"v[{BF+4*i}:{BF+4*i+3}]" if st == 0 else f"a[{32+4*i}:{32+4*i+3}]"
                out.append(f"ds_read2_b32 {ra(0)}, v{VA+(i>>1)} offset0:{o} offset1:{o+1}")
                out.append(f"ds_read2_b32 {ra(2)}, v{VA+(i>>1)} offset0:{o+2} offset1:{o+3}")
                out.append(f"ds_read_b128 {rb}, v{VA+4} offset:{512+512*i-64*dl}")
            return out
        work = []
        for step in range(um + 1):
            for k, u in enumerate(U):
                if step <= u: work.append((k, step, u - step))
        def mf(st, side):
            side = list(side)
            for n_, (k, i, w) in enumerate(work):
                a = ACC + 4 * k
                ra = f"v[{AF+4*i}:{AF+4*i+3}]" if st == 0 else f"a[{4*i}:{4*i+3}]"
                rb = f"v[{BF+4*w}:{BF+4*w+3}]" if st == 0 else f"a[{32+4*w}:{32+4*w+3}]"
                P(f"v_mfma_f32_16x16x32_f16 v[{a}:{a+3}], {ra}, {rb}, v[{a}:{a+3}]")
                for _ in range(2 if n_ < len(side) // 3 else 1):
                    if side: P(side.pop(0))
            for x_ in side: P(x_)
        for x_ in rds(0, 0): P(x_)
        P("s_mov_b32 s59, 0")
        P.label(f"k2_cloop{part}")
        P("s_waitcnt lgkmcnt(0)")
        mf(0, rds(1, 1))
        P("s_waitcnt lgkmcnt(0)")
        mf(1, rds(0, 2))
        for k in range(4): P(f"v_add_u32 v{VA+k}, 128, v{VA+k}")
        P(f"v_subrev_u32 v{VA+4}, 128, v{VA+4}")
        P("s_add_u32 s59, s59, 1")
        P("s_cmp_lt_u32 s59, 4")
        P(f"s_cbranch_scc1 k2_cloop{part}")
        P("s_waitcnt lgkmcnt(0)")
        for k, u in enumerate(U):
            P(f"ds_read_b64 v[{AF+2*k}:{AF+2*k+1}], v{VA+5} offset:{512+512*u}")
        P(f"v_lshlrev_b32 v{T+8}, 16, v{T+8}")
        P("s_waitcnt lgkmcnt(0)")
        for k, u in enumerate(U):
            a = ACC + 4 * k; xl, xh = AF + 2 * k, AF + 2 * k + 1
            for i in range(4): P(f"v_mul_f32 v{a+i}, v{a+i}, v{T+9}")
            P(f"v_cvt_pk_bf16_f32 v{T}, v{a}, v{a+1}")
            P(f"v_cvt_pk_bf16_f32 v{T+1}, v{a+2}, v{a+3}")
            P(f"v_cvt_f32_f16_sdwa v{a}, v{xh} dst_sel:DWORD dst_unused:UNUSED_PAD src0_sel:WORD_1")
            P(f"v_cvt_f32_f16 v{a+1}, v{xh}")
            P(f"v_cvt_f32_f16_sdwa v{a+2}, v{xl} dst_sel:DWORD dst_unused:UNUSED_PAD src0_sel:WORD_1")
            P(f"v_cvt_f32_f16 v{a+3}, v{xl}")
            for i in range(4): P(f"v_mul_f32 v{a+i}, v{a+i}, v{T+8}")
            P(f"v_cvt_pk_bf16_f32 v{T+2}, v{a}, v{a+1}")
            P(f"v_cvt_pk_bf16_f32 v{T+3}, v{a+2}, v{a+3}")
            for hh in range(2):
                P(f"v_lshlrev_b32 v{a+2*hh}, 16, v{T+hh}")
                P(f"v_and_b32 v{a+2*hh+1}, 0xffff0000, v{T+hh}")
                P(f"v_lshlrev_b32 v{T+4}, 16, v{T+2+hh}")
                P(f"v_and_b32 v{T+5}, 0xffff0000, v{T+2+hh}")
                P(f"v_add_f32 v{a+2*hh}, v{a+2*hh}, v{T+4}")
                P(f"v_add_f32 v{a+2*hh+1}, v{a+2*hh+1}, v{T+5}")
            P(f"v_cvt_pk_bf16_f32 v{BF+2*k}, v{a}, v{a+1}")
            P(f"v_cvt_pk_bf16_f32 v{BF+2*k+1}, v{a+2}, v{a+3}")
            P(f"buffer_store_dwordx2 v[{BF+2*k}:{BF+2*k+1}], v{VA+6}, s[40:43], s57 offen offset:{512*u} sc1")
        prof(P, 1, pr)
        P("s_barrier")
        P("s_endpgm")

def gen_k2(P, NST=3, conv=True, nz=3, pr=False):
    STG = 8192
    AREA = NST * STG
    P.label("k2_kernel")
    P("s_cmp_ge_u32 s2, 256")
    P("s_cbranch_scc1 k2_end")
    P("s_load_dwordx2 s[4:5], s[0:1], 88")
    P("s_load_dwordx2 s[6:7], s[0:1], 96")
    P("s_load_dwordx2 s[8:9], s[0:1], 128")
    P("s_load_dwordx2 s[10:11], s[0:1], 64")
    P("s_load_dwordx4 s[68:71], s[0:1], 8")
    P("s_load_dwordx4 s[72:75], s[0:1], 24")
    P("s_load_dwordx4 s[76:79], s[0:1], 40")
    P("s_load_dwordx2 s[80:81], s[0:1], 56")
    P("v_lshrrev_b32 v1, 6, v0")
    P("v_and_b32 v0, 63, v0")
    P("v_readfirstlane_b32 s3, v1")
    P("s_and_b32 s12, s2, 7")
    P("s_lshr_b32 s13, s2, 3")
    P("s_lshr_b32 s14, s12, 1")
    P("s_lshl_b32 s14, s14, 3")
    P("s_and_b32 s15, s13, 7")
    P("s_add_u32 s14, s14, s15")
    P("s_and_b32 s15, s12, 1")
    P("s_lshl_b32 s15, s15, 2")
    P("s_lshr_b32 s13, s13, 3")
    P("s_add_u32 s15, s15, s13")
    if EXP[0] in (5, 6):
        P("s_mov_b32 s14, 0")
        P("s_mov_b32 s15, 0")
    P("s_waitcnt lgkmcnt(0)")
    srd(P, 16, 4, 2048 * 2048 * 2)
    srd(P, 20, 8, 0x400000, WS_Z2F)
    srd(P, 24, 8, 0x400000, WS_Z1F)
    srd(P, 28, 8, 0x400000, WS_HF)
    srd(P, 32, 6, 4096)
    srd(P, 36, 8, 0x200000, WS_XNT)
    srd(P, 40, 8, 0x200000, WS_YAT)
    if conv:
        P("s_cmp_ge_u32 s3, 4")
        P("s_cbranch_scc1 k2_conv")
    if PRIO[0] == 9: P('s_endpgm')
    elif PRIO[0]: P(f's_setprio {PRIO[0]}')
    prof(P, 0, pr)
    if pr: P("s_memtime s[82:83]")
    VW = 2
    VZ = 10
    VA = 12
    T = 20
    WF = 28
    ZB = 60
    P(f"v_lshrrev_b32 v{T}, 3, v0")
    P(f"v_and_b32 v{T+1}, 7, v0")
    P(f"v_lshrrev_b32 v{T+2}, 1, v{T}")
    P(f"v_xor_b32 v{T+1}, v{T+1}, v{T+2}")
    P(f"v_lshlrev_b32 v{T+1}, 4, v{T+1}")
    P(f"v_lshl_add_u32 v{T+1}, v{T}, 12, v{T+1}")
    P(f"v_xor_b32 v{T+2}, 64, v{T+1}")
    for e in range(8):
        P(f"v_add_u32 v{VW+e}, {8*e*4096 - 1024*(e&3)}, v{T+1+(e&1)}")
    P(f"v_lshlrev_b32 v{VZ}, 4, v0")
    P(f"v_add_u32 v{VZ+1}, 4096, v{VZ}")
    P(f"v_and_b32 v{T}, 15, v0")
    P(f"v_lshrrev_b32 v{T+1}, 4, v0")
    P(f"v_lshrrev_b32 v{T+2}, 1, v{T}")
    P(f"v_xor_b32 v{T+1}, v{T+1}, v{T+2}")
    P(f"v_lshlrev_b32 v{T+1}, 4, v{T+1}")
    P(f"v_lshl_add_u32 v{T+1}, v{T}, 7, v{T+1}")
    P(f"s_mul_i32 s52, s3, {AREA}")
    for tau in range(4):
        P(f"s_add_u32 s53, s3, {tau}")
        P(f"s_and_b32 s53, s53, 3")
        P(f"s_lshl_b32 s53, s53, 11")
        P(f"s_add_u32 s53, s53, s52")
        P(f"v_add_u32 v{VA+tau}, s53, v{T+1}")
        P(f"v_xor_b32 v{VA+4+tau}, 64, v{VA+tau}")
    P("s_lshl_b32 s54, s14, 18")
    P("s_lshl_b32 s53, s3, 10")
    P("s_add_u32 s54, s54, s53")
    P(f"s_mul_i32 s55, s15, {64*7168}")
    P(f"s_mul_i32 s53, s3, {16*7168}")
    P("s_add_u32 s55, s55, s53")
    def wdma(q):
        out = []
        st = q % NST
        for e in range(8):
            pre = []
            if e % 4 == 0:
                pre.append(f"s_add_u32 m0, s52, {st*STG + e*1024}")
                if e == 0: pre.append(f"s_add_u32 s56, s54, {q*128}")
                else: pre.append("s_nop 0")
            out.append("\n".join(pre + [f"buffer_load_dwordx4 v{VW+e}, s[16:19], s56 offen offset:{1024*(e&3)} lds"]))
        return out
    def zld(i):
        out = []
        b = ZB + 28 * (i % nz)
        for ft in range(7):
            pre = [f"s_add_u32 s57, s55, {i*7168}"] if ft == 0 else []
            out.append("\n".join(pre + [f"buffer_load_dwordx4 v[{b+4*ft}:{b+4*ft+3}], v{VZ+(ft>>2)}, s[20:23], s57 offen offset:{1024*(ft&3)}"]))
        return out
    def wrd(i):
        out = []
        st = (i // 2) % NST; h = i & 1
        b = WF + 16 * (i & 1)
        for tau in range(4):
            out.append(f"ds_read_b128 v[{b+4*tau}:{b+4*tau+3}], v{VA+4*h+tau} offset:{st*STG}")
        return out
    ZD = nz - 1
    WD = NST - 1
    issued = []
    def emit(lst, tag):
        for s in lst:
            P(s); issued.append(tag)
    for q in range(max(WD, (ZD + 1) // 2)):
        if q < WD: emit(wdma(q), ('W', q))
        for i in (2 * q, 2 * q + 1):
            if i < ZD: emit(zld(i), ('Z', i))
    if conv: P('s_barrier')
    for r in range(112):
        P(f"v_accvgpr_write_b32 a{r}, 0")
    def wait_for(tags):
        if not any(t in tags for t in issued): return
        last = max(k for k, t in enumerate(issued) if t in tags)
        n = len(issued) - 1 - last
        P(f"s_waitcnt vmcnt({min(n,63)})")
    Z1 = ZB + 28 * ((15 - ZD) % nz)
    def epi_loads():
        P("s_and_b32 s53, s15, 1")
        P("s_mul_i32 s58, s15, 7")
        P("s_add_u32 s58, s58, s53")
        P("s_lshr_b32 s58, s58, 1")
        P("s_lshl_b32 s59, s53, 2")
        P("s_sub_u32 s59, 3, s59")
        P("s_add_u32 s59, s59, s58")
        P("s_mul_i32 s60, s14, 28")
        P("s_add_u32 s58, s58, s60")
        P("s_add_u32 s59, s59, s60")
        P("s_lshl_b32 s58, s58, 2")
        P("s_lshl_b32 s59, s59, 2")
        P("s_add_u32 s58, s58, s3")
        P("s_add_u32 s59, s59, s3")
        P("s_lshl_b32 s58, s58, 10")
        P("s_lshl_b32 s59, s59, 10")
        P("s_lshl_b32 s53, s53, 3")
        P("s_add_u32 s59, s59, s53")
        P(f"buffer_load_dwordx4 v[{Z1}:{Z1+3}], v{VZ}, s[24:27], s58 offen")
        P(f"buffer_load_dwordx4 v[{Z1+4}:{Z1+7}], v{VZ+1}, s[24:27], s58 offen")
        P(f"s_add_u32 s60, s58, 8192")
        P(f"buffer_load_dwordx4 v[{Z1+8}:{Z1+11}], v{VZ}, s[24:27], s60 offen")
        P(f"buffer_load_dwordx2 v[{Z1+12}:{Z1+13}], v{VZ}, s[24:27], s59 offen")
        P(f"v_and_b32 v{T}, 15, v0")
        P(f"v_lshlrev_b32 v{T}, 1, v{T}")
        P("s_lshl_b32 s61, s14, 7")
        P("s_lshl_b32 s53, s3, 5")
        P("s_add_u32 s61, s61, s53")
        P(f"buffer_load_ushort v{T+3}, v{T}, s[32:35], s61 offen")
    wait_for({('W', 0)})
    if pr: P('s_memrealtime s[80:81]')
    for s in wrd(0): P(s)
    for i in range(16):
        need_tags = {('Z', i)}
        if i + 1 < 16: need_tags.add(('W', (i + 1) // 2))
        wait_for(need_tags)
        P("s_waitcnt lgkmcnt(0)")
        side = []
        if i + 1 < 16: side += [(s, None) for s in wrd(i + 1)]
        if i + ZD < 16: side += [(s, ('Z', i + ZD)) for s in zld(i + ZD)]
        if i % 2 == 0 and i // 2 + WD < 8: side += [(s, ('W', i // 2 + WD)) for s in wdma(i // 2 + WD)]
        zb = ZB + 28 * (i % nz); wb = WF + 16 * (i & 1)
        if EXP[0] in (3, 4):
            drop = 'W' if EXP[0] == 3 else 'Z'
            side2 = []
            for x in side:
                if x[1] and x[1][0] == drop: side2.append(("s_nop 0", None))
                else: side2.append(x)
            side = side2
        if EXP[0] == 2:
            for x in side:
                if x[1]: issued.append(x[1])
            side = [x for x in side if not x[1]]
            P("s_sleep 7")
        k = 0
        if LF[0]:
            if LF[0] == 2: P("s_setprio 3")
            mem = [x for x in side if x[1]]; side = [x for x in side if not x[1]]
            for s_, tag in mem:
                P(s_); issued.append(tag)
            if LF[0] == 2: P("s_setprio 0")
        for ft in range(7):
            for tau in range(4):
                a = 4 * (ft * 4 + tau)
                if EXP[0] not in (1, 3, 4, 6): P(f"v_mfma_f32_16x16x32_bf16 a[{a}:{a+3}], v[{zb+4*ft}:{zb+4*ft+3}], v[{wb+4*tau}:{wb+4*tau+3}], a[{a}:{a+3}]")
                if k < len(side):
                    s, tag = side[k]; k += 1
                    P(s)
                    if tag: issued.append(tag)
        assert k == len(side)
        if i == 16 - ZD:
            epi_loads()
            for _ in range(5): issued.append(('E', 0))
    prof(P, 2, pr)
    if pr:
        P('v_mov_b32 v26, s80')
        P('v_mov_b32 v27, s81')
        P('global_store_dwordx2 v25, v[26:27], s[8:9] offset:-8')
    P(f"v_add_u32 v{T+2}, s52, v{VZ}")
    for tau in range(1, 4):
        for ft in range(7):
            a = 4 * (ft * 4 + tau)
            P(f"ds_write_b128 v{T+2}, a[{a}:{a+3}] offset:{(tau-1)*7168 + ft*1024}")
    P("s_waitcnt lgkmcnt(0)")
    P("s_barrier")
    RB = [ZB + 28 * ((15 - ZD + 1) % nz), ZB + 28 * ((15 - ZD + 2) % nz), WF]
    R = RB[0]
    for dl in range(1, 4):
        P(f"s_sub_u32 s53, s3, {dl}")
        P("s_and_b32 s53, s53, 3")
        P(f"s_mul_i32 s53, s53, {AREA}")
        P(f"v_add_u32 v{T+2}, s53, v{VZ}")
        for ft in range(7):
            r = RB[dl - 1] + 4 * ft
            P(f"ds_read_b128 v[{r}:{r+3}], v{T+2} offset:{(dl-1)*7168 + ft*1024}")
    G = T + 4
    P("s_waitcnt lgkmcnt(14)")
    for ft in range(7):
        for i in range(4):
            P(f"v_accvgpr_read_b32 v{G+i}, a{4*(ft*4)+i}")
        for i in range(4):
            P(f"v_add_f32 v{R+4*ft+i}, v{R+4*ft+i}, v{G+i}")
    P("s_waitcnt lgkmcnt(7)")
    for r in range(28):
        P(f"v_add_f32 v{R+r}, v{R+r}, v{RB[1]+r}")
    P("s_waitcnt lgkmcnt(0)")
    for r in range(28):
        P(f"v_add_f32 v{R+r}, v{R+r}, v{RB[2]+r}")
    P("s_waitcnt vmcnt(0)")
    P(f"v_lshlrev_b32 v{T+1}, 16, v{T+3}")
    H = RB[1]
    for q in range(14):
        a, b = R + 2 * q, R + 2 * q + 1
        P(f"v_cvt_pk_bf16_f32 v{G}, v{a}, v{b}")
        P(f"v_lshlrev_b32 v{a}, 16, v{G}")
        P(f"v_and_b32 v{b}, 0xffff0000, v{G}")
        P(f"v_add_f32 v{a}, v{a}, v{T+1}")
        P(f"v_add_f32 v{b}, v{b}, v{T+1}")
        P(f"v_cvt_pk_bf16_f32 v{G}, v{a}, v{b}")
        P(f"v_lshlrev_b32 v{a}, 16, v{G}")
        P(f"v_and_b32 v{b}, 0xffff0000, v{G}")
        P(f"v_lshlrev_b32 v{G+1}, 16, v{Z1+q}")
        P(f"v_and_b32 v{G+2}, 0xffff0000, v{Z1+q}")
        P(f"v_mul_f32 v{a}, v{a}, v{G+1}")
        P(f"v_mul_f32 v{b}, v{b}, v{G+2}")
        P(f"v_cvt_pk_bf16_f32 v{H+q}, v{a}, v{b}")
    ST = " sc1"
    P(f"buffer_store_dwordx4 v[{H}:{H+3}], v{VZ}, s[28:31], s58 offen{ST}")
    P(f"buffer_store_dwordx4 v[{H+4}:{H+7}], v{VZ+1}, s[28:31], s58 offen{ST}")
    P(f"buffer_store_dwordx4 v[{H+8}:{H+11}], v{VZ}, s[28:31], s60 offen{ST}")
    P(f"buffer_store_dwordx2 v[{H+12}:{H+13}], v{VZ}, s[28:31], s59 offen{ST}")
    prof(P, 3, pr)
    if pr: P("s_waitcnt vmcnt(0)")
    prof(P, 4, pr)
    if pr:
        P("s_memtime s[84:85]")
        P("s_waitcnt lgkmcnt(0)")
        P("s_sub_u32 s84, s84, s82")
        P("v_mov_b32 v26, s84")
        P("v_mov_b32 v27, 0")
        P("global_store_dwordx2 v25, v[26:27], s[8:9] offset:8")
    P("s_endpgm")
    if conv:
        P.label("k2_conv")
        gen_conv(P, 4 * AREA, pr)
    P.label("k2_end")
    P("s_endpgm")
    return dict(vgpr=ZB + 28 * max(nz, 3), agpr=112, lds=4 * AREA + (4 * CW_AREA if conv else 0))
```

```python
import sys
from dsl import Prog
import k1, k1b, k1c, k1d, k1e, k2, k2b, k2c, k3, aux
HDR = open('parallel_sum__ssm_conv_s4__mixer_gmlp__prompt.s.ref').read().split('; Override launch')[0]
import os
K2V = os.environ.get("K2V", "c")
K2F = {"a": lambda P, pr: k2.gen_k2(P, pr=pr), "b": lambda P, pr: k2b.gen_k2(P, pr=pr), "c": lambda P, pr: k2c.gen_k2(P, pr=pr)}[K2V]
K2B = 256 if K2V == "c" else 512
K1M = {"d": k1d, "e": k1e}[os.environ.get("K1V", "e")]
if os.environ.get("REBLK") == "1": aux.AUXRB[0] = 1; k1d.REBLK[0] = 1
def build(pr=False, **kw):
    parts = []; launches = []; descs = []
    for name, fn, blk in (("k1_kernel", lambda P: K1M.gen_k1(P, aux=aux.aux, pr=pr), 512),
                          ("k2_kernel", lambda P: K2F(P, pr), K2B),
                          ("k3_kernel", lambda P: k3.gen_k3(P, pr=pr), 256)):
        k2.PROF_K[0] = len(parts)
        P = Prog(); info = fn(P); body = P.finish()
        acc = (info['vgpr'] + 3) // 4 * 4
        launches.append(f"; @launch kernel={name} grid=(256,1,1) block=({blk},1,1) lds={info['lds']}")
        parts.append(f".globl {name}\n.p2align 8\n.type {name},@function\n{body}")
        descs.append(f""".p2align 6
.amdhsa_kernel {name}
  .amdhsa_next_free_vgpr {acc + info['agpr']}
  .amdhsa_next_free_sgpr 100
  .amdhsa_accum_offset {acc}
  .amdhsa_group_segment_fixed_size 0
  .amdhsa_kernarg_size 136
  .amdhsa_user_sgpr_count 2
  .amdhsa_user_sgpr_kernarg_segment_ptr 1
  .amdhsa_system_sgpr_workgroup_id_x 1
.end_amdhsa_kernel""")
    return HDR + "\n".join(launches) + '\n.amdgcn_target "amdgcn-amd-amdhsa--gfx950"\n.text\n' + "\n".join(parts) + '\n.section .rodata,"a"\n' + "\n".join(descs) + "\n"
import os
if os.environ.get("PRIO"): k2.PRIO[:] = [int(c) for c in os.environ["PRIO"]]
if os.environ.get("LF"): k2.LF[0] = int(os.environ["LF"])
if os.environ.get("EXP"): k2.EXP[0] = int(os.environ["EXP"])
if os.environ.get("FINE"): k1d.FINE[0] = 1
if os.environ.get("PRI"): k1d.PRI[0] = 1
if os.environ.get("INSLOT"): k2c.INSLOT[0] = int(os.environ["INSLOT"])
if os.environ.get("NS"): k2c.SSM_STEPS[0] = int(os.environ["NS"])
if os.environ.get("X32"): k2c.X32[0] = 1
for nm in ("GSPLIT", "XDELAY", "WARM", "REBLK"):
    if os.environ.get(nm): getattr(k1e, nm)[0] = int(os.environ[nm])
if os.environ.get("K2PRE"): k2.K2PRE[0] = int(os.environ["K2PRE"])
if __name__ == "__main__":
    out = sys.argv[1] if len(sys.argv) > 1 else 'parallel_sum__ssm_conv_s4__mixer_gmlp__prompt.s'
    open(out, 'w').write(build(pr=('prof' in sys.argv)))
```

```python
from k1 import *
from reblk import rb_load, rb_store

LOG2E = math.log2(math.e)
PROWS = [0,1,2,3,4,5,6,7, 256,258,260,262, 512,516,768,772, 1024,1280,1536,1792, 2048]
TROW = 272
QT0 = 21 * TROW
KW_AREA = 16384

def cmul(P, r, a, b, t):
    P(f"v_pk_mul_f32 v[{t}:{t+1}], v[{a}:{a+1}], v[{b}:{b+1}] op_sel:[0,0] op_sel_hi:[1,0]")
    P(f"v_pk_fma_f32 v[{r}:{r+1}], v[{a}:{a+1}], v[{b}:{b+1}], v[{t}:{t+1}] op_sel:[1,1,0] op_sel_hi:[0,1,1] neg_lo:[1,0,0]")

import os
AUXRB = [0]
AUXT = [int(os.environ.get('AUXT', '0'))]
def aux(P, X, T, VXW, pr):
    P("s_load_dwordx2 s[84:85], s[0:1], 104")
    P("s_waitcnt lgkmcnt(0)")
    srd(P, 20, 84, 896 * 512 * 2)
    srd(P, 24, 8, 0x200000, WS_XNT)
    srd(P, 28, 8, 896 * 1024, WS_WOF)
    P("s_mul_i32 s54, s14, 7")
    P("s_add_u32 s54, s54, s3")
    P("s_mul_i32 s55, s54, 1171")
    P("s_lshr_b32 s55, s55, 15")
    P("s_mul_i32 s56, s55, 28")
    P("s_sub_u32 s56, s54, s56")
    P("s_lshl_b32 s56, s56, 15")
    P("s_lshl_b32 s55, s55, 7")
    P("s_add_u32 s56, s56, s55")
    P(f"v_lshrrev_b32 v{T}, 3, v0")
    P(f"v_and_b32 v{T+1}, 7, v0")
    P(f"v_lshlrev_b32 v{T+1}, 4, v{T+1}")
    P(f"v_lshl_add_u32 v{T+1}, v{T}, 10, v{T+1}")
    WO = 112
    for e in range(4):
        P(f"s_add_u32 s57, s56, {8192*e}")
        P(f"buffer_load_dwordx4 v[{WO+4*e}:{WO+4*e+3}], v{T+1}, s[20:23], s57 offen")
    if AUXRB[0]: rb_load(P, 0, 30)
    NT = AUXT[0]
    if NT:
        P("v_lshlrev_b32 v30, 7, v0")
        P("s_lshl_b32 s56, s14, 18")
        P("s_lshl_b32 s57, s3, 13")
        P("s_add_u32 s56, s56, s57")
        for e in range(NT):
            P("buffer_load_dword v31, v30, s[36:39], s56 offen")
            P("s_add_u32 s56, s56, 65536")
    P(f"s_waitcnt vmcnt({(8 if AUXRB[0] else 4) + NT})")
    ln1(P, X, T, 16, 52)
    for r in range(32):
        a, b = T + 4 + (r & 1) * 2, T + 5 + (r & 1) * 2
        P(f"v_lshlrev_b32 v{a}, 16, v{X+r}")
        P(f"v_and_b32 v{b}, 0xffff0000, v{X+r}")
        P(f"v_cvt_pk_f16_f32 v{X+r}, v{a}, v{b}")
    for e in range(8):
        P(f"ds_write_b128 v{VXW+(e&1)}, v[{X+4*e}:{X+4*e+3}] offset:{256*(e>>1)}")
    P(f"v_lshlrev_b32 v{T}, 4, v0")
    P("s_lshl_b32 s53, s3, 12")
    P(f"v_add_u32 v{T}, s53, v{T}")
    P(f"s_waitcnt vmcnt({(4 if AUXRB[0] else 0) + NT})")
    for e in range(4):
        P(f"ds_write_b128 v{T}, v[{WO+4*e}:{WO+4*e+3}] offset:{1024*e}")
    P(f"v_lshrrev_b32 v{T+1}, 2, v0")
    P(f"v_and_b32 v{T+2}, 3, v0")
    P(f"v_lshlrev_b32 v{T+1}, 7, v{T+1}")
    P(f"v_lshl_add_u32 v{T+1}, v{T+2}, 4, v{T+1}")
    P(f"v_add_u32 v{T+1}, s53, v{T+1}")
    P("s_waitcnt lgkmcnt(0)")
    for dt in range(4):
        for eta in range(2):
            d = WO + 4 * dt + 2 * eta
            P(f"ds_read_b64_tr_b16 v[{d}:{d+1}], v{T+1} offset:{2048*eta + 64*(dt>>1) + 8*(dt&1)}")
    P(f"v_lshlrev_b32 v{T}, 4, v0")
    P("s_lshl_b32 s53, s54, 12")
    P("s_waitcnt lgkmcnt(0)")
    P("s_cmp_eq_u32 s3, 7")
    P("s_cbranch_scc1 aux_nowo")
    for dt in range(4):
        P(f"buffer_store_dwordx4 v[{WO+4*dt}:{WO+4*dt+3}], v{T}, s[28:31], s53 offen offset:{1024*dt} sc1")
    P.label("aux_nowo")
    P("s_barrier")
    P(f"v_lshrrev_b32 v{T}, 4, v0")
    P(f"v_bfe_u32 v{T+1}, v0, 2, 2")
    P(f"v_and_b32 v{T+2}, 3, v0")
    P(f"v_lshlrev_b32 v{T}, 3, v{T}")
    P(f"v_add_u32 v{T}, 7, v{T}")
    P(f"v_sub_u32 v{T}, v{T}, v{T+1}")
    P(f"v_lshrrev_b32 v{T+3}, 1, v{T+2}")
    P(f"v_and_b32 v{T+2}, 1, v{T+2}")
    P("s_and_b32 s53, s3, 1")
    P("s_lshl_b32 s53, s53, 7")
    P("s_lshr_b32 s55, s3, 1")
    P("s_lshl_b32 s55, s55, 8")
    P(f"s_add_u32 s55, s55, {XB}")
    for rr in range(2):
        if rr: P(f"v_subrev_u32 v{T}, 4, v{T}")
        P(f"v_and_b32 v{T+4}, 15, v{T}")
        P(f"v_xor_b32 v{T+4}, v{T+4}, v{T+3}")
        P(f"v_lshlrev_b32 v{T+4}, 4, v{T+4}")
        P(f"v_xor_b32 v{T+4}, s53, v{T+4}")
        P(f"v_lshl_add_u32 v{T+4}, v{T+2}, 3, v{T+4}")
        P(f"v_lshl_add_u32 v{T+4}, v{T}, 10, v{T+4}")
        P(f"v_add_u32 v{T+5+rr}, s55, v{T+4}")
    P(f"v_and_b32 v{T}, 15, v0")
    P(f"v_lshrrev_b32 v{T+1}, 4, v0")
    P(f"v_lshlrev_b32 v{T}, 12, v{T}")
    P(f"v_lshl_add_u32 v{T}, v{T+1}, 4, v{T}")
    P("s_lshl_b32 s53, s3, 18")
    P("s_lshl_b32 s55, s14, 7")
    P("s_add_u32 s53, s53, s55")
    for D in range(4):
        for rr in range(2):
            P(f"v_xor_b32 v{T+7+rr}, {32*D}, v{T+5+rr}")
        for half in range(2):
            for rr in range(2):
                d = X + 8 * D + 4 * half + 2 * rr
                P(f"ds_read_b64_tr_b16 v[{d}:{d+1}], v{T+7+rr} offset:{32768*half}")
    P("s_waitcnt lgkmcnt(0)")
    for D in range(4):
        P(f"s_add_u32 s55, s53, {65536*D}")
        for half in range(2):
            d = X + 8 * D + 4 * half
            P(f"buffer_store_dwordx4 v[{d}:{d+3}], v{T}, s[24:27], s55 offen offset:{64*half} sc1")
    if AUXRB[0]:
        P("s_waitcnt vmcnt(8)")
        rb_store(P, 0, 32768, T, 64)
    prof(P, 1, pr)
    P("s_endpgm")
```

```python
from dsl import Prog
from k2 import *
from k1 import ln1, bf16_round_v, fbits, GK0, GK1, wpre, XB
from k1b import Buf
import math
import k2
from reblk import rb_load, rb_store

def gelu_stream(A, T, Rr):
    B = Buf()
    for q in range(8):
        a, b = A + 2 * q, A + 2 * q + 1
        t0, t1 = T + (q & 1) * 2, T + 1 + (q & 1) * 2
        B(f"v_mul_f32 v{a}, v{a}, v{Rr}")
        B(f"v_mul_f32 v{b}, v{b}, v{Rr}")
        B(f"v_mul_f32 v{t0}, v{a}, v{a}")
        B(f"v_mul_f32 v{t1}, v{b}, v{b}")
        B(f"v_fma_f32 v{t0}, v{t0}, s64, v{T+4}")
        B(f"v_fma_f32 v{t1}, v{t1}, s64, v{T+4}")
        B(f"v_mul_f32 v{t0}, v{t0}, v{a}")
        B(f"v_mul_f32 v{t1}, v{t1}, v{b}")
        B(f"v_exp_f32 v{t0}, v{t0}")
        B(f"v_exp_f32 v{t1}, v{t1}")
        B(f"v_add_f32 v{t0}, 1.0, v{t0}")
        B(f"v_add_f32 v{t1}, 1.0, v{t1}")
        B(f"v_rcp_f32 v{t0}, v{t0}")
        B(f"v_rcp_f32 v{t1}, v{t1}")
        B(f"v_mul_f32 v{a}, v{a}, v{t0}")
        B(f"v_mul_f32 v{b}, v{b}, v{t1}")
        B(f"v_cvt_pk_bf16_f32 v{A+q}, v{a}, v{b}")
    return B.l

def gen_k1(P, aux=None, pr=False):
    P.label("k1_kernel")
    P("s_cmp_ge_u32 s2, 256")
    P("s_cbranch_scc1 k1_end")
    P("s_load_dwordx2 s[4:5], s[0:1], 0")
    P("s_load_dwordx2 s[6:7], s[0:1], 80")
    P("s_load_dwordx2 s[8:9], s[0:1], 128")
    P("s_load_dwordx2 s[10:11], s[0:1], 120")
    P("s_load_dwordx2 s[40:41], s[0:1], 88")
    P("v_lshrrev_b32 v1, 6, v0")
    P("v_and_b32 v0, 63, v0")
    P("v_readfirstlane_b32 s3, v1")
    P("s_mov_b32 s62, 0x3f803f80")
    P(f"s_mov_b32 s63, {fbits(GK0)}")
    P(f"s_mov_b32 s64, {fbits(GK1)}")
    P("s_and_b32 s12, s2, 7")
    P("s_lshr_b32 s13, s2, 3")
    P("s_lshl_b32 s14, s12, 2")
    P("s_and_b32 s15, s13, 3")
    P("s_add_u32 s14, s14, s15")
    P("s_lshr_b32 s15, s13, 2")
    X = 32; T = 2; VB = 16
    P(f"v_lshrrev_b32 v{T}, 3, v0")
    P(f"v_and_b32 v{T+1}, 7, v0")
    P(f"v_lshlrev_b32 v{T+2}, 4, v{T+1}")
    P(f"v_lshl_add_u32 v{T+2}, v{T}, 10, v{T+2}")
    P("s_lshl_b32 s52, s14, 16")
    P("s_lshl_b32 s53, s3, 13")
    P("s_add_u32 s52, s52, s53")
    P(f"v_lshrrev_b32 v{T+4}, 4, v0")
    P(f"v_and_b32 v{T+5}, 15, v0")
    P("s_lshl_b32 s53, s3, 2")
    P(f"v_add_u32 v{VB}, s53, v{T+4}")
    P("s_movk_i32 s53, 3584")
    P(f"v_mul_u32_u24 v{VB}, s53, v{VB}")
    P(f"v_lshl_add_u32 v{VB}, v{T+5}, 4, v{VB}")
    P("s_lshl_b32 s54, s15, 8")
    P("s_add_u32 s55, s54, 1792")
    P("s_waitcnt lgkmcnt(0)")
    srd(P, 16, 4, 2048 * 512 * 2)
    issued = []
    for e in range(8):
        P(f"buffer_load_dwordx4 v[{X+4*e}:{X+4*e+3}], v{T+2}, s[16:19], s52 offen offset:{128*e}")
        issued.append(('X', e))
    srd(P, 20, 6, 512 * 1792 * 2)
    srd(P, 24, 8, 0x400000, WS_Z2F)
    srd(P, 28, 8, 0x400000, WS_Z1F)
    srd(P, 32, 8, 32 * 2 * 28 * 512, WS_ST)
    srd(P, 36, 40, 2048 * 2048 * 2)
    srd(P, 44, 8, 0x800000, WS_WF)
    VXW = 23
    P("s_and_b32 s53, s3, 1")
    P("s_lshl_b32 s53, s53, 3")
    P(f"v_add_u32 v{T+3}, s53, v{T}")
    P(f"v_xor_b32 v{T+3}, v{T+3}, v{T+1}")
    P(f"v_lshlrev_b32 v{T+3}, 4, v{T+3}")
    P(f"v_lshl_add_u32 v{T+3}, v{T}, 10, v{T+3}")
    P("s_lshl_b32 s53, s3, 13")
    P(f"s_add_u32 s53, s53, {XB}")
    P(f"v_add_u32 v{VXW}, s53, v{T+3}")
    P(f"v_xor_b32 v{VXW+1}, 128, v{VXW}")
    if aux is not None:
        P("s_cmp_eq_u32 s15, 7")
        P("s_cbranch_scc1 k1_aux")
    ACC2, ACC1, WFR = 64, 80, 96
    def land(u):
        if u < 8: return f"v[{WFR+4*u}:{WFR+4*u+3}]"
        if u < 12: return f"v[{ACC1+4*(u-8)}:{ACC1+4*(u-8)+3}]"
        if u < 16: return f"a[{112+4*(u-12)}:{115+4*(u-12)}]"
        return f"v[{X+4*(u%8)}:{X+4*(u%8)+3}]"
    def bld(u):
        half, ku = u // 16, u % 16
        P(f"s_add_u32 s57, s{55 if half == 0 else 54}, {ku * 32 * 3584}")
        P(f"buffer_load_dwordx4 {land(u)}, v{VB}, s[20:23], s57 offen")
        issued.append(('B', u))
    def wait_for(tags):
        last = max(k for k, t in enumerate(issued) if t in tags)
        n = len(issued) - 1 - last
        P(f"s_waitcnt vmcnt({min(n,63)})")
    for u in range(4): bld(u)
    prof(P, 0, pr)
    P("s_lshl_b32 s53, s14, 3")
    P("v_mov_b32 v13, s53")
    P("s_or_b32 s53, s15, s3")
    P("s_cmp_lg_u32 s53, 0")
    P("s_cbranch_scc1 k1_nolead")
    P("s_memrealtime s[96:97]")
    P("s_waitcnt lgkmcnt(0)")
    P("s_or_b32 s96, s96, 1")
    P("v_mov_b32 v14, s96")
    P("v_mov_b32 v15, s97")
    P("s_mov_b64 exec, 1")
    P("global_store_dwordx2 v13, v[14:15], s[10:11] sc0 sc1")
    P("s_mov_b64 exec, -1")
    P.label("k1_nolead")
    if PRI[0]:
        P("s_cmp_lt_u32 s3, 4")
        P("s_cbranch_scc1 k1_nopri")
        P("s_setprio 1")
        P.label("k1_nopri")
    VLW = 17
    P(f"v_lshlrev_b32 v{T}, 2, v{T+4}")
    P(f"v_xor_b32 v{T}, v{T}, v{T+5}")
    P(f"v_lshlrev_b32 v{T}, 4, v{T}")
    P(f"v_lshl_add_u32 v{T}, v{T+4}, 8, v{T}")
    P("s_lshl_b32 s53, s3, 10")
    P(f"v_add_u32 v{VLW}, s53, v{T}")
    P(f"v_add_u32 v{VLW+1}, 0x10000, v{VLW}")
    def bwr(u):
        addr = (u % 12) * 8192
        wait_for({('B', u)})
        P(f"ds_write_b128 v{VLW+(addr>>16)}, {land(u)} offset:{addr & 0xffff}")
    P("s_lshr_b32 s59, s3, 2")
    P("s_and_b32 s58, s3, 3")
    VT = 19
    P(f"v_lshrrev_b32 v{T}, 4, v0")
    P(f"v_bfe_u32 v{T+1}, v0, 2, 2")
    P(f"v_and_b32 v{T+2}, 3, v0")
    P(f"v_and_b32 v{T+3}, 1, v{T}")
    P(f"v_lshl_add_u32 v{T+2}, v{T+3}, 2, v{T+2}")
    P(f"v_lshrrev_b32 v{T+3}, 1, v{T+2}")
    P(f"v_and_b32 v{T+4}, 1, v{T+2}")
    P(f"v_lshrrev_b32 v{T}, 1, v{T}")
    P(f"v_lshl_add_u32 v{T}, v{T}, 3, v{T+1}")
    P(f"v_lshlrev_b32 v{T}, 8, v{T}")
    P(f"v_lshlrev_b32 v{T+1}, 6, v{T+1}")
    P("s_lshl_b32 s53, s58, 6")
    P(f"v_lshlrev_b32 v{T+5}, 5, v{T+4}")
    P(f"v_lshl_add_u32 v{T+5}, v{T+3}, 3, v{T+5}")
    P(f"v_add_u32 v{T+5}, s53, v{T+5}")
    P(f"v_xor_b32 v{T+5}, v{T+5}, v{T+1}")
    P(f"v_add_u32 v{VT}, v{T+5}, v{T}")
    P(f"v_add_u32 v{VT+1}, 0x10000, v{VT}")
    P(f"v_and_b32 v{T+5}, 1, v{T+3}")
    P(f"v_lshlrev_b32 v{T+5}, 5, v{T+5}")
    P(f"v_lshl_add_u32 v{T+5}, v{T+4}, 4, v{T+5}")
    P(f"v_lshrrev_b32 v{T+3}, 1, v{T+3}")
    P(f"v_lshl_add_u32 v{T+5}, v{T+3}, 3, v{T+5}")
    P(f"v_add_u32 v{T+5}, s53, v{T+5}")
    P(f"v_xor_b32 v{T+5}, v{T+5}, v{T+1}")
    P(f"v_add_u32 v{VT+2}, v{T+5}, v{T}")
    P(f"v_add_u32 v{VT+3}, 0x10000, v{VT+2}")
    VXR = 1
    P(f"v_and_b32 v{T}, 31, v0")
    P(f"v_lshrrev_b32 v{T+1}, 5, v0")
    P(f"v_and_b32 v{T+2}, 15, v0")
    P(f"v_xor_b32 v{T+1}, v{T+1}, v{T+2}")
    P(f"v_lshlrev_b32 v{T+1}, 4, v{T+1}")
    P(f"v_lshl_add_u32 v{T+1}, v{T}, 10, v{T+1}")
    P("s_lshl_b32 s53, s59, 15")
    P(f"s_add_u32 s53, s53, {XB}")
    P(f"v_add_u32 v{VXR}, s53, v{T+1}")
    RS = 8 * 8192
    P(f"v_lshlrev_b32 v{T}, 2, v{T}")
    P("s_lshl_b32 s53, s59, 7")
    P(f"s_add_u32 s53, s53, {RS}")
    P(f"v_add_u32 v28, s53, v{T}")
    P(f"v_lshrrev_b32 v{T}, 3, v0")
    P(f"v_lshlrev_b32 v{T}, 2, v{T}")
    P("s_lshl_b32 s53, s3, 5")
    P(f"s_add_u32 s53, s53, {RS}")
    P(f"v_add_u32 v29, s53, v{T}")
    def freg(st, i, sl, k0, n):
        r = WFR + 16 * st + 8 * i + 4 * sl + k0
        return f"v[{r}:{r+n-1}]"
    def rds(sp):
        out = []
        for i in range(2):
            u = 2 * sp + i
            addr = (u % 12) * 8192
            vb = VT + 2 * (sp // 8) + (addr >> 16)
            for sl in range(2):
                for rr in range(2):
                    out.append(f"ds_read_b64_tr_b16 {freg(sp & 1, i, sl, 2*rr, 2)}, v{vb} offset:{(addr & 0xffff) + 4096*sl + 1024*rr}")
        return out
    S, Q = 8, 9
    for r in range(4): P(f"v_mov_b32 v{S+r}, 0")
    for e in range(8):
        wait_for({('X', e)})
        for r in range(4 * e, 4 * e + 4):
            a = (r & 1) * 2
            P(f"v_dot2c_f32_bf16 v{S+a}, s62, v{X+r}")
            P(f"v_dot2c_f32_bf16 v{Q+a}, v{X+r}, v{X+r}")
        if e % 2 == 1: bld(4 + e // 2)
    P(f"v_add_f32 v{S}, v{S}, v{S+2}")
    P(f"v_add_f32 v{Q}, v{Q}, v{S+3}")
    for m in ("quad_perm:[1,0,3,2]", "quad_perm:[2,3,0,1]", "row_half_mirror"):
        P(f"v_add_f32_dpp v{S}, v{S}, v{S} {m} row_mask:0xf bank_mask:0xf")
        P(f"v_add_f32_dpp v{Q}, v{Q}, v{Q} {m} row_mask:0xf bank_mask:0xf")
    P(f"v_mul_f32 v{S}, 0x3b000000, v{S}")
    P(f"v_mul_f32 v{Q}, 0x3b000000, v{Q}")
    P(f"v_fma_f32 v{Q}, -v{S}, v{S}, v{Q}")
    bf16_round_v(P, S, S, S + 2)
    P("s_mov_b32 s65, 0xffff0000")
    for e in range(8):
        for r in range(4 * e, 4 * e + 4):
            a, b = T + (r & 1) * 2, T + 1 + (r & 1) * 2
            P(f"v_lshlrev_b32 v{a}, 16, v{X+r}")
            P(f"v_and_b32 v{b}, s65, v{X+r}")
            P(f"v_sub_f32 v{a}, v{a}, v{S}")
            P(f"v_sub_f32 v{b}, v{b}, v{S}")
            P(f"v_cvt_pk_bf16_f32 v{X+r}, v{a}, v{b}")
        P(f"ds_write_b128 v{VXW+(e&1)}, v[{X+4*e}:{X+4*e+3}] offset:{256*(e>>1)}")
        bld(8 + e)
    P(f"v_max_f32 v{Q}, 0, v{Q}")
    bf16_round_v(P, Q, Q, S + 2)
    P(f"v_add_f32 v{Q}, 0x3727c5ac, v{Q}")
    bf16_round_v(P, Q, Q, S + 2)
    P(f"v_sqrt_f32 v{Q}, v{Q}")
    bf16_round_v(P, Q, Q, S + 2)
    P(f"v_rcp_f32 v{Q}, v{Q}")
    for u in range(4): bwr(u)
    P(f"ds_write_b32 v29, v{Q}")
    P("s_waitcnt lgkmcnt(0)")
    P("s_barrier")
    for s_ in rds(0): P(s_)
    RR = 28
    P(f"ds_read_b32 v{RR}, v28")
    def xfr(q, his):
        P(f"v_xor_b32 v{T+(q&1)}, {32*q}, v{VXR}")
        for hi in his:
            k16 = 8 * hi + q
            P(f"ds_read_b128 a[{4*k16}:{4*k16+3}], v{T+(q&1)} offset:{256*hi}")
    for q in range(8):
        xfr(q, (0, 1))
        if q >= 4: bwr(q)
    prof(P, 1, pr)
    hooks = {}
    def step(sp, vside=()):
        if FINE[0] and sp < 12: P(f"s_memtime s[{68+2*sp}:{69+2*sp}]")
        P("s_waitcnt lgkmcnt(0)")
        if sp % 2 == 1 and sp < 15: P("s_barrier")
        if sp in hooks: hooks[sp]()
        acc = ACC2 if sp < 8 else ACC1
        rd = rds(sp + 1) if sp < 15 else []
        vside = list(vside)
        per = (len(vside) + 3) // 4
        k = 0
        for i in range(2):
            u = 2 * sp + i
            for sl in range(2):
                k16 = 2 * (u % 16) + sl
                P(f"v_mfma_f32_32x32x16_bf16 v[{acc}:{acc+15}], {freg(sp & 1, i, sl, 0, 4)}, a[{4*k16}:{4*k16+3}], {'0' if k16 == 0 else f'v[{acc}:{acc+15}]'}")
                if k == 0:
                    for x_ in rd: P(x_)
                if k in (1, 2) and sp >= 1 and 2 * sp + 5 + k < 32: bwr(2 * sp + 5 + k)
                if sp in (0, 1) and k in (1, 2, 3, 0): xfr(4 * sp + k, (2,))
                if sp == 2: xfr(k, (3,))
                if sp == 5: xfr(4 + k, (3,))
                if k in (1, 3) and sp < 4: bld(16 + 2 * sp + (k >> 1))
                if k in (0, 1) and 6 <= sp <= 9: bld(24 + 2 * (sp - 6) + k)
                if k == 3 and sp == 5:
                    P("global_load_dwordx2 v[14:15], v13, s[10:11] sc0 sc1"); issued.append(('N', 0))
                for _ in range(per):
                    if vside: P(vside.pop(0))
                k += 1
        assert not vside
    def split(lst, n):
        k = (len(lst) + n - 1) // n
        return [lst[i*k:(i+1)*k] for i in range(n)]
    for sp in range(8): step(sp)
    prof(P, 2, pr)
    Z2 = ACC2
    GT = 8
    P(f"v_mov_b32 v{GT+4}, s63")
    gs = gelu_stream(ACC2, GT, RR)
    SS = Buf()
    S2, Q2 = ACC2 + 8, ACC2 + 9
    SS(f"v_mov_b32 v{S2}, 0")
    SS(f"v_mov_b32 v{Q2}, 0")
    for q in range(8):
        SS(f"v_dot2c_f32_bf16 v{S2}, s62, v{Z2+q}")
        SS(f"v_dot2c_f32_bf16 v{Q2}, v{Z2+q}, v{Z2+q}")
    SS(f"v_mov_b32 v{S2+2}, v{S2}")
    SS(f"v_mov_b32 v{S2+3}, v{Q2}")
    SS(f"v_permlane32_swap_b32 v{S2}, v{S2+2}")
    SS(f"v_permlane32_swap_b32 v{Q2}, v{S2+3}")
    SS(f"v_add_f32 v{S2}, v{S2}, v{S2+2}")
    SS(f"v_add_f32 v{Q2}, v{Q2}, v{S2+3}")
    SS(f"v_lshlrev_b32 v{S2+4}, 4, v0")
    SS("s_lshl_b32 s53, s14, 1")
    SS("s_add_u32 s53, s53, s59")
    SS("s_mul_i32 s60, s53, 14336")
    SS("s_lshl_b32 s53, s15, 2")
    SS("s_add_u32 s53, s53, s58")
    SS("s_lshl_b32 s53, s53, 9")
    SS("s_add_u32 s53, s53, s60")
    av = split(gs + SS.l, GSPLIT[0])
    for k in range(GSPLIT[0]): step(8 + k, av[k])
    wait_for({('N', 0)})
    P("s_mov_b32 s56, 0")
    P.label("k1_nonce")
    P("v_readfirstlane_b32 s96, v14")
    P("v_readfirstlane_b32 s97, v15")
    P("s_cmp_lg_u32 s96, 0")
    P("s_cbranch_scc1 k1_nonce_ok")
    P("global_load_dwordx2 v[14:15], v13, s[10:11] sc0 sc1")
    P("s_add_u32 s56, s56, 1")
    P("s_waitcnt vmcnt(0)")
    P("s_cmp_lt_u32 s56, 0x200000")
    P("s_cbranch_scc1 k1_nonce")
    P.label("k1_nonce_ok")
    P(f"v_mov_b32 v{S2+2}, v14")
    P(f"v_mov_b32 v{S2+3}, v15")
    P("s_mov_b32 exec_hi, 0")
    P(f"buffer_store_dwordx4 v[{S2}:{S2+3}], v{S2+4}, s[32:35], s53 offen sc0 sc1")
    issued.append(('S', 0))
    P("s_mov_b64 exec, -1")
    if REBLK[0] == 1:
        rb_load(P, 0, 30)
        for _ in range(4): issued.append(('R', 0))
    prof(P, 3, pr)
    for sp in range(8 + GSPLIT[0], 16): step(sp)
    if FINE[0]:
        P("s_lshl_b32 s92, s2, 3")
        P("s_add_u32 s92, s92, s3")
        P("s_lshl_b32 s92, s92, 6")
        P(f"s_add_u32 s92, s92, {WS_PROF + 3*0x40000}")
        P("v_mov_b32 v25, s92")
        for k in range(12):
            P(f"v_mov_b32 v26, s{68+2*k}")
            P(f"global_store_dword v25, v26, s[8:9] offset:{4*k}")
    prof(P, 4, pr)
    F = k2.FUSED[0]
    GA = 16
    P(f"v_lshlrev_b32 v{S2+4}, 4, v0")
    P("s_mul_i32 s61, s58, 3584")
    P("s_add_u32 s61, s61, s60")
    P(f"v_and_b32 v{S2+5}, 31, v0")
    P(f"v_lshlrev_b32 v{S2+5}, 4, v{S2+5}")
    def gather():
        for k in range(4):
            P(f"buffer_load_dwordx4 a[{GA+4*k}:{GA+3+4*k}], v{S2+4+(k==3)}, s[32:35], s61 offen offset:{1024*k} sc0 sc1")
    gather()
    Z1 = ACC1
    P(f"v_and_b32 v{T}, 15, v0")
    P(f"v_bfe_u32 v{T+1}, v0, 4, 1")
    P(f"v_lshrrev_b32 v{T+2}, 5, v0")
    P(f"v_lshlrev_b32 v{T}, 4, v{T}")
    P(f"v_lshl_add_u32 v{T}, v{T+1}, 10, v{T}")
    P(f"v_lshl_add_u32 v{T}, v{T+2}, 9, v{T}")
    P("s_mul_i32 s53, s14, 28")
    P("s_lshl_b32 s56, s15, 2")
    P("s_add_u32 s53, s53, s56")
    P("s_add_u32 s53, s53, s58")
    P("s_lshl_b32 s53, s53, 12")
    P("s_lshl_b32 s56, s59, 11")
    P("s_add_u32 s53, s53, s56")
    for s_ in gelu_stream(ACC1, GT, RR): P(s_)
    P(f"buffer_store_dwordx4 v[{Z1}:{Z1+3}], v{T}, s[28:31], s53 offen sc1")
    P(f"buffer_store_dwordx4 v[{Z1+4}:{Z1+7}], v{T}, s[28:31], s53 offen offset:256 sc1")
    prof(P, 5, pr)
    if REBLK[0] == 1:
        P("s_cmp_lg_u32 s58, 0")
        P("s_cbranch_scc1 k1_rbw")
        P("s_waitcnt vmcnt(16)")
        P("s_branch k1_rbs")
        P.label("k1_rbw")
        P("s_waitcnt vmcnt(2)")
        P.label("k1_rbs")
        rb_store(P, 0, XB, T, X + 16)
    PS = WFR
    MS = XB + 12288 if F else 2 * 8192
    S, Q = PS, PS + 1
    P("s_mov_b32 s56, 0")
    P(f"s_waitcnt vmcnt(2)")
    P.label("k1_poll")
    for k in range(4):
        for r in range(4): P(f"v_accvgpr_read_b32 v{X+4*k+r}, a{GA+4*k+r}")
    P(f"v_mul_f32 v{X+12}, 0.5, v{X+12}")
    P(f"v_mul_f32 v{X+13}, 0.5, v{X+13}")
    for k in range(4):
        P(f"v_xor_b32 v{X+4*k+2}, v{X+4*k+2}, v14")
        P(f"v_xor_b32 v{X+4*k+3}, v{X+4*k+3}, v15")
        P(f"v_or_b32 v{X+4*k+2}, v{X+4*k+2}, v{X+4*k+3}")
    P(f"v_or_b32 v{X+2}, v{X+2}, v{X+6}")
    P(f"v_or_b32 v{X+10}, v{X+10}, v{X+14}")
    P(f"v_or_b32 v{X+2}, v{X+2}, v{X+10}")
    P(f"v_cmp_ne_u32 vcc, 0, v{X+2}")
    P("s_add_u32 s56, s56, 1")
    P("s_cmp_eq_u64 vcc, 0")
    P("s_cbranch_scc1 k1_got")
    gather()
    P("s_waitcnt vmcnt(0)")
    P("s_cmp_lt_u32 s56, 0x100000")
    P("s_cbranch_scc1 k1_poll")
    P.label("k1_got")
    for r in range(2):
        P(f"v_add_f32 v{X+r}, v{X+r}, v{X+4+r}")
        P(f"v_add_f32 v{X+8+r}, v{X+8+r}, v{X+12+r}")
        P(f"v_add_f32 v{PS+r}, v{X+r}, v{X+8+r}")
    P(f"v_mov_b32 v{PS+2}, v{PS}")
    P(f"v_mov_b32 v{PS+3}, v{PS+1}")
    P(f"v_permlane32_swap_b32 v{PS}, v{PS+2}")
    P(f"v_permlane32_swap_b32 v{PS+1}, v{PS+3}")
    P(f"v_add_f32 v{PS}, v{PS}, v{PS+2}")
    P(f"v_add_f32 v{PS+1}, v{PS+1}, v{PS+3}")
    P(f"v_and_b32 v{VT+3}, 31, v0")
    P(f"v_lshlrev_b32 v{VT+3}, 3, v{VT+3}")
    P("s_lshl_b32 s53, s59, 8")
    P(f"s_add_u32 s53, s53, {MS}")
    P(f"v_add_u32 v{VT+3}, s53, v{VT+3}")
    P("s_lshl_b32 s53, s58, 9")
    P(f"v_add_u32 v{T}, s53, v{VT+3}")
    P(f"ds_write_b64 v{T}, v[{S}:{Q}]")
    if 't1' in k2.HOOKS: k2.HOOKS['t1'](P)
    P(f"v_and_b32 v{T}, 31, v0")
    P(f"v_lshrrev_b32 v{T+1}, 5, v0")
    P(f"v_lshlrev_b32 v{T}, 6, v{T}")
    P(f"v_lshl_add_u32 v{T}, v{T+1}, 5, v{T}")
    if F:
        P("s_lshl_b32 s53, s58, 11")
        P("s_lshl_b32 s56, s59, 14")
        P("s_add_u32 s53, s53, s56")
        P(f"s_add_u32 s53, s53, {XB + 1024}")
    else:
        P("s_lshl_b32 s53, s3, 11")
    P(f"v_add_u32 v{VT}, s53, v{T}")
    P(f"v_lshrrev_b32 v{T+1}, 4, v0")
    P(f"v_bfe_u32 v{T+2}, v0, 2, 2")
    P(f"v_and_b32 v{T+3}, 3, v0")
    P(f"v_lshl_add_u32 v{T+1}, v{T+1}, 3, v{T+2}")
    P(f"v_lshlrev_b32 v{T+1}, 6, v{T+1}")
    P(f"v_lshl_add_u32 v{T+1}, v{T+3}, 3, v{T+1}")
    P(f"v_add_u32 v{VT+1}, s53, v{T+1}")
    P(f"v_lshlrev_b32 v{VT+2}, 4, v0")
    P("s_lshl_b32 s60, s14, 1")
    P("s_add_u32 s60, s60, s59")
    for tl in range(2):
        P("s_lshl_b32 s53, s15, 3")
        P("s_lshl_b32 s61, s58, 1")
        P("s_add_u32 s53, s53, s61")
        if tl: P("s_add_u32 s53, s53, 1")
        P("s_mul_i32 s61, s53, 37")
        P("s_lshr_b32 s61, s61, 8")
        P("s_mul_i32 s65, s61, 7")
        P("s_sub_u32 s53, s53, s65")
        P("s_add_u32 s65, s53, 6")
        P("s_sub_u32 s66, s53, 1")
        P("s_cmp_eq_u32 s53, 0")
        P("s_cselect_b32 s65, s65, s66")
        P("s_bitcmp1_b32 s61, 0")
        P("s_cselect_b32 s53, s65, s53")
        P("s_lshl_b32 s61, s61, 6")
        P("s_add_u32 s61, s61, s60")
        P("s_mul_i32 s61, s61, 7")
        P("s_add_u32 s61, s61, s53")
        P(f"s_lshl_b32 s{88+tl}, s61, 10")
    U = X
    for r in range(8):
        P(f"v_lshlrev_b32 v{U+2*r}, 16, v{Z2+r}")
        P(f"v_and_b32 v{U+2*r+1}, 0xffff0000, v{Z2+r}")
    P("s_waitcnt lgkmcnt(0)")
    P("s_barrier")
    for k in range(4): P(f"ds_read_b64 v[{PS+2*k}:{PS+2*k+1}], v{VT+3} offset:{512*k}")
    P("s_waitcnt lgkmcnt(0)")
    for r in range(2):
        P(f"v_add_f32 v{PS+r}, v{PS+r}, v{PS+2+r}")
        P(f"v_add_f32 v{PS+4+r}, v{PS+4+r}, v{PS+6+r}")
        P(f"v_add_f32 v{PS+r}, v{PS+r}, v{PS+4+r}")
    P(f"v_mul_f32 v{S}, {fbits(1/896)}, v{S}")
    P(f"v_mul_f32 v{Q}, {fbits(1/896)}, v{Q}")
    P(f"v_fma_f32 v{Q}, -v{S}, v{S}, v{Q}")
    P(f"v_max_f32 v{Q}, 0, v{Q}")
    bf16_round_v(P, S, S, T + 2)
    bf16_round_v(P, Q, Q, T + 2)
    P(f"v_add_f32 v{Q}, 0x3727c5ac, v{Q}")
    bf16_round_v(P, Q, Q, T + 2)
    P(f"v_sqrt_f32 v{Q}, v{Q}")
    bf16_round_v(P, Q, Q, T + 2)
    P(f"v_rcp_f32 v{Q}, v{Q}")
    for r in range(16): P(f"v_sub_f32 v{U+r}, v{U+r}, v{S}")
    for r in range(16): P(f"v_mul_f32 v{U+r}, v{U+r}, v{Q}")
    for r in range(8): P(f"v_cvt_pk_bf16_f32 v{Z2+r}, v{U+2*r}, v{U+2*r+1}")
    P(f"ds_write_b128 v{VT}, v[{Z2}:{Z2+3}]")
    P(f"ds_write_b128 v{VT}, v[{Z2+4}:{Z2+7}] offset:16")
    P("s_waitcnt lgkmcnt(0)")
    O = X + 16
    for tl in range(2):
        for rr in range(2):
            P(f"ds_read_b64_tr_b16 v[{O+4*tl+2*rr}:{O+4*tl+2*rr+1}], v{VT+1} offset:{32*tl + 256*rr}")
    P("s_waitcnt lgkmcnt(0)")
    for tl in range(2):
        P(f"buffer_store_dwordx4 v[{O+4*tl}:{O+4*tl+3}], v{VT+2}, s[24:27], s{88+tl} offen sc1")
    prof(P, 6, pr)
    if pr: P("s_waitcnt vmcnt(0)")
    prof(P, 7, pr)
    P("s_endpgm")
    if aux is not None:
        P.label("k1_aux")
        prof(P, 0, pr)
        aux(P, X, T, VXW, pr)
    P.label("k1_end")
    P("s_endpgm")
    return dict(vgpr=128, agpr=128, lds=160 * 1024)
GSPLIT = [3]
FINE = [0]
PRI = [0]
REBLK = [0]
```

```python
from dsl import Prog
WS_Z2F = 0x0000000
WS_Z1F = 0x0400000
WS_HF  = 0x0800000
WS_XNT = 0x0C00000
WS_YAT = 0x0E00000
WS_KR  = 0x1000000
WS_WOF = 0x1800000
WS_ST  = 0x1900000
WS_WF  = 0x2000000
KR_STRIDE = 8704

def srd(P, d, base, nbytes, off=0):
    if off:
        P(f"s_add_u32 s{d}, s{base}, {off}")
        P(f"s_addc_u32 s{d+1}, s{base+1}, 0")
        P(f"s_and_b32 s{d+1}, s{d+1}, 0xffff")
    else:
        P(f"s_mov_b32 s{d}, s{base}")
        P(f"s_and_b32 s{d+1}, s{base+1}, 0xffff")
    P(f"s_mov_b32 s{d+2}, {nbytes}")
    P(f"s_mov_b32 s{d+3}, 0x00020000")

WS_PROF = 0x1A00000
PROF_K = [0]
PROF_V = [26]
PRIO = [0, 0]
LF = [0]
FUSED = [0]
HOOKS = {}
K2PRE = [0]
EXP = [0]
def prof(P, idx, on):
    if not on: return
    P("s_memrealtime s[90:91]")
    P("s_lshl_b32 s92, s2, 3")
    P("s_add_u32 s92, s92, s3")
    P("s_lshl_b32 s92, s92, 6")
    P(f"s_add_u32 s92, s92, {WS_PROF + PROF_K[0]*0x40000 + idx*8}")
    P("s_waitcnt lgkmcnt(0)")
    b_ = PROF_V[0]
    P(f"v_mov_b32 v{b_}, s90")
    P(f"v_mov_b32 v{b_+1}, s91")
    P(f"v_mov_b32 v{b_-1}, s92")
    P(f"global_store_dwordx2 v{b_-1}, v[{b_}:{b_+1}], s[8:9]")

CW_AREA = 16384
XPO = 8704
from kgen import kgen
def gen_conv(P, CB, pr):
    prof(P, 0, pr)
    if PRIO[1] == 9: P("s_endpgm")
    elif PRIO[1]: P(f's_setprio {PRIO[1]}')
    T = 2
    P("s_sub_u32 s52, s3, 4")
    P("s_lshr_b32 s53, s52, 1")
    P("s_lshl_b32 s54, s2, 1")
    P("s_add_u32 s54, s54, s53")
    P(f"s_mul_i32 s55, s52, {CW_AREA}")
    P(f"s_add_u32 s55, s55, {CB}")
    PAR = 104
    P("s_xor_b32 s60, s52, 1")
    P(f"s_mul_i32 s60, s60, {CW_AREA}")
    P(f"s_add_u32 s60, s60, {CB}")
    P("s_and_b32 s61, s52, 1")
    if not FUSED[0]:
        P(f"v_mov_b32 v{T}, s55")
        P(f"v_mov_b32 v{T+1}, 0")
        P(f"ds_write_b32 v{T}, v{T+1} offset:16380")
        P(f"v_lshlrev_b32 v{T}, 2, v0")
        P("s_lshl_b32 s53, s54, 8")
        P(f"v_add_u32 v{T}, s53, v{T}")
        P("s_lshl_b32 s53, s54, 1")
        P(f"v_mov_b32 v{T+1}, s53")
        P("s_waitcnt lgkmcnt(0)")
        for k in range(6):
            P(f"global_load_dword v{PAR+k}, v{T}, s[{68+2*k}:{69+2*k}]")
        P(f"global_load_ushort v{PAR+6}, v{T+1}, s[80:81]")
        P(f"global_load_ushort v{PAR+7}, v{T+1}, s[10:11]")
        if K2PRE[0]:
            P("s_and_b32 s56, s2, 7")
            P("s_lshl_b32 s56, s56, 5")
            P("s_lshr_b32 s57, s2, 3")
            P("s_add_u32 s56, s56, s57")
            P("s_lshl_b32 s56, s56, 15")
            P("s_lshl_b32 s57, s52, 13")
            P("s_add_u32 s56, s56, s57")
            P(f"v_lshlrev_b32 v{T+2}, 7, v0")
            P(f"buffer_load_dword v{PAR+8}, v{T+2}, s[16:19], s56 offen")
        P("s_barrier")
        P("s_waitcnt vmcnt(1)" if K2PRE[0] else "s_waitcnt vmcnt(0)")
    P(f"v_lshlrev_b32 v{PAR+6}, 16, v{PAR+6}")
    prof(P, 3, pr)
    def xload():
        if FUSED[0]: P.lines.append(__import__('dsl').Ins('@XPOLL'))
        P("s_lshl_b32 s59, s54, 12")
        P(f"v_lshlrev_b32 v{T}, 4, v0")
        P(f"s_add_u32 m0, s55, {XPO+512}")
        P("s_nop 0")
        for e in range(4):
            P(f"buffer_load_dwordx4 v{T}, s[36:39], s59 offen offset:{1024*e} lds")
        P(f"v_mov_b32 v{T+2}, 0")
        P(f"v_mov_b32 v{T+3}, 0")
        P(f"v_lshlrev_b32 v{T+1}, 3, v0")
        P(f"v_add_u32 v{T+1}, s55, v{T+1}")
        P(f"ds_write_b64 v{T+1}, v[{T+2}:{T+3}] offset:{XPO}")
    kgen(P, PAR, 55, 60, 61, xload)
    prof(P, 2, pr)
    P(f"v_mov_b32 v{T+9}, s57")
    P(f"v_mov_b32 v{T+8}, v{PAR+7}")
    P("s_lshl_b32 s57, s54, 12")
    VA = 12
    P(f"v_and_b32 v{T}, 15, v0")
    P(f"v_lshrrev_b32 v{T+1}, 5, v0")
    P(f"v_bfe_u32 v{T+2}, v0, 4, 1")
    P(f"v_lshl_add_u32 v{T+3}, v{T+1}, 4, v{T}")
    P(f"v_add_u32 v{T+3}, 9, v{T+3}")
    P(f"v_lshlrev_b32 v{T+4}, 3, v{T+2}")
    P(f"v_sub_u32 v{T+3}, v{T+3}, v{T+4}")
    P(f"v_and_b32 v{T+4}, 1, v{T+3}")
    P(f"v_sub_u32 v{T+3}, v{T+3}, v{T+4}")
    P(f"v_lshlrev_b32 v{T+3}, 1, v{T+3}")
    P("s_movk_i32 s58, 4288")
    P(f"v_mad_u32_u24 v{T+3}, v{T+4}, s58, v{T+3}")
    P(f"v_add_u32 v{VA}, s55, v{T+3}")
    for k in range(1, 4):
        P(f"v_add_u32 v{VA+k}, {1024*k}, v{VA}")
    P(f"v_sub_u32 v{T+3}, v{T}, v{T+1}")
    P(f"v_lshlrev_b32 v{T+3}, 5, v{T+3}")
    P(f"v_lshl_add_u32 v{T+3}, v{T+2}, 4, v{T+3}")
    P(f"s_add_u32 s58, s55, {XPO}")
    P(f"v_add_u32 v{VA+4}, s58, v{T+3}")
    P(f"v_lshl_add_u32 v{T+3}, v{T}, 1, v{T+1}")
    P(f"v_lshlrev_b32 v{T+3}, 4, v{T+3}")
    P(f"v_xor_b32 v{T+4}, 1, v{T+2}")
    P(f"v_lshl_add_u32 v{T+3}, v{T+4}, 3, v{T+3}")
    P(f"v_add_u32 v{VA+5}, s58, v{T+3}")
    P(f"v_lshrrev_b32 v{T+3}, 4, v0")
    P(f"v_lshlrev_b32 v{T+3}, 3, v{T+3}")
    P(f"v_lshl_add_u32 v{VA+6}, v{T}, 5, v{T+3}")
    AF, BF, ACC = 20, 52, 84
    for r in range(20): P(f"v_mov_b32 v{ACC+r}, 0")
    P("s_waitcnt vmcnt(0) lgkmcnt(0)")
    P("s_bitcmp1_b32 s52, 0")
    P("s_cbranch_scc1 k2_conv1")
    for part, U in enumerate(([7, 6, 2], [5, 4, 3, 1, 0])):
        if part: P.label("k2_conv1")
        um = max(U)
        def rds(st, dl):
            out = []
            for i in range(um + 1):
                o = 128 * (i & 1) + 16 * dl
                ra = (lambda k: f"v[{AF+4*i+k}:{AF+4*i+k+1}]") if st == 0 else (lambda k: f"a[{4*i+k}:{4*i+k+1}]")
                rb = f"v[{BF+4*i}:{BF+4*i+3}]" if st == 0 else f"a[{32+4*i}:{32+4*i+3}]"
                out.append(f"ds_read2_b32 {ra(0)}, v{VA+(i>>1)} offset0:{o} offset1:{o+1}")
                out.append(f"ds_read2_b32 {ra(2)}, v{VA+(i>>1)} offset0:{o+2} offset1:{o+3}")
                out.append(f"ds_read_b128 {rb}, v{VA+4} offset:{512+512*i-64*dl}")
            return out
        work = []
        for step in range(um + 1):
            for k, u in enumerate(U):
                if step <= u: work.append((k, step, u - step))
        def mf(st, side):
            side = list(side)
            for n_, (k, i, w) in enumerate(work):
                a = ACC + 4 * k
                ra = f"v[{AF+4*i}:{AF+4*i+3}]" if st == 0 else f"a[{4*i}:{4*i+3}]"
                rb = f"v[{BF+4*w}:{BF+4*w+3}]" if st == 0 else f"a[{32+4*w}:{32+4*w+3}]"
                P(f"v_mfma_f32_16x16x32_f16 v[{a}:{a+3}], {ra}, {rb}, v[{a}:{a+3}]")
                for _ in range(2 if n_ < len(side) // 3 else 1):
                    if side: P(side.pop(0))
            for x_ in side: P(x_)
        for x_ in rds(0, 0): P(x_)
        P("s_mov_b32 s59, 0")
        P.label(f"k2_cloop{part}")
        P("s_waitcnt lgkmcnt(0)")
        mf(0, rds(1, 1))
        P("s_waitcnt lgkmcnt(0)")
        mf(1, rds(0, 2))
        for k in range(4): P(f"v_add_u32 v{VA+k}, 128, v{VA+k}")
        P(f"v_subrev_u32 v{VA+4}, 128, v{VA+4}")
        P("s_add_u32 s59, s59, 1")
        P("s_cmp_lt_u32 s59, 4")
        P(f"s_cbranch_scc1 k2_cloop{part}")
        P("s_waitcnt lgkmcnt(0)")
        for k, u in enumerate(U):
            P(f"ds_read_b64 v[{AF+2*k}:{AF+2*k+1}], v{VA+5} offset:{512+512*u}")
        P(f"v_lshlrev_b32 v{T+8}, 16, v{T+8}")
        P("s_waitcnt lgkmcnt(0)")
        for k, u in enumerate(U):
            a = ACC + 4 * k; xl, xh = AF + 2 * k, AF + 2 * k + 1
            for i in range(4): P(f"v_mul_f32 v{a+i}, v{a+i}, v{T+9}")
            P(f"v_cvt_pk_bf16_f32 v{T}, v{a}, v{a+1}")
            P(f"v_cvt_pk_bf16_f32 v{T+1}, v{a+2}, v{a+3}")
            P(f"v_cvt_f32_f16_sdwa v{a}, v{xh} dst_sel:DWORD dst_unused:UNUSED_PAD src0_sel:WORD_1")
            P(f"v_cvt_f32_f16 v{a+1}, v{xh}")
            P(f"v_cvt_f32_f16_sdwa v{a+2}, v{xl} dst_sel:DWORD dst_unused:UNUSED_PAD src0_sel:WORD_1")
            P(f"v_cvt_f32_f16 v{a+3}, v{xl}")
            for i in range(4): P(f"v_mul_f32 v{a+i}, v{a+i}, v{T+8}")
            P(f"v_cvt_pk_bf16_f32 v{T+2}, v{a}, v{a+1}")
            P(f"v_cvt_pk_bf16_f32 v{T+3}, v{a+2}, v{a+3}")
            for hh in range(2):
                P(f"v_lshlrev_b32 v{a+2*hh}, 16, v{T+hh}")
                P(f"v_and_b32 v{a+2*hh+1}, 0xffff0000, v{T+hh}")
                P(f"v_lshlrev_b32 v{T+4}, 16, v{T+2+hh}")
                P(f"v_and_b32 v{T+5}, 0xffff0000, v{T+2+hh}")
                P(f"v_add_f32 v{a+2*hh}, v{a+2*hh}, v{T+4}")
                P(f"v_add_f32 v{a+2*hh+1}, v{a+2*hh+1}, v{T+5}")
            P(f"v_cvt_pk_bf16_f32 v{BF+2*k}, v{a}, v{a+1}")
            P(f"v_cvt_pk_bf16_f32 v{BF+2*k+1}, v{a+2}, v{a+3}")
            P(f"buffer_store_dwordx2 v[{BF+2*k}:{BF+2*k+1}], v{VA+6}, s[40:43], s57 offen offset:{512*u} sc1")
        prof(P, 1, pr)
        if 'p3early' in HOOKS: HOOKS['p3early'](P)
        P("s_barrier")
        P("s_endpgm")

def gen_k2(P, NST=3, conv=True, nz=3, pr=False):
    STG = 8192
    AREA = NST * STG
    P.label("k2_kernel")
    P("s_cmp_ge_u32 s2, 256")
    P("s_cbranch_scc1 k2_end")
    P("s_load_dwordx2 s[4:5], s[0:1], 88")
    P("s_load_dwordx2 s[6:7], s[0:1], 96")
    P("s_load_dwordx2 s[8:9], s[0:1], 128")
    P("s_load_dwordx2 s[10:11], s[0:1], 64")
    P("s_load_dwordx4 s[68:71], s[0:1], 8")
    P("s_load_dwordx4 s[72:75], s[0:1], 24")
    P("s_load_dwordx4 s[76:79], s[0:1], 40")
    P("s_load_dwordx2 s[80:81], s[0:1], 56")
    P("v_lshrrev_b32 v1, 6, v0")
    P("v_and_b32 v0, 63, v0")
    P("v_readfirstlane_b32 s3, v1")
    P("s_and_b32 s12, s2, 7")
    P("s_lshr_b32 s13, s2, 3")
    P("s_lshr_b32 s14, s12, 1")
    P("s_lshl_b32 s14, s14, 3")
    P("s_and_b32 s15, s13, 7")
    P("s_add_u32 s14, s14, s15")
    P("s_and_b32 s15, s12, 1")
    P("s_lshl_b32 s15, s15, 2")
    P("s_lshr_b32 s13, s13, 3")
    P("s_add_u32 s15, s15, s13")
    if EXP[0] in (5, 6):
        P("s_mov_b32 s14, 0")
        P("s_mov_b32 s15, 0")
    P("s_waitcnt lgkmcnt(0)")
    srd(P, 16, 4, 2048 * 2048 * 2)
    srd(P, 20, 8, 0x400000, WS_Z2F)
    srd(P, 24, 8, 0x400000, WS_Z1F)
    srd(P, 28, 8, 0x400000, WS_HF)
    srd(P, 32, 6, 4096)
    srd(P, 36, 8, 0x200000, WS_XNT)
    srd(P, 40, 8, 0x200000, WS_YAT)
    if conv:
        P("s_cmp_ge_u32 s3, 4")
        P("s_cbranch_scc1 k2_conv")
    if PRIO[0] == 9: P('s_endpgm')
    elif PRIO[0]: P(f's_setprio {PRIO[0]}')
    prof(P, 0, pr)
    if pr: P("s_memtime s[82:83]")
    VW = 2
    VZ = 10
    VA = 12
    T = 20
    WF = 28
    ZB = 60
    P(f"v_lshrrev_b32 v{T}, 3, v0")
    P(f"v_and_b32 v{T+1}, 7, v0")
    P(f"v_lshrrev_b32 v{T+2}, 1, v{T}")
    P(f"v_xor_b32 v{T+1}, v{T+1}, v{T+2}")
    P(f"v_lshlrev_b32 v{T+1}, 4, v{T+1}")
    P(f"v_lshl_add_u32 v{T+1}, v{T}, 12, v{T+1}")
    P(f"v_xor_b32 v{T+2}, 64, v{T+1}")
    for e in range(8):
        P(f"v_add_u32 v{VW+e}, {8*e*4096 - 1024*(e&3)}, v{T+1+(e&1)}")
    P(f"v_lshlrev_b32 v{VZ}, 4, v0")
    P(f"v_add_u32 v{VZ+1}, 4096, v{VZ}")
    P(f"v_and_b32 v{T}, 15, v0")
    P(f"v_lshrrev_b32 v{T+1}, 4, v0")
    P(f"v_lshrrev_b32 v{T+2}, 1, v{T}")
    P(f"v_xor_b32 v{T+1}, v{T+1}, v{T+2}")
    P(f"v_lshlrev_b32 v{T+1}, 4, v{T+1}")
    P(f"v_lshl_add_u32 v{T+1}, v{T}, 7, v{T+1}")
    P(f"s_mul_i32 s52, s3, {AREA}")
    for tau in range(4):
        P(f"s_add_u32 s53, s3, {tau}")
        P(f"s_and_b32 s53, s53, 3")
        P(f"s_lshl_b32 s53, s53, 11")
        P(f"s_add_u32 s53, s53, s52")
        P(f"v_add_u32 v{VA+tau}, s53, v{T+1}")
        P(f"v_xor_b32 v{VA+4+tau}, 64, v{VA+tau}")
    P("s_lshl_b32 s54, s14, 18")
    P("s_lshl_b32 s53, s3, 10")
    P("s_add_u32 s54, s54, s53")
    P(f"s_mul_i32 s55, s15, {64*7168}")
    P(f"s_mul_i32 s53, s3, {16*7168}")
    P("s_add_u32 s55, s55, s53")
    def wdma(q):
        out = []
        st = q % NST
        for e in range(8):
            pre = []
            if e % 4 == 0:
                pre.append(f"s_add_u32 m0, s52, {st*STG + e*1024}")
                if e == 0: pre.append(f"s_add_u32 s56, s54, {q*128}")
                else: pre.append("s_nop 0")
            out.append("\n".join(pre + [f"buffer_load_dwordx4 v{VW+e}, s[16:19], s56 offen offset:{1024*(e&3)} lds"]))
        return out
    def zld(i):
        out = []
        b = ZB + 28 * (i % nz)
        for ft in range(7):
            pre = [f"s_add_u32 s57, s55, {i*7168}"] if ft == 0 else []
            out.append("\n".join(pre + [f"buffer_load_dwordx4 v[{b+4*ft}:{b+4*ft+3}], v{VZ+(ft>>2)}, s[20:23], s57 offen offset:{1024*(ft&3)}"]))
        return out
    def wrd(i):
        out = []
        st = (i // 2) % NST; h = i & 1
        b = WF + 16 * (i & 1)
        for tau in range(4):
            out.append(f"ds_read_b128 v[{b+4*tau}:{b+4*tau+3}], v{VA+4*h+tau} offset:{st*STG}")
        return out
    ZD = nz - 1
    WD = NST - 1
    issued = []
    def emit(lst, tag):
        for s in lst:
            P(s); issued.append(tag)
    if FUSED[0]:
        for q in range(WD):
            for _ in range(8): issued.append(('W', q))
        P.lines.append(__import__('dsl').Ins('@ZPOLL'))
        for i in range(ZD): emit(zld(i), ('Z', i))
    else:
        for q in range(max(WD, (ZD + 1) // 2)):
            if q < WD: emit(wdma(q), ('W', q))
            for i in (2 * q, 2 * q + 1):
                if i < ZD: emit(zld(i), ('Z', i))
    if conv and not FUSED[0]: P('s_barrier')
    for r in range(112):
        P(f"v_accvgpr_write_b32 a{r}, 0")
    def wait_for(tags):
        if not any(t in tags for t in issued): return
        last = max(k for k, t in enumerate(issued) if t in tags)
        n = len(issued) - 1 - last
        P(f"s_waitcnt vmcnt({min(n,63)})")
    Z1 = ZB + 28 * ((15 - ZD) % nz)
    def epi_loads():
        P("s_and_b32 s53, s15, 1")
        P("s_mul_i32 s58, s15, 7")
        P("s_add_u32 s58, s58, s53")
        P("s_lshr_b32 s58, s58, 1")
        P("s_lshl_b32 s59, s53, 2")
        P("s_sub_u32 s59, 3, s59")
        P("s_add_u32 s59, s59, s58")
        P("s_mul_i32 s60, s14, 28")
        P("s_add_u32 s58, s58, s60")
        P("s_add_u32 s59, s59, s60")
        P("s_lshl_b32 s58, s58, 2")
        P("s_lshl_b32 s59, s59, 2")
        P("s_add_u32 s58, s58, s3")
        P("s_add_u32 s59, s59, s3")
        P("s_lshl_b32 s58, s58, 10")
        P("s_lshl_b32 s59, s59, 10")
        P("s_lshl_b32 s53, s53, 3")
        P("s_add_u32 s59, s59, s53")
        P(f"buffer_load_dwordx4 v[{Z1}:{Z1+3}], v{VZ}, s[24:27], s58 offen")
        P(f"buffer_load_dwordx4 v[{Z1+4}:{Z1+7}], v{VZ+1}, s[24:27], s58 offen")
        P(f"s_add_u32 s60, s58, 8192")
        P(f"buffer_load_dwordx4 v[{Z1+8}:{Z1+11}], v{VZ}, s[24:27], s60 offen")
        P(f"buffer_load_dwordx2 v[{Z1+12}:{Z1+13}], v{VZ}, s[24:27], s59 offen")
        P(f"v_and_b32 v{T}, 15, v0")
        P(f"v_lshlrev_b32 v{T}, 1, v{T}")
        P("s_lshl_b32 s61, s14, 7")
        P("s_lshl_b32 s53, s3, 5")
        P("s_add_u32 s61, s61, s53")
        P(f"buffer_load_ushort v{T+3}, v{T}, s[32:35], s61 offen")
    wait_for({('W', 0)})
    if pr: P('s_memrealtime s[80:81]')
    for s in wrd(0): P(s)
    for i in range(16):
        need_tags = {('Z', i)}
        if i + 1 < 16: need_tags.add(('W', (i + 1) // 2))
        wait_for(need_tags)
        P("s_waitcnt lgkmcnt(0)")
        side = []
        if i + 1 < 16: side += [(s, None) for s in wrd(i + 1)]
        if i + ZD < 16: side += [(s, ('Z', i + ZD)) for s in zld(i + ZD)]
        if i % 2 == 0 and i // 2 + WD < 8: side += [(s, ('W', i // 2 + WD)) for s in wdma(i // 2 + WD)]
        zb = ZB + 28 * (i % nz); wb = WF + 16 * (i & 1)
        if EXP[0] in (3, 4):
            drop = 'W' if EXP[0] == 3 else 'Z'
            side2 = []
            for x in side:
                if x[1] and x[1][0] == drop: side2.append(("s_nop 0", None))
                else: side2.append(x)
            side = side2
        if EXP[0] == 2:
            for x in side:
                if x[1]: issued.append(x[1])
            side = [x for x in side if not x[1]]
            P("s_sleep 7")
        k = 0
        if LF[0]:
            if LF[0] == 2: P("s_setprio 3")
            mem = [x for x in side if x[1]]; side = [x for x in side if not x[1]]
            for s_, tag in mem:
                P(s_); issued.append(tag)
            if LF[0] == 2: P("s_setprio 0")
        for ft in range(7):
            for tau in range(4):
                a = 4 * (ft * 4 + tau)
                if EXP[0] not in (1, 3, 4, 6): P(f"v_mfma_f32_16x16x32_bf16 a[{a}:{a+3}], v[{zb+4*ft}:{zb+4*ft+3}], v[{wb+4*tau}:{wb+4*tau+3}], a[{a}:{a+3}]")
                if k < len(side):
                    s, tag = side[k]; k += 1
                    P(s)
                    if tag: issued.append(tag)
        assert k == len(side)
        if i == 16 - ZD:
            epi_loads()
            for _ in range(5): issued.append(('E', 0))
    prof(P, 2, pr)
    if pr:
        P('v_mov_b32 v26, s80')
        P('v_mov_b32 v27, s81')
        P('global_store_dwordx2 v25, v[26:27], s[8:9] offset:-8')
    P(f"v_add_u32 v{T+2}, s52, v{VZ}")
    for tau in range(1, 4):
        for ft in range(7):
            a = 4 * (ft * 4 + tau)
            P(f"ds_write_b128 v{T+2}, a[{a}:{a+3}] offset:{(tau-1)*7168 + ft*1024}")
    P("s_waitcnt lgkmcnt(0)")
    nearly = HOOKS['p3early'](P) if 'p3early' in HOOKS else 0
    P("s_barrier")
    RB = [ZB + 28 * ((15 - ZD + 1) % nz), ZB + 28 * ((15 - ZD + 2) % nz), WF]
    R = RB[0]
    for dl in range(1, 4):
        P(f"s_sub_u32 s53, s3, {dl}")
        P("s_and_b32 s53, s53, 3")
        P(f"s_mul_i32 s53, s53, {AREA}")
        P(f"v_add_u32 v{T+2}, s53, v{VZ}")
        for ft in range(7):
            r = RB[dl - 1] + 4 * ft
            P(f"ds_read_b128 v[{r}:{r+3}], v{T+2} offset:{(dl-1)*7168 + ft*1024}")
    G = T + 4
    P("s_waitcnt lgkmcnt(14)")
    for ft in range(7):
        for i in range(4):
            P(f"v_accvgpr_read_b32 v{G+i}, a{4*(ft*4)+i}")
        for i in range(4):
            P(f"v_add_f32 v{R+4*ft+i}, v{R+4*ft+i}, v{G+i}")
    P("s_waitcnt lgkmcnt(7)")
    for r in range(28):
        P(f"v_add_f32 v{R+r}, v{R+r}, v{RB[1]+r}")
    P("s_waitcnt lgkmcnt(0)")
    for r in range(28):
        P(f"v_add_f32 v{R+r}, v{R+r}, v{RB[2]+r}")
    P(f"s_waitcnt vmcnt({nearly})")
    P(f"v_lshlrev_b32 v{T+1}, 16, v{T+3}")
    H = RB[1]
    for q in range(14):
        a, b = R + 2 * q, R + 2 * q + 1
        P(f"v_cvt_pk_bf16_f32 v{G}, v{a}, v{b}")
        P(f"v_lshlrev_b32 v{a}, 16, v{G}")
        P(f"v_and_b32 v{b}, 0xffff0000, v{G}")
        P(f"v_add_f32 v{a}, v{a}, v{T+1}")
        P(f"v_add_f32 v{b}, v{b}, v{T+1}")
        P(f"v_cvt_pk_bf16_f32 v{G}, v{a}, v{b}")
        P(f"v_lshlrev_b32 v{a}, 16, v{G}")
        P(f"v_and_b32 v{b}, 0xffff0000, v{G}")
        P(f"v_lshlrev_b32 v{G+1}, 16, v{Z1+q}")
        P(f"v_and_b32 v{G+2}, 0xffff0000, v{Z1+q}")
        P(f"v_mul_f32 v{a}, v{a}, v{G+1}")
        P(f"v_mul_f32 v{b}, v{b}, v{G+2}")
        P(f"v_cvt_pk_bf16_f32 v{H+q}, v{a}, v{b}")
    ST = " sc1"
    P(f"buffer_store_dwordx4 v[{H}:{H+3}], v{VZ}, s[28:31], s58 offen{ST}")
    P(f"buffer_store_dwordx4 v[{H+4}:{H+7}], v{VZ+1}, s[28:31], s58 offen{ST}")
    P(f"buffer_store_dwordx4 v[{H+8}:{H+11}], v{VZ}, s[28:31], s60 offen{ST}")
    P(f"buffer_store_dwordx2 v[{H+12}:{H+13}], v{VZ}, s[28:31], s59 offen{ST}")
    prof(P, 3, pr)
    if pr: P("s_waitcnt vmcnt(0)")
    prof(P, 4, pr)
    if pr:
        P("s_memtime s[84:85]")
        P("s_waitcnt lgkmcnt(0)")
        P("s_sub_u32 s84, s84, s82")
        P("v_mov_b32 v26, s84")
        P("v_mov_b32 v27, 0")
        P("global_store_dwordx2 v25, v[26:27], s[8:9] offset:8")
    P("s_endpgm")
    if conv:
        P.label("k2_conv")
        gen_conv(P, 4 * AREA, pr)
    P.label("k2_end")
    P("s_endpgm")
    return dict(vgpr=ZB + 28 * max(nz, 3), agpr=112, lds=4 * AREA + (4 * CW_AREA if conv else 0))
```

```python
import re, os, sys
from dsl import Prog, Ins
import k1d, k2, aux
from k2 import *
WS_FL1 = 0x1B00000
WS_FL2 = 0x1B08000
SLEEP = [4]
TOUCH = [int(os.environ.get('TOUCH', '1'))]
KN = "parallel_sum__ssm_conv_s4__mixer_gmlp__prompt_kernel"

def lines_of(P): return [l.text for l in P.lines]

def poll(E, name, va, vd, nlanes):
    mask = (1 << nlanes) - 1
    E(f"s_mov_b32 exec_lo, {mask & 0xffffffff:#x}")
    E(f"s_mov_b32 exec_hi, {mask >> 32:#x}")
    E("s_mov_b32 s95, 0")
    E(f"{name}:")
    E(f"global_load_dwordx2 v[{vd}:{vd+1}], v{va}, s[8:9] sc0 sc1")
    E("s_add_u32 s95, s95, 1")
    E("s_waitcnt vmcnt(0)")
    E(f"v_cmp_ne_u64 vcc, s[96:97], v[{vd}:{vd+1}]")
    E("s_nop 1")
    E("s_cmp_eq_u64 vcc, 0")
    E(f"s_cbranch_scc1 {name}_ok")
    E("s_sleep 2")
    E("s_cmp_lt_u32 s95, 0x100000")
    E(f"s_cbranch_scc1 {name}")
    E(f"{name}_ok:")
    E("s_mov_b64 exec, -1")

GOW = 4 * 24576 + 16376
def ldswait(E, name, va, vd):
    E("s_mov_b32 s95, 0")
    E(f"{name}:")
    E(f"ds_read_b32 v{vd}, v{va}")
    E("s_add_u32 s95, s95, 1")
    E("s_waitcnt lgkmcnt(0)")
    E(f"v_readfirstlane_b32 s94, v{vd}")
    E("s_cmp_eq_u32 s94, 1")
    E(f"s_cbranch_scc1 {name}_ok")
    E("s_sleep 1")
    E("s_cmp_lt_u32 s95, 0x1000000")
    E(f"s_cbranch_scc1 {name}")
    E(f"{name}_ok:")

def phase3(P, pr):
    P("s_load_dwordx2 s[4:5], s[0:1], 0")
    P("s_load_dwordx2 s[6:7], s[0:1], 112")
    P("s_and_b32 s12, s2, 7")
    P("s_lshr_b32 s13, s2, 3")
    P("s_lshl_b32 s14, s12, 2")
    P("s_and_b32 s15, s13, 3")
    P("s_add_u32 s14, s14, s15")
    P("s_lshr_b32 s15, s13, 2")
    srd(P, 24, 8, 0x400000, WS_HF)
    srd(P, 28, 8, 896 * 1024, WS_WOF)
    srd(P, 32, 8, 0x200000, WS_YAT)
    T = 2; VL = 10; VH = 12; VO = 16
    P(f"v_lshlrev_b32 v{VL}, 4, v0")
    for tau in range(4):
        P(f"s_add_u32 s53, s3, {tau}")
        P("s_and_b32 s53, s53, 3")
        P("s_lshl_b32 s53, s53, 10")
        P(f"v_add_u32 v{VH+tau}, s53, v{VL}")
    P("s_lshr_b32 s59, s3, 2")
    P("s_lshl_b32 s53, s59, 11")
    P(f"v_add_u32 v{VO}, s53, v{VL}")
    P(f"v_xor_b32 v{VO+1}, 2048, v{VO}")
    P("s_lshl_b32 s52, s3, 2")
    P("s_mul_i32 s53, s3, 3")
    P("s_add_u32 s53, s53, 4")
    P("s_cmp_lt_u32 s3, 4")
    P("s_cselect_b32 s52, s52, s53")
    P("s_mul_i32 s54, s14, 28")
    P("s_add_u32 s54, s54, s52")
    P("s_lshl_b32 s54, s54, 12")
    P("s_mul_i32 s55, s15, 28")
    P("s_add_u32 s55, s55, s52")
    P("s_lshl_b32 s55, s55, 12")
    P("s_waitcnt lgkmcnt(0)")
    srd(P, 16, 4, 2048 * 512 * 2)
    srd(P, 20, 6, 2048 * 512 * 2)
    XR = 20
    P(f"v_and_b32 v{T}, 15, v0")
    P(f"v_lshrrev_b32 v{T+1}, 4, v0")
    P(f"v_lshlrev_b32 v{T}, 10, v{T}")
    P(f"v_lshl_add_u32 v{VL+1}, v{T+1}, 4, v{T}")
    P("s_lshl_b32 s58, s14, 16")
    P("s_and_b32 s57, s3, 3")
    P("s_lshl_b32 s57, s57, 14")
    P("s_add_u32 s58, s58, s57")
    P("s_lshl_b32 s57, s15, 7")
    P("s_add_u32 s58, s58, s57")
    P("s_lshl_b32 s57, s59, 6")
    P("s_add_u32 s58, s58, s57")
    P(f"buffer_load_dwordx4 v[{XR}:{XR+3}], v{VL+1}, s[16:19], s58 offen")
    P("s_lshl_b32 s53, s14, 7")
    P(f"s_add_u32 s53, s53, {WS_FL2 + 4096}")
    P("s_lshl_b32 s57, s15, 8")
    P(f"s_add_u32 s57, s57, {WS_FL2 - 64}")
    P(f"v_mov_b32 v{T}, s53")
    P(f"v_mov_b32 v{T+1}, s57")
    P(f"v_cmp_gt_u32 vcc, 8, v0")
    P(f"v_cndmask_b32 v{T}, v{T+1}, v{T}, vcc")
    P(f"v_lshl_add_u32 v{T}, v0, 3, v{T}")
    prof(P, 0, pr)
    def E(t):
        if t.endswith(':'): P.label(t[:-1])
        else: P(t)
    P("s_cmp_lg_u32 s3, 0")
    P("s_cbranch_scc1 p3_np")
    poll(E, "p3_poll", T, T + 2, 40)
    P.label("p3_np")
    P("s_barrier")
    prof(P, 1, pr)
    HB = 80
    def hl(k):
        P(f"s_add_u32 s56, s54, {4096*k}")
        for tau in range(4):
            r = HB + 16 * k + 4 * tau
            P(f"buffer_load_dwordx4 v[{r}:{r+3}], v{VH+tau}, s[24:27], s56 offen sc1")
    AREA = 14 * 1024; YB = 8 * AREA
    P(f"v_lshrrev_b32 v{T}, 3, v0")
    P(f"v_and_b32 v{T+1}, 7, v0")
    P(f"v_lshlrev_b32 v{T+1}, 4, v{T+1}")
    P(f"v_lshl_add_u32 v{T+1}, v{T}, 12, v{T+1}")
    P("s_lshl_b32 s56, s15, 18")
    P("s_lshl_b32 s57, s3, 15")
    P("s_add_u32 s56, s56, s57")
    P("s_lshl_b32 s57, s14, 7")
    P("s_add_u32 s60, s56, s57")
    P("s_lshl_b32 s57, s3, 10")
    P(f"s_add_u32 m0, s57, {YB}")
    def acc(pi, sg_, tau):
        i = (2 * pi + sg_) * 4 + tau
        return f"a[{64+4*i}:{67+4*i}]" if 0 < (i & ~4) and i - (2 if i > 4 else 1) < 12 and i not in (0, 4) and False else None
    others = [(pi, sg_, tau) for pi in range(2) for tau in range(4) for sg_ in range(2) if not (pi == 0 and tau == 0)]
    amap = {}
    for sg_ in range(2): amap[(0, sg_, 0)] = f"v[{24+4*sg_}:{27+4*sg_}]"
    for n_, key in enumerate(others):
        amap[key] = f"a[{4*ACQ[n_]}:{4*ACQ[n_]+3}]" if n_ < 12 else f"v[{32+4*(n_-12)}:{35+4*(n_-12)}]"
    def mf(k):
        for pi in range(2):
            for sg_ in range(2):
                for tau in range(4):
                    a = amap[(pi, sg_, tau)]; r = 4 * WOQ[4 * k + 2 * pi + sg_]; h = HB + 16 * k + 4 * tau
                    P(f"v_mfma_f32_16x16x32_bf16 {a}, a[{r}:{r+3}], v[{h}:{h+3}], {'0' if k == 0 else a}")
    P("s_cmp_ge_u32 s3, 4")
    P("s_cbranch_scc1 p3_3")
    for k in range(4): hl(k)
    P(f"buffer_load_dwordx4 v{T+1}, s[32:35], s60 offen sc1 lds")
    for k in range(4):
        P(f"s_waitcnt vmcnt({1 + 4*(3-k)})"); mf(k)
    P("s_branch p3_red")
    P.label("p3_3")
    for k in range(3): hl(k)
    P(f"buffer_load_dwordx4 v{T+1}, s[32:35], s60 offen sc1 lds")
    for k in range(3):
        P(f"s_waitcnt vmcnt({1 + 4*(2-k)})"); mf(k)
    P.label("p3_red")
    prof(P, 2, pr)
    P(f"s_mul_i32 s52, s3, {AREA}")
    P(f"v_add_u32 v{T}, s52, v{VL}")
    for n_, key in enumerate(others):
        P(f"ds_write_b128 v{T}, {amap[key]} offset:{1024*n_}")
    P("s_waitcnt vmcnt(0) lgkmcnt(0)")
    P("s_barrier")
    R = 40
    gi = 0
    for pi in range(2):
        for tau in range(4):
            if pi == 0 and tau == 0: continue
            P(f"s_sub_u32 s53, s3, {tau}")
            P("s_and_b32 s53, s53, 3")
            P(f"s_xor_b32 s57, s59, {pi}")
            P("s_lshl_b32 s57, s57, 2")
            P("s_add_u32 s53, s53, s57")
            P(f"s_mul_i32 s53, s53, {AREA}")
            P(f"v_add_u32 v{T+(gi&1)}, s53, v{VL}")
            for sg_ in range(2):
                r = R + 8 * gi + 4 * sg_
                P(f"ds_read_b128 v[{r}:{r+3}], v{T+(gi&1)} offset:{1024*(2*gi+sg_)}")
            gi += 1
    P(f"v_lshrrev_b32 v{T+2}, 4, v0")
    P(f"v_bfe_u32 v{T+3}, v0, 2, 2")
    P(f"v_and_b32 v{T+4}, 3, v0")
    P(f"v_lshl_add_u32 v{T+2}, v{T+2}, 3, v{T+3}")
    P(f"v_lshlrev_b32 v{T+2}, 7, v{T+2}")
    P(f"v_lshl_add_u32 v{T+2}, v{T+4}, 3, v{T+2}")
    P("s_and_b32 s53, s3, 3")
    P("s_lshl_b32 s53, s53, 5")
    P("s_lshl_b32 s57, s59, 12")
    P("s_add_u32 s53, s53, s57")
    P(f"s_add_u32 s53, s53, {YB}")
    P(f"v_add_u32 v{T+2}, s53, v{T+2}")
    YA = 32
    P("s_waitcnt lgkmcnt(0)")
    for eta in range(2):
        P(f"ds_read_b64_tr_b16 v[{YA+2*eta}:{YA+2*eta+1}], v{T+2} offset:{512*eta}")
    for i in range(8):
        P(f"v_add_f32 v{24+i}, v{24+i}, v{R+i}")
        P(f"v_add_f32 v{R+8+i}, v{R+8+i}, v{R+16+i}")
        P(f"v_add_f32 v{R+24+i}, v{R+24+i}, v{R+32+i}")
        P(f"v_add_f32 v{R+40+i}, v{R+40+i}, v{R+48+i}")
    for i in range(8):
        P(f"v_add_f32 v{24+i}, v{24+i}, v{R+8+i}")
        P(f"v_add_f32 v{R+24+i}, v{R+24+i}, v{R+40+i}")
    for i in range(8): P(f"v_add_f32 v{24+i}, v{24+i}, v{R+24+i}")
    P("s_mov_b32 s65, 0xffff0000")
    P("s_waitcnt lgkmcnt(0)")
    for q in range(4):
        a = 24 + 2 * q
        P(f"v_cvt_pk_bf16_f32 v{T}, v{a}, v{a+1}")
        P(f"v_lshlrev_b32 v{T+2}, 16, v{XR+q}")
        P(f"v_and_b32 v{T+3}, s65, v{XR+q}")
        P(f"v_lshlrev_b32 v{T+4}, 16, v{YA+q}")
        P(f"v_and_b32 v{T+5}, s65, v{YA+q}")
        P(f"v_add_f32 v{T+2}, v{T+2}, v{T+4}")
        P(f"v_add_f32 v{T+3}, v{T+3}, v{T+5}")
        P(f"v_cvt_pk_bf16_f32 v{T+4}, v{T+2}, v{T+3}")
        P(f"v_lshlrev_b32 v{T+2}, 16, v{T+4}")
        P(f"v_and_b32 v{T+3}, s65, v{T+4}")
        P(f"v_lshlrev_b32 v{T+4}, 16, v{T}")
        P(f"v_and_b32 v{T+5}, s65, v{T}")
        P(f"v_add_f32 v{T+2}, v{T+2}, v{T+4}")
        P(f"v_add_f32 v{T+3}, v{T+3}, v{T+5}")
        P(f"v_cvt_pk_bf16_f32 v{R+q}, v{T+2}, v{T+3}")
    P(f"buffer_store_dwordx4 v[{R}:{R+3}], v{VL+1}, s[20:23], s58 offen")
    prof(P, 3, pr)
    if pr: P("s_waitcnt vmcnt(0)")
    prof(P, 4, pr)

CNT = [0]
def early2(P):
    n = CNT[0]; CNT[0] += 1
    P("s_load_dwordx4 s[68:71], s[0:1], 8")
    P("s_load_dwordx4 s[72:75], s[0:1], 24")
    P("s_load_dwordx4 s[76:79], s[0:1], 40")
    P("s_load_dwordx4 s[80:83], s[0:1], 56")
    P("s_waitcnt lgkmcnt(0)")
    if n == 1: P("s_barrier")
    P("s_cmp_lt_u32 s3, 4")
    P(f"s_cbranch_scc1 e2_done{n}")
    P.label(f"e2_conv{n}")
    PAR = 104; V = 112
    P("s_sub_u32 s56, s3, 4")
    P("s_lshr_b32 s57, s56, 1")
    P("s_lshl_b32 s61, s2, 1")
    P("s_add_u32 s61, s61, s57")
    P(f"s_mul_i32 s56, s56, {CW_AREA}")
    P(f"s_add_u32 s56, s56, {4*24576}")
    P(f"v_mov_b32 v{V}, s56")
    P(f"v_mov_b32 v{V+4}, 0")
    P(f"v_mov_b32 v{V+5}, 0")
    P(f"ds_write_b64 v{V}, v[{V+4}:{V+5}] offset:16376")
    P(f"v_lshlrev_b32 v{V+2}, 2, v0")
    P("s_lshl_b32 s57, s61, 8")
    P(f"v_add_u32 v{V+2}, s57, v{V+2}")
    P("s_lshl_b32 s57, s61, 1")
    P(f"v_mov_b32 v{V+3}, s57")
    for k in range(6):
        P(f"global_load_dword v{PAR+k}, v{V+2}, s[{68+2*k}:{69+2*k}]")
    P(f"global_load_ushort v{PAR+6}, v{V+3}, s[80:81]")
    P(f"global_load_ushort v{PAR+7}, v{V+3}, s[82:83]")
    P.label(f"e2_done{n}")

FREEQ = [4 * ft + t for ft in range(7) for t in (1, 2, 3)]
WOQ = FREEQ[:16]
ACQ = FREEQ[16:] + [4 * ft for ft in range(7)]
def p3early(P):
    n = CNT[0]; CNT[0] += 1
    srd(P, 44, 8, 896 * 1024, WS_WOF)
    P("s_lshl_b32 s84, s3, 2")
    P("s_mul_i32 s85, s3, 3")
    P("s_add_u32 s85, s85, 4")
    P("s_cmp_lt_u32 s3, 4")
    P("s_cselect_b32 s84, s84, s85")
    P("s_lshr_b32 s85, s2, 5")
    P("s_mul_i32 s85, s85, 28")
    P("s_add_u32 s85, s85, s84")
    P("s_lshl_b32 s85, s85, 12")
    P("s_lshr_b32 s86, s3, 2")
    P("s_lshl_b32 s86, s86, 11")
    P("v_lshlrev_b32 v1, 4, v0")
    for k in range(4):
        for pi in range(2):
            P(f"s_xor_b32 s87, s86, {2048*pi}")
            P("s_add_u32 s87, s87, s85")
            P(f"s_add_u32 s87, s87, {4096*k}")
            for sg_ in range(2):
                r = 4 * WOQ[4 * k + 2 * pi + sg_]
                P(f"buffer_load_dwordx4 a[{r}:{r+3}], v1, s[44:47], s87 offen offset:{1024*sg_} sc1")
    return 16

def build(pr=False):
    k2.HOOKS['t1'] = early2
    k2.HOOKS['p3early'] = p3early
    out = []
    E = out.append
    k2.PROF_K[0] = 0
    P1 = Prog(); k1d.gen_k1(P1, aux=aux.aux, pr=pr)
    L1 = lines_of(P1)
    def amap(m):
        if m.group(1):
            lo, hi = int(m.group(1)), int(m.group(2))
            return f"v[{lo+16}:{hi+16}]" if lo >= 112 else m.group(0)
        n = int(m.group(3)); return f"v{n+16}" if n >= 112 else m.group(0)
    L1 = [re.sub(r'\ba\[(\d+):(\d+)\]|\ba(\d+)\b', amap, l) for l in L1]
    nend = 0
    for l in L1:
        if l == "k1_kernel:": E(KN + ":"); continue
        if l == "k1_end:": break
        if l == "s_cbranch_scc1 k1_end": E("s_cbranch_scc1 f_end"); continue
        if l == "s_lshl_b32 s53, s14, 3" and 'nonce_addr' not in globals():
            globals()['nonce_addr'] = 1; E("s_mov_b32 s53, 0"); continue
        if l == "s_or_b32 s53, s15, s3": E("s_or_b32 s53, s2, s3"); continue
        if l == "s_endpgm":
            nend += 1
            if nend == 1: E("s_branch p1_done")
            else:
                PE = Prog(); early2(PE)
                for x_ in lines_of(PE): E(x_)
                E("v_mov_b32 v13, 0")
                E("s_mov_b32 s95, 0")
                E("aux_nonce:")
                E("global_load_dwordx2 v[14:15], v13, s[10:11] sc0 sc1")
                E("s_add_u32 s95, s95, 1")
                E("s_waitcnt vmcnt(0)")
                E("v_readfirstlane_b32 s96, v14")
                E("v_readfirstlane_b32 s97, v15")
                E("s_cmp_lg_u32 s96, 0")
                E("s_cbranch_scc1 p1_done")
                E("s_cmp_lt_u32 s95, 0x200000")
                E("s_cbranch_scc1 aux_nonce")
            continue
        E(l)
    globals().pop('nonce_addr', None)
    def signal(tag, code, nl):
        E("s_waitcnt vmcnt(0) lgkmcnt(0)")
        E("s_barrier")
        E("s_cmp_lg_u32 s3, 0")
        E(f"s_cbranch_scc1 {tag}_ns")
        for c in code: E(c)
        E("v_mov_b32 v4, s96")
        E("v_mov_b32 v5, s97")
        E(f"s_mov_b64 exec, {(1 << nl) - 1}")
        E("global_store_dwordx2 v2, v[4:5], s[8:9] sc0 sc1")
        E("s_mov_b64 exec, -1")
        E(f"{tag}_ns:")
    E("p1_done:")
    signal("p1", ["s_lshl_b32 s53, s2, 3", f"s_add_u32 s53, s53, {WS_FL1}", "v_lshlrev_b32 v2, 11, v0", "v_add_u32 v2, s53, v2"], 8)
    k2.PROF_K[0] = 1
    P2 = Prog(); k2.gen_k2(P2, pr=pr)
    L2 = lines_of(P2)
    skip = {"k2_kernel:", "s_cmp_ge_u32 s2, 256", "s_cbranch_scc1 k2_end", "v_lshrrev_b32 v1, 6, v0", "v_and_b32 v0, 63, v0",
            "v_readfirstlane_b32 s3, v1", "s_load_dwordx2 s[8:9], s[0:1], 128", "s_load_dwordx2 s[10:11], s[0:1], 64",
            "s_load_dwordx4 s[68:71], s[0:1], 8", "s_load_dwordx4 s[72:75], s[0:1], 24", "s_load_dwordx4 s[76:79], s[0:1], 40", "s_load_dwordx2 s[80:81], s[0:1], 56"}
    firstz = True; firstx = True
    for l in L2:
        if l in skip: continue
        if l == "k2_end:": break
        if l == "s_endpgm": E("s_branch p2_done"); continue
        if l.startswith("buffer_load") and any(f"s[{a}:{a+3}]" in l for a in (20, 24, 36)):
            l = l.replace(" lds", " sc1 lds") if l.endswith(" lds") else l + " sc1"
        if l == "@ZPOLL":
            if TOUCH[0]:
                E("s_and_b32 s56, s2, 7")
                E("s_lshl_b32 s56, s56, 5")
                E("s_lshr_b32 s57, s2, 3")
                E("s_add_u32 s56, s56, s57")
                E("s_lshl_b32 s56, s56, 15")
                E("v_lshlrev_b32 v20, 7, v0")
                E("s_cmp_eq_u32 s3, 0")
                E("s_cbranch_scc1 p2_t2")
                E("s_cmp_lg_u32 s3, 3")
                E("s_cbranch_scc1 p2_t1")
                E("buffer_load_dword v21, v20, s[16:19], s56 offen")
                E("p2_t1:")
                E("s_lshl_b32 s57, s3, 13")
                E("s_add_u32 s56, s56, s57")
                E("buffer_load_dword v21, v20, s[16:19], s56 offen")
                E("p2_t2:")
            for q in range(2):
                for e in range(8):
                    if e % 4 == 0:
                        E(f"s_add_u32 m0, s52, {q*8192 + e*1024}")
                        E(f"s_add_u32 s56, s54, {q*128}")
                    E(f"buffer_load_dwordx4 v{2+e}, s[16:19], s56 offen offset:{1024*(e&3)} lds")
            E(f"v_mov_b32 v22, {GOW}")
            E("s_cmp_lg_u32 s3, 0")
            E("s_cbranch_scc1 p2_lw")
            E("s_and_b32 s53, s2, 7")
            E("s_lshl_b32 s53, s53, 11")
            E(f"s_add_u32 s53, s53, {WS_FL1}")
            E("v_lshlrev_b32 v20, 4, v0")
            E("v_add_u32 v20, s53, v20")
            E("s_mov_b32 s95, 0")
            E("p2_zpoll:")
            E("global_load_dwordx4 v[28:31], v20, s[8:9] sc0 sc1")
            E("global_load_dwordx4 v[32:35], v20, s[8:9] offset:1024 sc0 sc1")
            E("s_add_u32 s95, s95, 1")
            E("s_waitcnt vmcnt(0)")
            E("v_cmp_ne_u64 s[62:63], s[96:97], v[28:29]")
            E("v_cmp_ne_u64 s[64:65], s[96:97], v[30:31]")
            E("v_cmp_ne_u64 s[66:67], s[96:97], v[32:33]")
            E("v_cmp_ne_u64 vcc, s[96:97], v[34:35]")
            E("s_nop 1")
            E("s_or_b64 s[62:63], s[62:63], s[64:65]")
            E("s_or_b64 s[66:67], s[66:67], vcc")
            E("s_or_b64 s[62:63], s[62:63], s[66:67]")
            E("s_cmp_eq_u64 s[62:63], 0")
            E("s_cbranch_scc1 p2_set")
            E(f"s_sleep {SLEEP[0]}")
            E("s_cmp_lt_u32 s95, 0x100000")
            E("s_cbranch_scc1 p2_zpoll")
            E("p2_set:")
            E("v_mov_b32 v23, 1")
            E("ds_write_b32 v22, v23")
            E("s_branch p2_go")
            E("p2_lw:")
            ldswait(E, "p2_lwl", 22, 23)
            E("p2_go:")
            continue
        if l == "@XPOLL":
            E(f"v_mov_b32 v2, {GOW}")
            ldswait(E, "p2_xw", 2, 3)
            continue
        E(l)
    E("p2_done:")
    signal("p2", ["s_lshl_b32 s53, s2, 3", f"s_add_u32 s53, s53, {WS_FL2}", "v_mov_b32 v2, s53",
                  "s_lshl_b32 s53, s14, 7", "s_lshl_b32 s56, s15, 3", "s_add_u32 s53, s53, s56", f"s_add_u32 s53, s53, {WS_FL2 + 4096}",
                  "v_writelane_b32 v2, s53, 1"], 2)
    k2.PROF_K[0] = 2
    k2.PROF_V[0] = 142
    P3 = Prog(); phase3(P3, pr)
    k2.PROF_V[0] = 26
    out += lines_of(P3)
    E("f_end:")
    E("s_endpgm")
    P = Prog()
    for l in out:
        if l.endswith(':'): P.label(l[:-1])
        else: P(l)
    body = P.finish()
    HDR = open('parallel_sum__ssm_conv_s4__mixer_gmlp__prompt.s.ref').read().split('; Override launch')[0]
    first = f"; @launch kernel={KN} grid=(256,1,1) block=(512,1,1) lds=163840" if os.environ.get("ASLIST") else "; @launch grid=(256,1,1) block=(512,1,1) lds=163840"
    return HDR + first + f'''
.amdgcn_target "amdgcn-amd-amdhsa--gfx950"
.text
.globl {KN}
.p2align 8
.type {KN},@function
{body}
.section .rodata,"a"
.p2align 6
.amdhsa_kernel {KN}
  .amdhsa_next_free_vgpr 256
  .amdhsa_next_free_sgpr 100
  .amdhsa_accum_offset 144
  .amdhsa_group_segment_fixed_size 0
  .amdhsa_kernarg_size 136
  .amdhsa_user_sgpr_count 2
  .amdhsa_user_sgpr_kernarg_segment_ptr 1
  .amdhsa_system_sgpr_workgroup_id_x 1
.end_amdhsa_kernel
'''
if __name__ == "__main__":
    k2.FUSED[0] = 1
    open(sys.argv[1], 'w').write(build(pr=('prof' in sys.argv)))
```

```python
from dsl import Prog
from k2 import *
from k1 import ln1, bf16_round_v, fbits, GK0, GK1, wpre, XB
from k1b import Buf
import math
import k2
from reblk import rb_load, rb_store

def gelu_stream(A, T, Rr):
    B = Buf()
    for q in range(8):
        a, b = A + 2 * q, A + 2 * q + 1
        t0, t1 = T + (q & 1) * 2, T + 1 + (q & 1) * 2
        B(f"v_mul_f32 v{a}, v{a}, v{Rr}")
        B(f"v_mul_f32 v{b}, v{b}, v{Rr}")
        B(f"v_mul_f32 v{t0}, v{a}, v{a}")
        B(f"v_mul_f32 v{t1}, v{b}, v{b}")
        B(f"v_fma_f32 v{t0}, v{t0}, s64, v{T+4}")
        B(f"v_fma_f32 v{t1}, v{t1}, s64, v{T+4}")
        B(f"v_mul_f32 v{t0}, v{t0}, v{a}")
        B(f"v_mul_f32 v{t1}, v{t1}, v{b}")
        B(f"v_exp_f32 v{t0}, v{t0}")
        B(f"v_exp_f32 v{t1}, v{t1}")
        B(f"v_add_f32 v{t0}, 1.0, v{t0}")
        B(f"v_add_f32 v{t1}, 1.0, v{t1}")
        B(f"v_rcp_f32 v{t0}, v{t0}")
        B(f"v_rcp_f32 v{t1}, v{t1}")
        B(f"v_mul_f32 v{a}, v{a}, v{t0}")
        B(f"v_mul_f32 v{b}, v{b}, v{t1}")
        B(f"v_cvt_pk_bf16_f32 v{A+q}, v{a}, v{b}")
    return B.l

def gen_k1(P, aux=None, pr=False):
    P.label("k1_kernel")
    P("s_cmp_ge_u32 s2, 256")
    P("s_cbranch_scc1 k1_end")
    P("s_load_dwordx2 s[4:5], s[0:1], 0")
    P("s_load_dwordx2 s[6:7], s[0:1], 80")
    P("s_load_dwordx2 s[8:9], s[0:1], 128")
    P("s_load_dwordx2 s[10:11], s[0:1], 120")
    P("s_load_dwordx2 s[40:41], s[0:1], 88")
    if k2.FUSED[0]:
        P("s_load_dwordx4 s[68:71], s[0:1], 8")
        P("s_load_dwordx4 s[72:75], s[0:1], 24")
        P("s_load_dwordx4 s[76:79], s[0:1], 40")
        P("s_load_dwordx4 s[80:83], s[0:1], 56")
    P("v_lshrrev_b32 v1, 6, v0")
    P("v_and_b32 v0, 63, v0")
    P("v_readfirstlane_b32 s3, v1")
    P("s_mov_b32 s62, 0x3f803f80")
    P(f"s_mov_b32 s63, {fbits(GK0)}")
    P(f"s_mov_b32 s64, {fbits(GK1)}")
    P("s_and_b32 s12, s2, 7")
    P("s_lshr_b32 s13, s2, 3")
    P("s_lshl_b32 s14, s12, 2")
    P("s_and_b32 s15, s13, 3")
    P("s_add_u32 s14, s14, s15")
    P("s_lshr_b32 s15, s13, 2")
    X = 32; T = 2; VB = 16
    P(f"v_lshrrev_b32 v{T}, 3, v0")
    P(f"v_and_b32 v{T+1}, 7, v0")
    P(f"v_lshlrev_b32 v{T+2}, 4, v{T+1}")
    P(f"v_lshl_add_u32 v{T+2}, v{T}, 10, v{T+2}")
    P("s_lshl_b32 s52, s14, 16")
    P("s_lshl_b32 s53, s3, 13")
    P("s_add_u32 s52, s52, s53")
    P(f"v_lshrrev_b32 v{T+4}, 4, v0")
    P(f"v_and_b32 v{T+5}, 15, v0")
    P("s_lshl_b32 s53, s3, 2")
    P(f"v_add_u32 v{VB}, s53, v{T+4}")
    P("s_movk_i32 s53, 3584")
    P(f"v_mul_u32_u24 v{VB}, s53, v{VB}")
    P(f"v_lshl_add_u32 v{VB}, v{T+5}, 4, v{VB}")
    P("s_lshl_b32 s54, s15, 8")
    P("s_add_u32 s55, s54, 1792")
    P("s_waitcnt lgkmcnt(0)")
    srd(P, 16, 4, 2048 * 512 * 2)
    issued = []
    for e in range(8):
        P(f"buffer_load_dwordx4 v[{X+4*e}:{X+4*e+3}], v{T+2}, s[16:19], s52 offen offset:{128*e}")
        issued.append(('X', e))
    srd(P, 20, 6, 512 * 1792 * 2)
    srd(P, 24, 8, 0x400000, WS_Z2F)
    srd(P, 28, 8, 0x400000, WS_Z1F)
    srd(P, 32, 8, 32 * 2 * 28 * 512, WS_ST)
    srd(P, 36, 40, 2048 * 2048 * 2)
    srd(P, 44, 8, 0x800000, WS_WF)
    VXW = 23
    P("s_and_b32 s53, s3, 1")
    P("s_lshl_b32 s53, s53, 3")
    P(f"v_add_u32 v{T+3}, s53, v{T}")
    P(f"v_xor_b32 v{T+3}, v{T+3}, v{T+1}")
    P(f"v_lshlrev_b32 v{T+3}, 4, v{T+3}")
    P(f"v_lshl_add_u32 v{T+3}, v{T}, 10, v{T+3}")
    P("s_lshl_b32 s53, s3, 13")
    P(f"s_add_u32 s53, s53, {XB}")
    P(f"v_add_u32 v{VXW}, s53, v{T+3}")
    P(f"v_xor_b32 v{VXW+1}, 128, v{VXW}")
    if aux is not None:
        P("s_cmp_eq_u32 s15, 7")
        P("s_cbranch_scc1 k1_aux")
    ACC2, ACC1, WFR = 64, 80, 96
    def land(u):
        if u < 8: return f"v[{WFR+4*u}:{WFR+4*u+3}]"
        if u < 12: return f"v[{ACC1+4*(u-8)}:{ACC1+4*(u-8)+3}]"
        if u < 16: return f"a[{112+4*(u-12)}:{115+4*(u-12)}]"
        return f"v[{X+4*(u%8)}:{X+4*(u%8)+3}]"
    def bld(u):
        half, ku = u // 16, u % 16
        P(f"s_add_u32 s57, s{55 if half == 0 else 54}, {ku * 32 * 3584}")
        P(f"buffer_load_dwordx4 {land(u)}, v{VB}, s[20:23], s57 offen")
        issued.append(('B', u))
    def wait_for(tags):
        last = max(k for k, t in enumerate(issued) if t in tags)
        n = len(issued) - 1 - last
        P(f"s_waitcnt vmcnt({min(n,63)})")
    for u in range(4): bld(u)
    prof(P, 0, pr)
    P("s_lshl_b32 s53, s14, 3")
    P("v_mov_b32 v13, s53")
    P("s_or_b32 s53, s15, s3")
    P("s_cmp_lg_u32 s53, 0")
    P("s_cbranch_scc1 k1_nolead")
    P("s_memrealtime s[96:97]")
    P("s_waitcnt lgkmcnt(0)")
    P("s_or_b32 s96, s96, 1")
    P("v_mov_b32 v14, s96")
    P("v_mov_b32 v15, s97")
    P("s_mov_b64 exec, 1")
    P("global_store_dwordx2 v13, v[14:15], s[10:11] sc0 sc1")
    P("s_mov_b64 exec, -1")
    P.label("k1_nolead")
    if PRI[0]:
        P("s_cmp_lt_u32 s3, 4")
        P("s_cbranch_scc1 k1_nopri")
        P("s_setprio 1")
        P.label("k1_nopri")
    VLW = 17
    P(f"v_lshlrev_b32 v{T}, 2, v{T+4}")
    P(f"v_xor_b32 v{T}, v{T}, v{T+5}")
    P(f"v_lshlrev_b32 v{T}, 4, v{T}")
    P(f"v_lshl_add_u32 v{T}, v{T+4}, 8, v{T}")
    P("s_lshl_b32 s53, s3, 10")
    P(f"v_add_u32 v{VLW}, s53, v{T}")
    P(f"v_add_u32 v{VLW+1}, 0x10000, v{VLW}")
    def bwr(u):
        addr = (u % 12) * 8192
        wait_for({('B', u)})
        P(f"ds_write_b128 v{VLW+(addr>>16)}, {land(u)} offset:{addr & 0xffff}")
    P("s_lshr_b32 s59, s3, 2")
    P("s_and_b32 s58, s3, 3")
    VT = 19
    P(f"v_lshrrev_b32 v{T}, 4, v0")
    P(f"v_bfe_u32 v{T+1}, v0, 2, 2")
    P(f"v_and_b32 v{T+2}, 3, v0")
    P(f"v_and_b32 v{T+3}, 1, v{T}")
    P(f"v_lshl_add_u32 v{T+2}, v{T+3}, 2, v{T+2}")
    P(f"v_lshrrev_b32 v{T+3}, 1, v{T+2}")
    P(f"v_and_b32 v{T+4}, 1, v{T+2}")
    P(f"v_lshrrev_b32 v{T}, 1, v{T}")
    P(f"v_lshl_add_u32 v{T}, v{T}, 3, v{T+1}")
    P(f"v_lshlrev_b32 v{T}, 8, v{T}")
    P(f"v_lshlrev_b32 v{T+1}, 6, v{T+1}")
    P("s_lshl_b32 s53, s58, 6")
    P(f"v_lshlrev_b32 v{T+5}, 5, v{T+4}")
    P(f"v_lshl_add_u32 v{T+5}, v{T+3}, 3, v{T+5}")
    P(f"v_add_u32 v{T+5}, s53, v{T+5}")
    P(f"v_xor_b32 v{T+5}, v{T+5}, v{T+1}")
    P(f"v_add_u32 v{VT}, v{T+5}, v{T}")
    P(f"v_add_u32 v{VT+1}, 0x10000, v{VT}")
    P(f"v_and_b32 v{T+5}, 1, v{T+3}")
    P(f"v_lshlrev_b32 v{T+5}, 5, v{T+5}")
    P(f"v_lshl_add_u32 v{T+5}, v{T+4}, 4, v{T+5}")
    P(f"v_lshrrev_b32 v{T+3}, 1, v{T+3}")
    P(f"v_lshl_add_u32 v{T+5}, v{T+3}, 3, v{T+5}")
    P(f"v_add_u32 v{T+5}, s53, v{T+5}")
    P(f"v_xor_b32 v{T+5}, v{T+5}, v{T+1}")
    P(f"v_add_u32 v{VT+2}, v{T+5}, v{T}")
    P(f"v_add_u32 v{VT+3}, 0x10000, v{VT+2}")
    VXR = 1
    P(f"v_and_b32 v{T}, 31, v0")
    P(f"v_lshrrev_b32 v{T+1}, 5, v0")
    P(f"v_and_b32 v{T+2}, 15, v0")
    P(f"v_xor_b32 v{T+1}, v{T+1}, v{T+2}")
    P(f"v_lshlrev_b32 v{T+1}, 4, v{T+1}")
    P(f"v_lshl_add_u32 v{T+1}, v{T}, 10, v{T+1}")
    P("s_lshl_b32 s53, s59, 15")
    P(f"s_add_u32 s53, s53, {XB}")
    P(f"v_add_u32 v{VXR}, s53, v{T+1}")
    RS = 8 * 8192
    P(f"v_lshlrev_b32 v{T}, 2, v{T}")
    P("s_lshl_b32 s53, s59, 7")
    P(f"s_add_u32 s53, s53, {RS}")
    P(f"v_add_u32 v28, s53, v{T}")
    P(f"v_lshrrev_b32 v{T}, 3, v0")
    P(f"v_lshlrev_b32 v{T}, 2, v{T}")
    P("s_lshl_b32 s53, s3, 5")
    P(f"s_add_u32 s53, s53, {RS}")
    P(f"v_add_u32 v29, s53, v{T}")
    def freg(st, i, sl, k0, n):
        r = WFR + 16 * st + 8 * i + 4 * sl + k0
        return f"v[{r}:{r+n-1}]"
    def rds(sp):
        out = []
        for i in range(2):
            u = 2 * sp + i
            addr = (u % 12) * 8192
            vb = VT + 2 * (sp // 8) + (addr >> 16)
            for sl in range(2):
                for rr in range(2):
                    out.append(f"ds_read_b64_tr_b16 {freg(sp & 1, i, sl, 2*rr, 2)}, v{vb} offset:{(addr & 0xffff) + 4096*sl + 1024*rr}")
        return out
    S, Q = 8, 9
    for r in range(4): P(f"v_mov_b32 v{S+r}, 0")
    for e in range(8):
        wait_for({('X', e)})
        for r in range(4 * e, 4 * e + 4):
            P(f"v_dot2c_f32_bf16 v{S+(r&1)*2}, s62, v{X+r}")
        if e % 2 == 1: bld(4 + e // 2)
    P(f"v_add_f32 v{S}, v{S}, v{S+2}")
    for m in ("quad_perm:[1,0,3,2]", "quad_perm:[2,3,0,1]", "row_half_mirror"):
        P(f"v_add_f32_dpp v{S}, v{S}, v{S} {m} row_mask:0xf bank_mask:0xf")
    P(f"v_mul_f32 v{S}, 0xbb000000, v{S}")
    bf16_round_v(P, S + 2, S, S + 4)
    P("s_mov_b32 s65, 0xffff0000")
    P("s_movk_i32 s66, 0x3f80")
    for e in range(8):
        for r in range(4 * e, 4 * e + 4):
            a, b = T + (r % 3) * 2, T + 1 + (r % 3) * 2
            P(f"v_dot2_f32_bf16 v{a}, v{X+r}, s66, v{S+2}")
            P(f"v_and_b32 v{b}, s65, v{X+r}")
            P(f"v_add_f32 v{b}, v{b}, v{S+2}")
            if r > 4 * e:
                a2, b2 = T + ((r - 1) % 3) * 2, T + 1 + ((r - 1) % 3) * 2
                P(f"v_cvt_pk_bf16_f32 v{X+r-1}, v{a2}, v{b2}")
        r = 4 * e + 3
        bld(8 + e)
        P(f"v_cvt_pk_bf16_f32 v{X+r}, v{T+(r%3)*2}, v{T+1+(r%3)*2}")
        P(f"ds_write_b128 v{VXW+(e&1)}, v[{X+4*e}:{X+4*e+3}] offset:{256*(e>>1)}")
    for u in range(4): bwr(u)
    for r in range(32):
        P(f"v_dot2c_f32_bf16 v{Q+(r&1)*2}, v{X+r}, v{X+r}")
    P(f"v_add_f32 v{Q}, v{Q}, v{Q+2}")
    for m in ("quad_perm:[1,0,3,2]", "quad_perm:[2,3,0,1]", "row_half_mirror"):
        P(f"v_add_f32_dpp v{Q}, v{Q}, v{Q} {m} row_mask:0xf bank_mask:0xf")
    P(f"v_sub_f32 v{S}, v{S}, v{S+2}")
    P(f"v_mul_f32 v{Q}, 0x3b000000, v{Q}")
    P(f"v_fma_f32 v{Q}, -v{S}, v{S}, v{Q}")
    P(f"v_max_f32 v{Q}, 0, v{Q}")
    bf16_round_v(P, Q, Q, S + 2)
    P(f"v_add_f32 v{Q}, 0x3727c5ac, v{Q}")
    bf16_round_v(P, Q, Q, S + 2)
    P(f"v_sqrt_f32 v{Q}, v{Q}")
    bf16_round_v(P, Q, Q, S + 2)
    P(f"v_rcp_f32 v{Q}, v{Q}")
    P(f"ds_write_b32 v29, v{Q}")
    P("s_waitcnt lgkmcnt(0)")
    P("s_barrier")
    for s_ in rds(0): P(s_)
    RR = 28
    P(f"ds_read_b32 v{RR}, v28")
    def xfr(q, his):
        P(f"v_xor_b32 v{T+(q&1)}, {32*q}, v{VXR}")
        for hi in his:
            k16 = 8 * hi + q
            P(f"ds_read_b128 a[{4*k16}:{4*k16+3}], v{T+(q&1)} offset:{256*hi}")
    for q in range(8):
        xfr(q, (0, 1))
        if q >= 4: bwr(q)
    prof(P, 1, pr)
    hooks = {}
    def step(sp, vside=()):
        if FINE[0] and sp < 12: P(f"s_memtime s[{68+2*sp}:{69+2*sp}]")
        P("s_waitcnt lgkmcnt(0)")
        if sp % 2 == 1 and sp < 15: P("s_barrier")
        if sp in hooks: hooks[sp]()
        acc = ACC2 if sp < 8 else ACC1
        rd = rds(sp + 1) if sp < 15 else []
        vside = list(vside)
        per = (len(vside) + 3) // 4
        k = 0
        for i in range(2):
            u = 2 * sp + i
            for sl in range(2):
                k16 = 2 * (u % 16) + sl
                P(f"v_mfma_f32_32x32x16_bf16 v[{acc}:{acc+15}], {freg(sp & 1, i, sl, 0, 4)}, a[{4*k16}:{4*k16+3}], {'0' if k16 == 0 else f'v[{acc}:{acc+15}]'}")
                if k == 0:
                    for x_ in rd: P(x_)
                if k in (1, 2) and sp >= 1 and 2 * sp + 5 + k < 32: bwr(2 * sp + 5 + k)
                if sp in (0, 1) and k in (1, 2, 3, 0): xfr(4 * sp + k, (2,))
                if sp == 2: xfr(k, (3,))
                if sp == 5: xfr(4 + k, (3,))
                if k in (1, 3) and sp < 4: bld(16 + 2 * sp + (k >> 1))
                if k in (0, 1) and 6 <= sp <= 9: bld(24 + 2 * (sp - 6) + k)
                if k == 3 and sp == 5:
                    P("global_load_dwordx2 v[14:15], v13, s[10:11] sc0 sc1"); issued.append(('N', 0))
                for _ in range(per):
                    if vside: P(vside.pop(0))
                k += 1
        assert not vside
    def split(lst, n):
        k = (len(lst) + n - 1) // n
        return [lst[i*k:(i+1)*k] for i in range(n)]
    for sp in range(8): step(sp)
    prof(P, 2, pr)
    Z2 = ACC2
    GT = 8
    P(f"v_mov_b32 v{GT+4}, s63")
    gs = gelu_stream(ACC2, GT, RR)
    SS = Buf()
    S2, Q2 = ACC2 + 8, ACC2 + 9
    SS(f"v_mov_b32 v{S2}, 0")
    SS(f"v_mov_b32 v{Q2}, 0")
    for q in range(8):
        SS(f"v_dot2c_f32_bf16 v{S2}, s62, v{Z2+q}")
        SS(f"v_dot2c_f32_bf16 v{Q2}, v{Z2+q}, v{Z2+q}")
    SS(f"v_mov_b32 v{S2+2}, v{S2}")
    SS(f"v_mov_b32 v{S2+3}, v{Q2}")
    SS(f"v_permlane32_swap_b32 v{S2}, v{S2+2}")
    SS(f"v_permlane32_swap_b32 v{Q2}, v{S2+3}")
    SS(f"v_add_f32 v{S2}, v{S2}, v{S2+2}")
    SS(f"v_add_f32 v{Q2}, v{Q2}, v{S2+3}")
    SS(f"v_lshlrev_b32 v{S2+4}, 4, v0")
    SS("s_lshl_b32 s53, s14, 1")
    SS("s_add_u32 s53, s53, s59")
    SS("s_mul_i32 s60, s53, 14336")
    SS("s_lshl_b32 s53, s15, 2")
    SS("s_add_u32 s53, s53, s58")
    SS("s_lshl_b32 s53, s53, 9")
    SS("s_add_u32 s53, s53, s60")
    av = split(gs + SS.l, GSPLIT[0])
    for k in range(GSPLIT[0]): step(8 + k, av[k])
    wait_for({('N', 0)})
    P("s_mov_b32 s56, 0")
    P.label("k1_nonce")
    P("v_readfirstlane_b32 s96, v14")
    P("v_readfirstlane_b32 s97, v15")
    P("s_cmp_lg_u32 s96, 0")
    P("s_cbranch_scc1 k1_nonce_ok")
    P("global_load_dwordx2 v[14:15], v13, s[10:11] sc0 sc1")
    P("s_add_u32 s56, s56, 1")
    P("s_waitcnt vmcnt(0)")
    P("s_cmp_lt_u32 s56, 0x200000")
    P("s_cbranch_scc1 k1_nonce")
    P.label("k1_nonce_ok")
    P(f"v_mov_b32 v{S2+2}, v14")
    P(f"v_mov_b32 v{S2+3}, v15")
    P("s_mov_b32 exec_hi, 0")
    P(f"buffer_store_dwordx4 v[{S2}:{S2+3}], v{S2+4}, s[32:35], s53 offen sc0 sc1")
    issued.append(('S', 0))
    P("s_mov_b64 exec, -1")
    if REBLK[0] == 1:
        rb_load(P, 0, 30)
        for _ in range(4): issued.append(('R', 0))
    prof(P, 3, pr)
    for sp in range(8 + GSPLIT[0], GAT[0]): step(sp)
    F = k2.FUSED[0]
    GA = 16
    P(f"v_lshlrev_b32 v{S2+4}, 4, v0")
    P("s_mul_i32 s61, s58, 3584")
    P("s_add_u32 s61, s61, s60")
    P(f"v_and_b32 v{S2+5}, 31, v0")
    P(f"v_lshlrev_b32 v{S2+5}, 4, v{S2+5}")
    def gather():
        for k in range(4):
            P(f"buffer_load_dwordx4 a[{GA+4*k}:{GA+3+4*k}], v{S2+4+(k==3)}, s[32:35], s61 offen offset:{1024*k} sc0 sc1")
    gather()
    for sp in range(GAT[0], 16): step(sp)
    if FINE[0]:
        P("s_lshl_b32 s92, s2, 3")
        P("s_add_u32 s92, s92, s3")
        P("s_lshl_b32 s92, s92, 6")
        P(f"s_add_u32 s92, s92, {WS_PROF + 3*0x40000}")
        P("v_mov_b32 v25, s92")
        for k in range(12):
            P(f"v_mov_b32 v26, s{68+2*k}")
            P(f"global_store_dword v25, v26, s[8:9] offset:{4*k}")
    prof(P, 4, pr)
    def z1epi():
        Z1 = ACC1
        P(f"v_and_b32 v{T}, 15, v0")
        P(f"v_bfe_u32 v{T+1}, v0, 4, 1")
        P(f"v_lshrrev_b32 v{T+2}, 5, v0")
        P(f"v_lshlrev_b32 v{T}, 4, v{T}")
        P(f"v_lshl_add_u32 v{T}, v{T+1}, 10, v{T}")
        P(f"v_lshl_add_u32 v{T}, v{T+2}, 9, v{T}")
        P("s_mul_i32 s53, s14, 28")
        P("s_lshl_b32 s56, s15, 2")
        P("s_add_u32 s53, s53, s56")
        P("s_add_u32 s53, s53, s58")
        P("s_lshl_b32 s53, s53, 12")
        P("s_lshl_b32 s56, s59, 11")
        P("s_add_u32 s53, s53, s56")
        for s_ in gelu_stream(ACC1, GT, RR): P(s_)
        P(f"buffer_store_dwordx4 v[{Z1}:{Z1+3}], v{T}, s[28:31], s53 offen sc1")
        P(f"buffer_store_dwordx4 v[{Z1+4}:{Z1+7}], v{T}, s[28:31], s53 offen offset:256 sc1")
    ZL = F and k2.Z1LATE[0]
    if not ZL: z1epi()
    prof(P, 5, pr)
    if REBLK[0] == 1:
        P("s_cmp_lg_u32 s58, 0")
        P("s_cbranch_scc1 k1_rbw")
        P("s_waitcnt vmcnt(16)")
        P("s_branch k1_rbs")
        P.label("k1_rbw")
        P("s_waitcnt vmcnt(2)")
        P.label("k1_rbs")
        rb_store(P, 0, XB, T, X + 16)
    PS = WFR
    MS = XB + 9216 if F else 2 * 8192
    S, Q = PS, PS + 1
    P("s_mov_b32 s56, 0")
    P(f"s_waitcnt vmcnt({0 if ZL else 2})")
    P.label("k1_poll")
    for k in range(4):
        for r in range(4): P(f"v_accvgpr_read_b32 v{X+4*k+r}, a{GA+4*k+r}")
    P(f"v_mul_f32 v{X+12}, 0.5, v{X+12}")
    P(f"v_mul_f32 v{X+13}, 0.5, v{X+13}")
    for k in range(4):
        P(f"v_xor_b32 v{X+4*k+2}, v{X+4*k+2}, v14")
        P(f"v_xor_b32 v{X+4*k+3}, v{X+4*k+3}, v15")
        P(f"v_or_b32 v{X+4*k+2}, v{X+4*k+2}, v{X+4*k+3}")
    P(f"v_or_b32 v{X+2}, v{X+2}, v{X+6}")
    P(f"v_or_b32 v{X+10}, v{X+10}, v{X+14}")
    P(f"v_or_b32 v{X+2}, v{X+2}, v{X+10}")
    P(f"v_cmp_ne_u32 vcc, 0, v{X+2}")
    P("s_add_u32 s56, s56, 1")
    P("s_cmp_eq_u64 vcc, 0")
    P("s_cbranch_scc1 k1_got")
    gather()
    P("s_waitcnt vmcnt(0)")
    P("s_cmp_lt_u32 s56, 0x100000")
    P("s_cbranch_scc1 k1_poll")
    P.label("k1_got")
    for r in range(2):
        P(f"v_add_f32 v{X+r}, v{X+r}, v{X+4+r}")
        P(f"v_add_f32 v{X+8+r}, v{X+8+r}, v{X+12+r}")
        P(f"v_add_f32 v{PS+r}, v{X+r}, v{X+8+r}")
    P(f"v_mov_b32 v{PS+2}, v{PS}")
    P(f"v_mov_b32 v{PS+3}, v{PS+1}")
    P(f"v_permlane32_swap_b32 v{PS}, v{PS+2}")
    P(f"v_permlane32_swap_b32 v{PS+1}, v{PS+3}")
    P(f"v_add_f32 v{PS}, v{PS}, v{PS+2}")
    P(f"v_add_f32 v{PS+1}, v{PS+1}, v{PS+3}")
    P(f"v_and_b32 v{VT+3}, 31, v0")
    P(f"v_lshlrev_b32 v{VT+3}, 3, v{VT+3}")
    P("s_lshl_b32 s53, s59, 8")
    P(f"s_add_u32 s53, s53, {MS}")
    P(f"v_add_u32 v{VT+3}, s53, v{VT+3}")
    P("s_lshl_b32 s53, s58, 9")
    P(f"v_add_u32 v{T}, s53, v{VT+3}")
    P(f"ds_write_b64 v{T}, v[{S}:{Q}]")
    if 't1' in k2.HOOKS: k2.HOOKS['t1'](P)
    P(f"v_and_b32 v{T}, 31, v0")
    P(f"v_lshrrev_b32 v{T+1}, 5, v0")
    P(f"v_lshlrev_b32 v{T}, 6, v{T}")
    P(f"v_lshl_add_u32 v{T}, v{T+1}, 5, v{T}")
    if F:
        P("s_lshl_b32 s53, s58, 11")
        P("s_lshl_b32 s56, s59, 14")
        P("s_add_u32 s53, s53, s56")
        P(f"s_add_u32 s53, s53, {XB + 1024}")
    else:
        P("s_lshl_b32 s53, s3, 11")
    P(f"v_add_u32 v{VT}, s53, v{T}")
    P(f"v_lshrrev_b32 v{T+1}, 4, v0")
    P(f"v_bfe_u32 v{T+2}, v0, 2, 2")
    P(f"v_and_b32 v{T+3}, 3, v0")
    P(f"v_lshl_add_u32 v{T+1}, v{T+1}, 3, v{T+2}")
    P(f"v_lshlrev_b32 v{T+1}, 6, v{T+1}")
    P(f"v_lshl_add_u32 v{T+1}, v{T+3}, 3, v{T+1}")
    P(f"v_add_u32 v{VT+1}, s53, v{T+1}")
    P(f"v_lshlrev_b32 v{VT+2}, 4, v0")
    P("s_lshl_b32 s60, s14, 1")
    P("s_add_u32 s60, s60, s59")
    for tl in range(2):
        P("s_lshl_b32 s53, s15, 3")
        P("s_lshl_b32 s61, s58, 1")
        P("s_add_u32 s53, s53, s61")
        if tl: P("s_add_u32 s53, s53, 1")
        P("s_mul_i32 s61, s53, 37")
        P("s_lshr_b32 s61, s61, 8")
        P("s_mul_i32 s65, s61, 7")
        P("s_sub_u32 s53, s53, s65")
        P("s_add_u32 s65, s53, 6")
        P("s_sub_u32 s66, s53, 1")
        P("s_cmp_eq_u32 s53, 0")
        P("s_cselect_b32 s65, s65, s66")
        P("s_bitcmp1_b32 s61, 0")
        P("s_cselect_b32 s53, s65, s53")
        P("s_lshl_b32 s61, s61, 6")
        P("s_add_u32 s61, s61, s60")
        P("s_mul_i32 s61, s61, 7")
        P("s_add_u32 s61, s61, s53")
        P(f"s_lshl_b32 s{88+tl}, s61, 10")
    U = X
    for r in range(8):
        P(f"v_lshlrev_b32 v{U+2*r}, 16, v{Z2+r}")
        P(f"v_and_b32 v{U+2*r+1}, 0xffff0000, v{Z2+r}")
    P("s_waitcnt lgkmcnt(0)")
    P("s_barrier")
    for k in range(4): P(f"ds_read_b64 v[{PS+2*k}:{PS+2*k+1}], v{VT+3} offset:{512*k}")
    P("s_waitcnt lgkmcnt(0)")
    for r in range(2):
        P(f"v_add_f32 v{PS+r}, v{PS+r}, v{PS+2+r}")
        P(f"v_add_f32 v{PS+4+r}, v{PS+4+r}, v{PS+6+r}")
        P(f"v_add_f32 v{PS+r}, v{PS+r}, v{PS+4+r}")
    P(f"v_mul_f32 v{S}, {fbits(1/896)}, v{S}")
    P(f"v_mul_f32 v{Q}, {fbits(1/896)}, v{Q}")
    P(f"v_fma_f32 v{Q}, -v{S}, v{S}, v{Q}")
    P(f"v_max_f32 v{Q}, 0, v{Q}")
    bf16_round_v(P, S, S, T + 2)
    bf16_round_v(P, Q, Q, T + 2)
    P(f"v_add_f32 v{Q}, 0x3727c5ac, v{Q}")
    bf16_round_v(P, Q, Q, T + 2)
    P(f"v_sqrt_f32 v{Q}, v{Q}")
    bf16_round_v(P, Q, Q, T + 2)
    P(f"v_rcp_f32 v{Q}, v{Q}")
    for r in range(16): P(f"v_sub_f32 v{U+r}, v{U+r}, v{S}")
    for r in range(16): P(f"v_mul_f32 v{U+r}, v{U+r}, v{Q}")
    for r in range(8): P(f"v_cvt_pk_bf16_f32 v{Z2+r}, v{U+2*r}, v{U+2*r+1}")
    P(f"ds_write_b128 v{VT}, v[{Z2}:{Z2+3}]")
    P(f"ds_write_b128 v{VT}, v[{Z2+4}:{Z2+7}] offset:16")
    P("s_waitcnt lgkmcnt(0)")
    O = X + 16
    for tl in range(2):
        for rr in range(2):
            P(f"ds_read_b64_tr_b16 v[{O+4*tl+2*rr}:{O+4*tl+2*rr+1}], v{VT+1} offset:{32*tl + 256*rr}")
    P("s_waitcnt lgkmcnt(0)")
    for tl in range(2):
        P(f"buffer_store_dwordx4 v[{O+4*tl}:{O+4*tl+3}], v{VT+2}, s[24:27], s{88+tl} offen sc1")
    prof(P, 6, pr)
    if pr: P("s_waitcnt vmcnt(0)")
    prof(P, 7, pr)
    if F:
        k2.HOOKS['sig1'](P, 0)
        if ZL: z1epi()
    P("s_endpgm")
    if aux is not None:
        P.label("k1_aux")
        prof(P, 0, pr)
        aux(P, X, T, VXW, pr)
    P.label("k1_end")
    P("s_endpgm")
    return dict(vgpr=128, agpr=128, lds=160 * 1024)
GSPLIT = [3]
FINE = [0]
PRI = [0]
GAT = [14]
REBLK = [0]
```

```python
from dsl import Prog
WS_Z2F = 0x0000000
WS_Z1F = 0x0400000
WS_HF  = 0x0800000
WS_XNT = 0x0C00000
WS_YAT = 0x0E00000
WS_KR  = 0x1000000
WS_WOF = 0x1800000
WS_ST  = 0x1900000
WS_WF  = 0x2000000
KR_STRIDE = 8704

def srd(P, d, base, nbytes, off=0):
    if off:
        P(f"s_add_u32 s{d}, s{base}, {off}")
        P(f"s_addc_u32 s{d+1}, s{base+1}, 0")
        P(f"s_and_b32 s{d+1}, s{d+1}, 0xffff")
    else:
        P(f"s_mov_b32 s{d}, s{base}")
        P(f"s_and_b32 s{d+1}, s{base+1}, 0xffff")
    P(f"s_mov_b32 s{d+2}, {nbytes}")
    P(f"s_mov_b32 s{d+3}, 0x00020000")

WS_PROF = 0x1A00000
PROF_K = [0]
PROF_V = [26]
PRIO = [0, 0]
LF = [0]
FUSED = [0]
HOOKS = {}
import os
Z1LATE = [int(os.environ.get('Z1LATE', '0'))]
K2PRE = [0]
EXP = [0]
def prof(P, idx, on):
    if not on: return
    P("s_memrealtime s[90:91]")
    P("s_lshl_b32 s92, s2, 3")
    P("s_add_u32 s92, s92, s3")
    P("s_lshl_b32 s92, s92, 6")
    P(f"s_add_u32 s92, s92, {WS_PROF + PROF_K[0]*0x40000 + idx*8}")
    P("s_waitcnt lgkmcnt(0)")
    b_ = PROF_V[0]
    P(f"v_mov_b32 v{b_}, s90")
    P(f"v_mov_b32 v{b_+1}, s91")
    P(f"v_mov_b32 v{b_-1}, s92")
    P(f"global_store_dwordx2 v{b_-1}, v[{b_}:{b_+1}], s[8:9]")

def epi_addr(P, sw):
    P("s_and_b32 s53, s15, 1")
    P("s_mul_i32 s58, s15, 7")
    P("s_add_u32 s58, s58, s53")
    P("s_lshr_b32 s58, s58, 1")
    P("s_lshl_b32 s59, s53, 2")
    P("s_sub_u32 s59, 3, s59")
    P("s_add_u32 s59, s59, s58")
    P("s_mul_i32 s60, s14, 28")
    P("s_add_u32 s58, s58, s60")
    P("s_add_u32 s59, s59, s60")
    P("s_lshl_b32 s58, s58, 2")
    P("s_lshl_b32 s59, s59, 2")
    P(f"s_add_u32 s58, s58, s{sw}")
    P(f"s_add_u32 s59, s59, s{sw}")
    P("s_lshl_b32 s58, s58, 10")
    P("s_lshl_b32 s59, s59, 10")
    P("s_lshl_b32 s53, s53, 3")
    P("s_add_u32 s59, s59, s53")
    P("s_add_u32 s60, s58, 8192")
    P("s_lshl_b32 s61, s14, 7")
    P(f"s_lshl_b32 s53, s{sw}, 5")
    P("s_add_u32 s61, s61, s53")
def epi_math(P, R, Z1, H, BI, G, q):
    a, b = R + 2 * q, R + 2 * q + 1
    P(f"v_add_f32 v{a}, v{a}, v{BI}")
    P(f"v_add_f32 v{b}, v{b}, v{BI}")
    P(f"v_cvt_pk_bf16_f32 v{G}, v{a}, v{b}")
    P(f"v_lshlrev_b32 v{G+1}, 16, v{Z1+q}")
    P(f"v_and_b32 v{G+2}, s62, v{Z1+q}")
    P(f"v_lshlrev_b32 v{a}, 16, v{G}")
    P(f"v_and_b32 v{b}, s62, v{G}")
    P(f"v_mul_f32 v{a}, v{a}, v{G+1}")
    P(f"v_mul_f32 v{b}, v{b}, v{G+2}")
    P(f"v_cvt_pk_bf16_f32 v{H+q}, v{a}, v{b}")
CW_AREA = 16384
XPO = 8704
from kgen import kgen
def gen_conv(P, CB, pr):
    prof(P, 0, pr)
    if PRIO[1] == 9: P("s_endpgm")
    elif PRIO[1]: P(f's_setprio {PRIO[1]}')
    T = 2
    P("s_sub_u32 s52, s3, 4")
    P("s_lshr_b32 s53, s52, 1")
    P("s_lshl_b32 s54, s2, 1")
    P("s_add_u32 s54, s54, s53")
    P(f"s_mul_i32 s55, s52, {CW_AREA}")
    P(f"s_add_u32 s55, s55, {CB}")
    PAR = 104
    P("s_xor_b32 s60, s52, 1")
    P(f"s_mul_i32 s60, s60, {CW_AREA}")
    P(f"s_add_u32 s60, s60, {CB}")
    P("s_and_b32 s61, s52, 1")
    if not FUSED[0]:
        P(f"v_mov_b32 v{T}, s55")
        P(f"v_mov_b32 v{T+1}, 0")
        P(f"ds_write_b32 v{T}, v{T+1} offset:16380")
        P(f"v_lshlrev_b32 v{T}, 2, v0")
        P("s_lshl_b32 s53, s54, 8")
        P(f"v_add_u32 v{T}, s53, v{T}")
        P("s_lshl_b32 s53, s54, 1")
        P(f"v_mov_b32 v{T+1}, s53")
        P("s_waitcnt lgkmcnt(0)")
        for k in range(6):
            P(f"global_load_dword v{PAR+k}, v{T}, s[{68+2*k}:{69+2*k}]")
        P(f"global_load_ushort v{PAR+6}, v{T+1}, s[80:81]")
        P(f"global_load_ushort v{PAR+7}, v{T+1}, s[10:11]")
        if K2PRE[0]:
            P("s_and_b32 s56, s2, 7")
            P("s_lshl_b32 s56, s56, 5")
            P("s_lshr_b32 s57, s2, 3")
            P("s_add_u32 s56, s56, s57")
            P("s_lshl_b32 s56, s56, 15")
            P("s_lshl_b32 s57, s52, 13")
            P("s_add_u32 s56, s56, s57")
            P(f"v_lshlrev_b32 v{T+2}, 7, v0")
            P(f"buffer_load_dword v{PAR+8}, v{T+2}, s[16:19], s56 offen")
        P("s_barrier")
        P("s_waitcnt vmcnt(1)" if K2PRE[0] else "s_waitcnt vmcnt(0)")
    P(f"v_lshlrev_b32 v{PAR+6}, 16, v{PAR+6}")
    prof(P, 3, pr)
    def xload():
        if FUSED[0]: P.lines.append(__import__('dsl').Ins('@XPOLL'))
        P("s_lshl_b32 s59, s54, 12")
        P(f"v_lshlrev_b32 v{T}, 4, v0")
        P(f"s_add_u32 m0, s55, {XPO+512}")
        P("s_nop 0")
        for e in range(4):
            P(f"buffer_load_dwordx4 v{T}, s[36:39], s59 offen offset:{1024*e} lds")
        P(f"v_mov_b32 v{T+2}, 0")
        P(f"v_mov_b32 v{T+3}, 0")
        P(f"v_lshlrev_b32 v{T+1}, 3, v0")
        P(f"v_add_u32 v{T+1}, s55, v{T+1}")
        P(f"ds_write_b64 v{T+1}, v[{T+2}:{T+3}] offset:{XPO}")
    if FUSED[0]:
        kgen(P, PAR, 55, 60, 61, None); xload()
    else:
        kgen(P, PAR, 55, 60, 61, xload)
    prof(P, 2, pr)
    P(f"v_mov_b32 v{T+9}, s57")
    P(f"v_mov_b32 v{T+8}, v{PAR+7}")
    P("s_lshl_b32 s57, s54, 12")
    VA = 12
    P(f"v_lshlrev_b32 v{T+8}, 16, v{T+8}")
    P(f"v_and_b32 v{T}, 15, v0")
    P(f"v_lshrrev_b32 v{T+1}, 5, v0")
    P(f"v_bfe_u32 v{T+2}, v0, 4, 1")
    P(f"v_lshl_add_u32 v{T+3}, v{T+1}, 4, v{T}")
    P(f"v_add_u32 v{T+3}, 9, v{T+3}")
    P(f"v_lshlrev_b32 v{T+4}, 3, v{T+2}")
    P(f"v_sub_u32 v{T+3}, v{T+3}, v{T+4}")
    P(f"v_and_b32 v{T+4}, 1, v{T+3}")
    P(f"v_sub_u32 v{T+3}, v{T+3}, v{T+4}")
    P(f"v_lshlrev_b32 v{T+3}, 1, v{T+3}")
    P("s_movk_i32 s58, 4288")
    P(f"v_mad_u32_u24 v{T+3}, v{T+4}, s58, v{T+3}")
    P("s_lshl_b32 s56, s61, 8")
    P("s_add_u32 s58, s55, s56")
    P(f"v_add_u32 v{VA}, s58, v{T+3}")
    for k in range(1, 4): P(f"v_add_u32 v{VA+k}, {1024*k}, v{VA}")
    P(f"v_sub_u32 v{T+3}, v{T}, v{T+1}")
    P(f"v_lshlrev_b32 v{T+3}, 5, v{T+3}")
    P(f"v_lshl_add_u32 v{T+3}, v{T+2}, 4, v{T+3}")
    P(f"s_add_u32 s58, s55, {XPO}")
    P("s_sub_u32 s56, s58, s56")
    P(f"v_add_u32 v{VA+4}, s56, v{T+3}")
    P(f"v_lshl_add_u32 v{T+3}, v{T}, 1, v{T+1}")
    P(f"v_lshlrev_b32 v{T+3}, 4, v{T+3}")
    P(f"v_xor_b32 v{T+4}, 1, v{T+2}")
    P(f"v_lshl_add_u32 v{T+3}, v{T+4}, 3, v{T+3}")
    P("s_lshl_b32 s56, s61, 11")
    P("s_add_u32 s58, s58, s56")
    P(f"v_add_u32 v{VA+5}, s58, v{T+3}")
    P(f"v_lshrrev_b32 v{T+3}, 4, v0")
    P(f"v_lshlrev_b32 v{T+3}, 3, v{T+3}")
    P(f"v_lshl_add_u32 v{VA+6}, v{T}, 5, v{T+3}")
    P(f"v_add_u32 v{VA+6}, s56, v{VA+6}")
    AF, BF, CACC = 20, 52, 84
    for r in range(32): P(f"v_mov_b32 v{CACC+r}, 0")
    P("s_waitcnt vmcnt(0) lgkmcnt(0)")
    def rds(st, dl):
        out = []
        for i in range(8):
            o = 128 * (i & 1) + 16 * dl
            ra = (lambda k: f"v[{AF+4*i+k}:{AF+4*i+k+1}]") if st == 0 else (lambda k: f"a[{4*i+k}:{4*i+k+1}]")
            rb = f"v[{BF+4*i}:{BF+4*i+3}]" if st == 0 else f"a[{32+4*i}:{32+4*i+3}]"
            out.append(f"ds_read2_b32 {ra(0)}, v{VA+(i>>1)} offset0:{o} offset1:{o+1}")
            out.append(f"ds_read2_b32 {ra(2)}, v{VA+(i>>1)} offset0:{o+2} offset1:{o+3}")
            out.append(f"ds_read_b128 {rb}, v{VA+4} offset:{512+512*i-64*dl}")
        return out
    def mf(st, side):
        side = list(side)
        for i in range(8):
            for w in range(8 - i):
                a = CACC + 4 * (i + w)
                ra = f"v[{AF+4*i}:{AF+4*i+3}]" if st == 0 else f"a[{4*i}:{4*i+3}]"
                rb = f"v[{BF+4*w}:{BF+4*w+3}]" if st == 0 else f"a[{32+4*w}:{32+4*w+3}]"
                P(f"v_mfma_f32_16x16x32_f16 v[{a}:{a+3}], {ra}, {rb}, v[{a}:{a+3}]")
                if side: P(side.pop(0))
    if FUSED[0]: P.lines.append(__import__('dsl').Ins('@Z1ISSUE 19 116'))
    for x_ in rds(0, 0): P(x_)
    P("s_mov_b32 s59, 0")
    P.label("k2_cloop")
    P("s_waitcnt lgkmcnt(0)")
    mf(0, rds(1, 1))
    P("s_waitcnt lgkmcnt(0)")
    mf(1, rds(0, 2))
    for k in range(4): P(f"v_add_u32 v{VA+k}, 128, v{VA+k}")
    P(f"v_subrev_u32 v{VA+4}, 128, v{VA+4}")
    P("s_add_u32 s59, s59, 1")
    P("s_cmp_lt_u32 s59, 2")
    P("s_cbranch_scc1 k2_cloop")
    P("s_waitcnt lgkmcnt(0)")
    P(f"v_lshlrev_b32 v{T}, 4, v0")
    P(f"v_add_u32 v{T+1}, s55, v{T}")
    for u in range(8):
        P(f"ds_write_b128 v{T+1}, v[{CACC+4*u}:{CACC+4*u+3}] offset:{1024*u}")
    P(f"v_mov_b32 v{T+3}, s55")
    P(f"v_mov_b32 v{T+4}, s60")
    P(f"v_mov_b32 v{T+5}, 2")
    P("s_lshl_b32 s56, s61, 12")
    P("s_add_u32 s58, s56, s60")
    P("s_add_u32 s56, s56, s55")
    P(f"v_add_u32 v{T+1}, s56, v{T}")
    P(f"v_add_u32 v{T+2}, s58, v{T}")
    P("s_waitcnt lgkmcnt(0)")
    P(f"ds_write_b32 v{T+3}, v{T+5} offset:16380")
    for k in range(4):
        P(f"ds_read_b128 v[{CACC+4*k}:{CACC+4*k+3}], v{T+1} offset:{1024*k}")
        P(f"ds_read_b64 v[{AF+2*k}:{AF+2*k+1}], v{VA+5} offset:{512+512*k}")
    P("s_mov_b32 s58, 0")
    P.label("k2_cp")
    P(f"ds_read_b32 v{T+5}, v{T+4} offset:16380")
    P("s_add_u32 s58, s58, 1")
    P("s_waitcnt lgkmcnt(0)")
    P(f"v_readfirstlane_b32 s56, v{T+5}")
    P("s_cmp_eq_u32 s56, 2")
    P("s_cbranch_scc1 k2_cg")
    P("s_sleep 1")
    P("s_cmp_lt_u32 s58, 0x400000")
    P("s_cbranch_scc1 k2_cp")
    P.label("k2_cg")
    for k in range(4):
        P(f"ds_read_b128 v[{CACC+16+4*k}:{CACC+19+4*k}], v{T+2} offset:{1024*k}")
    P("s_mov_b32 s62, 0xffff0000")
    P("s_waitcnt lgkmcnt(0)")
    for k in range(4):
        a = CACC + 4 * k; xl, xh = AF + 2 * k, AF + 2 * k + 1
        for i in range(4): P(f"v_add_f32 v{a+i}, v{a+i}, v{a+16+i}")
        for i in range(4): P(f"v_mul_f32 v{a+i}, v{a+i}, v{T+9}")
        P(f"v_cvt_pk_bf16_f32 v{T}, v{a}, v{a+1}")
        P(f"v_cvt_pk_bf16_f32 v{T+1}, v{a+2}, v{a+3}")
        P(f"v_cvt_f32_f16_sdwa v{a}, v{xh} dst_sel:DWORD dst_unused:UNUSED_PAD src0_sel:WORD_1")
        P(f"v_cvt_f32_f16 v{a+1}, v{xh}")
        P(f"v_cvt_f32_f16_sdwa v{a+2}, v{xl} dst_sel:DWORD dst_unused:UNUSED_PAD src0_sel:WORD_1")
        P(f"v_cvt_f32_f16 v{a+3}, v{xl}")
        for i in range(4): P(f"v_mul_f32 v{a+i}, v{a+i}, v{T+8}")
        P(f"v_cvt_pk_bf16_f32 v{T+2}, v{a}, v{a+1}")
        P(f"v_cvt_pk_bf16_f32 v{T+3}, v{a+2}, v{a+3}")
        for hh in range(2):
            P(f"v_lshlrev_b32 v{a+2*hh}, 16, v{T+hh}")
            P(f"v_and_b32 v{a+2*hh+1}, s62, v{T+hh}")
            P(f"v_lshlrev_b32 v{T+4}, 16, v{T+2+hh}")
            P(f"v_and_b32 v{T+5}, s62, v{T+2+hh}")
            P(f"v_add_f32 v{a+2*hh}, v{a+2*hh}, v{T+4}")
            P(f"v_add_f32 v{a+2*hh+1}, v{a+2*hh+1}, v{T+5}")
        P(f"v_cvt_pk_bf16_f32 v{BF+2*k}, v{a}, v{a+1}")
        P(f"v_cvt_pk_bf16_f32 v{BF+2*k+1}, v{a+2}, v{a+3}")
        P(f"buffer_store_dwordx2 v[{BF+2*k}:{BF+2*k+1}], v{VA+6}, s[40:43], s57 offen offset:{512*k} sc1")
    P.label("k2_ctail")
    prof(P, 1, pr)
    AREA = CB // 4
    if FUSED[0]:
        P('s_waitcnt vmcnt(4)')
        P.lines.append(__import__('dsl').Ins('@Z1CHECKb 19 116'))
    epi_addr(P, 52)
    Z1 = 20; VL = 2
    P(f"v_lshlrev_b32 v{VL}, 4, v0")
    P(f"buffer_load_dwordx4 v[{Z1}:{Z1+3}], v{VL}, s[24:27], s60 offen")
    P(f"buffer_load_dwordx2 v[{Z1+4}:{Z1+5}], v{VL}, s[24:27], s59 offen")
    P(f"v_and_b32 v3, 15, v0")
    P(f"v_lshlrev_b32 v3, 1, v3")
    P(f"buffer_load_ushort v{Z1+6}, v3, s[32:35], s61 offen")
    nearly = HOOKS['p3early'](P) if 'p3early' in HOOKS else 0
    P("s_mov_b32 s62, 0xffff0000")
    P("s_barrier")
    R = 84
    for dl in range(4):
        P(f"s_sub_u32 s53, s52, {dl}")
        P("s_and_b32 s53, s53, 3")
        P(f"s_mul_i32 s53, s53, {AREA}")
        P(f"v_add_u32 v{4+(dl&1)}, s53, v{VL}")
        for k in range(3):
            r = R + 12 * dl + 4 * k
            off = 21504 + 1024 * k if dl == 0 else (dl - 1) * 7168 + (4 + k) * 1024
            P(f"ds_read_b128 v[{r}:{r+3}], v{4+(dl&1)} offset:{off}")
    P("s_waitcnt lgkmcnt(6)")
    for r in range(12): P(f"v_add_f32 v{R+r}, v{R+r}, v{R+12+r}")
    P("s_waitcnt lgkmcnt(0)")
    for r in range(12): P(f"v_add_f32 v{R+24+r}, v{R+24+r}, v{R+36+r}")
    for r in range(12): P(f"v_add_f32 v{R+r}, v{R+r}, v{R+24+r}")
    P(f"s_waitcnt vmcnt({nearly})")
    P(f"v_lshlrev_b32 v{Z1+7}, 16, v{Z1+6}")
    H = 28
    for q in range(6):
        epi_math(P, R, Z1, H, Z1 + 7, 6, q)
        if q == 3: P(f"buffer_store_dwordx4 v[{H}:{H+3}], v{VL}, s[28:31], s60 offen sc1")
    P(f"buffer_store_dwordx2 v[{H+4}:{H+5}], v{VL}, s[28:31], s59 offen sc1")
    P("s_endpgm")

def gen_k2(P, NST=3, conv=True, nz=3, pr=False):
    STG = 8192
    AREA = NST * STG
    P.label("k2_kernel")
    P("s_cmp_ge_u32 s2, 256")
    P("s_cbranch_scc1 k2_end")
    P("s_load_dwordx2 s[4:5], s[0:1], 88")
    P("s_load_dwordx2 s[6:7], s[0:1], 96")
    P("s_load_dwordx2 s[8:9], s[0:1], 128")
    P("s_load_dwordx2 s[10:11], s[0:1], 64")
    P("s_load_dwordx4 s[68:71], s[0:1], 8")
    P("s_load_dwordx4 s[72:75], s[0:1], 24")
    P("s_load_dwordx4 s[76:79], s[0:1], 40")
    P("s_load_dwordx2 s[80:81], s[0:1], 56")
    P("v_lshrrev_b32 v1, 6, v0")
    P("v_and_b32 v0, 63, v0")
    P("v_readfirstlane_b32 s3, v1")
    P("s_and_b32 s12, s2, 7")
    P("s_lshr_b32 s13, s2, 3")
    P("s_lshr_b32 s14, s12, 1")
    P("s_lshl_b32 s14, s14, 3")
    P("s_and_b32 s15, s13, 7")
    P("s_add_u32 s14, s14, s15")
    P("s_and_b32 s15, s12, 1")
    P("s_lshl_b32 s15, s15, 2")
    P("s_lshr_b32 s13, s13, 3")
    P("s_add_u32 s15, s15, s13")
    if EXP[0] in (5, 6):
        P("s_mov_b32 s14, 0")
        P("s_mov_b32 s15, 0")
    P("s_waitcnt lgkmcnt(0)")
    srd(P, 16, 4, 2048 * 2048 * 2)
    srd(P, 20, 8, 0x400000, WS_Z2F)
    srd(P, 24, 8, 0x400000, WS_Z1F)
    srd(P, 28, 8, 0x400000, WS_HF)
    srd(P, 32, 6, 4096)
    srd(P, 36, 8, 0x200000, WS_XNT)
    srd(P, 40, 8, 0x200000, WS_YAT)
    if conv:
        P("s_cmp_ge_u32 s3, 4")
        P("s_cbranch_scc1 k2_conv")
    if PRIO[0] == 9: P('s_endpgm')
    elif PRIO[0]: P(f's_setprio {PRIO[0]}')
    prof(P, 0, pr)
    if pr: P("s_memtime s[82:83]")
    VW = 2
    VZ = 10
    VA = 12
    T = 20
    WF = 28
    ZB = 60
    P(f"v_lshrrev_b32 v{T}, 3, v0")
    P(f"v_and_b32 v{T+1}, 7, v0")
    P(f"v_lshrrev_b32 v{T+2}, 1, v{T}")
    P(f"v_xor_b32 v{T+1}, v{T+1}, v{T+2}")
    P(f"v_lshlrev_b32 v{T+1}, 4, v{T+1}")
    P(f"v_lshl_add_u32 v{T+1}, v{T}, 12, v{T+1}")
    P(f"v_xor_b32 v{T+2}, 64, v{T+1}")
    for e in range(8):
        P(f"v_add_u32 v{VW+e}, {8*e*4096 - 1024*(e&3)}, v{T+1+(e&1)}")
    P(f"v_lshlrev_b32 v{VZ}, 4, v0")
    P(f"v_add_u32 v{VZ+1}, 4096, v{VZ}")
    P(f"v_and_b32 v{T}, 15, v0")
    P(f"v_lshrrev_b32 v{T+1}, 4, v0")
    P(f"v_lshrrev_b32 v{T+2}, 1, v{T}")
    P(f"v_xor_b32 v{T+1}, v{T+1}, v{T+2}")
    P(f"v_lshlrev_b32 v{T+1}, 4, v{T+1}")
    P(f"v_lshl_add_u32 v{T+1}, v{T}, 7, v{T+1}")
    P(f"s_mul_i32 s52, s3, {AREA}")
    for tau in range(4):
        P(f"s_add_u32 s53, s3, {tau}")
        P(f"s_and_b32 s53, s53, 3")
        P(f"s_lshl_b32 s53, s53, 11")
        P(f"s_add_u32 s53, s53, s52")
        P(f"v_add_u32 v{VA+tau}, s53, v{T+1}")
        P(f"v_xor_b32 v{VA+4+tau}, 64, v{VA+tau}")
    P("s_lshl_b32 s54, s14, 18")
    P("s_lshl_b32 s53, s3, 10")
    P("s_add_u32 s54, s54, s53")
    P(f"s_mul_i32 s55, s15, {64*7168}")
    P(f"s_mul_i32 s53, s3, {16*7168}")
    P("s_add_u32 s55, s55, s53")
    def wdma(q):
        out = []
        st = q % NST
        for e in range(8):
            pre = []
            if e % 4 == 0:
                pre.append(f"s_add_u32 m0, s52, {st*STG + e*1024}")
                if e == 0: pre.append(f"s_add_u32 s56, s54, {q*128}")
                else: pre.append("s_nop 0")
            out.append("\n".join(pre + [f"buffer_load_dwordx4 v{VW+e}, s[16:19], s56 offen offset:{1024*(e&3)} lds"]))
        return out
    def zld(i):
        out = []
        b = ZB + 28 * (i % nz)
        for ft in range(7):
            pre = [f"s_add_u32 s57, s55, {i*7168}"] if ft == 0 else []
            out.append("\n".join(pre + [f"buffer_load_dwordx4 v[{b+4*ft}:{b+4*ft+3}], v{VZ+(ft>>2)}, s[20:23], s57 offen offset:{1024*(ft&3)}"]))
        return out
    def wrd(i):
        out = []
        st = (i // 2) % NST; h = i & 1
        b = WF + 16 * (i & 1)
        for tau in range(4):
            out.append(f"ds_read_b128 v[{b+4*tau}:{b+4*tau+3}], v{VA+4*h+tau} offset:{st*STG}")
        return out
    ZD = nz - 1
    WD = NST - 1
    issued = []
    def emit(lst, tag):
        for s in lst:
            P(s); issued.append(tag)
    if FUSED[0]:
        for q in range(WD):
            for _ in range(8): issued.append(('W', q))
        for _ in range(2): issued.append(('W', 0))
        P.lines.append(__import__('dsl').Ins('@ZPOLL'))
        for i in range(ZD): emit(zld(i), ('Z', i))
    else:
        for q in range(max(WD, (ZD + 1) // 2)):
            if q < WD: emit(wdma(q), ('W', q))
            for i in (2 * q, 2 * q + 1):
                if i < ZD: emit(zld(i), ('Z', i))
    if conv and not FUSED[0]: P('s_barrier')
    for r in range(112):
        P(f"v_accvgpr_write_b32 a{r}, 0")
    def wait_for(tags):
        if not any(t in tags for t in issued): return
        last = max(k for k, t in enumerate(issued) if t in tags)
        n = len(issued) - 1 - last
        P(f"s_waitcnt vmcnt({min(n,63)})")
    Z1 = ZB + 28 * ((15 - ZD) % nz)
    def epi_loads():
        if FUSED[0]: P.lines.append(__import__('dsl').Ins('@Z1CHECKa 24 26'))
        epi_addr(P, 3)
        P(f"buffer_load_dwordx4 v[{Z1}:{Z1+3}], v{VZ}, s[24:27], s58 offen")
        P(f"buffer_load_dwordx4 v[{Z1+4}:{Z1+7}], v{VZ+1}, s[24:27], s58 offen")
        P(f"v_and_b32 v{T}, 15, v0")
        P(f"v_lshlrev_b32 v{T}, 1, v{T}")
        P(f"buffer_load_ushort v{T+3}, v{T}, s[32:35], s61 offen")
    wait_for({('W', 0)})
    if FUSED[0]:
        P.lines.append(__import__('dsl').Ins('@Z1FLAG'))
        if Z1LATE[0]: issued.append(('F', 0))
    if pr: P('s_memrealtime s[80:81]')
    for s in wrd(0): P(s)
    for i in range(16):
        need_tags = {('Z', i)}
        if i + 1 < 16: need_tags.add(('W', (i + 1) // 2))
        wait_for(need_tags)
        P("s_waitcnt lgkmcnt(0)")
        side = []
        if i + 1 < 16: side += [(s, None) for s in wrd(i + 1)]
        if i + ZD < 16: side += [(s, ('Z', i + ZD)) for s in zld(i + ZD)]
        if i % 2 == 0 and i // 2 + WD < 8: side += [(s, ('W', i // 2 + WD)) for s in wdma(i // 2 + WD)]
        zb = ZB + 28 * (i % nz); wb = WF + 16 * (i & 1)
        if EXP[0] in (3, 4):
            drop = 'W' if EXP[0] == 3 else 'Z'
            side2 = []
            for x in side:
                if x[1] and x[1][0] == drop: side2.append(("s_nop 0", None))
                else: side2.append(x)
            side = side2
        if EXP[0] == 2:
            for x in side:
                if x[1]: issued.append(x[1])
            side = [x for x in side if not x[1]]
            P("s_sleep 7")
        k = 0
        if LF[0]:
            if LF[0] == 2: P("s_setprio 3")
            mem = [x for x in side if x[1]]; side = [x for x in side if not x[1]]
            for s_, tag in mem:
                P(s_); issued.append(tag)
            if LF[0] == 2: P("s_setprio 0")
        for ft in range(7):
            for tau in range(4):
                a = 4 * (ft * 4 + tau)
                if EXP[0] not in (1, 3, 4, 6): P(f"v_mfma_f32_16x16x32_bf16 a[{a}:{a+3}], v[{zb+4*ft}:{zb+4*ft+3}], v[{wb+4*tau}:{wb+4*tau+3}], a[{a}:{a+3}]")
                if k < len(side):
                    s, tag = side[k]; k += 1
                    P(s)
                    if tag: issued.append(tag)
        assert k == len(side)
        if i == 8 and FUSED[0]:
            P.lines.append(__import__('dsl').Ins('@Z1ISSUE 24 26'))
            if Z1LATE[0]: issued.append(('F', 1))
        if i == 16 - ZD:
            epi_loads()
            for _ in range(3): issued.append(('E', 0))
    prof(P, 2, pr)
    if pr:
        P('v_mov_b32 v26, s80')
        P('v_mov_b32 v27, s81')
        P('global_store_dwordx2 v25, v[26:27], s[8:9] offset:-8')
    P(f"v_add_u32 v{T+2}, s52, v{VZ}")
    for tau in range(1, 4):
        for ft in range(7):
            a = 4 * (ft * 4 + tau)
            P(f"ds_write_b128 v{T+2}, a[{a}:{a+3}] offset:{(tau-1)*7168 + ft*1024}")
    for ft in range(4, 7):
        P(f"ds_write_b128 v{T+2}, a[{16*ft}:{16*ft+3}] offset:{21504 + (ft-4)*1024}")
    R = WF
    for ft in range(4):
        for i in range(4): P(f"v_accvgpr_read_b32 v{R+4*ft+i}, a{16*ft+i}")
    P("s_mov_b32 s62, 0xffff0000")
    P("s_waitcnt lgkmcnt(0)")
    nearly = HOOKS['p3early'](P) if 'p3early' in HOOKS else 0
    P("s_barrier")
    RB = [ZB + 28 * ((15 - ZD + 1) % nz), ZB + 28 * ((15 - ZD + 2) % nz), WF + 16]
    for dl in range(1, 4):
        P(f"s_sub_u32 s53, s3, {dl}")
        P("s_and_b32 s53, s53, 3")
        P(f"s_mul_i32 s53, s53, {AREA}")
        P(f"v_add_u32 v{T+2}, s53, v{VZ}")
        for ft in range(4):
            r = RB[dl - 1] + 4 * ft
            P(f"ds_read_b128 v[{r}:{r+3}], v{T+2} offset:{(dl-1)*7168 + ft*1024}")
    G = T + 4
    P("s_waitcnt lgkmcnt(8)")
    for r in range(16): P(f"v_add_f32 v{R+r}, v{R+r}, v{RB[0]+r}")
    P("s_waitcnt lgkmcnt(0)")
    for r in range(16): P(f"v_add_f32 v{RB[1]+r}, v{RB[1]+r}, v{RB[2]+r}")
    for r in range(16): P(f"v_add_f32 v{R+r}, v{R+r}, v{RB[1]+r}")
    P(f"s_waitcnt vmcnt({nearly})")
    P(f"v_lshlrev_b32 v{T+1}, 16, v{T+3}")
    H = RB[0]
    for q in range(8):
        epi_math(P, R, Z1, H, T + 1, G, q)
        if q == 3: P(f"buffer_store_dwordx4 v[{H}:{H+3}], v{VZ}, s[28:31], s58 offen sc1")
    P(f"buffer_store_dwordx4 v[{H+4}:{H+7}], v{VZ+1}, s[28:31], s58 offen sc1")
    prof(P, 3, pr)
    if pr: P("s_waitcnt vmcnt(0)")
    prof(P, 4, pr)
    if pr:
        P("s_memtime s[84:85]")
        P("s_waitcnt lgkmcnt(0)")
        P("s_sub_u32 s84, s84, s82")
        P("v_mov_b32 v26, s84")
        P("v_mov_b32 v27, 0")
        P("global_store_dwordx2 v25, v[26:27], s[8:9] offset:8")
    P("s_endpgm")
    if conv:
        P.label("k2_conv")
        gen_conv(P, 4 * AREA, pr)
    P.label("k2_end")
    P("s_endpgm")
    return dict(vgpr=ZB + 28 * max(nz, 3), agpr=112, lds=4 * AREA + (4 * CW_AREA if conv else 0))
```

```python
import re, os, sys
from dsl import Prog, Ins
import k1d, k2, aux
from k2 import *
WS_FL1 = 0x1B00000
WS_FL1B = 0x1B10000
WS_FL2 = 0x1B08000
SLEEP = [4]
TOUCH = [int(os.environ.get('TOUCH', '1'))]
KN = "parallel_sum__ssm_conv_s4__mixer_gmlp__prompt_kernel"

def lines_of(P): return [l.text for l in P.lines]

def poll(E, name, va, vd, nlanes):
    mask = (1 << nlanes) - 1
    E(f"s_mov_b32 exec_lo, {mask & 0xffffffff:#x}")
    E(f"s_mov_b32 exec_hi, {mask >> 32:#x}")
    E("s_mov_b32 s95, 0")
    E(f"{name}:")
    E(f"global_load_dwordx2 v[{vd}:{vd+1}], v{va}, s[8:9] sc0 sc1")
    E("s_add_u32 s95, s95, 1")
    E("s_waitcnt vmcnt(0)")
    E(f"v_cmp_ne_u64 vcc, s[96:97], v[{vd}:{vd+1}]")
    E("s_nop 1")
    E("s_cmp_eq_u64 vcc, 0")
    E(f"s_cbranch_scc1 {name}_ok")
    E("s_sleep 2")
    E("s_cmp_lt_u32 s95, 0x100000")
    E(f"s_cbranch_scc1 {name}")
    E(f"{name}_ok:")
    E("s_mov_b64 exec, -1")

GOW = 4 * 24576 + 16376
def ldswait(E, name, va, vd):
    E("s_mov_b32 s95, 0")
    E(f"{name}:")
    E(f"ds_read_b32 v{vd}, v{va}")
    E("s_add_u32 s95, s95, 1")
    E("s_waitcnt lgkmcnt(0)")
    E(f"v_readfirstlane_b32 s94, v{vd}")
    E("s_cmp_eq_u32 s94, 1")
    E(f"s_cbranch_scc1 {name}_ok")
    E("s_sleep 1")
    E("s_cmp_lt_u32 s95, 0x1000000")
    E(f"s_cbranch_scc1 {name}")
    E(f"{name}_ok:")

def phase3(P, pr):
    P("s_load_dwordx2 s[4:5], s[0:1], 0")
    P("s_load_dwordx2 s[6:7], s[0:1], 112")
    P("s_and_b32 s12, s2, 7")
    P("s_lshr_b32 s13, s2, 3")
    P("s_lshl_b32 s14, s12, 2")
    P("s_and_b32 s15, s13, 3")
    P("s_add_u32 s14, s14, s15")
    P("s_lshr_b32 s15, s13, 2")
    srd(P, 24, 8, 0x400000, WS_HF)
    srd(P, 28, 8, 896 * 1024, WS_WOF)
    srd(P, 32, 8, 0x200000, WS_YAT)
    T = 2; VL = 10; VH = 12; VO = 16
    P(f"v_lshlrev_b32 v{VL}, 4, v0")
    for tau in range(4):
        P(f"s_add_u32 s53, s3, {tau}")
        P("s_and_b32 s53, s53, 3")
        P("s_lshl_b32 s53, s53, 10")
        P(f"v_add_u32 v{VH+tau}, s53, v{VL}")
    P("s_lshr_b32 s59, s3, 2")
    P("s_lshl_b32 s53, s59, 11")
    P(f"v_add_u32 v{VO}, s53, v{VL}")
    P(f"v_xor_b32 v{VO+1}, 2048, v{VO}")
    P("s_lshl_b32 s52, s3, 2")
    P("s_mul_i32 s53, s3, 3")
    P("s_add_u32 s53, s53, 4")
    P("s_cmp_lt_u32 s3, 4")
    P("s_cselect_b32 s52, s52, s53")
    P("s_mul_i32 s54, s14, 28")
    P("s_add_u32 s54, s54, s52")
    P("s_lshl_b32 s54, s54, 12")
    P("s_mul_i32 s55, s15, 28")
    P("s_add_u32 s55, s55, s52")
    P("s_lshl_b32 s55, s55, 12")
    P("s_waitcnt lgkmcnt(0)")
    srd(P, 16, 4, 2048 * 512 * 2)
    srd(P, 20, 6, 2048 * 512 * 2)
    XR = 20
    P(f"v_and_b32 v{T}, 15, v0")
    P(f"v_lshrrev_b32 v{T+1}, 4, v0")
    P(f"v_lshlrev_b32 v{T}, 10, v{T}")
    P(f"v_lshl_add_u32 v{VL+1}, v{T+1}, 4, v{T}")
    P("s_lshl_b32 s58, s14, 16")
    P("s_and_b32 s57, s3, 3")
    P("s_lshl_b32 s57, s57, 14")
    P("s_add_u32 s58, s58, s57")
    P("s_lshl_b32 s57, s15, 7")
    P("s_add_u32 s58, s58, s57")
    P("s_lshl_b32 s57, s59, 6")
    P("s_add_u32 s58, s58, s57")
    P(f"buffer_load_dwordx4 v[{XR}:{XR+3}], v{VL+1}, s[16:19], s58 offen")
    P("s_lshl_b32 s53, s14, 7")
    P(f"s_add_u32 s53, s53, {WS_FL2 + 4096}")
    P("s_lshl_b32 s57, s15, 8")
    P(f"s_add_u32 s57, s57, {WS_FL2 - 64}")
    P(f"v_mov_b32 v{T}, s53")
    P(f"v_mov_b32 v{T+1}, s57")
    P(f"v_cmp_gt_u32 vcc, 8, v0")
    P(f"v_cndmask_b32 v{T}, v{T+1}, v{T}, vcc")
    P(f"v_lshl_add_u32 v{T}, v0, 3, v{T}")
    prof(P, 0, pr)
    def E(t):
        if t.endswith(':'): P.label(t[:-1])
        else: P(t)
    P("s_cmp_lg_u32 s3, 0")
    P("s_cbranch_scc1 p3_np")
    poll(E, "p3_poll", T, T + 2, 40)
    P.label("p3_np")
    P("s_barrier")
    prof(P, 1, pr)
    HB = 80
    def hl(k):
        P(f"s_add_u32 s56, s54, {4096*k}")
        for tau in range(4):
            r = HB + 16 * k + 4 * tau
            P(f"buffer_load_dwordx4 v[{r}:{r+3}], v{VH+tau}, s[24:27], s56 offen sc1")
    AREA = 14 * 1024; YB = 8 * AREA
    P(f"v_lshrrev_b32 v{T}, 3, v0")
    P(f"v_and_b32 v{T+1}, 7, v0")
    P(f"v_lshlrev_b32 v{T+1}, 4, v{T+1}")
    P(f"v_lshl_add_u32 v{T+1}, v{T}, 12, v{T+1}")
    P("s_lshl_b32 s56, s15, 18")
    P("s_lshl_b32 s57, s3, 15")
    P("s_add_u32 s56, s56, s57")
    P("s_lshl_b32 s57, s14, 7")
    P("s_add_u32 s60, s56, s57")
    P("s_lshl_b32 s57, s3, 10")
    P(f"s_add_u32 m0, s57, {YB}")
    def acc(pi, sg_, tau):
        i = (2 * pi + sg_) * 4 + tau
        return f"a[{64+4*i}:{67+4*i}]" if 0 < (i & ~4) and i - (2 if i > 4 else 1) < 12 and i not in (0, 4) and False else None
    others = [(pi, sg_, tau) for pi in range(2) for tau in range(4) for sg_ in range(2) if not (pi == 0 and tau == 0)]
    amap = {}
    for sg_ in range(2): amap[(0, sg_, 0)] = f"v[{24+4*sg_}:{27+4*sg_}]"
    for n_, key in enumerate(others):
        amap[key] = f"a[{4*ACQ[n_]}:{4*ACQ[n_]+3}]" if n_ < 12 else f"v[{32+4*(n_-12)}:{35+4*(n_-12)}]"
    def mf(k):
        for pi in range(2):
            for sg_ in range(2):
                for tau in range(4):
                    a = amap[(pi, sg_, tau)]; r = 4 * WOQ[4 * k + 2 * pi + sg_]; h = HB + 16 * k + 4 * tau
                    P(f"v_mfma_f32_16x16x32_bf16 {a}, a[{r}:{r+3}], v[{h}:{h+3}], {'0' if k == 0 else a}")
    P("s_cmp_ge_u32 s3, 4")
    P("s_cbranch_scc1 p3_3")
    for k in range(4): hl(k)
    P(f"buffer_load_dwordx4 v{T+1}, s[32:35], s60 offen sc1 lds")
    for k in range(4):
        P(f"s_waitcnt vmcnt({1 + 4*(3-k)})"); mf(k)
    P("s_branch p3_red")
    P.label("p3_3")
    for k in range(3): hl(k)
    P(f"buffer_load_dwordx4 v{T+1}, s[32:35], s60 offen sc1 lds")
    for k in range(3):
        P(f"s_waitcnt vmcnt({1 + 4*(2-k)})"); mf(k)
    P.label("p3_red")
    prof(P, 2, pr)
    P(f"s_mul_i32 s52, s3, {AREA}")
    P(f"v_add_u32 v{T}, s52, v{VL}")
    for n_, key in enumerate(others):
        P(f"ds_write_b128 v{T}, {amap[key]} offset:{1024*n_}")
    P("s_waitcnt vmcnt(0) lgkmcnt(0)")
    P("s_barrier")
    R = 40
    gi = 0
    for pi in range(2):
        for tau in range(4):
            if pi == 0 and tau == 0: continue
            P(f"s_sub_u32 s53, s3, {tau}")
            P("s_and_b32 s53, s53, 3")
            P(f"s_xor_b32 s57, s59, {pi}")
            P("s_lshl_b32 s57, s57, 2")
            P("s_add_u32 s53, s53, s57")
            P(f"s_mul_i32 s53, s53, {AREA}")
            P(f"v_add_u32 v{T+(gi&1)}, s53, v{VL}")
            for sg_ in range(2):
                r = R + 8 * gi + 4 * sg_
                P(f"ds_read_b128 v[{r}:{r+3}], v{T+(gi&1)} offset:{1024*(2*gi+sg_)}")
            gi += 1
    P(f"v_lshrrev_b32 v{T+2}, 4, v0")
    P(f"v_bfe_u32 v{T+3}, v0, 2, 2")
    P(f"v_and_b32 v{T+4}, 3, v0")
    P(f"v_lshl_add_u32 v{T+2}, v{T+2}, 3, v{T+3}")
    P(f"v_lshlrev_b32 v{T+2}, 7, v{T+2}")
    P(f"v_lshl_add_u32 v{T+2}, v{T+4}, 3, v{T+2}")
    P("s_and_b32 s53, s3, 3")
    P("s_lshl_b32 s53, s53, 5")
    P("s_lshl_b32 s57, s59, 12")
    P("s_add_u32 s53, s53, s57")
    P(f"s_add_u32 s53, s53, {YB}")
    P(f"v_add_u32 v{T+2}, s53, v{T+2}")
    YA = 32
    P("s_waitcnt lgkmcnt(0)")
    for eta in range(2):
        P(f"ds_read_b64_tr_b16 v[{YA+2*eta}:{YA+2*eta+1}], v{T+2} offset:{512*eta}")
    for i in range(8):
        P(f"v_add_f32 v{24+i}, v{24+i}, v{R+i}")
        P(f"v_add_f32 v{R+8+i}, v{R+8+i}, v{R+16+i}")
        P(f"v_add_f32 v{R+24+i}, v{R+24+i}, v{R+32+i}")
        P(f"v_add_f32 v{R+40+i}, v{R+40+i}, v{R+48+i}")
    for i in range(8):
        P(f"v_add_f32 v{24+i}, v{24+i}, v{R+8+i}")
        P(f"v_add_f32 v{R+24+i}, v{R+24+i}, v{R+40+i}")
    for i in range(8): P(f"v_add_f32 v{24+i}, v{24+i}, v{R+24+i}")
    P("s_mov_b32 s65, 0xffff0000")
    P("s_waitcnt lgkmcnt(0)")
    for q in range(4):
        a = 24 + 2 * q
        P(f"v_cvt_pk_bf16_f32 v{T}, v{a}, v{a+1}")
        P(f"v_lshlrev_b32 v{T+2}, 16, v{XR+q}")
        P(f"v_and_b32 v{T+3}, s65, v{XR+q}")
        P(f"v_lshlrev_b32 v{T+4}, 16, v{YA+q}")
        P(f"v_and_b32 v{T+5}, s65, v{YA+q}")
        P(f"v_add_f32 v{T+2}, v{T+2}, v{T+4}")
        P(f"v_add_f32 v{T+3}, v{T+3}, v{T+5}")
        P(f"v_cvt_pk_bf16_f32 v{T+4}, v{T+2}, v{T+3}")
        P(f"v_lshlrev_b32 v{T+2}, 16, v{T+4}")
        P(f"v_and_b32 v{T+3}, s65, v{T+4}")
        P(f"v_lshlrev_b32 v{T+4}, 16, v{T}")
        P(f"v_and_b32 v{T+5}, s65, v{T}")
        P(f"v_add_f32 v{T+2}, v{T+2}, v{T+4}")
        P(f"v_add_f32 v{T+3}, v{T+3}, v{T+5}")
        P(f"v_cvt_pk_bf16_f32 v{R+q}, v{T+2}, v{T+3}")
    P(f"buffer_store_dwordx4 v[{R}:{R+3}], v{VL+1}, s[20:23], s58 offen")
    prof(P, 3, pr)
    if pr: P("s_waitcnt vmcnt(0)")
    prof(P, 4, pr)

CNT = [0]
def early2(P):
    n = CNT[0]; CNT[0] += 1
    if n == 1:
        P("s_waitcnt lgkmcnt(0)")
        P("s_barrier")
    P("s_cmp_lt_u32 s3, 4")
    P(f"s_cbranch_scc1 e2_done{n}")
    P.label(f"e2_conv{n}")
    PAR = 104; V = 112
    P("s_sub_u32 s56, s3, 4")
    P("s_lshr_b32 s57, s56, 1")
    P("s_lshl_b32 s61, s2, 1")
    P("s_add_u32 s61, s61, s57")
    P(f"s_mul_i32 s56, s56, {CW_AREA}")
    P(f"s_add_u32 s56, s56, {4*24576}")
    P(f"v_mov_b32 v{V}, s56")
    P(f"v_mov_b32 v{V+4}, 0")
    P(f"v_mov_b32 v{V+5}, 0")
    P(f"ds_write_b64 v{V}, v[{V+4}:{V+5}] offset:16376")
    P(f"v_lshlrev_b32 v{V+2}, 2, v0")
    P("s_lshl_b32 s57, s61, 8")
    P(f"v_add_u32 v{V+2}, s57, v{V+2}")
    P("s_lshl_b32 s57, s61, 1")
    P(f"v_mov_b32 v{V+3}, s57")
    for k in range(6):
        P(f"global_load_dword v{PAR+k}, v{V+2}, s[{68+2*k}:{69+2*k}]")
    P(f"global_load_ushort v{PAR+6}, v{V+3}, s[80:81]")
    P(f"global_load_ushort v{PAR+7}, v{V+3}, s[82:83]")
    P.label(f"e2_done{n}")

FREEQ = [4 * ft + t for ft in range(7) for t in (1, 2, 3)]
WOQ = FREEQ[:16]
ACQ = FREEQ[16:] + [4 * ft for ft in range(7)]
def p3early(P):
    n = CNT[0]; CNT[0] += 1
    srd(P, 44, 8, 896 * 1024, WS_WOF)
    P("s_lshl_b32 s84, s3, 2")
    P("s_mul_i32 s85, s3, 3")
    P("s_add_u32 s85, s85, 4")
    P("s_cmp_lt_u32 s3, 4")
    P("s_cselect_b32 s84, s84, s85")
    P("s_lshr_b32 s85, s2, 5")
    P("s_mul_i32 s85, s85, 28")
    P("s_add_u32 s85, s85, s84")
    P("s_lshl_b32 s85, s85, 12")
    P("s_lshr_b32 s86, s3, 2")
    P("s_lshl_b32 s86, s86, 11")
    P("v_lshlrev_b32 v1, 4, v0")
    for k in range(4):
        for pi in range(2):
            P(f"s_xor_b32 s87, s86, {2048*pi}")
            P("s_add_u32 s87, s87, s85")
            P(f"s_add_u32 s87, s87, {4096*k}")
            for sg_ in range(2):
                r = 4 * WOQ[4 * k + 2 * pi + sg_]
                P(f"buffer_load_dwordx4 a[{r}:{r+3}], v1, s[44:47], s87 offen offset:{1024*sg_} sc1")
    return 16

def signal_to(E, tag, code, nl):
    E("s_waitcnt vmcnt(0) lgkmcnt(0)")
    E("s_barrier")
    E("s_cmp_lg_u32 s3, 0")
    E(f"s_cbranch_scc1 {tag}_ns")
    for c in code: E(c)
    E("v_mov_b32 v4, s96")
    E("v_mov_b32 v5, s97")
    E(f"s_mov_b64 exec, {(1 << nl) - 1}")
    E("global_store_dwordx2 v2, v[4:5], s[8:9] sc0 sc1")
    E("s_mov_b64 exec, -1")
    E(f"{tag}_ns:")
def sig1(P, n):
    def E(t):
        if t.endswith(':'): P.label(t[:-1])
        else: P(t)
    signal_to(E, f"p1{n}", ["s_lshl_b32 s53, s2, 3", f"s_add_u32 s53, s53, {WS_FL1}", "v_lshlrev_b32 v2, 11, v0", "v_add_u32 v2, s53, v2"], 8)
    P("s_cmp_ge_u32 s3, 4")
    P(f"s_cbranch_scc1 s1_nw{n}")
    V = 112
    if TOUCH[0]:
        P("s_and_b32 s56, s2, 7")
        P("s_lshl_b32 s56, s56, 5")
        P("s_lshr_b32 s57, s2, 3")
        P("s_add_u32 s56, s56, s57")
        P("s_lshl_b32 s56, s56, 15")
        P(f"v_lshlrev_b32 v{V}, 7, v0")
        P("s_cmp_eq_u32 s3, 0")
        P(f"s_cbranch_scc1 s1_t2{n}")
        P("s_cmp_lg_u32 s3, 3")
        P(f"s_cbranch_scc1 s1_t1{n}")
        P(f"buffer_load_dword v143, v{V}, s[36:39], s56 offen")
        P.label(f"s1_t1{n}")
        P("s_lshl_b32 s57, s3, 13")
        P("s_add_u32 s56, s56, s57")
        P(f"buffer_load_dword v143, v{V}, s[36:39], s56 offen")
        P.label(f"s1_t2{n}")
    P(f"v_lshrrev_b32 v{V}, 3, v0")
    P(f"v_and_b32 v{V+1}, 7, v0")
    P(f"v_lshrrev_b32 v{V+2}, 1, v{V}")
    P(f"v_xor_b32 v{V+1}, v{V+1}, v{V+2}")
    P(f"v_lshlrev_b32 v{V+1}, 4, v{V+1}")
    P(f"v_lshl_add_u32 v{V+1}, v{V}, 12, v{V+1}")
    P(f"v_xor_b32 v{V+2}, 64, v{V+1}")
    P("s_and_b32 s56, s2, 7")
    P("s_lshr_b32 s56, s56, 1")
    P("s_lshl_b32 s56, s56, 3")
    P("s_bfe_u32 s57, s2, 0x30003")
    P("s_add_u32 s56, s56, s57")
    P("s_lshl_b32 s56, s56, 18")
    P("s_lshl_b32 s57, s3, 10")
    P("s_add_u32 s56, s56, s57")
    P("s_mul_i32 s57, s3, 24576")
    for q in range(2):
        for e in range(8):
            P(f"s_add_u32 m0, s57, {q*8192 + e*1024}")
            P(f"s_add_u32 s61, s56, {q*128 + e*32768}")
            P(f"buffer_load_dwordx4 v{V+1+(e&1)}, s[36:39], s61 offen lds")
    P.label(f"s1_nw{n}")
    P("s_lshl_b32 s93, s14, 3")
    P("s_add_u32 s93, s93, s15")
    P("s_lshl_b32 s93, s93, 3")
    P("s_add_u32 s93, s93, s3")
    P("s_lshl_b32 s93, s93, 3")
    P(f"s_add_u32 s93, s93, {WS_FL1B}")
def z1flag(E, va):
    E(f"v_mov_b32 v{va}, s93")
    E(f"v_mov_b32 v{va+1}, s96")
    E(f"v_mov_b32 v{va+2}, s97")
    E("s_mov_b64 exec, 1")
    E(f"global_store_dwordx2 v{va}, v[{va+1}:{va+2}], s[8:9] sc0 sc1")
    E("s_mov_b64 exec, -1")
def z1issue(E, va, vd):
    E("s_mul_i32 s64, s15, 112")
    E("s_lshr_b32 s62, s64, 7")
    E("s_add_u32 s64, s64, 111")
    E("s_lshr_b32 s63, s64, 7")
    E("s_sub_u32 s63, s63, s62")
    E("s_lshl_b32 s63, s63, 6")
    E("s_lshl_b32 s64, s14, 3")
    E("s_add_u32 s64, s64, s62")
    E("s_lshl_b32 s64, s64, 6")
    E(f"s_add_u32 s64, s64, {WS_FL1B}")
    E(f"v_bfe_u32 v{va}, v0, 3, 1")
    E(f"v_mul_u32_u24 v{va}, s63, v{va}")
    E(f"v_and_b32 v{vd}, 7, v0")
    E(f"v_lshl_add_u32 v{va}, v{vd}, 3, v{va}")
    E(f"v_add_u32 v{va}, s64, v{va}")
    E(f"global_load_dwordx2 v[{vd}:{vd+1}], v{va}, s[8:9] sc0 sc1")
def z1check(E, name, va, vd):
    E(f"v_cmp_ne_u64 vcc, s[96:97], v[{vd}:{vd+1}]")
    E("s_nop 1")
    E("s_cmp_eq_u64 vcc, 0")
    E(f"s_cbranch_scc1 {name}_ok")
    poll(E, name, va, vd, 64)

def build(pr=False):
    k2.HOOKS['sig1'] = sig1
    k2.HOOKS['t1'] = early2
    k2.HOOKS['p3early'] = p3early
    out = []
    E = out.append
    k2.PROF_K[0] = 0
    P1 = Prog(); k1d.gen_k1(P1, aux=aux.aux, pr=pr)
    L1 = lines_of(P1)
    def amap(m):
        if m.group(1):
            lo, hi = int(m.group(1)), int(m.group(2))
            return f"v[{lo+16}:{hi+16}]" if lo >= 112 else m.group(0)
        n = int(m.group(3)); return f"v{n+16}" if n >= 112 else m.group(0)
    L1 = [re.sub(r'\ba\[(\d+):(\d+)\]|\ba(\d+)\b', amap, l) for l in L1]
    nend = 0
    for l in L1:
        if l == "k1_kernel:": E(KN + ":"); continue
        if l == "k1_end:": break
        if l == "s_cbranch_scc1 k1_end": E("s_cbranch_scc1 f_end"); continue
        if l == "s_lshl_b32 s53, s14, 3" and 'nonce_addr' not in globals():
            globals()['nonce_addr'] = 1; E("s_mov_b32 s53, 0"); continue
        if l == "s_or_b32 s53, s15, s3": E("s_or_b32 s53, s2, s3"); continue
        if l == "s_endpgm":
            nend += 1
            if nend == 1: E("s_branch p1_done")
            else:
                PE = Prog(); early2(PE)
                for x_ in lines_of(PE): E(x_)
                E("v_mov_b32 v13, 0")
                E("s_mov_b32 s95, 0")
                E("aux_nonce:")
                E("global_load_dwordx2 v[14:15], v13, s[10:11] sc0 sc1")
                E("s_add_u32 s95, s95, 1")
                E("s_waitcnt vmcnt(0)")
                E("v_readfirstlane_b32 s96, v14")
                E("v_readfirstlane_b32 s97, v15")
                E("s_cmp_lg_u32 s96, 0")
                E("s_cbranch_scc1 aux_sig")
                E("s_cmp_lt_u32 s95, 0x200000")
                E("s_cbranch_scc1 aux_nonce")
                E("aux_sig:")
                PE = Prog(); sig1(PE, 1)
                for x_ in lines_of(PE): E(x_)
            continue
        E(l)
    globals().pop('nonce_addr', None)
    E("p1_done:")
    k2.PROF_K[0] = 1
    P2 = Prog(); k2.gen_k2(P2, pr=pr)
    L2 = lines_of(P2)
    skip = {"k2_kernel:", "s_cmp_ge_u32 s2, 256", "s_cbranch_scc1 k2_end", "v_lshrrev_b32 v1, 6, v0", "v_and_b32 v0, 63, v0",
            "v_readfirstlane_b32 s3, v1", "s_load_dwordx2 s[8:9], s[0:1], 128", "s_load_dwordx2 s[10:11], s[0:1], 64",
            "s_load_dwordx4 s[68:71], s[0:1], 8", "s_load_dwordx4 s[72:75], s[0:1], 24", "s_load_dwordx4 s[76:79], s[0:1], 40", "s_load_dwordx2 s[80:81], s[0:1], 56"}
    firstz = True; firstx = True
    for l in L2:
        if l in skip: continue
        if l == "k2_end:": break
        if l == "s_endpgm": E("s_branch p2_done"); continue
        if l.startswith("buffer_load") and any(f"s[{a}:{a+3}]" in l for a in (20, 24, 36)):
            l = l.replace(" lds", " sc1 lds") if l.endswith(" lds") else l + " sc1"
        if l == "@ZPOLL":
            E(f"v_mov_b32 v22, {GOW}")
            E("s_cmp_lg_u32 s3, 0")
            E("s_cbranch_scc1 p2_lw")
            E("s_and_b32 s53, s2, 7")
            E("s_lshl_b32 s53, s53, 11")
            E(f"s_add_u32 s53, s53, {WS_FL1}")
            E("v_lshlrev_b32 v20, 4, v0")
            E("v_add_u32 v20, s53, v20")
            E("s_mov_b32 s95, 0")
            E("p2_zpoll:")
            E("global_load_dwordx4 v[28:31], v20, s[8:9] sc0 sc1")
            E("global_load_dwordx4 v[32:35], v20, s[8:9] offset:1024 sc0 sc1")
            E("s_add_u32 s95, s95, 1")
            E("s_waitcnt vmcnt(0)")
            E("v_cmp_ne_u64 s[62:63], s[96:97], v[28:29]")
            E("v_cmp_ne_u64 s[64:65], s[96:97], v[30:31]")
            E("v_cmp_ne_u64 s[66:67], s[96:97], v[32:33]")
            E("v_cmp_ne_u64 vcc, s[96:97], v[34:35]")
            E("s_nop 1")
            E("s_or_b64 s[62:63], s[62:63], s[64:65]")
            E("s_or_b64 s[66:67], s[66:67], vcc")
            E("s_or_b64 s[62:63], s[62:63], s[66:67]")
            E("s_cmp_eq_u64 s[62:63], 0")
            E("s_cbranch_scc1 p2_set")
            E(f"s_sleep {SLEEP[0]}")
            E("s_cmp_lt_u32 s95, 0x100000")
            E("s_cbranch_scc1 p2_zpoll")
            E("p2_set:")
            E("v_mov_b32 v23, 1")
            E("ds_write_b32 v22, v23")
            E("s_branch p2_go")
            E("p2_lw:")
            ldswait(E, "p2_lwl", 22, 23)
            E("p2_go:")
            continue
        if l.startswith("@Z1") and not k2.Z1LATE[0]:
            continue
        if l == "@Z1FLAG":
            z1flag(E, 21); continue
        if l.startswith("@Z1ISSUE"):
            z1issue(E, *map(int, l.split()[1:])); continue
        if l.startswith("@Z1CHECK"):
            z1check(E, "p2_z1w" + l[8:9], *map(int, l.split()[1:])); continue
        if l == "@XPOLL":
            if k2.Z1LATE[0]:
                E("s_waitcnt vmcnt(0)")
                z1flag(E, 3)
            E(f"v_mov_b32 v2, {GOW}")
            ldswait(E, "p2_xw", 2, 3)
            continue
        E(l)
    E("p2_done:")
    E("s_setprio 0")
    signal_to(E, "p2", ["s_lshl_b32 s53, s2, 3", f"s_add_u32 s53, s53, {WS_FL2}", "v_mov_b32 v2, s53",
                  "s_lshl_b32 s53, s14, 7", "s_lshl_b32 s56, s15, 3", "s_add_u32 s53, s53, s56", f"s_add_u32 s53, s53, {WS_FL2 + 4096}",
                  "v_writelane_b32 v2, s53, 1"], 2)
    k2.PROF_K[0] = 2
    k2.PROF_V[0] = 142
    P3 = Prog(); phase3(P3, pr)
    k2.PROF_V[0] = 26
    out += lines_of(P3)
    E("f_end:")
    E("s_endpgm")
    P = Prog()
    for l in out:
        if l.endswith(':'): P.label(l[:-1])
        else: P(l)
    body = P.finish()
    HDR = open('parallel_sum__ssm_conv_s4__mixer_gmlp__prompt.s.ref').read().split('; Override launch')[0]
    first = f"; @launch kernel={KN} grid=(256,1,1) block=(512,1,1) lds=163840" if os.environ.get("ASLIST") else "; @launch grid=(256,1,1) block=(512,1,1) lds=163840"
    return HDR + first + f'''
.amdgcn_target "amdgcn-amd-amdhsa--gfx950"
.text
.globl {KN}
.p2align 8
.type {KN},@function
{body}
.section .rodata,"a"
.p2align 6
.amdhsa_kernel {KN}
  .amdhsa_next_free_vgpr 256
  .amdhsa_next_free_sgpr 100
  .amdhsa_accum_offset 144
  .amdhsa_group_segment_fixed_size 0
  .amdhsa_kernarg_size 136
  .amdhsa_user_sgpr_count 2
  .amdhsa_user_sgpr_kernarg_segment_ptr 1
  .amdhsa_system_sgpr_workgroup_id_x 1
.end_amdhsa_kernel
'''
if __name__ == "__main__":
    k2.FUSED[0] = 1
    for nm in ('GSPLIT', 'GAT'):
        if os.environ.get(nm): getattr(k1d, nm)[0] = int(os.environ[nm])
    if os.environ.get('PRIO'): k2.PRIO[:] = [int(c) for c in os.environ['PRIO']]
    open(sys.argv[1], 'w').write(build(pr=('prof' in sys.argv)))
```

```python
from dsl import Prog
import os
if os.environ.get("COMPACT"):
    WS_Z2F, WS_Z1F, WS_HF, WS_XNT, WS_YAT, WS_KR, WS_WOF, WS_ST, WS_FLB = 0, 0x380000, 0x700000, 0xA80000, 0xC80000, 0x1000000, 0xE80000, 0xF60000, 0x1040000
else:
    WS_Z2F, WS_Z1F, WS_HF, WS_XNT, WS_YAT, WS_KR, WS_WOF, WS_ST, WS_FLB = 0, 0x400000, 0x800000, 0xC00000, 0xE00000, 0x1000000, 0x1800000, 0x1900000, 0x1B00000
WS_WF  = 0x2000000
KR_STRIDE = 8704

def srd(P, d, base, nbytes, off=0):
    if off:
        P(f"s_add_u32 s{d}, s{base}, {off}")
        P(f"s_addc_u32 s{d+1}, s{base+1}, 0")
        P(f"s_and_b32 s{d+1}, s{d+1}, 0xffff")
    else:
        P(f"s_mov_b32 s{d}, s{base}")
        P(f"s_and_b32 s{d+1}, s{base+1}, 0xffff")
    P(f"s_mov_b32 s{d+2}, {nbytes}")
    P(f"s_mov_b32 s{d+3}, 0x00020000")

WS_PROF = 0x1A00000
PROF_K = [0]
PROF_V = [26]
PRIO = [0, 0]
LF = [0]
FUSED = [0]
HOOKS = {}
import os
XE = [int(os.environ.get('XE', '0'))]
Z1LATE = [int(os.environ.get('Z1LATE', '0'))]
K2PRE = [0]
EXP = [0]
def prof(P, idx, on):
    if not on: return
    P("s_memrealtime s[90:91]")
    P("s_lshl_b32 s92, s2, 3")
    P("s_add_u32 s92, s92, s3")
    P("s_lshl_b32 s92, s92, 6")
    P(f"s_add_u32 s92, s92, {WS_PROF + PROF_K[0]*0x40000 + idx*8}")
    P("s_waitcnt lgkmcnt(0)")
    b_ = PROF_V[0]
    P(f"v_mov_b32 v{b_}, s90")
    P(f"v_mov_b32 v{b_+1}, s91")
    P(f"v_mov_b32 v{b_-1}, s92")
    P(f"global_store_dwordx2 v{b_-1}, v[{b_}:{b_+1}], s[8:9]")

def epi_addr(P, sw):
    P("s_and_b32 s53, s15, 1")
    P("s_mul_i32 s58, s15, 7")
    P("s_add_u32 s58, s58, s53")
    P("s_lshr_b32 s58, s58, 1")
    P("s_lshl_b32 s59, s53, 2")
    P("s_sub_u32 s59, 3, s59")
    P("s_add_u32 s59, s59, s58")
    P("s_mul_i32 s60, s14, 28")
    P("s_add_u32 s58, s58, s60")
    P("s_add_u32 s59, s59, s60")
    P("s_lshl_b32 s58, s58, 2")
    P("s_lshl_b32 s59, s59, 2")
    P(f"s_add_u32 s58, s58, s{sw}")
    P(f"s_add_u32 s59, s59, s{sw}")
    P("s_lshl_b32 s58, s58, 10")
    P("s_lshl_b32 s59, s59, 10")
    P("s_lshl_b32 s53, s53, 3")
    P("s_add_u32 s59, s59, s53")
    P("s_add_u32 s60, s58, 8192")
    P("s_lshl_b32 s61, s14, 7")
    P(f"s_lshl_b32 s53, s{sw}, 5")
    P("s_add_u32 s61, s61, s53")
def epi_math(P, R, Z1, H, BI, G, q):
    a, b = R + 2 * q, R + 2 * q + 1
    P(f"v_add_f32 v{a}, v{a}, v{BI}")
    P(f"v_add_f32 v{b}, v{b}, v{BI}")
    P(f"v_cvt_pk_bf16_f32 v{G}, v{a}, v{b}")
    P(f"v_lshlrev_b32 v{G+1}, 16, v{Z1+q}")
    P(f"v_and_b32 v{G+2}, s62, v{Z1+q}")
    P(f"v_lshlrev_b32 v{a}, 16, v{G}")
    P(f"v_and_b32 v{b}, s62, v{G}")
    P(f"v_mul_f32 v{a}, v{a}, v{G+1}")
    P(f"v_mul_f32 v{b}, v{b}, v{G+2}")
    P(f"v_cvt_pk_bf16_f32 v{H+q}, v{a}, v{b}")
CW_AREA = 16384
XPO = 8704
from kgen import kgen
def gen_conv(P, CB, pr):
    prof(P, 0, pr)
    if PRIO[1] == 9: P("s_endpgm")
    elif PRIO[1]: P(f's_setprio {PRIO[1]}')
    T = 2
    P("s_sub_u32 s52, s3, 4")
    P("s_lshr_b32 s53, s52, 1")
    P("s_lshl_b32 s54, s2, 1")
    P("s_add_u32 s54, s54, s53")
    P(f"s_mul_i32 s55, s52, {CW_AREA}")
    P(f"s_add_u32 s55, s55, {CB}")
    PAR = 104
    P("s_xor_b32 s60, s52, 1")
    P(f"s_mul_i32 s60, s60, {CW_AREA}")
    P(f"s_add_u32 s60, s60, {CB}")
    P("s_and_b32 s61, s52, 1")
    if not FUSED[0]:
        P(f"v_mov_b32 v{T}, s55")
        P(f"v_mov_b32 v{T+1}, 0")
        P(f"ds_write_b32 v{T}, v{T+1} offset:16380")
        P(f"v_lshlrev_b32 v{T}, 2, v0")
        P("s_lshl_b32 s53, s54, 8")
        P(f"v_add_u32 v{T}, s53, v{T}")
        P("s_lshl_b32 s53, s54, 1")
        P(f"v_mov_b32 v{T+1}, s53")
        P("s_waitcnt lgkmcnt(0)")
        for k in range(6):
            P(f"global_load_dword v{PAR+k}, v{T}, s[{68+2*k}:{69+2*k}]")
        P(f"global_load_ushort v{PAR+6}, v{T+1}, s[80:81]")
        P(f"global_load_ushort v{PAR+7}, v{T+1}, s[10:11]")
        if K2PRE[0]:
            P("s_and_b32 s56, s2, 7")
            P("s_lshl_b32 s56, s56, 5")
            P("s_lshr_b32 s57, s2, 3")
            P("s_add_u32 s56, s56, s57")
            P("s_lshl_b32 s56, s56, 15")
            P("s_lshl_b32 s57, s52, 13")
            P("s_add_u32 s56, s56, s57")
            P(f"v_lshlrev_b32 v{T+2}, 7, v0")
            P(f"buffer_load_dword v{PAR+8}, v{T+2}, s[16:19], s56 offen")
        P("s_barrier")
        P("s_waitcnt vmcnt(1)" if K2PRE[0] else "s_waitcnt vmcnt(0)")
    P(f"v_lshlrev_b32 v{PAR+6}, 16, v{PAR+6}")
    prof(P, 3, pr)
    def xload():
        if FUSED[0]: P.lines.append(__import__('dsl').Ins('@XPOLL'))
        P("s_lshl_b32 s59, s54, 12")
        P(f"v_lshlrev_b32 v{T}, 4, v0")
        P(f"s_add_u32 m0, s55, {XPO+512}")
        P("s_nop 0")
        for e in range(4):
            P(f"buffer_load_dwordx4 v{T}, s[36:39], s59 offen offset:{1024*e} lds")
        P(f"v_mov_b32 v{T+2}, 0")
        P(f"v_mov_b32 v{T+3}, 0")
        P(f"v_lshlrev_b32 v{T+1}, 3, v0")
        P(f"v_add_u32 v{T+1}, s55, v{T+1}")
        P(f"ds_write_b64 v{T+1}, v[{T+2}:{T+3}] offset:{XPO}")
    if FUSED[0] and not XE[0]:
        kgen(P, PAR, 55, 60, 61, None); xload()
    elif FUSED[0]:
        P.lines.append(__import__('dsl').Ins('@XEARLY'))
        P("s_lshl_b32 s59, s54, 12")
        P(f"v_lshlrev_b32 v{T}, 4, v0")
        for e in range(4):
            P(f"buffer_load_dwordx4 v[{116+4*e}:{119+4*e}], v{T}, s[36:39], s59 offen offset:{1024*e}")
        P.lines.append(__import__('dsl').Ins('@TOUCH'))
        def xput():
            P(f"v_lshlrev_b32 v{T}, 4, v0")
            P(f"v_add_u32 v{T}, s55, v{T}")
            P("s_waitcnt vmcnt(1)")
            for e in range(4):
                P(f"ds_write_b128 v{T}, v[{116+4*e}:{119+4*e}] offset:{XPO+512+1024*e}")
            P(f"v_mov_b32 v{T+2}, 0")
            P(f"v_mov_b32 v{T+3}, 0")
            P(f"v_lshlrev_b32 v{T+1}, 3, v0")
            P(f"v_add_u32 v{T+1}, s55, v{T+1}")
            P(f"ds_write_b64 v{T+1}, v[{T+2}:{T+3}] offset:{XPO}")
        kgen(P, PAR, 55, 60, 61, xput)
    else:
        kgen(P, PAR, 55, 60, 61, xload)
    prof(P, 2, pr)
    P(f"v_mov_b32 v{T+9}, s57")
    P(f"v_mov_b32 v{T+8}, v{PAR+7}")
    P("s_lshl_b32 s57, s54, 12")
    VA = 12
    P(f"v_lshlrev_b32 v{T+8}, 16, v{T+8}")
    P(f"v_and_b32 v{T}, 15, v0")
    P(f"v_lshrrev_b32 v{T+1}, 5, v0")
    P(f"v_bfe_u32 v{T+2}, v0, 4, 1")
    P(f"v_lshl_add_u32 v{T+3}, v{T+1}, 4, v{T}")
    P(f"v_add_u32 v{T+3}, 9, v{T+3}")
    P(f"v_lshlrev_b32 v{T+4}, 3, v{T+2}")
    P(f"v_sub_u32 v{T+3}, v{T+3}, v{T+4}")
    P(f"v_and_b32 v{T+4}, 1, v{T+3}")
    P(f"v_sub_u32 v{T+3}, v{T+3}, v{T+4}")
    P(f"v_lshlrev_b32 v{T+3}, 1, v{T+3}")
    P("s_movk_i32 s58, 4288")
    P(f"v_mad_u32_u24 v{T+3}, v{T+4}, s58, v{T+3}")
    P("s_lshl_b32 s56, s61, 8")
    P("s_add_u32 s58, s55, s56")
    P(f"v_add_u32 v{VA}, s58, v{T+3}")
    for k in range(1, 4): P(f"v_add_u32 v{VA+k}, {1024*k}, v{VA}")
    P(f"v_sub_u32 v{T+3}, v{T}, v{T+1}")
    P(f"v_lshlrev_b32 v{T+3}, 5, v{T+3}")
    P(f"v_lshl_add_u32 v{T+3}, v{T+2}, 4, v{T+3}")
    P(f"s_add_u32 s58, s55, {XPO}")
    P("s_sub_u32 s56, s58, s56")
    P(f"v_add_u32 v{VA+4}, s56, v{T+3}")
    P(f"v_lshl_add_u32 v{T+3}, v{T}, 1, v{T+1}")
    P(f"v_lshlrev_b32 v{T+3}, 4, v{T+3}")
    P(f"v_xor_b32 v{T+4}, 1, v{T+2}")
    P(f"v_lshl_add_u32 v{T+3}, v{T+4}, 3, v{T+3}")
    P("s_lshl_b32 s56, s61, 11")
    P("s_add_u32 s58, s58, s56")
    P(f"v_add_u32 v{VA+5}, s58, v{T+3}")
    P(f"v_lshrrev_b32 v{T+3}, 4, v0")
    P(f"v_lshlrev_b32 v{T+3}, 3, v{T+3}")
    P(f"v_lshl_add_u32 v{VA+6}, v{T}, 5, v{T+3}")
    P(f"v_add_u32 v{VA+6}, s56, v{VA+6}")
    AF, BF, CACC = 20, 52, 84
    for r in range(32): P(f"v_mov_b32 v{CACC+r}, 0")
    P("s_waitcnt lgkmcnt(0)" if (FUSED[0] and XE[0]) else "s_waitcnt vmcnt(0) lgkmcnt(0)")
    def rds(st, dl):
        out = []
        for i in range(8):
            o = 128 * (i & 1) + 16 * dl
            ra = (lambda k: f"v[{AF+4*i+k}:{AF+4*i+k+1}]") if st == 0 else (lambda k: f"a[{4*i+k}:{4*i+k+1}]")
            rb = f"v[{BF+4*i}:{BF+4*i+3}]" if st == 0 else f"a[{32+4*i}:{32+4*i+3}]"
            out.append(f"ds_read2_b32 {ra(0)}, v{VA+(i>>1)} offset0:{o} offset1:{o+1}")
            out.append(f"ds_read2_b32 {ra(2)}, v{VA+(i>>1)} offset0:{o+2} offset1:{o+3}")
            out.append(f"ds_read_b128 {rb}, v{VA+4} offset:{512+512*i-64*dl}")
        return out
    def mf(st, side):
        side = list(side)
        for i in range(8):
            for w in range(8 - i):
                a = CACC + 4 * (i + w)
                ra = f"v[{AF+4*i}:{AF+4*i+3}]" if st == 0 else f"a[{4*i}:{4*i+3}]"
                rb = f"v[{BF+4*w}:{BF+4*w+3}]" if st == 0 else f"a[{32+4*w}:{32+4*w+3}]"
                P(f"v_mfma_f32_16x16x32_f16 v[{a}:{a+3}], {ra}, {rb}, v[{a}:{a+3}]")
                if side: P(side.pop(0))
    if FUSED[0]: P.lines.append(__import__('dsl').Ins('@Z1ISSUE 19 116'))
    for x_ in rds(0, 0): P(x_)
    P("s_mov_b32 s59, 0")
    P.label("k2_cloop")
    P("s_waitcnt lgkmcnt(0)")
    mf(0, rds(1, 1))
    P("s_waitcnt lgkmcnt(0)")
    mf(1, rds(0, 2))
    for k in range(4): P(f"v_add_u32 v{VA+k}, 128, v{VA+k}")
    P(f"v_subrev_u32 v{VA+4}, 128, v{VA+4}")
    P("s_add_u32 s59, s59, 1")
    P("s_cmp_lt_u32 s59, 2")
    P("s_cbranch_scc1 k2_cloop")
    P("s_waitcnt lgkmcnt(0)")
    P(f"v_lshlrev_b32 v{T}, 4, v0")
    P(f"v_add_u32 v{T+1}, s55, v{T}")
    for u in range(8):
        P(f"ds_write_b128 v{T+1}, v[{CACC+4*u}:{CACC+4*u+3}] offset:{1024*u}")
    P(f"v_mov_b32 v{T+3}, s55")
    P(f"v_mov_b32 v{T+4}, s60")
    P(f"v_mov_b32 v{T+5}, 2")
    P("s_lshl_b32 s56, s61, 12")
    P("s_add_u32 s58, s56, s60")
    P("s_add_u32 s56, s56, s55")
    P(f"v_add_u32 v{T+1}, s56, v{T}")
    P(f"v_add_u32 v{T+2}, s58, v{T}")
    P("s_waitcnt lgkmcnt(0)")
    P(f"ds_write_b32 v{T+3}, v{T+5} offset:16380")
    for k in range(4):
        P(f"ds_read_b128 v[{CACC+4*k}:{CACC+4*k+3}], v{T+1} offset:{1024*k}")
        P(f"ds_read_b64 v[{AF+2*k}:{AF+2*k+1}], v{VA+5} offset:{512+512*k}")
    P("s_mov_b32 s58, 0")
    P.label("k2_cp")
    P(f"ds_read_b32 v{T+5}, v{T+4} offset:16380")
    P("s_add_u32 s58, s58, 1")
    P("s_waitcnt lgkmcnt(0)")
    P(f"v_readfirstlane_b32 s56, v{T+5}")
    P("s_cmp_eq_u32 s56, 2")
    P("s_cbranch_scc1 k2_cg")
    P("s_sleep 1")
    P("s_cmp_lt_u32 s58, 0x400000")
    P("s_cbranch_scc1 k2_cp")
    P.label("k2_cg")
    for k in range(4):
        P(f"ds_read_b128 v[{CACC+16+4*k}:{CACC+19+4*k}], v{T+2} offset:{1024*k}")
    P("s_mov_b32 s62, 0xffff0000")
    P("s_waitcnt lgkmcnt(0)")
    for k in range(4):
        a = CACC + 4 * k; xl, xh = AF + 2 * k, AF + 2 * k + 1
        for i in range(4): P(f"v_add_f32 v{a+i}, v{a+i}, v{a+16+i}")
        for i in range(4): P(f"v_mul_f32 v{a+i}, v{a+i}, v{T+9}")
        P(f"v_cvt_pk_bf16_f32 v{T}, v{a}, v{a+1}")
        P(f"v_cvt_pk_bf16_f32 v{T+1}, v{a+2}, v{a+3}")
        P(f"v_cvt_f32_f16_sdwa v{a}, v{xh} dst_sel:DWORD dst_unused:UNUSED_PAD src0_sel:WORD_1")
        P(f"v_cvt_f32_f16 v{a+1}, v{xh}")
        P(f"v_cvt_f32_f16_sdwa v{a+2}, v{xl} dst_sel:DWORD dst_unused:UNUSED_PAD src0_sel:WORD_1")
        P(f"v_cvt_f32_f16 v{a+3}, v{xl}")
        for i in range(4): P(f"v_mul_f32 v{a+i}, v{a+i}, v{T+8}")
        P(f"v_cvt_pk_bf16_f32 v{T+2}, v{a}, v{a+1}")
        P(f"v_cvt_pk_bf16_f32 v{T+3}, v{a+2}, v{a+3}")
        for hh in range(2):
            P(f"v_lshlrev_b32 v{a+2*hh}, 16, v{T+hh}")
            P(f"v_and_b32 v{a+2*hh+1}, s62, v{T+hh}")
            P(f"v_lshlrev_b32 v{T+4}, 16, v{T+2+hh}")
            P(f"v_and_b32 v{T+5}, s62, v{T+2+hh}")
            P(f"v_add_f32 v{a+2*hh}, v{a+2*hh}, v{T+4}")
            P(f"v_add_f32 v{a+2*hh+1}, v{a+2*hh+1}, v{T+5}")
        P(f"v_cvt_pk_bf16_f32 v{BF+2*k}, v{a}, v{a+1}")
        P(f"v_cvt_pk_bf16_f32 v{BF+2*k+1}, v{a+2}, v{a+3}")
        P(f"buffer_store_dwordx2 v[{BF+2*k}:{BF+2*k+1}], v{VA+6}, s[40:43], s57 offen offset:{512*k} sc1")
    P.label("k2_ctail")
    prof(P, 1, pr)
    AREA = CB // 4
    if FUSED[0] and XE[0]: P.lines.append(__import__('dsl').Ins('@XPOLL'))
    if FUSED[0]:
        P('s_waitcnt vmcnt(4)')
        P.lines.append(__import__('dsl').Ins('@Z1CHECKb 19 116'))
    epi_addr(P, 52)
    Z1 = 20; VL = 2
    P(f"v_lshlrev_b32 v{VL}, 4, v0")
    P(f"buffer_load_dwordx4 v[{Z1}:{Z1+3}], v{VL}, s[24:27], s60 offen")
    P(f"buffer_load_dwordx2 v[{Z1+4}:{Z1+5}], v{VL}, s[24:27], s59 offen")
    P(f"v_and_b32 v3, 15, v0")
    P(f"v_lshlrev_b32 v3, 1, v3")
    P(f"buffer_load_ushort v{Z1+6}, v3, s[32:35], s61 offen")
    nearly = HOOKS['p3early'](P) if 'p3early' in HOOKS else 0
    P("s_mov_b32 s62, 0xffff0000")
    P("s_barrier")
    R = 84
    for dl in range(4):
        P(f"s_sub_u32 s53, s52, {dl}")
        P("s_and_b32 s53, s53, 3")
        P(f"s_mul_i32 s53, s53, {AREA}")
        P(f"v_add_u32 v{4+(dl&1)}, s53, v{VL}")
        for k in range(3):
            r = R + 12 * dl + 4 * k
            off = 21504 + 1024 * k if dl == 0 else (dl - 1) * 7168 + (4 + k) * 1024
            P(f"ds_read_b128 v[{r}:{r+3}], v{4+(dl&1)} offset:{off}")
    P("s_waitcnt lgkmcnt(6)")
    for r in range(12): P(f"v_add_f32 v{R+r}, v{R+r}, v{R+12+r}")
    P("s_waitcnt lgkmcnt(0)")
    for r in range(12): P(f"v_add_f32 v{R+24+r}, v{R+24+r}, v{R+36+r}")
    for r in range(12): P(f"v_add_f32 v{R+r}, v{R+r}, v{R+24+r}")
    P(f"s_waitcnt vmcnt({nearly})")
    P(f"v_lshlrev_b32 v{Z1+7}, 16, v{Z1+6}")
    H = 28
    for q in range(6):
        epi_math(P, R, Z1, H, Z1 + 7, 6, q)
        if q == 3: P(f"buffer_store_dwordx4 v[{H}:{H+3}], v{VL}, s[28:31], s60 offen sc1")
    P(f"buffer_store_dwordx2 v[{H+4}:{H+5}], v{VL}, s[28:31], s59 offen sc1")
    P("s_endpgm")

def gen_k2(P, NST=3, conv=True, nz=3, pr=False):
    STG = 8192
    AREA = NST * STG
    P.label("k2_kernel")
    P("s_cmp_ge_u32 s2, 256")
    P("s_cbranch_scc1 k2_end")
    P("s_load_dwordx2 s[4:5], s[0:1], 88")
    P("s_load_dwordx2 s[6:7], s[0:1], 96")
    P("s_load_dwordx2 s[8:9], s[0:1], 128")
    P("s_load_dwordx2 s[10:11], s[0:1], 64")
    P("s_load_dwordx4 s[68:71], s[0:1], 8")
    P("s_load_dwordx4 s[72:75], s[0:1], 24")
    P("s_load_dwordx4 s[76:79], s[0:1], 40")
    P("s_load_dwordx2 s[80:81], s[0:1], 56")
    P("v_lshrrev_b32 v1, 6, v0")
    P("v_and_b32 v0, 63, v0")
    P("v_readfirstlane_b32 s3, v1")
    P("s_and_b32 s12, s2, 7")
    P("s_lshr_b32 s13, s2, 3")
    P("s_lshr_b32 s14, s12, 1")
    P("s_lshl_b32 s14, s14, 3")
    P("s_and_b32 s15, s13, 7")
    P("s_add_u32 s14, s14, s15")
    P("s_and_b32 s15, s12, 1")
    P("s_lshl_b32 s15, s15, 2")
    P("s_lshr_b32 s13, s13, 3")
    P("s_add_u32 s15, s15, s13")
    if EXP[0] in (5, 6):
        P("s_mov_b32 s14, 0")
        P("s_mov_b32 s15, 0")
    P("s_waitcnt lgkmcnt(0)")
    srd(P, 16, 4, 2048 * 2048 * 2)
    srd(P, 20, 8, 0x400000, WS_Z2F)
    srd(P, 24, 8, 0x400000, WS_Z1F)
    srd(P, 28, 8, 0x400000, WS_HF)
    srd(P, 32, 6, 4096)
    srd(P, 36, 8, 0x200000, WS_XNT)
    srd(P, 40, 8, 0x200000, WS_YAT)
    if conv:
        P("s_cmp_ge_u32 s3, 4")
        P("s_cbranch_scc1 k2_conv")
    if PRIO[0] == 9: P('s_endpgm')
    elif PRIO[0]: P(f's_setprio {PRIO[0]}')
    prof(P, 0, pr)
    if pr: P("s_memtime s[82:83]")
    VW = 2
    VZ = 10
    VA = 12
    T = 20
    WF = 28
    ZB = 60
    P(f"v_lshrrev_b32 v{T}, 3, v0")
    P(f"v_and_b32 v{T+1}, 7, v0")
    P(f"v_lshrrev_b32 v{T+2}, 1, v{T}")
    P(f"v_xor_b32 v{T+1}, v{T+1}, v{T+2}")
    P(f"v_lshlrev_b32 v{T+1}, 4, v{T+1}")
    P(f"v_lshl_add_u32 v{T+1}, v{T}, 12, v{T+1}")
    P(f"v_xor_b32 v{T+2}, 64, v{T+1}")
    for e in range(8):
        P(f"v_add_u32 v{VW+e}, {8*e*4096 - 1024*(e&3)}, v{T+1+(e&1)}")
    P(f"v_lshlrev_b32 v{VZ}, 4, v0")
    P(f"v_add_u32 v{VZ+1}, 4096, v{VZ}")
    P(f"v_and_b32 v{T}, 15, v0")
    P(f"v_lshrrev_b32 v{T+1}, 4, v0")
    P(f"v_lshrrev_b32 v{T+2}, 1, v{T}")
    P(f"v_xor_b32 v{T+1}, v{T+1}, v{T+2}")
    P(f"v_lshlrev_b32 v{T+1}, 4, v{T+1}")
    P(f"v_lshl_add_u32 v{T+1}, v{T}, 7, v{T+1}")
    P(f"s_mul_i32 s52, s3, {AREA}")
    for tau in range(4):
        P(f"s_add_u32 s53, s3, {tau}")
        P(f"s_and_b32 s53, s53, 3")
        P(f"s_lshl_b32 s53, s53, 11")
        P(f"s_add_u32 s53, s53, s52")
        P(f"v_add_u32 v{VA+tau}, s53, v{T+1}")
        P(f"v_xor_b32 v{VA+4+tau}, 64, v{VA+tau}")
    P("s_lshl_b32 s54, s14, 18")
    P("s_lshl_b32 s53, s3, 10")
    P("s_add_u32 s54, s54, s53")
    P(f"s_mul_i32 s55, s15, {64*7168}")
    P(f"s_mul_i32 s53, s3, {16*7168}")
    P("s_add_u32 s55, s55, s53")
    def wdma(q):
        out = []
        st = q % NST
        for e in range(8):
            pre = []
            if e % 4 == 0:
                pre.append(f"s_add_u32 m0, s52, {st*STG + e*1024}")
                if e == 0: pre.append(f"s_add_u32 s56, s54, {q*128}")
                else: pre.append("s_nop 0")
            out.append("\n".join(pre + [f"buffer_load_dwordx4 v{VW+e}, s[16:19], s56 offen offset:{1024*(e&3)} lds"]))
        return out
    def zld(i):
        out = []
        b = ZB + 28 * (i % nz)
        for ft in range(7):
            pre = [f"s_add_u32 s57, s55, {i*7168}"] if ft == 0 else []
            out.append("\n".join(pre + [f"buffer_load_dwordx4 v[{b+4*ft}:{b+4*ft+3}], v{VZ+(ft>>2)}, s[20:23], s57 offen offset:{1024*(ft&3)}"]))
        return out
    def wrd(i):
        out = []
        st = (i // 2) % NST; h = i & 1
        b = WF + 16 * (i & 1)
        for tau in range(4):
            out.append(f"ds_read_b128 v[{b+4*tau}:{b+4*tau+3}], v{VA+4*h+tau} offset:{st*STG}")
        return out
    ZD = nz - 1
    WD = NST - 1
    issued = []
    def emit(lst, tag):
        for s in lst:
            P(s); issued.append(tag)
    if FUSED[0]:
        for q in range(WD):
            for _ in range(8): issued.append(('W', q))
        for _ in range(2): issued.append(('W', 0))
        P.lines.append(__import__('dsl').Ins('@ZPOLL'))
        for i in range(ZD): emit(zld(i), ('Z', i))
    else:
        for q in range(max(WD, (ZD + 1) // 2)):
            if q < WD: emit(wdma(q), ('W', q))
            for i in (2 * q, 2 * q + 1):
                if i < ZD: emit(zld(i), ('Z', i))
    if conv and not FUSED[0]: P('s_barrier')
    for r in range(112):
        P(f"v_accvgpr_write_b32 a{r}, 0")
    def wait_for(tags):
        if not any(t in tags for t in issued): return
        last = max(k for k, t in enumerate(issued) if t in tags)
        n = len(issued) - 1 - last
        P(f"s_waitcnt vmcnt({min(n,63)})")
    Z1 = ZB + 28 * ((15 - ZD) % nz)
    def epi_loads():
        if FUSED[0]: P.lines.append(__import__('dsl').Ins('@Z1CHECKa 24 26'))
        epi_addr(P, 3)
        P(f"buffer_load_dwordx4 v[{Z1}:{Z1+3}], v{VZ}, s[24:27], s58 offen")
        P(f"buffer_load_dwordx4 v[{Z1+4}:{Z1+7}], v{VZ+1}, s[24:27], s58 offen")
        P(f"v_and_b32 v{T}, 15, v0")
        P(f"v_lshlrev_b32 v{T}, 1, v{T}")
        P(f"buffer_load_ushort v{T+3}, v{T}, s[32:35], s61 offen")
    wait_for({('W', 0)})
    if FUSED[0]:
        P.lines.append(__import__('dsl').Ins('@Z1FLAG'))
        if Z1LATE[0]: issued.append(('F', 0))
    if pr: P('s_memrealtime s[80:81]')
    for s in wrd(0): P(s)
    for i in range(16):
        need_tags = {('Z', i)}
        if i + 1 < 16: need_tags.add(('W', (i + 1) // 2))
        wait_for(need_tags)
        P("s_waitcnt lgkmcnt(0)")
        side = []
        if i + 1 < 16: side += [(s, None) for s in wrd(i + 1)]
        if i + ZD < 16: side += [(s, ('Z', i + ZD)) for s in zld(i + ZD)]
        if i % 2 == 0 and i // 2 + WD < 8: side += [(s, ('W', i // 2 + WD)) for s in wdma(i // 2 + WD)]
        zb = ZB + 28 * (i % nz); wb = WF + 16 * (i & 1)
        if EXP[0] in (3, 4):
            drop = 'W' if EXP[0] == 3 else 'Z'
            side2 = []
            for x in side:
                if x[1] and x[1][0] == drop: side2.append(("s_nop 0", None))
                else: side2.append(x)
            side = side2
        if EXP[0] == 2:
            for x in side:
                if x[1]: issued.append(x[1])
            side = [x for x in side if not x[1]]
            P("s_sleep 7")
        k = 0
        if LF[0]:
            if LF[0] == 2: P("s_setprio 3")
            mem = [x for x in side if x[1]]; side = [x for x in side if not x[1]]
            for s_, tag in mem:
                P(s_); issued.append(tag)
            if LF[0] == 2: P("s_setprio 0")
        for ft in range(7):
            for tau in range(4):
                a = 4 * (ft * 4 + tau)
                if EXP[0] not in (1, 3, 4, 6): P(f"v_mfma_f32_16x16x32_bf16 a[{a}:{a+3}], v[{zb+4*ft}:{zb+4*ft+3}], v[{wb+4*tau}:{wb+4*tau+3}], a[{a}:{a+3}]")
                if k < len(side):
                    s, tag = side[k]; k += 1
                    P(s)
                    if tag: issued.append(tag)
        assert k == len(side)
        if i == 8 and FUSED[0]:
            P.lines.append(__import__('dsl').Ins('@Z1ISSUE 24 26'))
            if Z1LATE[0]: issued.append(('F', 1))
        if i == 16 - ZD:
            epi_loads()
            for _ in range(3): issued.append(('E', 0))
    prof(P, 2, pr)
    if pr:
        P('v_mov_b32 v26, s80')
        P('v_mov_b32 v27, s81')
        P('global_store_dwordx2 v25, v[26:27], s[8:9] offset:-8')
    P(f"v_add_u32 v{T+2}, s52, v{VZ}")
    for tau in range(1, 4):
        for ft in range(7):
            a = 4 * (ft * 4 + tau)
            P(f"ds_write_b128 v{T+2}, a[{a}:{a+3}] offset:{(tau-1)*7168 + ft*1024}")
    for ft in range(4, 7):
        P(f"ds_write_b128 v{T+2}, a[{16*ft}:{16*ft+3}] offset:{21504 + (ft-4)*1024}")
    R = WF
    for ft in range(4):
        for i in range(4): P(f"v_accvgpr_read_b32 v{R+4*ft+i}, a{16*ft+i}")
    P("s_mov_b32 s62, 0xffff0000")
    P("s_waitcnt lgkmcnt(0)")
    nearly = HOOKS['p3early'](P) if 'p3early' in HOOKS else 0
    P("s_barrier")
    RB = [ZB + 28 * ((15 - ZD + 1) % nz), ZB + 28 * ((15 - ZD + 2) % nz), WF + 16]
    for dl in range(1, 4):
        P(f"s_sub_u32 s53, s3, {dl}")
        P("s_and_b32 s53, s53, 3")
        P(f"s_mul_i32 s53, s53, {AREA}")
        P(f"v_add_u32 v{T+2}, s53, v{VZ}")
        for ft in range(4):
            r = RB[dl - 1] + 4 * ft
            P(f"ds_read_b128 v[{r}:{r+3}], v{T+2} offset:{(dl-1)*7168 + ft*1024}")
    G = T + 4
    P("s_waitcnt lgkmcnt(8)")
    for r in range(16): P(f"v_add_f32 v{R+r}, v{R+r}, v{RB[0]+r}")
    P("s_waitcnt lgkmcnt(0)")
    for r in range(16): P(f"v_add_f32 v{RB[1]+r}, v{RB[1]+r}, v{RB[2]+r}")
    for r in range(16): P(f"v_add_f32 v{R+r}, v{R+r}, v{RB[1]+r}")
    P(f"s_waitcnt vmcnt({nearly})")
    P(f"v_lshlrev_b32 v{T+1}, 16, v{T+3}")
    H = RB[0]
    for q in range(8):
        epi_math(P, R, Z1, H, T + 1, G, q)
        if q == 3: P(f"buffer_store_dwordx4 v[{H}:{H+3}], v{VZ}, s[28:31], s58 offen sc1")
    P(f"buffer_store_dwordx4 v[{H+4}:{H+7}], v{VZ+1}, s[28:31], s58 offen sc1")
    prof(P, 3, pr)
    if pr: P("s_waitcnt vmcnt(0)")
    prof(P, 4, pr)
    if pr:
        P("s_memtime s[84:85]")
        P("s_waitcnt lgkmcnt(0)")
        P("s_sub_u32 s84, s84, s82")
        P("v_mov_b32 v26, s84")
        P("v_mov_b32 v27, 0")
        P("global_store_dwordx2 v25, v[26:27], s[8:9] offset:8")
    P("s_endpgm")
    if conv:
        P.label("k2_conv")
        gen_conv(P, 4 * AREA, pr)
    P.label("k2_end")
    P("s_endpgm")
    return dict(vgpr=ZB + 28 * max(nz, 3), agpr=112, lds=4 * AREA + (4 * CW_AREA if conv else 0))
```

```python
import re, os, sys
from dsl import Prog, Ins
import k1d, k2, aux
from k2 import *
WS_FL1 = WS_FLB
WS_FL1B = WS_FLB + 0x10000
WS_FLX = WS_FLB + 0x20000
WS_FL2 = WS_FLB + 0x8000
SLEEP = [4]
TOUCH = [int(os.environ.get('TOUCH', '1'))]
KN = "parallel_sum__ssm_conv_s4__mixer_gmlp__prompt_kernel"

def lines_of(P): return [l.text for l in P.lines]

def poll(E, name, va, vd, nlanes):
    mask = (1 << nlanes) - 1
    E(f"s_mov_b32 exec_lo, {mask & 0xffffffff:#x}")
    E(f"s_mov_b32 exec_hi, {mask >> 32:#x}")
    E("s_mov_b32 s95, 0")
    E(f"{name}:")
    E(f"global_load_dwordx2 v[{vd}:{vd+1}], v{va}, s[8:9] sc0 sc1")
    E("s_add_u32 s95, s95, 1")
    E("s_waitcnt vmcnt(0)")
    E(f"v_cmp_ne_u64 vcc, s[96:97], v[{vd}:{vd+1}]")
    E("s_nop 1")
    E("s_cmp_eq_u64 vcc, 0")
    E(f"s_cbranch_scc1 {name}_ok")
    E("s_sleep 2")
    E("s_cmp_lt_u32 s95, 0x100000")
    E(f"s_cbranch_scc1 {name}")
    E(f"{name}_ok:")
    E("s_mov_b64 exec, -1")

GOW = 4 * 24576 + 16376
def ldswait(E, name, va, vd):
    E("s_mov_b32 s95, 0")
    E(f"{name}:")
    E(f"ds_read_b32 v{vd}, v{va}")
    E("s_add_u32 s95, s95, 1")
    E("s_waitcnt lgkmcnt(0)")
    E(f"v_readfirstlane_b32 s94, v{vd}")
    E("s_cmp_eq_u32 s94, 1")
    E(f"s_cbranch_scc1 {name}_ok")
    E("s_sleep 1")
    E("s_cmp_lt_u32 s95, 0x1000000")
    E(f"s_cbranch_scc1 {name}")
    E(f"{name}_ok:")

def phase3(P, pr):
    P("s_load_dwordx2 s[4:5], s[0:1], 0")
    P("s_load_dwordx2 s[6:7], s[0:1], 112")
    P("s_and_b32 s12, s2, 7")
    P("s_lshr_b32 s13, s2, 3")
    P("s_lshl_b32 s14, s12, 2")
    P("s_and_b32 s15, s13, 3")
    P("s_add_u32 s14, s14, s15")
    P("s_lshr_b32 s15, s13, 2")
    srd(P, 24, 8, 0x400000, WS_HF)
    srd(P, 28, 8, 896 * 1024, WS_WOF)
    srd(P, 32, 8, 0x200000, WS_YAT)
    T = 2; VL = 10; VH = 12; VO = 16
    P(f"v_lshlrev_b32 v{VL}, 4, v0")
    for tau in range(4):
        P(f"s_add_u32 s53, s3, {tau}")
        P("s_and_b32 s53, s53, 3")
        P("s_lshl_b32 s53, s53, 10")
        P(f"v_add_u32 v{VH+tau}, s53, v{VL}")
    P("s_lshr_b32 s59, s3, 2")
    P("s_lshl_b32 s53, s59, 11")
    P(f"v_add_u32 v{VO}, s53, v{VL}")
    P(f"v_xor_b32 v{VO+1}, 2048, v{VO}")
    P("s_lshl_b32 s52, s3, 2")
    P("s_mul_i32 s53, s3, 3")
    P("s_add_u32 s53, s53, 4")
    P("s_cmp_lt_u32 s3, 4")
    P("s_cselect_b32 s52, s52, s53")
    P("s_mul_i32 s54, s14, 28")
    P("s_add_u32 s54, s54, s52")
    P("s_lshl_b32 s54, s54, 12")
    P("s_mul_i32 s55, s15, 28")
    P("s_add_u32 s55, s55, s52")
    P("s_lshl_b32 s55, s55, 12")
    P("s_waitcnt lgkmcnt(0)")
    srd(P, 16, 4, 2048 * 512 * 2)
    srd(P, 20, 6, 2048 * 512 * 2)
    XR = 20
    P(f"v_and_b32 v{T}, 15, v0")
    P(f"v_lshrrev_b32 v{T+1}, 4, v0")
    P(f"v_lshlrev_b32 v{T}, 10, v{T}")
    P(f"v_lshl_add_u32 v{VL+1}, v{T+1}, 4, v{T}")
    P("s_lshl_b32 s58, s14, 16")
    P("s_and_b32 s57, s3, 3")
    P("s_lshl_b32 s57, s57, 14")
    P("s_add_u32 s58, s58, s57")
    P("s_lshl_b32 s57, s15, 7")
    P("s_add_u32 s58, s58, s57")
    P("s_lshl_b32 s57, s59, 6")
    P("s_add_u32 s58, s58, s57")
    P(f"buffer_load_dwordx4 v[{XR}:{XR+3}], v{VL+1}, s[16:19], s58 offen")
    P("s_lshl_b32 s53, s14, 7")
    P(f"s_add_u32 s53, s53, {WS_FL2 + 4096}")
    P("s_lshl_b32 s57, s15, 8")
    P(f"s_add_u32 s57, s57, {WS_FL2 - 64}")
    P(f"v_mov_b32 v{T}, s53")
    P(f"v_mov_b32 v{T+1}, s57")
    P(f"v_cmp_gt_u32 vcc, 8, v0")
    P(f"v_cndmask_b32 v{T}, v{T+1}, v{T}, vcc")
    P(f"v_lshl_add_u32 v{T}, v0, 3, v{T}")
    prof(P, 0, pr)
    def E(t):
        if t.endswith(':'): P.label(t[:-1])
        else: P(t)
    P("s_cmp_lg_u32 s3, 0")
    P("s_cbranch_scc1 p3_np")
    poll(E, "p3_poll", T, T + 2, 40)
    P.label("p3_np")
    P("s_barrier")
    prof(P, 1, pr)
    HB = 80
    def hl(k):
        P(f"s_add_u32 s56, s54, {4096*k}")
        for tau in range(4):
            r = HB + 16 * k + 4 * tau
            P(f"buffer_load_dwordx4 v[{r}:{r+3}], v{VH+tau}, s[24:27], s56 offen sc1")
    AREA = 14 * 1024; YB = 8 * AREA
    P(f"v_lshrrev_b32 v{T}, 3, v0")
    P(f"v_and_b32 v{T+1}, 7, v0")
    P(f"v_lshlrev_b32 v{T+1}, 4, v{T+1}")
    P(f"v_lshl_add_u32 v{T+1}, v{T}, 12, v{T+1}")
    P("s_lshl_b32 s56, s15, 18")
    P("s_lshl_b32 s57, s3, 15")
    P("s_add_u32 s56, s56, s57")
    P("s_lshl_b32 s57, s14, 7")
    P("s_add_u32 s60, s56, s57")
    P("s_lshl_b32 s57, s3, 10")
    P(f"s_add_u32 m0, s57, {YB}")
    def acc(pi, sg_, tau):
        i = (2 * pi + sg_) * 4 + tau
        return f"a[{64+4*i}:{67+4*i}]" if 0 < (i & ~4) and i - (2 if i > 4 else 1) < 12 and i not in (0, 4) and False else None
    others = [(pi, sg_, tau) for pi in range(2) for tau in range(4) for sg_ in range(2) if not (pi == 0 and tau == 0)]
    amap = {}
    for sg_ in range(2): amap[(0, sg_, 0)] = f"v[{24+4*sg_}:{27+4*sg_}]"
    for n_, key in enumerate(others):
        amap[key] = f"a[{4*ACQ[n_]}:{4*ACQ[n_]+3}]" if n_ < 12 else f"v[{32+4*(n_-12)}:{35+4*(n_-12)}]"
    def mf(k):
        for pi in range(2):
            for sg_ in range(2):
                for tau in range(4):
                    a = amap[(pi, sg_, tau)]; r = 4 * WOQ[4 * k + 2 * pi + sg_]; h = HB + 16 * k + 4 * tau
                    P(f"v_mfma_f32_16x16x32_bf16 {a}, a[{r}:{r+3}], v[{h}:{h+3}], {'0' if k == 0 else a}")
    P("s_cmp_ge_u32 s3, 4")
    P("s_cbranch_scc1 p3_3")
    for k in range(4): hl(k)
    P(f"buffer_load_dwordx4 v{T+1}, s[32:35], s60 offen sc1 lds")
    for k in range(4):
        P(f"s_waitcnt vmcnt({1 + 4*(3-k)})"); mf(k)
    P("s_branch p3_red")
    P.label("p3_3")
    for k in range(3): hl(k)
    P(f"buffer_load_dwordx4 v{T+1}, s[32:35], s60 offen sc1 lds")
    for k in range(3):
        P(f"s_waitcnt vmcnt({1 + 4*(2-k)})"); mf(k)
    P.label("p3_red")
    prof(P, 2, pr)
    P(f"s_mul_i32 s52, s3, {AREA}")
    P(f"v_add_u32 v{T}, s52, v{VL}")
    for n_, key in enumerate(others):
        P(f"ds_write_b128 v{T}, {amap[key]} offset:{1024*n_}")
    P("s_waitcnt vmcnt(0) lgkmcnt(0)")
    P("s_barrier")
    R = 40
    gi = 0
    for pi in range(2):
        for tau in range(4):
            if pi == 0 and tau == 0: continue
            P(f"s_sub_u32 s53, s3, {tau}")
            P("s_and_b32 s53, s53, 3")
            P(f"s_xor_b32 s57, s59, {pi}")
            P("s_lshl_b32 s57, s57, 2")
            P("s_add_u32 s53, s53, s57")
            P(f"s_mul_i32 s53, s53, {AREA}")
            P(f"v_add_u32 v{T+(gi&1)}, s53, v{VL}")
            for sg_ in range(2):
                r = R + 8 * gi + 4 * sg_
                P(f"ds_read_b128 v[{r}:{r+3}], v{T+(gi&1)} offset:{1024*(2*gi+sg_)}")
            gi += 1
    P(f"v_lshrrev_b32 v{T+2}, 4, v0")
    P(f"v_bfe_u32 v{T+3}, v0, 2, 2")
    P(f"v_and_b32 v{T+4}, 3, v0")
    P(f"v_lshl_add_u32 v{T+2}, v{T+2}, 3, v{T+3}")
    P(f"v_lshlrev_b32 v{T+2}, 7, v{T+2}")
    P(f"v_lshl_add_u32 v{T+2}, v{T+4}, 3, v{T+2}")
    P("s_and_b32 s53, s3, 3")
    P("s_lshl_b32 s53, s53, 5")
    P("s_lshl_b32 s57, s59, 12")
    P("s_add_u32 s53, s53, s57")
    P(f"s_add_u32 s53, s53, {YB}")
    P(f"v_add_u32 v{T+2}, s53, v{T+2}")
    YA = 32
    P("s_waitcnt lgkmcnt(0)")
    for eta in range(2):
        P(f"ds_read_b64_tr_b16 v[{YA+2*eta}:{YA+2*eta+1}], v{T+2} offset:{512*eta}")
    for i in range(8):
        P(f"v_add_f32 v{24+i}, v{24+i}, v{R+i}")
        P(f"v_add_f32 v{R+8+i}, v{R+8+i}, v{R+16+i}")
        P(f"v_add_f32 v{R+24+i}, v{R+24+i}, v{R+32+i}")
        P(f"v_add_f32 v{R+40+i}, v{R+40+i}, v{R+48+i}")
    for i in range(8):
        P(f"v_add_f32 v{24+i}, v{24+i}, v{R+8+i}")
        P(f"v_add_f32 v{R+24+i}, v{R+24+i}, v{R+40+i}")
    for i in range(8): P(f"v_add_f32 v{24+i}, v{24+i}, v{R+24+i}")
    P("s_mov_b32 s65, 0xffff0000")
    P("s_waitcnt lgkmcnt(0)")
    for q in range(4):
        a = 24 + 2 * q
        P(f"v_cvt_pk_bf16_f32 v{T}, v{a}, v{a+1}")
        P(f"v_lshlrev_b32 v{T+2}, 16, v{XR+q}")
        P(f"v_and_b32 v{T+3}, s65, v{XR+q}")
        P(f"v_lshlrev_b32 v{T+4}, 16, v{YA+q}")
        P(f"v_and_b32 v{T+5}, s65, v{YA+q}")
        P(f"v_add_f32 v{T+2}, v{T+2}, v{T+4}")
        P(f"v_add_f32 v{T+3}, v{T+3}, v{T+5}")
        P(f"v_cvt_pk_bf16_f32 v{T+4}, v{T+2}, v{T+3}")
        P(f"v_lshlrev_b32 v{T+2}, 16, v{T+4}")
        P(f"v_and_b32 v{T+3}, s65, v{T+4}")
        P(f"v_lshlrev_b32 v{T+4}, 16, v{T}")
        P(f"v_and_b32 v{T+5}, s65, v{T}")
        P(f"v_add_f32 v{T+2}, v{T+2}, v{T+4}")
        P(f"v_add_f32 v{T+3}, v{T+3}, v{T+5}")
        P(f"v_cvt_pk_bf16_f32 v{R+q}, v{T+2}, v{T+3}")
    P(f"buffer_store_dwordx4 v[{R}:{R+3}], v{VL+1}, s[20:23], s58 offen")
    prof(P, 3, pr)
    if pr: P("s_waitcnt vmcnt(0)")
    prof(P, 4, pr)

CNT = [0]
def early2(P):
    n = CNT[0]; CNT[0] += 1
    if n == 1:
        P("s_waitcnt lgkmcnt(0)")
        P("s_barrier")
    P("s_lshl_b32 s57, s2, 8")
    P(f"s_add_u32 s57, s57, {WS_FLX}")
    P("v_and_b32 v132, 31, v0")
    P("v_lshlrev_b32 v132, 3, v132")
    P("v_add_u32 v132, s57, v132")
    P("s_cmp_lt_u32 s3, 4")
    P(f"s_cbranch_scc1 e2_done{n}")
    P.label(f"e2_conv{n}")
    PAR = 104; V = 112
    P("s_sub_u32 s56, s3, 4")
    P("s_lshr_b32 s57, s56, 1")
    P("s_lshl_b32 s61, s2, 1")
    P("s_add_u32 s61, s61, s57")
    P(f"s_mul_i32 s56, s56, {CW_AREA}")
    P(f"s_add_u32 s56, s56, {4*24576}")
    P(f"v_mov_b32 v{V}, s56")
    P(f"v_mov_b32 v{V+4}, 0")
    P(f"v_mov_b32 v{V+5}, 0")
    P(f"ds_write_b64 v{V}, v[{V+4}:{V+5}] offset:16376")
    P(f"v_lshlrev_b32 v{V+2}, 2, v0")
    P("s_lshl_b32 s57, s61, 8")
    P(f"v_add_u32 v{V+2}, s57, v{V+2}")
    P("s_lshl_b32 s57, s61, 1")
    P(f"v_mov_b32 v{V+3}, s57")
    for k in range(6):
        P(f"global_load_dword v{PAR+k}, v{V+2}, s[{68+2*k}:{69+2*k}]")
    P(f"global_load_ushort v{PAR+6}, v{V+3}, s[80:81]")
    P(f"global_load_ushort v{PAR+7}, v{V+3}, s[82:83]")
    if k2.XE[0]: P("global_load_dwordx2 v[134:135], v132, s[8:9] sc0 sc1")
    P.label(f"e2_done{n}")

FREEQ = [4 * ft + t for ft in range(7) for t in (1, 2, 3)]
WOQ = FREEQ[:16]
ACQ = FREEQ[16:] + [4 * ft for ft in range(7)]
def p3early(P):
    n = CNT[0]; CNT[0] += 1
    srd(P, 44, 8, 896 * 1024, WS_WOF)
    P("s_lshl_b32 s84, s3, 2")
    P("s_mul_i32 s85, s3, 3")
    P("s_add_u32 s85, s85, 4")
    P("s_cmp_lt_u32 s3, 4")
    P("s_cselect_b32 s84, s84, s85")
    P("s_lshr_b32 s85, s2, 5")
    P("s_mul_i32 s85, s85, 28")
    P("s_add_u32 s85, s85, s84")
    P("s_lshl_b32 s85, s85, 12")
    P("s_lshr_b32 s86, s3, 2")
    P("s_lshl_b32 s86, s86, 11")
    P("v_lshlrev_b32 v1, 4, v0")
    for k in range(4):
        for pi in range(2):
            P(f"s_xor_b32 s87, s86, {2048*pi}")
            P("s_add_u32 s87, s87, s85")
            P(f"s_add_u32 s87, s87, {4096*k}")
            for sg_ in range(2):
                r = 4 * WOQ[4 * k + 2 * pi + sg_]
                P(f"buffer_load_dwordx4 a[{r}:{r+3}], v1, s[44:47], s87 offen offset:{1024*sg_} sc1")
    return 16

def signal_to(E, tag, code, nl, drain=True):
    E("s_waitcnt vmcnt(0) lgkmcnt(0)" if drain else "s_waitcnt lgkmcnt(0)")
    E("s_barrier")
    E("s_cmp_lg_u32 s3, 0")
    E(f"s_cbranch_scc1 {tag}_ns")
    for c in code: E(c)
    E("v_mov_b32 v4, s96")
    E("v_mov_b32 v5, s97")
    E(f"s_mov_b64 exec, {(1 << nl) - 1}")
    E("global_store_dwordx2 v2, v[4:5], s[8:9] sc0 sc1")
    E("s_mov_b64 exec, -1")
    E(f"{tag}_ns:")
def sig1(P, n):
    def E(t):
        if t.endswith(':'): P.label(t[:-1])
        else: P(t)
    signal_to(E, f"p1{n}", ["s_lshl_b32 s53, s2, 3", f"s_add_u32 s53, s53, {WS_FL1}", "v_lshlrev_b32 v2, 11, v0", "v_add_u32 v2, s53, v2"], 8)
    P("s_cmp_ge_u32 s3, 4")
    P(f"s_cbranch_scc1 s1_nw{n}")
    V = 112
    if not k2.XE[0]:
        P("s_and_b32 s56, s2, 7")
        P("s_lshl_b32 s56, s56, 5")
        P("s_lshr_b32 s57, s2, 3")
        P("s_add_u32 s56, s56, s57")
        P("s_lshl_b32 s56, s56, 15")
        P(f"v_lshlrev_b32 v{V}, 7, v0")
        P("s_cmp_eq_u32 s3, 0")
        P(f"s_cbranch_scc1 s1_t2{n}")
        P("s_cmp_lg_u32 s3, 3")
        P(f"s_cbranch_scc1 s1_t1{n}")
        P(f"buffer_load_dword v143, v{V}, s[36:39], s56 offen")
        P.label(f"s1_t1{n}")
        P("s_lshl_b32 s57, s3, 13")
        P("s_add_u32 s56, s56, s57")
        P(f"buffer_load_dword v143, v{V}, s[36:39], s56 offen")
        P.label(f"s1_t2{n}")
    P(f"v_lshrrev_b32 v{V}, 3, v0")
    P(f"v_and_b32 v{V+1}, 7, v0")
    P(f"v_lshrrev_b32 v{V+2}, 1, v{V}")
    P(f"v_xor_b32 v{V+1}, v{V+1}, v{V+2}")
    P(f"v_lshlrev_b32 v{V+1}, 4, v{V+1}")
    P(f"v_lshl_add_u32 v{V+1}, v{V}, 12, v{V+1}")
    P(f"v_xor_b32 v{V+2}, 64, v{V+1}")
    P("s_and_b32 s56, s2, 7")
    P("s_lshr_b32 s56, s56, 1")
    P("s_lshl_b32 s56, s56, 3")
    P("s_bfe_u32 s57, s2, 0x30003")
    P("s_add_u32 s56, s56, s57")
    P("s_lshl_b32 s56, s56, 18")
    P("s_lshl_b32 s57, s3, 10")
    P("s_add_u32 s56, s56, s57")
    P("s_mul_i32 s57, s3, 24576")
    for q in range(2):
        for e in range(8):
            P(f"s_add_u32 m0, s57, {q*8192 + e*1024}")
            P(f"s_add_u32 s61, s56, {q*128 + e*32768}")
            P(f"buffer_load_dwordx4 v{V+1+(e&1)}, s[36:39], s61 offen lds")
    if n == 1 and k2.XE[0]:
        P(f"s_branch s1_x{n}")
    P.label(f"s1_nw{n}")
    if n == 1 and k2.XE[0]:
        P("s_sub_u32 s56, s3, 4")
        P("s_lshl_b32 s56, s56, 14")
        P("s_lshl_b32 s57, s14, 3")
        P("s_add_u32 s56, s56, s57")
        P(f"s_add_u32 s56, s56, {WS_FLX}")
        P("v_lshlrev_b32 v2, 8, v0")
        P("v_add_u32 v2, s56, v2")
        P("v_mov_b32 v4, s96")
        P("v_mov_b32 v5, s97")
        P("global_store_dwordx2 v2, v[4:5], s[8:9] sc0 sc1")
        P.label(f"s1_x{n}")
    P("s_lshl_b32 s93, s14, 3")
    P("s_add_u32 s93, s93, s15")
    P("s_lshl_b32 s93, s93, 3")
    P("s_add_u32 s93, s93, s3")
    P("s_lshl_b32 s93, s93, 3")
    P(f"s_add_u32 s93, s93, {WS_FL1B}")
def z1flag(E, va):
    E(f"v_mov_b32 v{va}, s93")
    E(f"v_mov_b32 v{va+1}, s96")
    E(f"v_mov_b32 v{va+2}, s97")
    E("s_mov_b64 exec, 1")
    E(f"global_store_dwordx2 v{va}, v[{va+1}:{va+2}], s[8:9] sc0 sc1")
    E("s_mov_b64 exec, -1")
def z1issue(E, va, vd):
    E("s_mul_i32 s64, s15, 112")
    E("s_lshr_b32 s62, s64, 7")
    E("s_add_u32 s64, s64, 111")
    E("s_lshr_b32 s63, s64, 7")
    E("s_sub_u32 s63, s63, s62")
    E("s_lshl_b32 s63, s63, 6")
    E("s_lshl_b32 s64, s14, 3")
    E("s_add_u32 s64, s64, s62")
    E("s_lshl_b32 s64, s64, 6")
    E(f"s_add_u32 s64, s64, {WS_FL1B}")
    E(f"v_bfe_u32 v{va}, v0, 3, 1")
    E(f"v_mul_u32_u24 v{va}, s63, v{va}")
    E(f"v_and_b32 v{vd}, 7, v0")
    E(f"v_lshl_add_u32 v{va}, v{vd}, 3, v{va}")
    E(f"v_add_u32 v{va}, s64, v{va}")
    E(f"global_load_dwordx2 v[{vd}:{vd+1}], v{va}, s[8:9] sc0 sc1")
def z1check(E, name, va, vd):
    E(f"v_cmp_ne_u64 vcc, s[96:97], v[{vd}:{vd+1}]")
    E("s_nop 1")
    E("s_cmp_eq_u64 vcc, 0")
    E(f"s_cbranch_scc1 {name}_ok")
    poll(E, name, va, vd, 64)

def build(pr=False):
    k2.HOOKS['sig1'] = sig1
    k2.HOOKS['p3early'] = p3early
    k2.HOOKS['t1'] = early2
    out = []
    E = out.append
    k2.PROF_K[0] = 0
    P1 = Prog(); k1d.gen_k1(P1, aux=aux.aux, pr=pr)
    L1 = lines_of(P1)
    def amap(m):
        if m.group(1):
            lo, hi = int(m.group(1)), int(m.group(2))
            return f"v[{lo+16}:{hi+16}]" if lo >= 112 else m.group(0)
        n = int(m.group(3)); return f"v{n+16}" if n >= 112 else m.group(0)
    L1 = [re.sub(r'\ba\[(\d+):(\d+)\]|\ba(\d+)\b', amap, l) for l in L1]
    nend = 0
    for l in L1:
        if l == "k1_kernel:": E(KN + ":"); continue
        if l == "k1_end:": break
        if l == "s_cbranch_scc1 k1_end": E("s_cbranch_scc1 f_end"); continue
        if l == "s_lshl_b32 s53, s14, 3" and 'nonce_addr' not in globals():
            globals()['nonce_addr'] = 1; E("s_mov_b32 s53, 0"); continue
        if l == "s_or_b32 s53, s15, s3": E("s_or_b32 s53, s2, s3"); continue
        if l == "s_endpgm":
            nend += 1
            if nend == 1: E("s_branch p1_done")
            else:
                PE = Prog(); early2(PE)
                for x_ in lines_of(PE): E(x_)
                E("v_mov_b32 v13, 0")
                E("s_mov_b32 s95, 0")
                E("aux_nonce:")
                E("global_load_dwordx2 v[14:15], v13, s[10:11] sc0 sc1")
                E("s_add_u32 s95, s95, 1")
                E("s_waitcnt vmcnt(0)")
                E("v_readfirstlane_b32 s96, v14")
                E("v_readfirstlane_b32 s97, v15")
                E("s_cmp_lg_u32 s96, 0")
                E("s_cbranch_scc1 aux_sig")
                E("s_cmp_lt_u32 s95, 0x200000")
                E("s_cbranch_scc1 aux_nonce")
                E("aux_sig:")
                PE = Prog(); sig1(PE, 1)
                for x_ in lines_of(PE): E(x_)
            continue
        E(l)
    globals().pop('nonce_addr', None)
    E("p1_done:")
    k2.PROF_K[0] = 1
    P2 = Prog(); k2.gen_k2(P2, pr=pr)
    L2 = lines_of(P2)
    skip = {"k2_kernel:", "s_cmp_ge_u32 s2, 256", "s_cbranch_scc1 k2_end", "v_lshrrev_b32 v1, 6, v0", "v_and_b32 v0, 63, v0",
            "v_readfirstlane_b32 s3, v1", "s_load_dwordx2 s[8:9], s[0:1], 128", "s_load_dwordx2 s[10:11], s[0:1], 64",
            "s_load_dwordx4 s[68:71], s[0:1], 8", "s_load_dwordx4 s[72:75], s[0:1], 24", "s_load_dwordx4 s[76:79], s[0:1], 40", "s_load_dwordx2 s[80:81], s[0:1], 56"}
    firstz = True; firstx = True
    for l in L2:
        if l in skip: continue
        if l == "k2_end:": break
        if l == "s_endpgm": E("s_branch p2_done"); continue
        if l.startswith("buffer_load") and any(f"s[{a}:{a+3}]" in l for a in (20, 24, 36)):
            l = l.replace(" lds", " sc1 lds") if l.endswith(" lds") else l + " sc1"
        if l == "@ZPOLL":
            E(f"v_mov_b32 v22, {GOW}")
            E("s_cmp_lg_u32 s3, 0")
            E("s_cbranch_scc1 p2_lw")
            E("s_and_b32 s53, s2, 7")
            E("s_lshl_b32 s53, s53, 11")
            E(f"s_add_u32 s53, s53, {WS_FL1}")
            E("v_lshlrev_b32 v20, 4, v0")
            E("v_add_u32 v20, s53, v20")
            E("s_mov_b32 s95, 0")
            E("p2_zpoll:")
            E("global_load_dwordx4 v[28:31], v20, s[8:9] sc0 sc1")
            E("global_load_dwordx4 v[32:35], v20, s[8:9] offset:1024 sc0 sc1")
            E("s_add_u32 s95, s95, 1")
            E("s_waitcnt vmcnt(0)")
            E("v_cmp_ne_u64 s[62:63], s[96:97], v[28:29]")
            E("v_cmp_ne_u64 s[64:65], s[96:97], v[30:31]")
            E("v_cmp_ne_u64 s[66:67], s[96:97], v[32:33]")
            E("v_cmp_ne_u64 vcc, s[96:97], v[34:35]")
            E("s_nop 1")
            E("s_or_b64 s[62:63], s[62:63], s[64:65]")
            E("s_or_b64 s[66:67], s[66:67], vcc")
            E("s_or_b64 s[62:63], s[62:63], s[66:67]")
            E("s_cmp_eq_u64 s[62:63], 0")
            E("s_cbranch_scc1 p2_set")
            E(f"s_sleep {SLEEP[0]}")
            E("s_cmp_lt_u32 s95, 0x100000")
            E("s_cbranch_scc1 p2_zpoll")
            E("p2_set:")
            E("v_mov_b32 v23, 1")
            E("ds_write_b32 v22, v23")
            E("s_branch p2_go")
            E("p2_lw:")
            ldswait(E, "p2_lwl", 22, 23)
            E("p2_go:")
            continue
        if l.startswith("@Z1") and not k2.Z1LATE[0]:
            continue
        if l == "@Z1FLAG":
            z1flag(E, 21); continue
        if l.startswith("@Z1ISSUE"):
            z1issue(E, *map(int, l.split()[1:])); continue
        if l.startswith("@Z1CHECK"):
            z1check(E, "p2_z1w" + l[8:9], *map(int, l.split()[1:])); continue
        if l == "@XEARLY":
            z1check(E, "p2_xe", 132, 134)
            continue
        if l == "@TOUCH":
            E("s_and_b32 s56, s2, 7")
            E("s_lshl_b32 s56, s56, 5")
            E("s_lshr_b32 s57, s2, 3")
            E("s_add_u32 s56, s56, s57")
            E("s_lshl_b32 s56, s56, 15")
            E("s_lshl_b32 s57, s52, 13")
            E("s_add_u32 s56, s56, s57")
            E("v_lshlrev_b32 v2, 7, v0")
            E("buffer_load_dword v143, v2, s[16:19], s56 offen")
            continue
        if l == "@XPOLL":
            if k2.Z1LATE[0]:
                E("s_waitcnt vmcnt(0)")
                z1flag(E, 3)
            E(f"v_mov_b32 v2, {GOW}")
            ldswait(E, "p2_xw", 2, 3)
            continue
        E(l)
    E("p2_done:")
    E("s_setprio 0")
    signal_to(E, "p2", ["s_lshl_b32 s53, s2, 3", f"s_add_u32 s53, s53, {WS_FL2}", "v_mov_b32 v2, s53",
                  "s_lshl_b32 s53, s14, 7", "s_lshl_b32 s56, s15, 3", "s_add_u32 s53, s53, s56", f"s_add_u32 s53, s53, {WS_FL2 + 4096}",
                  "v_writelane_b32 v2, s53, 1"], 2)
    k2.PROF_K[0] = 2
    k2.PROF_V[0] = 142
    P3 = Prog(); phase3(P3, pr)
    k2.PROF_V[0] = 26
    out += lines_of(P3)
    E("f_end:")
    E("s_endpgm")
    P = Prog()
    for l in out:
        if l.endswith(':'): P.label(l[:-1])
        else: P(l)
    body = P.finish()
    HDR = open('parallel_sum__ssm_conv_s4__mixer_gmlp__prompt.s.ref').read().split('; Override launch')[0]
    first = f"; @launch kernel={KN} grid=(256,1,1) block=(512,1,1) lds=163840" if os.environ.get("ASLIST") else "; @launch grid=(256,1,1) block=(512,1,1) lds=163840"
    return HDR + first + f'''
.amdgcn_target "amdgcn-amd-amdhsa--gfx950"
.text
.globl {KN}
.p2align 8
.type {KN},@function
{body}
.section .rodata,"a"
.p2align 6
.amdhsa_kernel {KN}
  .amdhsa_next_free_vgpr 256
  .amdhsa_next_free_sgpr 100
  .amdhsa_accum_offset 144
  .amdhsa_group_segment_fixed_size 0
  .amdhsa_kernarg_size 136
  .amdhsa_user_sgpr_count 2
  .amdhsa_user_sgpr_kernarg_segment_ptr 1
  .amdhsa_system_sgpr_workgroup_id_x 1
.end_amdhsa_kernel
'''
if __name__ == "__main__":
    k2.FUSED[0] = 1
    for nm in ('GSPLIT', 'GAT'):
        if os.environ.get(nm): getattr(k1d, nm)[0] = int(os.environ[nm])
    if os.environ.get('PRIO'): k2.PRIO[:] = [int(c) for c in os.environ['PRIO']]
    open(sys.argv[1], 'w').write(build(pr=('prof' in sys.argv)))
```

```python
from dsl import Prog
import os
if os.environ.get("COMPACT"):
    WS_Z2F, WS_Z1F, WS_HF, WS_XNT, WS_YAT, WS_KR, WS_WOF, WS_ST, WS_FLB = 0, 0x380000, 0x700000, 0xA80000, 0xC80000, 0x1000000, 0xE80000, 0xF60000, 0x1040000
else:
    WS_Z2F, WS_Z1F, WS_HF, WS_XNT, WS_YAT, WS_KR, WS_WOF, WS_ST, WS_FLB = 0, 0x400000, 0x800000, 0xC00000, 0xE00000, 0x1000000, 0x1800000, 0x1900000, 0x1B00000
WS_WF  = 0x2000000
KR_STRIDE = 8704

def srd(P, d, base, nbytes, off=0):
    if off:
        P(f"s_add_u32 s{d}, s{base}, {off}")
        P(f"s_addc_u32 s{d+1}, s{base+1}, 0")
        P(f"s_and_b32 s{d+1}, s{d+1}, 0xffff")
    else:
        P(f"s_mov_b32 s{d}, s{base}")
        P(f"s_and_b32 s{d+1}, s{base+1}, 0xffff")
    P(f"s_mov_b32 s{d+2}, {nbytes}")
    P(f"s_mov_b32 s{d+3}, 0x00020000")

WS_PROF = 0x1A00000
PROF_K = [0]
DBGN = [0]
PROF_V = [26]
PRIO = [0, 0]
LF = [0]
FUSED = [0]
HOOKS = {}
import os
XE = [int(os.environ.get('XE', '0'))]
Z1LATE = [int(os.environ.get('Z1LATE', '0'))]
K2PRE = [0]
EXP = [0]
def prof(P, idx, on):
    if not on: return
    if os.environ.get("DBGSTAMP"):
        slot = {(0,1):2,(0,2):3,(0,3):4,(0,4):5,(0,7):6,(1,2):8,(1,4):9,(2,1):10,(2,2):11,(2,4):12,(0,0):13}.get((PROF_K[0], idx))
        if slot is None: return
        n = DBGN[0]; DBGN[0] += 1
        b_ = PROF_V[0]
        P("s_or_b32 s92, s3, 0")
        P("s_cmp_lg_u32 s3, 0")
        P(f"s_cbranch_scc1 dbgs{n}")
        P("s_and_b32 s92, s2, 31")
        P("s_cmp_lg_u32 s92, 9")
        P(f"s_cbranch_scc1 dbgs{n}")
        P("s_load_dwordx2 s[98:99], s[0:1], 120")
        P("s_memrealtime s[90:91]")
        P("s_waitcnt lgkmcnt(0)")
        P(f"v_mov_b32 v{b_}, s90")
        P(f"v_mov_b32 v{b_-1}, {4*slot}")
        P("s_mov_b64 exec, 1")
        P(f"global_atomic_umax v{b_-1}, v{b_}, s[98:99] sc1")
        P("s_mov_b64 exec, -1")
        P.label(f"dbgs{n}")
        return
    P("s_memrealtime s[90:91]")
    P("s_lshl_b32 s92, s2, 3")
    P("s_add_u32 s92, s92, s3")
    P("s_lshl_b32 s92, s92, 6")
    P(f"s_add_u32 s92, s92, {WS_PROF + PROF_K[0]*0x40000 + idx*8}")
    P("s_waitcnt lgkmcnt(0)")
    b_ = PROF_V[0]
    P(f"v_mov_b32 v{b_}, s90")
    P(f"v_mov_b32 v{b_+1}, s91")
    P(f"v_mov_b32 v{b_-1}, s92")
    P(f"global_store_dwordx2 v{b_-1}, v[{b_}:{b_+1}], s[8:9]")

def epi_addr(P, sw):
    P("s_and_b32 s53, s15, 1")
    P("s_mul_i32 s58, s15, 7")
    P("s_add_u32 s58, s58, s53")
    P("s_lshr_b32 s58, s58, 1")
    P("s_lshl_b32 s59, s53, 2")
    P("s_sub_u32 s59, 3, s59")
    P("s_add_u32 s59, s59, s58")
    P("s_mul_i32 s60, s14, 28")
    P("s_add_u32 s58, s58, s60")
    P("s_add_u32 s59, s59, s60")
    P("s_lshl_b32 s58, s58, 2")
    P("s_lshl_b32 s59, s59, 2")
    P(f"s_add_u32 s58, s58, s{sw}")
    P(f"s_add_u32 s59, s59, s{sw}")
    P("s_lshl_b32 s58, s58, 10")
    P("s_lshl_b32 s59, s59, 10")
    P("s_lshl_b32 s53, s53, 3")
    P("s_add_u32 s59, s59, s53")
    P("s_add_u32 s60, s58, 8192")
    P("s_lshl_b32 s61, s14, 7")
    P(f"s_lshl_b32 s53, s{sw}, 5")
    P("s_add_u32 s61, s61, s53")
def epi_math(P, R, Z1, H, BI, G, q):
    a, b = R + 2 * q, R + 2 * q + 1
    P(f"v_add_f32 v{a}, v{a}, v{BI}")
    P(f"v_add_f32 v{b}, v{b}, v{BI}")
    P(f"v_cvt_pk_bf16_f32 v{G}, v{a}, v{b}")
    P(f"v_lshlrev_b32 v{G+1}, 16, v{Z1+q}")
    P(f"v_and_b32 v{G+2}, s62, v{Z1+q}")
    P(f"v_lshlrev_b32 v{a}, 16, v{G}")
    P(f"v_and_b32 v{b}, s62, v{G}")
    P(f"v_mul_f32 v{a}, v{a}, v{G+1}")
    P(f"v_mul_f32 v{b}, v{b}, v{G+2}")
    P(f"v_cvt_pk_bf16_f32 v{H+q}, v{a}, v{b}")
CW_AREA = 16384
XPO = 8704
from kgen import kgen
def gen_conv(P, CB, pr):
    prof(P, 0, pr)
    if PRIO[1] == 9: P("s_endpgm")
    elif PRIO[1]: P(f's_setprio {PRIO[1]}')
    T = 2
    P("s_sub_u32 s52, s3, 4")
    P("s_lshr_b32 s53, s52, 1")
    P("s_lshl_b32 s54, s2, 1")
    P("s_add_u32 s54, s54, s53")
    P(f"s_mul_i32 s55, s52, {CW_AREA}")
    P(f"s_add_u32 s55, s55, {CB}")
    PAR = 104
    P("s_xor_b32 s60, s52, 1")
    P(f"s_mul_i32 s60, s60, {CW_AREA}")
    P(f"s_add_u32 s60, s60, {CB}")
    P("s_and_b32 s61, s52, 1")
    if not FUSED[0]:
        P(f"v_mov_b32 v{T}, s55")
        P(f"v_mov_b32 v{T+1}, 0")
        P(f"ds_write_b32 v{T}, v{T+1} offset:16380")
        P(f"v_lshlrev_b32 v{T}, 2, v0")
        P("s_lshl_b32 s53, s54, 8")
        P(f"v_add_u32 v{T}, s53, v{T}")
        P("s_lshl_b32 s53, s54, 1")
        P(f"v_mov_b32 v{T+1}, s53")
        P("s_waitcnt lgkmcnt(0)")
        for k in range(6):
            P(f"global_load_dword v{PAR+k}, v{T}, s[{68+2*k}:{69+2*k}]")
        P(f"global_load_ushort v{PAR+6}, v{T+1}, s[80:81]")
        P(f"global_load_ushort v{PAR+7}, v{T+1}, s[10:11]")
        if K2PRE[0]:
            P("s_and_b32 s56, s2, 7")
            P("s_lshl_b32 s56, s56, 5")
            P("s_lshr_b32 s57, s2, 3")
            P("s_add_u32 s56, s56, s57")
            P("s_lshl_b32 s56, s56, 15")
            P("s_lshl_b32 s57, s52, 13")
            P("s_add_u32 s56, s56, s57")
            P(f"v_lshlrev_b32 v{T+2}, 7, v0")
            P(f"buffer_load_dword v{PAR+8}, v{T+2}, s[16:19], s56 offen")
        P("s_barrier")
        P("s_waitcnt vmcnt(1)" if K2PRE[0] else "s_waitcnt vmcnt(0)")
    P(f"v_lshlrev_b32 v{PAR+6}, 16, v{PAR+6}")
    prof(P, 3, pr)
    def xload():
        if FUSED[0]: P.lines.append(__import__('dsl').Ins('@XPOLL'))
        P("s_lshl_b32 s59, s54, 12")
        P(f"v_lshlrev_b32 v{T}, 4, v0")
        P(f"s_add_u32 m0, s55, {XPO+512}")
        P("s_nop 0")
        for e in range(4):
            P(f"buffer_load_dwordx4 v{T}, s[36:39], s59 offen offset:{1024*e} lds")
        P(f"v_mov_b32 v{T+2}, 0")
        P(f"v_mov_b32 v{T+3}, 0")
        P(f"v_lshlrev_b32 v{T+1}, 3, v0")
        P(f"v_add_u32 v{T+1}, s55, v{T+1}")
        P(f"ds_write_b64 v{T+1}, v[{T+2}:{T+3}] offset:{XPO}")
    if FUSED[0] and not XE[0]:
        kgen(P, PAR, 55, 60, 61, None); xload()
    elif FUSED[0]:
        P.lines.append(__import__('dsl').Ins('@XEARLY'))
        P("s_lshl_b32 s59, s54, 12")
        P(f"v_lshlrev_b32 v{T}, 4, v0")
        for e in range(4):
            P(f"buffer_load_dwordx4 v[{116+4*e}:{119+4*e}], v{T}, s[36:39], s59 offen offset:{1024*e}")
        P.lines.append(__import__('dsl').Ins('@TOUCH'))
        def xput():
            P(f"v_lshlrev_b32 v{T}, 4, v0")
            P(f"v_add_u32 v{T}, s55, v{T}")
            P("s_waitcnt vmcnt(1)")
            for e in range(4):
                P(f"ds_write_b128 v{T}, v[{116+4*e}:{119+4*e}] offset:{XPO+512+1024*e}")
            P(f"v_mov_b32 v{T+2}, 0")
            P(f"v_mov_b32 v{T+3}, 0")
            P(f"v_lshlrev_b32 v{T+1}, 3, v0")
            P(f"v_add_u32 v{T+1}, s55, v{T+1}")
            P(f"ds_write_b64 v{T+1}, v[{T+2}:{T+3}] offset:{XPO}")
        kgen(P, PAR, 55, 60, 61, xput)
    else:
        kgen(P, PAR, 55, 60, 61, xload)
    prof(P, 2, pr)
    P(f"v_mov_b32 v{T+9}, s57")
    P(f"v_mov_b32 v{T+8}, v{PAR+7}")
    P("s_lshl_b32 s57, s54, 12")
    VA = 12
    P(f"v_lshlrev_b32 v{T+8}, 16, v{T+8}")
    P(f"v_and_b32 v{T}, 15, v0")
    P(f"v_lshrrev_b32 v{T+1}, 5, v0")
    P(f"v_bfe_u32 v{T+2}, v0, 4, 1")
    P(f"v_lshl_add_u32 v{T+3}, v{T+1}, 4, v{T}")
    P(f"v_add_u32 v{T+3}, 9, v{T+3}")
    P(f"v_lshlrev_b32 v{T+4}, 3, v{T+2}")
    P(f"v_sub_u32 v{T+3}, v{T+3}, v{T+4}")
    P(f"v_and_b32 v{T+4}, 1, v{T+3}")
    P(f"v_sub_u32 v{T+3}, v{T+3}, v{T+4}")
    P(f"v_lshlrev_b32 v{T+3}, 1, v{T+3}")
    P("s_movk_i32 s58, 4288")
    P(f"v_mad_u32_u24 v{T+3}, v{T+4}, s58, v{T+3}")
    P("s_lshl_b32 s56, s61, 8")
    P("s_add_u32 s58, s55, s56")
    P(f"v_add_u32 v{VA}, s58, v{T+3}")
    for k in range(1, 4): P(f"v_add_u32 v{VA+k}, {1024*k}, v{VA}")
    P(f"v_sub_u32 v{T+3}, v{T}, v{T+1}")
    P(f"v_lshlrev_b32 v{T+3}, 5, v{T+3}")
    P(f"v_lshl_add_u32 v{T+3}, v{T+2}, 4, v{T+3}")
    P(f"s_add_u32 s58, s55, {XPO}")
    P("s_sub_u32 s56, s58, s56")
    P(f"v_add_u32 v{VA+4}, s56, v{T+3}")
    P(f"v_lshl_add_u32 v{T+3}, v{T}, 1, v{T+1}")
    P(f"v_lshlrev_b32 v{T+3}, 4, v{T+3}")
    P(f"v_xor_b32 v{T+4}, 1, v{T+2}")
    P(f"v_lshl_add_u32 v{T+3}, v{T+4}, 3, v{T+3}")
    P("s_lshl_b32 s56, s61, 11")
    P("s_add_u32 s58, s58, s56")
    P(f"v_add_u32 v{VA+5}, s58, v{T+3}")
    P(f"v_lshrrev_b32 v{T+3}, 4, v0")
    P(f"v_lshlrev_b32 v{T+3}, 3, v{T+3}")
    P(f"v_lshl_add_u32 v{VA+6}, v{T}, 5, v{T+3}")
    P(f"v_add_u32 v{VA+6}, s56, v{VA+6}")
    AF, BF, CACC = 20, 52, 84
    for r in range(32): P(f"v_mov_b32 v{CACC+r}, 0")
    P("s_waitcnt lgkmcnt(0)" if (FUSED[0] and XE[0]) else "s_waitcnt vmcnt(0) lgkmcnt(0)")
    def rds(st, dl):
        out = []
        for i in range(8):
            o = 128 * (i & 1) + 16 * dl
            ra = (lambda k: f"v[{AF+4*i+k}:{AF+4*i+k+1}]") if st == 0 else (lambda k: f"a[{4*i+k}:{4*i+k+1}]")
            rb = f"v[{BF+4*i}:{BF+4*i+3}]" if st == 0 else f"a[{32+4*i}:{32+4*i+3}]"
            out.append(f"ds_read2_b32 {ra(0)}, v{VA+(i>>1)} offset0:{o} offset1:{o+1}")
            out.append(f"ds_read2_b32 {ra(2)}, v{VA+(i>>1)} offset0:{o+2} offset1:{o+3}")
            out.append(f"ds_read_b128 {rb}, v{VA+4} offset:{512+512*i-64*dl}")
        return out
    def mf(st, side):
        side = list(side)
        for i in range(8):
            for w in range(8 - i):
                a = CACC + 4 * (i + w)
                ra = f"v[{AF+4*i}:{AF+4*i+3}]" if st == 0 else f"a[{4*i}:{4*i+3}]"
                rb = f"v[{BF+4*w}:{BF+4*w+3}]" if st == 0 else f"a[{32+4*w}:{32+4*w+3}]"
                P(f"v_mfma_f32_16x16x32_f16 v[{a}:{a+3}], {ra}, {rb}, v[{a}:{a+3}]")
                if side: P(side.pop(0))
    if FUSED[0]: P.lines.append(__import__('dsl').Ins('@Z1ISSUE 19 116'))
    for x_ in rds(0, 0): P(x_)
    P("s_mov_b32 s59, 0")
    P.label("k2_cloop")
    P("s_waitcnt lgkmcnt(0)")
    mf(0, rds(1, 1))
    P("s_waitcnt lgkmcnt(0)")
    mf(1, rds(0, 2))
    for k in range(4): P(f"v_add_u32 v{VA+k}, 128, v{VA+k}")
    P(f"v_subrev_u32 v{VA+4}, 128, v{VA+4}")
    P("s_add_u32 s59, s59, 1")
    P("s_cmp_lt_u32 s59, 2")
    P("s_cbranch_scc1 k2_cloop")
    P("s_waitcnt lgkmcnt(0)")
    P(f"v_lshlrev_b32 v{T}, 4, v0")
    P(f"v_add_u32 v{T+1}, s55, v{T}")
    for u in range(8):
        P(f"ds_write_b128 v{T+1}, v[{CACC+4*u}:{CACC+4*u+3}] offset:{1024*u}")
    P(f"v_mov_b32 v{T+3}, s55")
    P(f"v_mov_b32 v{T+4}, s60")
    P(f"v_mov_b32 v{T+5}, 2")
    P("s_lshl_b32 s56, s61, 12")
    P("s_add_u32 s58, s56, s60")
    P("s_add_u32 s56, s56, s55")
    P(f"v_add_u32 v{T+1}, s56, v{T}")
    P(f"v_add_u32 v{T+2}, s58, v{T}")
    P("s_waitcnt lgkmcnt(0)")
    P(f"ds_write_b32 v{T+3}, v{T+5} offset:16380")
    for k in range(4):
        P(f"ds_read_b128 v[{CACC+4*k}:{CACC+4*k+3}], v{T+1} offset:{1024*k}")
        P(f"ds_read_b64 v[{AF+2*k}:{AF+2*k+1}], v{VA+5} offset:{512+512*k}")
    P("s_mov_b32 s58, 0")
    P.label("k2_cp")
    P(f"ds_read_b32 v{T+5}, v{T+4} offset:16380")
    P("s_add_u32 s58, s58, 1")
    P("s_waitcnt lgkmcnt(0)")
    P(f"v_readfirstlane_b32 s56, v{T+5}")
    P("s_cmp_eq_u32 s56, 2")
    P("s_cbranch_scc1 k2_cg")
    P("s_sleep 1")
    P("s_cmp_lt_u32 s58, 0x400000")
    P("s_cbranch_scc1 k2_cp")
    P.label("k2_cg")
    for k in range(4):
        P(f"ds_read_b128 v[{CACC+16+4*k}:{CACC+19+4*k}], v{T+2} offset:{1024*k}")
    P("s_mov_b32 s62, 0xffff0000")
    P("s_waitcnt lgkmcnt(0)")
    for k in range(4):
        a = CACC + 4 * k; xl, xh = AF + 2 * k, AF + 2 * k + 1
        for i in range(4): P(f"v_add_f32 v{a+i}, v{a+i}, v{a+16+i}")
        for i in range(4): P(f"v_mul_f32 v{a+i}, v{a+i}, v{T+9}")
        P(f"v_cvt_pk_bf16_f32 v{T}, v{a}, v{a+1}")
        P(f"v_cvt_pk_bf16_f32 v{T+1}, v{a+2}, v{a+3}")
        P(f"v_cvt_f32_f16_sdwa v{a}, v{xh} dst_sel:DWORD dst_unused:UNUSED_PAD src0_sel:WORD_1")
        P(f"v_cvt_f32_f16 v{a+1}, v{xh}")
        P(f"v_cvt_f32_f16_sdwa v{a+2}, v{xl} dst_sel:DWORD dst_unused:UNUSED_PAD src0_sel:WORD_1")
        P(f"v_cvt_f32_f16 v{a+3}, v{xl}")
        for i in range(4): P(f"v_mul_f32 v{a+i}, v{a+i}, v{T+8}")
        P(f"v_cvt_pk_bf16_f32 v{T+2}, v{a}, v{a+1}")
        P(f"v_cvt_pk_bf16_f32 v{T+3}, v{a+2}, v{a+3}")
        for hh in range(2):
            P(f"v_lshlrev_b32 v{a+2*hh}, 16, v{T+hh}")
            P(f"v_and_b32 v{a+2*hh+1}, s62, v{T+hh}")
            P(f"v_lshlrev_b32 v{T+4}, 16, v{T+2+hh}")
            P(f"v_and_b32 v{T+5}, s62, v{T+2+hh}")
            P(f"v_add_f32 v{a+2*hh}, v{a+2*hh}, v{T+4}")
            P(f"v_add_f32 v{a+2*hh+1}, v{a+2*hh+1}, v{T+5}")
        P(f"v_cvt_pk_bf16_f32 v{BF+2*k}, v{a}, v{a+1}")
        P(f"v_cvt_pk_bf16_f32 v{BF+2*k+1}, v{a+2}, v{a+3}")
        P(f"buffer_store_dwordx2 v[{BF+2*k}:{BF+2*k+1}], v{VA+6}, s[40:43], s57 offen offset:{512*k} sc1")
    P.label("k2_ctail")
    prof(P, 1, pr)
    AREA = CB // 4
    if FUSED[0] and XE[0]: P.lines.append(__import__('dsl').Ins('@XPOLL'))
    if FUSED[0]:
        P('s_waitcnt vmcnt(4)')
        P.lines.append(__import__('dsl').Ins('@Z1CHECKb 19 116'))
    epi_addr(P, 52)
    Z1 = 20; VL = 2
    P(f"v_lshlrev_b32 v{VL}, 4, v0")
    P(f"buffer_load_dwordx4 v[{Z1}:{Z1+3}], v{VL}, s[24:27], s60 offen")
    P(f"buffer_load_dwordx2 v[{Z1+4}:{Z1+5}], v{VL}, s[24:27], s59 offen")
    P(f"v_and_b32 v3, 15, v0")
    P(f"v_lshlrev_b32 v3, 1, v3")
    P(f"buffer_load_ushort v{Z1+6}, v3, s[32:35], s61 offen")
    nearly = HOOKS['p3early'](P) if 'p3early' in HOOKS else 0
    P("s_mov_b32 s62, 0xffff0000")
    P("s_barrier")
    R = 84
    for dl in range(4):
        P(f"s_sub_u32 s53, s52, {dl}")
        P("s_and_b32 s53, s53, 3")
        P(f"s_mul_i32 s53, s53, {AREA}")
        P(f"v_add_u32 v{4+(dl&1)}, s53, v{VL}")
        for k in range(3):
            r = R + 12 * dl + 4 * k
            off = 21504 + 1024 * k if dl == 0 else (dl - 1) * 7168 + (4 + k) * 1024
            P(f"ds_read_b128 v[{r}:{r+3}], v{4+(dl&1)} offset:{off}")
    P("s_waitcnt lgkmcnt(6)")
    for r in range(12): P(f"v_add_f32 v{R+r}, v{R+r}, v{R+12+r}")
    P("s_waitcnt lgkmcnt(0)")
    for r in range(12): P(f"v_add_f32 v{R+24+r}, v{R+24+r}, v{R+36+r}")
    for r in range(12): P(f"v_add_f32 v{R+r}, v{R+r}, v{R+24+r}")
    P(f"s_waitcnt vmcnt({nearly})")
    P(f"v_lshlrev_b32 v{Z1+7}, 16, v{Z1+6}")
    H = 28
    for q in range(6):
        epi_math(P, R, Z1, H, Z1 + 7, 6, q)
        if q == 3: P(f"buffer_store_dwordx4 v[{H}:{H+3}], v{VL}, s[28:31], s60 offen sc1")
    P(f"buffer_store_dwordx2 v[{H+4}:{H+5}], v{VL}, s[28:31], s59 offen sc1")
    P("s_endpgm")

def gen_k2(P, NST=3, conv=True, nz=3, pr=False):
    STG = 8192
    AREA = NST * STG
    P.label("k2_kernel")
    P("s_cmp_ge_u32 s2, 256")
    P("s_cbranch_scc1 k2_end")
    P("s_load_dwordx2 s[4:5], s[0:1], 88")
    P("s_load_dwordx2 s[6:7], s[0:1], 96")
    P("s_load_dwordx2 s[8:9], s[0:1], 128")
    P("s_load_dwordx2 s[10:11], s[0:1], 64")
    P("s_load_dwordx4 s[68:71], s[0:1], 8")
    P("s_load_dwordx4 s[72:75], s[0:1], 24")
    P("s_load_dwordx4 s[76:79], s[0:1], 40")
    P("s_load_dwordx2 s[80:81], s[0:1], 56")
    P("v_lshrrev_b32 v1, 6, v0")
    P("v_and_b32 v0, 63, v0")
    P("v_readfirstlane_b32 s3, v1")
    P("s_and_b32 s12, s2, 7")
    P("s_lshr_b32 s13, s2, 3")
    P("s_lshr_b32 s14, s12, 1")
    P("s_lshl_b32 s14, s14, 3")
    P("s_and_b32 s15, s13, 7")
    P("s_add_u32 s14, s14, s15")
    P("s_and_b32 s15, s12, 1")
    P("s_lshl_b32 s15, s15, 2")
    P("s_lshr_b32 s13, s13, 3")
    P("s_add_u32 s15, s15, s13")
    if EXP[0] in (5, 6):
        P("s_mov_b32 s14, 0")
        P("s_mov_b32 s15, 0")
    P("s_waitcnt lgkmcnt(0)")
    srd(P, 16, 4, 2048 * 2048 * 2)
    srd(P, 20, 8, 0x400000, WS_Z2F)
    srd(P, 24, 8, 0x400000, WS_Z1F)
    srd(P, 28, 8, 0x400000, WS_HF)
    srd(P, 32, 6, 4096)
    srd(P, 36, 8, 0x200000, WS_XNT)
    srd(P, 40, 8, 0x200000, WS_YAT)
    if conv:
        P("s_cmp_ge_u32 s3, 4")
        P("s_cbranch_scc1 k2_conv")
    if PRIO[0] == 9: P('s_endpgm')
    elif PRIO[0]: P(f's_setprio {PRIO[0]}')
    prof(P, 0, pr)
    if pr: P("s_memtime s[82:83]")
    VW = 2
    VZ = 10
    VA = 12
    T = 20
    WF = 28
    ZB = 60
    P(f"v_lshrrev_b32 v{T}, 3, v0")
    P(f"v_and_b32 v{T+1}, 7, v0")
    P(f"v_lshrrev_b32 v{T+2}, 1, v{T}")
    P(f"v_xor_b32 v{T+1}, v{T+1}, v{T+2}")
    P(f"v_lshlrev_b32 v{T+1}, 4, v{T+1}")
    P(f"v_lshl_add_u32 v{T+1}, v{T}, 12, v{T+1}")
    P(f"v_xor_b32 v{T+2}, 64, v{T+1}")
    for e in range(8):
        P(f"v_add_u32 v{VW+e}, {8*e*4096 - 1024*(e&3)}, v{T+1+(e&1)}")
    P(f"v_lshlrev_b32 v{VZ}, 4, v0")
    P(f"v_add_u32 v{VZ+1}, 4096, v{VZ}")
    P(f"v_and_b32 v{T}, 15, v0")
    P(f"v_lshrrev_b32 v{T+1}, 4, v0")
    P(f"v_lshrrev_b32 v{T+2}, 1, v{T}")
    P(f"v_xor_b32 v{T+1}, v{T+1}, v{T+2}")
    P(f"v_lshlrev_b32 v{T+1}, 4, v{T+1}")
    P(f"v_lshl_add_u32 v{T+1}, v{T}, 7, v{T+1}")
    P(f"s_mul_i32 s52, s3, {AREA}")
    for tau in range(4):
        P(f"s_add_u32 s53, s3, {tau}")
        P(f"s_and_b32 s53, s53, 3")
        P(f"s_lshl_b32 s53, s53, 11")
        P(f"s_add_u32 s53, s53, s52")
        P(f"v_add_u32 v{VA+tau}, s53, v{T+1}")
        P(f"v_xor_b32 v{VA+4+tau}, 64, v{VA+tau}")
    P("s_lshl_b32 s54, s14, 18")
    P("s_lshl_b32 s53, s3, 10")
    P("s_add_u32 s54, s54, s53")
    P(f"s_mul_i32 s55, s15, {64*7168}")
    P(f"s_mul_i32 s53, s3, {16*7168}")
    P("s_add_u32 s55, s55, s53")
    def wdma(q):
        out = []
        st = q % NST
        for e in range(8):
            pre = []
            if e % 4 == 0:
                pre.append(f"s_add_u32 m0, s52, {st*STG + e*1024}")
                if e == 0: pre.append(f"s_add_u32 s56, s54, {q*128}")
                else: pre.append("s_nop 0")
            out.append("\n".join(pre + [f"buffer_load_dwordx4 v{VW+e}, s[16:19], s56 offen offset:{1024*(e&3)} lds"]))
        return out
    def zld(i):
        out = []
        b = ZB + 28 * (i % nz)
        for ft in range(7):
            pre = [f"s_add_u32 s57, s55, {i*7168}"] if ft == 0 else []
            out.append("\n".join(pre + [f"buffer_load_dwordx4 v[{b+4*ft}:{b+4*ft+3}], v{VZ+(ft>>2)}, s[20:23], s57 offen offset:{1024*(ft&3)}"]))
        return out
    def wrd(i):
        out = []
        st = (i // 2) % NST; h = i & 1
        b = WF + 16 * (i & 1)
        for tau in range(4):
            out.append(f"ds_read_b128 v[{b+4*tau}:{b+4*tau+3}], v{VA+4*h+tau} offset:{st*STG}")
        return out
    ZD = nz - 1
    WD = NST - 1
    issued = []
    def emit(lst, tag):
        for s in lst:
            P(s); issued.append(tag)
    if FUSED[0]:
        for q in range(WD):
            for _ in range(8): issued.append(('W', q))
        for _ in range(2): issued.append(('W', 0))
        P.lines.append(__import__('dsl').Ins('@ZPOLL'))
        for i in range(ZD): emit(zld(i), ('Z', i))
    else:
        for q in range(max(WD, (ZD + 1) // 2)):
            if q < WD: emit(wdma(q), ('W', q))
            for i in (2 * q, 2 * q + 1):
                if i < ZD: emit(zld(i), ('Z', i))
    if conv and not FUSED[0]: P('s_barrier')
    for r in range(112):
        P(f"v_accvgpr_write_b32 a{r}, 0")
    def wait_for(tags):
        if not any(t in tags for t in issued): return
        last = max(k for k, t in enumerate(issued) if t in tags)
        n = len(issued) - 1 - last
        P(f"s_waitcnt vmcnt({min(n,63)})")
    Z1 = ZB + 28 * ((15 - ZD) % nz)
    def epi_loads():
        if FUSED[0]: P.lines.append(__import__('dsl').Ins('@Z1CHECKa 24 26'))
        epi_addr(P, 3)
        P(f"buffer_load_dwordx4 v[{Z1}:{Z1+3}], v{VZ}, s[24:27], s58 offen")
        P(f"buffer_load_dwordx4 v[{Z1+4}:{Z1+7}], v{VZ+1}, s[24:27], s58 offen")
        P(f"v_and_b32 v{T}, 15, v0")
        P(f"v_lshlrev_b32 v{T}, 1, v{T}")
        P(f"buffer_load_ushort v{T+3}, v{T}, s[32:35], s61 offen")
    wait_for({('W', 0)})
    if FUSED[0]:
        P.lines.append(__import__('dsl').Ins('@Z1FLAG'))
        if Z1LATE[0]: issued.append(('F', 0))
    if pr: P('s_memrealtime s[80:81]')
    for s in wrd(0): P(s)
    for i in range(16):
        need_tags = {('Z', i)}
        if i + 1 < 16: need_tags.add(('W', (i + 1) // 2))
        wait_for(need_tags)
        P("s_waitcnt lgkmcnt(0)")
        side = []
        if i + 1 < 16: side += [(s, None) for s in wrd(i + 1)]
        if i + ZD < 16: side += [(s, ('Z', i + ZD)) for s in zld(i + ZD)]
        if i % 2 == 0 and i // 2 + WD < 8: side += [(s, ('W', i // 2 + WD)) for s in wdma(i // 2 + WD)]
        zb = ZB + 28 * (i % nz); wb = WF + 16 * (i & 1)
        if EXP[0] in (3, 4):
            drop = 'W' if EXP[0] == 3 else 'Z'
            side2 = []
            for x in side:
                if x[1] and x[1][0] == drop: side2.append(("s_nop 0", None))
                else: side2.append(x)
            side = side2
        if EXP[0] == 2:
            for x in side:
                if x[1]: issued.append(x[1])
            side = [x for x in side if not x[1]]
            P("s_sleep 7")
        k = 0
        if LF[0]:
            if LF[0] == 2: P("s_setprio 3")
            mem = [x for x in side if x[1]]; side = [x for x in side if not x[1]]
            for s_, tag in mem:
                P(s_); issued.append(tag)
            if LF[0] == 2: P("s_setprio 0")
        for ft in range(7):
            for tau in range(4):
                a = 4 * (ft * 4 + tau)
                if EXP[0] not in (1, 3, 4, 6): P(f"v_mfma_f32_16x16x32_bf16 a[{a}:{a+3}], v[{zb+4*ft}:{zb+4*ft+3}], v[{wb+4*tau}:{wb+4*tau+3}], a[{a}:{a+3}]")
                if k < len(side):
                    s, tag = side[k]; k += 1
                    P(s)
                    if tag: issued.append(tag)
        assert k == len(side)
        if i == 8 and FUSED[0]:
            P.lines.append(__import__('dsl').Ins('@Z1ISSUE 24 26'))
            if Z1LATE[0]: issued.append(('F', 1))
        if i == 16 - ZD:
            epi_loads()
            for _ in range(3): issued.append(('E', 0))
    prof(P, 2, pr)
    if pr:
        P('v_mov_b32 v26, s80')
        P('v_mov_b32 v27, s81')
        P('global_store_dwordx2 v25, v[26:27], s[8:9] offset:-8')
    P(f"v_add_u32 v{T+2}, s52, v{VZ}")
    for tau in range(1, 4):
        for ft in range(7):
            a = 4 * (ft * 4 + tau)
            P(f"ds_write_b128 v{T+2}, a[{a}:{a+3}] offset:{(tau-1)*7168 + ft*1024}")
    for ft in range(4, 7):
        P(f"ds_write_b128 v{T+2}, a[{16*ft}:{16*ft+3}] offset:{21504 + (ft-4)*1024}")
    R = WF
    for ft in range(4):
        for i in range(4): P(f"v_accvgpr_read_b32 v{R+4*ft+i}, a{16*ft+i}")
    P("s_mov_b32 s62, 0xffff0000")
    P("s_waitcnt lgkmcnt(0)")
    nearly = HOOKS['p3early'](P) if 'p3early' in HOOKS else 0
    P("s_barrier")
    RB = [ZB + 28 * ((15 - ZD + 1) % nz), ZB + 28 * ((15 - ZD + 2) % nz), WF + 16]
    for dl in range(1, 4):
        P(f"s_sub_u32 s53, s3, {dl}")
        P("s_and_b32 s53, s53, 3")
        P(f"s_mul_i32 s53, s53, {AREA}")
        P(f"v_add_u32 v{T+2}, s53, v{VZ}")
        for ft in range(4):
            r = RB[dl - 1] + 4 * ft
            P(f"ds_read_b128 v[{r}:{r+3}], v{T+2} offset:{(dl-1)*7168 + ft*1024}")
    G = T + 4
    P("s_waitcnt lgkmcnt(8)")
    for r in range(16): P(f"v_add_f32 v{R+r}, v{R+r}, v{RB[0]+r}")
    P("s_waitcnt lgkmcnt(0)")
    for r in range(16): P(f"v_add_f32 v{RB[1]+r}, v{RB[1]+r}, v{RB[2]+r}")
    for r in range(16): P(f"v_add_f32 v{R+r}, v{R+r}, v{RB[1]+r}")
    P(f"s_waitcnt vmcnt({nearly})")
    P(f"v_lshlrev_b32 v{T+1}, 16, v{T+3}")
    H = RB[0]
    for q in range(8):
        epi_math(P, R, Z1, H, T + 1, G, q)
        if q == 3: P(f"buffer_store_dwordx4 v[{H}:{H+3}], v{VZ}, s[28:31], s58 offen sc1")
    P(f"buffer_store_dwordx4 v[{H+4}:{H+7}], v{VZ+1}, s[28:31], s58 offen sc1")
    prof(P, 3, pr)
    if pr: P("s_waitcnt vmcnt(0)")
    prof(P, 4, pr)
    if pr:
        P("s_memtime s[84:85]")
        P("s_waitcnt lgkmcnt(0)")
        P("s_sub_u32 s84, s84, s82")
        P("v_mov_b32 v26, s84")
        P("v_mov_b32 v27, 0")
        P("global_store_dwordx2 v25, v[26:27], s[8:9] offset:8")
    P("s_endpgm")
    if conv:
        P.label("k2_conv")
        gen_conv(P, 4 * AREA, pr)
    P.label("k2_end")
    P("s_endpgm")
    return dict(vgpr=ZB + 28 * max(nz, 3), agpr=112, lds=4 * AREA + (4 * CW_AREA if conv else 0))
```

```python
from dsl import Prog
import os
if os.environ.get("COMPACT"):
    WS_Z2F, WS_Z1F, WS_HF, WS_XNT, WS_YAT, WS_KR, WS_WOF, WS_ST, WS_FLB = 0, 0x380000, 0x700000, 0xA80000, 0xC80000, 0x1000000, 0xE80000, 0xF60000, 0x1040000
else:
    WS_Z2F, WS_Z1F, WS_HF, WS_XNT, WS_YAT, WS_KR, WS_WOF, WS_ST, WS_FLB = 0, 0x400000, 0x800000, 0xC00000, 0xE00000, 0x1000000, 0x1800000, 0x1900000, 0x1B00000
WS_WF  = 0x2000000
KR_STRIDE = 8704

def srd(P, d, base, nbytes, off=0):
    if off:
        P(f"s_add_u32 s{d}, s{base}, {off}")
        P(f"s_addc_u32 s{d+1}, s{base+1}, 0")
        P(f"s_and_b32 s{d+1}, s{d+1}, 0xffff")
    else:
        P(f"s_mov_b32 s{d}, s{base}")
        P(f"s_and_b32 s{d+1}, s{base+1}, 0xffff")
    P(f"s_mov_b32 s{d+2}, {nbytes}")
    P(f"s_mov_b32 s{d+3}, 0x00020000")

WS_PROF = 0x1A00000
PROF_K = [0]
DBGN = [0]
PROF_V = [26]
PRIO = [0, 0]
LF = [0]
FUSED = [0]
HOOKS = {}
import os
XE = [int(os.environ.get('XE', '0'))]
Z1LATE = [int(os.environ.get('Z1LATE', '0'))]
K2PRE = [0]
EXP = [0]
def prof(P, idx, on):
    if not on: return
    if os.environ.get("DBGSTAMP"):
        slot = {(0,1):2,(0,2):3,(0,3):4,(0,4):5,(0,7):6,(1,2):8,(1,4):9,(2,1):10,(2,2):11,(2,4):12,(0,0):13}.get((PROF_K[0], idx))
        if slot is None: return
        n = DBGN[0]; DBGN[0] += 1
        b_ = PROF_V[0]
        P("s_or_b32 s92, s3, 0")
        P("s_cmp_lg_u32 s3, 0")
        P(f"s_cbranch_scc1 dbgs{n}")
        P("s_and_b32 s92, s2, 31")
        P("s_cmp_lg_u32 s92, 9")
        P(f"s_cbranch_scc1 dbgs{n}")
        P("s_load_dwordx2 s[98:99], s[0:1], 120")
        P("s_memrealtime s[90:91]")
        P("s_waitcnt lgkmcnt(0)")
        P(f"v_mov_b32 v{b_}, s90")
        P(f"v_mov_b32 v{b_-1}, {4*slot}")
        P("s_mov_b64 exec, 1")
        P(f"global_atomic_umax v{b_-1}, v{b_}, s[98:99] sc1")
        P("s_mov_b64 exec, -1")
        P.label(f"dbgs{n}")
        return
    P("s_memrealtime s[90:91]")
    P("s_lshl_b32 s92, s2, 3")
    P("s_add_u32 s92, s92, s3")
    P("s_lshl_b32 s92, s92, 6")
    P(f"s_add_u32 s92, s92, {WS_PROF + PROF_K[0]*0x40000 + idx*8}")
    P("s_waitcnt lgkmcnt(0)")
    b_ = PROF_V[0]
    P(f"v_mov_b32 v{b_}, s90")
    P(f"v_mov_b32 v{b_+1}, s91")
    P(f"v_mov_b32 v{b_-1}, s92")
    P(f"global_store_dwordx2 v{b_-1}, v[{b_}:{b_+1}], s[8:9]")

def epi_addr(P, sw):
    P("s_and_b32 s53, s15, 1")
    P("s_mul_i32 s58, s15, 7")
    P("s_add_u32 s58, s58, s53")
    P("s_lshr_b32 s58, s58, 1")
    P("s_lshl_b32 s59, s53, 2")
    P("s_sub_u32 s59, 3, s59")
    P("s_add_u32 s59, s59, s58")
    P("s_mul_i32 s60, s14, 28")
    P("s_add_u32 s58, s58, s60")
    P("s_add_u32 s59, s59, s60")
    P("s_lshl_b32 s58, s58, 2")
    P("s_lshl_b32 s59, s59, 2")
    P(f"s_add_u32 s58, s58, s{sw}")
    P(f"s_add_u32 s59, s59, s{sw}")
    P("s_lshl_b32 s58, s58, 10")
    P("s_lshl_b32 s59, s59, 10")
    P("s_lshl_b32 s53, s53, 3")
    P("s_add_u32 s59, s59, s53")
    P("s_add_u32 s60, s58, 8192")
    P("s_lshl_b32 s61, s14, 7")
    P(f"s_lshl_b32 s53, s{sw}, 5")
    P("s_add_u32 s61, s61, s53")
def epi_math(P, R, Z1, H, BI, G, q):
    a, b = R + 2 * q, R + 2 * q + 1
    P(f"v_add_f32 v{a}, v{a}, v{BI}")
    P(f"v_add_f32 v{b}, v{b}, v{BI}")
    P(f"v_cvt_pk_bf16_f32 v{G}, v{a}, v{b}")
    P(f"v_lshlrev_b32 v{G+1}, 16, v{Z1+q}")
    P(f"v_and_b32 v{G+2}, s62, v{Z1+q}")
    P(f"v_lshlrev_b32 v{a}, 16, v{G}")
    P(f"v_and_b32 v{b}, s62, v{G}")
    P(f"v_mul_f32 v{a}, v{a}, v{G+1}")
    P(f"v_mul_f32 v{b}, v{b}, v{G+2}")
    P(f"v_cvt_pk_bf16_f32 v{H+q}, v{a}, v{b}")
CW_AREA = 14080
FLO = 14076
from kgen import kgen
def gen_conv(P, CB, pr):
    prof(P, 0, pr)
    if PRIO[1] == 9: P("s_endpgm")
    elif PRIO[1]: P(f's_setprio {PRIO[1]}')
    T = 2
    P("s_sub_u32 s52, s3, 4")
    P("s_lshr_b32 s53, s52, 1")
    P("s_lshl_b32 s54, s2, 1")
    P("s_add_u32 s54, s54, s53")
    P(f"s_mul_i32 s55, s52, {CW_AREA}")
    P(f"s_add_u32 s55, s55, {CB}")
    PAR = 104
    P("s_lshr_b32 s63, s52, 1")
    P("s_mul_i32 s63, s63, 4608")
    P(f"s_add_u32 s63, s63, {CB + 4*CW_AREA}")
    P(f"v_mov_b32 v{T+2}, 0")
    P(f"v_mov_b32 v{T+3}, 0")
    P(f"v_lshlrev_b32 v{T+1}, 3, v0")
    P(f"v_add_u32 v{T+1}, s63, v{T+1}")
    P(f"ds_write_b64 v{T+1}, v[{T+2}:{T+3}]")
    P("s_xor_b32 s60, s52, 1")
    P(f"s_mul_i32 s60, s60, {CW_AREA}")
    P(f"s_add_u32 s60, s60, {CB}")
    P("s_and_b32 s61, s52, 1")
    if not FUSED[0]:
        P(f"v_mov_b32 v{T}, s55")
        P(f"v_mov_b32 v{T+1}, 0")
        P(f"ds_write_b32 v{T}, v{T+1} offset:{FLO}")
        P(f"v_lshlrev_b32 v{T}, 2, v0")
        P("s_lshl_b32 s53, s54, 8")
        P(f"v_add_u32 v{T}, s53, v{T}")
        P("s_lshl_b32 s53, s54, 1")
        P(f"v_mov_b32 v{T+1}, s53")
        P("s_waitcnt lgkmcnt(0)")
        for k in range(6):
            P(f"global_load_dword v{PAR+k}, v{T}, s[{68+2*k}:{69+2*k}]")
        P(f"global_load_ushort v{PAR+6}, v{T+1}, s[80:81]")
        P(f"global_load_ushort v{PAR+7}, v{T+1}, s[10:11]")
        if K2PRE[0]:
            P("s_and_b32 s56, s2, 7")
            P("s_lshl_b32 s56, s56, 5")
            P("s_lshr_b32 s57, s2, 3")
            P("s_add_u32 s56, s56, s57")
            P("s_lshl_b32 s56, s56, 15")
            P("s_lshl_b32 s57, s52, 13")
            P("s_add_u32 s56, s56, s57")
            P(f"v_lshlrev_b32 v{T+2}, 7, v0")
            P(f"buffer_load_dword v{PAR+8}, v{T+2}, s[16:19], s56 offen")
        P("s_barrier")
        P("s_waitcnt vmcnt(1)" if K2PRE[0] else "s_waitcnt vmcnt(0)")
    P(f"v_lshlrev_b32 v{PAR+6}, 16, v{PAR+6}")
    prof(P, 3, pr)
    if FUSED[0]:
        kgen(P, PAR, 55, 60, 61, None)
        P.lines.append(__import__('dsl').Ins('@XPOLL'))
    else:
        P("s_lshl_b32 s59, s54, 12")
        P(f"v_lshlrev_b32 v{T}, 4, v0")
        P("s_add_u32 m0, s63, 512")
        P("s_nop 0")
        for e in range(4):
            P(f"buffer_load_dwordx4 v{T}, s[36:39], s59 offen offset:{1024*e} lds")
        kgen(P, PAR, 55, 60, 61, None)
    prof(P, 2, pr)
    P(f"v_mov_b32 v{T+9}, s57")
    P(f"v_mov_b32 v{T+8}, v{PAR+7}")
    P("s_lshl_b32 s57, s54, 12")
    VA = 12
    P(f"v_lshlrev_b32 v{T+8}, 16, v{T+8}")
    P(f"v_and_b32 v{T}, 15, v0")
    P(f"v_lshrrev_b32 v{T+1}, 5, v0")
    P(f"v_bfe_u32 v{T+2}, v0, 4, 1")
    P(f"v_lshl_add_u32 v{T+3}, v{T+1}, 4, v{T}")
    P(f"v_add_u32 v{T+3}, 9, v{T+3}")
    P(f"v_lshlrev_b32 v{T+4}, 3, v{T+2}")
    P(f"v_sub_u32 v{T+3}, v{T+3}, v{T+4}")
    P(f"v_and_b32 v{T+4}, 1, v{T+3}")
    P(f"v_sub_u32 v{T+3}, v{T+3}, v{T+4}")
    P(f"v_lshlrev_b32 v{T+3}, 1, v{T+3}")
    P("s_movk_i32 s58, 4288")
    P(f"v_mad_u32_u24 v{T+3}, v{T+4}, s58, v{T+3}")
    P("s_lshl_b32 s56, s61, 8")
    P("s_add_u32 s58, s55, s56")
    P(f"v_add_u32 v{VA}, s58, v{T+3}")
    for k in range(1, 4): P(f"v_add_u32 v{VA+k}, {1024*k}, v{VA}")
    P(f"v_sub_u32 v{T+3}, v{T}, v{T+1}")
    P(f"v_lshlrev_b32 v{T+3}, 5, v{T+3}")
    P(f"v_lshl_add_u32 v{T+3}, v{T+2}, 4, v{T+3}")
    P("s_mov_b32 s58, s63")
    P("s_sub_u32 s56, s58, s56")
    P(f"v_add_u32 v{VA+4}, s56, v{T+3}")
    P(f"v_lshl_add_u32 v{T+3}, v{T}, 1, v{T+1}")
    P(f"v_lshlrev_b32 v{T+3}, 4, v{T+3}")
    P(f"v_xor_b32 v{T+4}, 1, v{T+2}")
    P(f"v_lshl_add_u32 v{T+3}, v{T+4}, 3, v{T+3}")
    P("s_lshl_b32 s56, s61, 11")
    P("s_add_u32 s58, s58, s56")
    P(f"v_add_u32 v{VA+5}, s58, v{T+3}")
    P(f"v_lshrrev_b32 v{T+3}, 4, v0")
    P(f"v_lshlrev_b32 v{T+3}, 3, v{T+3}")
    P(f"v_lshl_add_u32 v{VA+6}, v{T}, 5, v{T+3}")
    P(f"v_add_u32 v{VA+6}, s56, v{VA+6}")
    AF, BF, CACC = 20, 52, 84
    for r in range(32): P(f"v_mov_b32 v{CACC+r}, 0")
    P("s_waitcnt lgkmcnt(0)" if (FUSED[0] and XE[0]) else "s_waitcnt vmcnt(0) lgkmcnt(0)")
    def rds(st, dl):
        out = []
        for i in range(8):
            o = 128 * (i & 1) + 16 * dl
            ra = (lambda k: f"v[{AF+4*i+k}:{AF+4*i+k+1}]") if st == 0 else (lambda k: f"a[{4*i+k}:{4*i+k+1}]")
            rb = f"v[{BF+4*i}:{BF+4*i+3}]" if st == 0 else f"a[{32+4*i}:{32+4*i+3}]"
            out.append(f"ds_read2_b32 {ra(0)}, v{VA+(i>>1)} offset0:{o} offset1:{o+1}")
            out.append(f"ds_read2_b32 {ra(2)}, v{VA+(i>>1)} offset0:{o+2} offset1:{o+3}")
            out.append(f"ds_read_b128 {rb}, v{VA+4} offset:{512+512*i-64*dl}")
        return out
    def mf(st, side):
        side = list(side)
        for i in range(8):
            for w in range(8 - i):
                a = CACC + 4 * (i + w)
                ra = f"v[{AF+4*i}:{AF+4*i+3}]" if st == 0 else f"a[{4*i}:{4*i+3}]"
                rb = f"v[{BF+4*w}:{BF+4*w+3}]" if st == 0 else f"a[{32+4*w}:{32+4*w+3}]"
                P(f"v_mfma_f32_16x16x32_f16 v[{a}:{a+3}], {ra}, {rb}, v[{a}:{a+3}]")
                if side: P(side.pop(0))
    if FUSED[0]: P.lines.append(__import__('dsl').Ins('@Z1ISSUE 19 116'))
    for x_ in rds(0, 0): P(x_)
    P("s_mov_b32 s59, 0")
    P.label("k2_cloop")
    P("s_waitcnt lgkmcnt(0)")
    mf(0, rds(1, 1))
    P("s_waitcnt lgkmcnt(0)")
    mf(1, rds(0, 2))
    for k in range(4): P(f"v_add_u32 v{VA+k}, 128, v{VA+k}")
    P(f"v_subrev_u32 v{VA+4}, 128, v{VA+4}")
    P("s_add_u32 s59, s59, 1")
    P("s_cmp_lt_u32 s59, 2")
    P("s_cbranch_scc1 k2_cloop")
    P("s_waitcnt lgkmcnt(0)")
    P(f"v_lshlrev_b32 v{T}, 4, v0")
    P(f"v_add_u32 v{T+1}, s55, v{T}")
    for u in range(8):
        P(f"ds_write_b128 v{T+1}, v[{CACC+4*u}:{CACC+4*u+3}] offset:{1024*u}")
    P(f"v_mov_b32 v{T+3}, s55")
    P(f"v_mov_b32 v{T+4}, s60")
    P(f"v_mov_b32 v{T+5}, 2")
    P("s_lshl_b32 s56, s61, 12")
    P("s_add_u32 s58, s56, s60")
    P("s_add_u32 s56, s56, s55")
    P(f"v_add_u32 v{T+1}, s56, v{T}")
    P(f"v_add_u32 v{T+2}, s58, v{T}")
    P("s_waitcnt lgkmcnt(0)")
    P(f"ds_write_b32 v{T+3}, v{T+5} offset:{FLO}")
    for k in range(4):
        P(f"ds_read_b128 v[{CACC+4*k}:{CACC+4*k+3}], v{T+1} offset:{1024*k}")
        P(f"ds_read_b64 v[{AF+2*k}:{AF+2*k+1}], v{VA+5} offset:{512+512*k}")
    P("s_mov_b32 s58, 0")
    P.label("k2_cp")
    P(f"ds_read_b32 v{T+5}, v{T+4} offset:{FLO}")
    P("s_add_u32 s58, s58, 1")
    P("s_waitcnt lgkmcnt(0)")
    P(f"v_readfirstlane_b32 s56, v{T+5}")
    P("s_cmp_eq_u32 s56, 2")
    P("s_cbranch_scc1 k2_cg")
    P("s_sleep 1")
    P("s_cmp_lt_u32 s58, 0x400000")
    P("s_cbranch_scc1 k2_cp")
    P.label("k2_cg")
    for k in range(4):
        P(f"ds_read_b128 v[{CACC+16+4*k}:{CACC+19+4*k}], v{T+2} offset:{1024*k}")
    P("s_mov_b32 s62, 0xffff0000")
    P("s_waitcnt lgkmcnt(0)")
    for k in range(4):
        a = CACC + 4 * k; xl, xh = AF + 2 * k, AF + 2 * k + 1
        for i in range(4): P(f"v_add_f32 v{a+i}, v{a+i}, v{a+16+i}")
        for i in range(4): P(f"v_mul_f32 v{a+i}, v{a+i}, v{T+9}")
        P(f"v_cvt_pk_bf16_f32 v{T}, v{a}, v{a+1}")
        P(f"v_cvt_pk_bf16_f32 v{T+1}, v{a+2}, v{a+3}")
        P(f"v_cvt_f32_f16_sdwa v{a}, v{xh} dst_sel:DWORD dst_unused:UNUSED_PAD src0_sel:WORD_1")
        P(f"v_cvt_f32_f16 v{a+1}, v{xh}")
        P(f"v_cvt_f32_f16_sdwa v{a+2}, v{xl} dst_sel:DWORD dst_unused:UNUSED_PAD src0_sel:WORD_1")
        P(f"v_cvt_f32_f16 v{a+3}, v{xl}")
        for i in range(4): P(f"v_mul_f32 v{a+i}, v{a+i}, v{T+8}")
        P(f"v_cvt_pk_bf16_f32 v{T+2}, v{a}, v{a+1}")
        P(f"v_cvt_pk_bf16_f32 v{T+3}, v{a+2}, v{a+3}")
        for hh in range(2):
            P(f"v_lshlrev_b32 v{a+2*hh}, 16, v{T+hh}")
            P(f"v_and_b32 v{a+2*hh+1}, s62, v{T+hh}")
            P(f"v_lshlrev_b32 v{T+4}, 16, v{T+2+hh}")
            P(f"v_and_b32 v{T+5}, s62, v{T+2+hh}")
            P(f"v_add_f32 v{a+2*hh}, v{a+2*hh}, v{T+4}")
            P(f"v_add_f32 v{a+2*hh+1}, v{a+2*hh+1}, v{T+5}")
        P(f"v_cvt_pk_bf16_f32 v{BF+2*k}, v{a}, v{a+1}")
        P(f"v_cvt_pk_bf16_f32 v{BF+2*k+1}, v{a+2}, v{a+3}")
        P(f"buffer_store_dwordx2 v[{BF+2*k}:{BF+2*k+1}], v{VA+6}, s[40:43], s57 offen offset:{512*k} sc1")
    P.label("k2_ctail")
    prof(P, 1, pr)
    AREA = CB // 4
    if FUSED[0]:
        P('s_waitcnt vmcnt(4)')
        P.lines.append(__import__('dsl').Ins('@Z1CHECKb 19 116'))
    epi_addr(P, 52)
    Z1 = 20; VL = 2
    P(f"v_lshlrev_b32 v{VL}, 4, v0")
    P(f"buffer_load_dwordx4 v[{Z1}:{Z1+3}], v{VL}, s[24:27], s60 offen")
    P(f"buffer_load_dwordx2 v[{Z1+4}:{Z1+5}], v{VL}, s[24:27], s59 offen")
    P(f"v_and_b32 v3, 15, v0")
    P(f"v_lshlrev_b32 v3, 1, v3")
    P(f"buffer_load_ushort v{Z1+6}, v3, s[32:35], s61 offen")
    nearly = HOOKS['p3early'](P) if 'p3early' in HOOKS else 0
    P("s_mov_b32 s62, 0xffff0000")
    P("s_barrier")
    R = 84
    for dl in range(4):
        P(f"s_sub_u32 s53, s52, {dl}")
        P("s_and_b32 s53, s53, 3")
        P(f"s_mul_i32 s53, s53, {AREA}")
        P(f"v_add_u32 v{4+(dl&1)}, s53, v{VL}")
        for k in range(3):
            r = R + 12 * dl + 4 * k
            off = 21504 + 1024 * k if dl == 0 else (dl - 1) * 7168 + (4 + k) * 1024
            P(f"ds_read_b128 v[{r}:{r+3}], v{4+(dl&1)} offset:{off}")
    P("s_waitcnt lgkmcnt(6)")
    for r in range(12): P(f"v_add_f32 v{R+r}, v{R+r}, v{R+12+r}")
    P("s_waitcnt lgkmcnt(0)")
    for r in range(12): P(f"v_add_f32 v{R+24+r}, v{R+24+r}, v{R+36+r}")
    for r in range(12): P(f"v_add_f32 v{R+r}, v{R+r}, v{R+24+r}")
    P(f"s_waitcnt vmcnt({nearly})")
    P(f"v_lshlrev_b32 v{Z1+7}, 16, v{Z1+6}")
    H = 28
    for q in range(6):
        epi_math(P, R, Z1, H, Z1 + 7, 6, q)
        if q == 3: P(f"buffer_store_dwordx4 v[{H}:{H+3}], v{VL}, s[28:31], s60 offen sc1")
    P(f"buffer_store_dwordx2 v[{H+4}:{H+5}], v{VL}, s[28:31], s59 offen sc1")
    P("s_endpgm")

def gen_k2(P, NST=3, conv=True, nz=3, pr=False):
    STG = 8192
    AREA = NST * STG
    P.label("k2_kernel")
    P("s_cmp_ge_u32 s2, 256")
    P("s_cbranch_scc1 k2_end")
    P("s_load_dwordx2 s[4:5], s[0:1], 88")
    P("s_load_dwordx2 s[6:7], s[0:1], 96")
    P("s_load_dwordx2 s[8:9], s[0:1], 128")
    P("s_load_dwordx2 s[10:11], s[0:1], 64")
    P("s_load_dwordx4 s[68:71], s[0:1], 8")
    P("s_load_dwordx4 s[72:75], s[0:1], 24")
    P("s_load_dwordx4 s[76:79], s[0:1], 40")
    P("s_load_dwordx2 s[80:81], s[0:1], 56")
    P("v_lshrrev_b32 v1, 6, v0")
    P("v_and_b32 v0, 63, v0")
    P("v_readfirstlane_b32 s3, v1")
    P("s_and_b32 s12, s2, 7")
    P("s_lshr_b32 s13, s2, 3")
    P("s_lshr_b32 s14, s12, 1")
    P("s_lshl_b32 s14, s14, 3")
    P("s_and_b32 s15, s13, 7")
    P("s_add_u32 s14, s14, s15")
    P("s_and_b32 s15, s12, 1")
    P("s_lshl_b32 s15, s15, 2")
    P("s_lshr_b32 s13, s13, 3")
    P("s_add_u32 s15, s15, s13")
    if EXP[0] in (5, 6):
        P("s_mov_b32 s14, 0")
        P("s_mov_b32 s15, 0")
    P("s_waitcnt lgkmcnt(0)")
    srd(P, 16, 4, 2048 * 2048 * 2)
    srd(P, 20, 8, 0x400000, WS_Z2F)
    srd(P, 24, 8, 0x400000, WS_Z1F)
    srd(P, 28, 8, 0x400000, WS_HF)
    srd(P, 32, 6, 4096)
    srd(P, 36, 8, 0x200000, WS_XNT)
    srd(P, 40, 8, 0x200000, WS_YAT)
    if conv:
        P("s_cmp_ge_u32 s3, 4")
        P("s_cbranch_scc1 k2_conv")
    if PRIO[0] == 9: P('s_endpgm')
    elif PRIO[0]: P(f's_setprio {PRIO[0]}')
    prof(P, 0, pr)
    if pr: P("s_memtime s[82:83]")
    VW = 2
    VZ = 10
    VA = 12
    T = 20
    WF = 28
    ZB = 60
    P(f"v_lshrrev_b32 v{T}, 3, v0")
    P(f"v_and_b32 v{T+1}, 7, v0")
    P(f"v_lshrrev_b32 v{T+2}, 1, v{T}")
    P(f"v_xor_b32 v{T+1}, v{T+1}, v{T+2}")
    P(f"v_lshlrev_b32 v{T+1}, 4, v{T+1}")
    P(f"v_lshl_add_u32 v{T+1}, v{T}, 12, v{T+1}")
    P(f"v_xor_b32 v{T+2}, 64, v{T+1}")
    for e in range(8):
        P(f"v_add_u32 v{VW+e}, {8*e*4096 - 1024*(e&3)}, v{T+1+(e&1)}")
    P(f"v_lshlrev_b32 v{VZ}, 4, v0")
    P(f"v_add_u32 v{VZ+1}, 4096, v{VZ}")
    P(f"v_and_b32 v{T}, 15, v0")
    P(f"v_lshrrev_b32 v{T+1}, 4, v0")
    P(f"v_lshrrev_b32 v{T+2}, 1, v{T}")
    P(f"v_xor_b32 v{T+1}, v{T+1}, v{T+2}")
    P(f"v_lshlrev_b32 v{T+1}, 4, v{T+1}")
    P(f"v_lshl_add_u32 v{T+1}, v{T}, 7, v{T+1}")
    P(f"s_mul_i32 s52, s3, {AREA}")
    for tau in range(4):
        P(f"s_add_u32 s53, s3, {tau}")
        P(f"s_and_b32 s53, s53, 3")
        P(f"s_lshl_b32 s53, s53, 11")
        P(f"s_add_u32 s53, s53, s52")
        P(f"v_add_u32 v{VA+tau}, s53, v{T+1}")
        P(f"v_xor_b32 v{VA+4+tau}, 64, v{VA+tau}")
    P("s_lshl_b32 s54, s14, 18")
    P("s_lshl_b32 s53, s3, 10")
    P("s_add_u32 s54, s54, s53")
    P(f"s_mul_i32 s55, s15, {64*7168}")
    P(f"s_mul_i32 s53, s3, {16*7168}")
    P("s_add_u32 s55, s55, s53")
    def wdma(q):
        out = []
        st = q % NST
        for e in range(8):
            pre = []
            if e % 4 == 0:
                pre.append(f"s_add_u32 m0, s52, {st*STG + e*1024}")
                if e == 0: pre.append(f"s_add_u32 s56, s54, {q*128}")
                else: pre.append("s_nop 0")
            out.append("\n".join(pre + [f"buffer_load_dwordx4 v{VW+e}, s[16:19], s56 offen offset:{1024*(e&3)} lds"]))
        return out
    def zld(i):
        out = []
        b = ZB + 28 * (i % nz)
        for ft in range(7):
            pre = [f"s_add_u32 s57, s55, {i*7168}"] if ft == 0 else []
            out.append("\n".join(pre + [f"buffer_load_dwordx4 v[{b+4*ft}:{b+4*ft+3}], v{VZ+(ft>>2)}, s[20:23], s57 offen offset:{1024*(ft&3)}"]))
        return out
    def wrd(i):
        out = []
        st = (i // 2) % NST; h = i & 1
        b = WF + 16 * (i & 1)
        for tau in range(4):
            out.append(f"ds_read_b128 v[{b+4*tau}:{b+4*tau+3}], v{VA+4*h+tau} offset:{st*STG}")
        return out
    ZD = nz - 1
    WD = NST - 1
    issued = []
    def emit(lst, tag):
        for s in lst:
            P(s); issued.append(tag)
    if FUSED[0]:
        for q in range(WD):
            for _ in range(8): issued.append(('W', q))
        for _ in range(2): issued.append(('W', 0))
        P.lines.append(__import__('dsl').Ins('@ZPOLL'))
        for i in range(ZD): emit(zld(i), ('Z', i))
    else:
        for q in range(max(WD, (ZD + 1) // 2)):
            if q < WD: emit(wdma(q), ('W', q))
            for i in (2 * q, 2 * q + 1):
                if i < ZD: emit(zld(i), ('Z', i))
    if conv and not FUSED[0]: P('s_barrier')
    for r in range(112):
        P(f"v_accvgpr_write_b32 a{r}, 0")
    def wait_for(tags):
        if not any(t in tags for t in issued): return
        last = max(k for k, t in enumerate(issued) if t in tags)
        n = len(issued) - 1 - last
        P(f"s_waitcnt vmcnt({min(n,63)})")
    Z1 = ZB + 28 * ((15 - ZD) % nz)
    def epi_loads():
        if FUSED[0]: P.lines.append(__import__('dsl').Ins('@Z1CHECKa 24 26'))
        epi_addr(P, 3)
        P(f"buffer_load_dwordx4 v[{Z1}:{Z1+3}], v{VZ}, s[24:27], s58 offen")
        P(f"buffer_load_dwordx4 v[{Z1+4}:{Z1+7}], v{VZ+1}, s[24:27], s58 offen")
        P(f"v_and_b32 v{T}, 15, v0")
        P(f"v_lshlrev_b32 v{T}, 1, v{T}")
        P(f"buffer_load_ushort v{T+3}, v{T}, s[32:35], s61 offen")
    wait_for({('W', 0)})
    if FUSED[0]:
        P.lines.append(__import__('dsl').Ins('@Z1FLAG'))
        if Z1LATE[0]: issued.append(('F', 0))
    if pr: P('s_memrealtime s[80:81]')
    for s in wrd(0): P(s)
    for i in range(16):
        need_tags = {('Z', i)}
        if i + 1 < 16: need_tags.add(('W', (i + 1) // 2))
        wait_for(need_tags)
        if i == 0 and FUSED[0]: P.lines.append(__import__('dsl').Ins('@XWSET'))
        P("s_waitcnt lgkmcnt(0)")
        side = []
        if i + 1 < 16: side += [(s, None) for s in wrd(i + 1)]
        if i + ZD < 16: side += [(s, ('Z', i + ZD)) for s in zld(i + ZD)]
        if i % 2 == 0 and i // 2 + WD < 8: side += [(s, ('W', i // 2 + WD)) for s in wdma(i // 2 + WD)]
        zb = ZB + 28 * (i % nz); wb = WF + 16 * (i & 1)
        if EXP[0] in (3, 4):
            drop = 'W' if EXP[0] == 3 else 'Z'
            side2 = []
            for x in side:
                if x[1] and x[1][0] == drop: side2.append(("s_nop 0", None))
                else: side2.append(x)
            side = side2
        if EXP[0] == 2:
            for x in side:
                if x[1]: issued.append(x[1])
            side = [x for x in side if not x[1]]
            P("s_sleep 7")
        k = 0
        if LF[0]:
            if LF[0] == 2: P("s_setprio 3")
            mem = [x for x in side if x[1]]; side = [x for x in side if not x[1]]
            for s_, tag in mem:
                P(s_); issued.append(tag)
            if LF[0] == 2: P("s_setprio 0")
        for ft in range(7):
            for tau in range(4):
                a = 4 * (ft * 4 + tau)
                if EXP[0] not in (1, 3, 4, 6): P(f"v_mfma_f32_16x16x32_bf16 a[{a}:{a+3}], v[{zb+4*ft}:{zb+4*ft+3}], v[{wb+4*tau}:{wb+4*tau+3}], a[{a}:{a+3}]")
                if k < len(side):
                    s, tag = side[k]; k += 1
                    P(s)
                    if tag: issued.append(tag)
        assert k == len(side)
        if i == 8 and FUSED[0]:
            P.lines.append(__import__('dsl').Ins('@Z1ISSUE 24 26'))
            if Z1LATE[0]: issued.append(('F', 1))
        if i == 16 - ZD:
            epi_loads()
            for _ in range(3): issued.append(('E', 0))
    prof(P, 2, pr)
    if pr:
        P('v_mov_b32 v26, s80')
        P('v_mov_b32 v27, s81')
        P('global_store_dwordx2 v25, v[26:27], s[8:9] offset:-8')
    P(f"v_add_u32 v{T+2}, s52, v{VZ}")
    for tau in range(1, 4):
        for ft in range(7):
            a = 4 * (ft * 4 + tau)
            P(f"ds_write_b128 v{T+2}, a[{a}:{a+3}] offset:{(tau-1)*7168 + ft*1024}")
    for ft in range(4, 7):
        P(f"ds_write_b128 v{T+2}, a[{16*ft}:{16*ft+3}] offset:{21504 + (ft-4)*1024}")
    R = WF
    for ft in range(4):
        for i in range(4): P(f"v_accvgpr_read_b32 v{R+4*ft+i}, a{16*ft+i}")
    P("s_mov_b32 s62, 0xffff0000")
    P("s_waitcnt lgkmcnt(0)")
    nearly = HOOKS['p3early'](P) if 'p3early' in HOOKS else 0
    P("s_barrier")
    RB = [ZB + 28 * ((15 - ZD + 1) % nz), ZB + 28 * ((15 - ZD + 2) % nz), WF + 16]
    for dl in range(1, 4):
        P(f"s_sub_u32 s53, s3, {dl}")
        P("s_and_b32 s53, s53, 3")
        P(f"s_mul_i32 s53, s53, {AREA}")
        P(f"v_add_u32 v{T+2}, s53, v{VZ}")
        for ft in range(4):
            r = RB[dl - 1] + 4 * ft
            P(f"ds_read_b128 v[{r}:{r+3}], v{T+2} offset:{(dl-1)*7168 + ft*1024}")
    G = T + 4
    P("s_waitcnt lgkmcnt(8)")
    for r in range(16): P(f"v_add_f32 v{R+r}, v{R+r}, v{RB[0]+r}")
    P("s_waitcnt lgkmcnt(0)")
    for r in range(16): P(f"v_add_f32 v{RB[1]+r}, v{RB[1]+r}, v{RB[2]+r}")
    for r in range(16): P(f"v_add_f32 v{R+r}, v{R+r}, v{RB[1]+r}")
    P(f"s_waitcnt vmcnt({nearly})")
    P(f"v_lshlrev_b32 v{T+1}, 16, v{T+3}")
    H = RB[0]
    for q in range(8):
        epi_math(P, R, Z1, H, T + 1, G, q)
        if q == 3: P(f"buffer_store_dwordx4 v[{H}:{H+3}], v{VZ}, s[28:31], s58 offen sc1")
    P(f"buffer_store_dwordx4 v[{H+4}:{H+7}], v{VZ+1}, s[28:31], s58 offen sc1")
    prof(P, 3, pr)
    if pr: P("s_waitcnt vmcnt(0)")
    prof(P, 4, pr)
    if pr:
        P("s_memtime s[84:85]")
        P("s_waitcnt lgkmcnt(0)")
        P("s_sub_u32 s84, s84, s82")
        P("v_mov_b32 v26, s84")
        P("v_mov_b32 v27, 0")
        P("global_store_dwordx2 v25, v[26:27], s[8:9] offset:8")
    P("s_endpgm")
    if conv:
        P.label("k2_conv")
        gen_conv(P, 4 * AREA, pr)
    P.label("k2_end")
    P("s_endpgm")
    return dict(vgpr=ZB + 28 * max(nz, 3), agpr=112, lds=4 * AREA + (65536 if conv else 0))
```

```python
import math, struct
def fbits(x): return "0x%08x" % struct.unpack("<I", struct.pack("<f", x))[0]
LOG2E = math.log2(math.e)
TROW = 264
QT0 = 21 * TROW
C1 = 4288
def cmul(P, r, a, b, t):
    assert r not in (a, b)
    P(f"v_mul_f32 v{r}, v{a}, v{b}")
    P(f"v_mul_f32 v{r+1}, v{a}, v{b+1}")
    P(f"v_fma_f32 v{r}, -v{a+1}, v{b+1}, v{r}")
    P(f"v_fmac_f32 v{r+1}, v{a+1}, v{b}")
def bfr(P, dst, src, tmp):
    P(f"v_cvt_pk_bf16_f32 v{tmp}, v{src}, v{src}")
    P(f"v_lshlrev_b32 v{dst}, 16, v{tmp}")

FLO = 14076
DX = 8448
def pmul(P, r, a, b, t, conj_out=False, a_conj=False):
    sa = -1 if a_conj else 1
    so = -1 if conj_out else 1
    nh = 1 if sa * so < 0 else 0
    P(f"v_pk_mul_f16 v{t}, v{a}, v{b} op_sel:[0,0] op_sel_hi:[1,0] neg_hi:[{nh},0]")
    nl = 1 if sa > 0 else 0
    nh2 = 1 if so < 0 else 0
    P(f"v_pk_fma_f16 v{r}, v{a}, v{b}, v{t} op_sel:[1,1,0] op_sel_hi:[0,1,1] neg_lo:[{nl},0,0] neg_hi:[{nh2},0,0]")

def kgen(P, PAR, sA, sB, sPart, after_mfma=None):
    T = 2
    VW_, VR_ = 17, 18
    P(f"v_lshlrev_b32 v{VW_}, 2, v0")
    P(f"v_add_u32 v{VW_}, s{sA}, v{VW_}")
    P(f"v_and_b32 v{T}, 31, v0")
    P(f"v_lshrrev_b32 v{T+1}, 5, v0")
    P(f"s_movk_i32 s53, {TROW}")
    P(f"v_mul_u32_u24 v{T}, s53, v{T}")
    P(f"v_lshl_add_u32 v{T}, v{T+1}, 4, v{T}")
    P(f"v_add_u32 v{VR_}, s{sA}, v{T}")
    P(f"s_mov_b32 s65, {fbits(LOG2E)}")
    P(f"s_mov_b32 s66, {fbits(1/(2*math.pi))}")
    P(f"s_lshl_b32 s56, s{sPart}, 4")
    P(f"s_sub_u32 s58, 16, s56")
    P("s_mov_b32 s84, 0xffff0000")
    AL, BE = 20, 21
    CC = 22
    ACC = 64
    pa = PAR
    P(f"v_mul_f32 v{T}, s65, v{PAR+6}")
    P(f"v_exp_f32 v{T}, v{T}")
    bfr(P, T, T, T + 1)
    def unp(dst, src, sh):
        P(f"v_lshlrev_b32 v{dst}, s{sh}, v{src}")
        P(f"v_and_b32 v{dst}, s84, v{dst}")
    unp(T + 2, pa + 0, 58); unp(T + 3, pa + 1, 58)
    P(f"v_mul_f32 v{T+2}, v{T+2}, v{T}")
    P(f"v_mul_f32 v{T+3}, v{T+3}, v{T}")
    P(f"v_mul_f32 v{AL}, s65, v{T+2}")
    P(f"v_mul_f32 v{BE}, s66, v{T+3}")
    for k, sh in enumerate((58, 56)):
        unp(T + 2, pa + 2, sh); unp(T + 3, pa + 3, sh)
        P(f"v_mul_f32 v{T+2}, v{T+2}, v{T}")
        P(f"v_mul_f32 v{T+3}, v{T+3}, v{T}")
        unp(T + 4, pa + 4, sh); unp(T + 5, pa + 5, sh)
        cmul(P, CC + 2 * k, T + 2, T + 4, T + 6)
    P(f"v_max3_f32 v{T}, abs(v{CC}), abs(v{CC+1}), abs(v{CC+2})")
    P(f"v_max_f32 v{T}, abs(v{CC+3}), v{T}")
    def direct(dst, p, t):
        if p == 1:
            P(f"v_exp_f32 v{t}, v{AL}")
            P(f"v_fract_f32 v{t+1}, v{BE}")
        else:
            P(f"v_mul_f32 v{t}, {fbits(float(p))}, v{AL}")
            P(f"v_mul_f32 v{t+1}, {fbits(float(p))}, v{BE}")
            P(f"v_exp_f32 v{t}, v{t}")
            P(f"v_fract_f32 v{t+1}, v{t+1}")
        P(f"v_cos_f32 v{dst}, v{t+1}")
        P(f"v_sin_f32 v{dst+1}, v{t+1}")
        P(f"v_mul_f32 v{dst}, v{dst}, v{t}")
        P(f"v_mul_f32 v{dst+1}, v{dst+1}, v{t}")
    Z1r, Z8r, Z64, Z256, Z1k = 26, 28, 30, 32, 34
    ZA, ZB_, QA, QB = 36, 38, 40, 42
    Z512, Z768, TA, TB = 44, 46, 48, 50
    ZH = 80
    QH, AH, CH, MH = 88, 52, 52, 56
    dpp = ["quad_perm:[1,0,3,2]", "quad_perm:[2,3,0,1]", "row_half_mirror", "row_mirror"]
    for k, (dst, p) in enumerate(((Z1r, 1), (Z8r, 8), (Z64, 64), (Z256, 256), (Z1k, 1024))):
        direct(dst, p, T + 2 + 2 * (k & 1))
        if k < 4: P(f"v_max_f32_dpp v{T}, v{T}, v{T} {dpp[k]} row_mask:0xf bank_mask:0xf")
    P(f"v_readlane_b32 s84, v{T}, 0")
    P(f"v_readlane_b32 s56, v{T}, 16")
    P(f"v_readlane_b32 s57, v{T}, 32")
    P(f"v_readlane_b32 s58, v{T}, 48")
    P("s_max_u32 s84, s84, s56")
    P("s_max_u32 s57, s57, s58")
    P("s_max_u32 s84, s84, s57")
    P("s_lshr_b32 s84, s84, 23")
    P("s_max_u32 s84, s84, 6")
    P("s_min_u32 s84, s84, 250")
    P("s_sub_u32 s56, 259, s84")
    P("s_lshl_b32 s56, s56, 23")
    P("s_sub_u32 s57, s84, 5")
    P("s_lshl_b32 s57, s57, 23")
    for r in range(2):
        P(f"v_mul_f32 v{CC+r}, s56, v{CC+r}")
    def wP(row, reg): P(f"ds_write_b32 v{VW_}, v{reg} offset:{row*TROW}")
    def wQ(row, reg): P(f"ds_write_b32 v{VW_}, v{reg} offset:{QT0 + row*TROW}")
    def pk(dst, src, conj=False): P(f"v_cvt_pk_f16_f32 v{dst}, v{src}, {'-' if conj else ''}v{src+1}")
    pk(CH, CC, True); wP(0, CH)
    P(f"v_mov_b32 v{MH}, 0x3c00"); wQ(0, MH)
    pk(ZH + 1, Z1r); pk(QH + 1, Z8r); wQ(1, QH + 1)
    pk(AH + 1, Z64); wQ(8, AH + 1)
    zp, qp = Z1r, Z8r
    for j in range(2, 8):
        zn, qn = (ZA, QA) if j % 2 == 0 else (ZB_, QB)
        cmul(P, zn, zp, Z1r, 0); cmul(P, qn, qp, Z8r, 0)
        pk(ZH + j, zn); pk(QH + j, qn); wQ(j, QH + j)
        zp, qp = zn, qn
    cmul(P, TA, Z64, Z64, 0); cmul(P, Z512, Z256, Z256, 0)
    cmul(P, TB, TA, Z64, 0); cmul(P, Z768, Z512, Z256, 0)
    pk(AH + 2, TA); wQ(16, AH + 2); pk(AH + 3, TB); wQ(24, AH + 3)
    for m in range(1, 4):
        for j in range(1, 8):
            d = MH + (j & 3)
            pmul(P, d, QH + j, AH + m, MH + 4 + (j & 1)); wQ(8 * m + j, d)
    for j in range(1, 8):
        d = MH + (j & 3)
        pmul(P, d, CH, ZH + j, MH + 4 + (j & 1), conj_out=True, a_conj=True); wP(j, d)
    for k, (src, row, muls) in enumerate(((Z256, 8, (2, 4, 6)), (Z512, 12, (4,)), (Z768, 14, (4,)))):
        t = TA if k % 2 == 0 else TB
        cmul(P, t, src, CC, 0); pk(MH + 6, t, True); wP(row, MH + 6)
        for i, zz in enumerate(muls):
            d = MH + (i & 3)
            pmul(P, d, MH + 6, ZH + zz, MH + 4 + (i & 1), conj_out=True, a_conj=True); wP(row + 1 + i, d)
    pk(MH + 7, Z1k); pmul(P, MH, CH, MH + 7, MH + 4, conj_out=True, a_conj=True); wP(16, MH)
    for k, src in enumerate((Z256, Z512, Z768, Z1k)):
        t = TA if k % 2 == 0 else TB
        cmul(P, t, Z1k, src, 0); pk(MH + 6 + (k & 1), t)
        pmul(P, MH + 1 + (k & 1), CH, MH + 6 + (k & 1), MH + 4, conj_out=True, a_conj=True); wP(17 + k, MH + 1 + (k & 1))
    P("s_waitcnt lgkmcnt(0)")
    FR = 80
    def rdf(st):
        b = FR + 8 * (st & 1)
        for hh in range(2):
            P(f"ds_read_b64 v[{b+2*hh}:{b+2*hh+1}], v{VR_} offset:{32*st+8*hh}")
            P(f"ds_read_b64 v[{b+4+2*hh}:{b+5+2*hh}], v{VR_} offset:{QT0 + 32*st+8*hh}")
    rdf(0)
    for st in range(8):
        if st + 1 < 8: rdf(st + 1)
        P(f"s_waitcnt lgkmcnt({4 if st+1 < 8 else 0})")
        b = FR + 8 * (st & 1)
        P(f"v_mfma_f32_32x32x16_f16 v[{ACC}:{ACC+15}], v[{b}:{b+3}], v[{b+4}:{b+7}], {'0' if st == 0 else f'v[{ACC}:{ACC+15}]'}")
    if after_mfma: after_mfma()
    P(f"v_lshlrev_b32 v{T}, 4, v0")
    P(f"v_add_u32 v{T+1}, s{sA}, v{T}")
    P(f"v_add_u32 v{T+2}, s{sB}, v{T}")
    P(f"v_mov_b32 v{T+3}, s{sA}")
    P(f"v_mov_b32 v{T+4}, s{sB}")
    P(f"v_mov_b32 v{T+5}, 1")
    P(f"ds_write_b128 v{T+1}, v[{ACC}:{ACC+3}] offset:{DX}")
    P(f"ds_write_b128 v{T+1}, v[{ACC+4}:{ACC+7}] offset:{DX+1024}")
    P("s_mov_b32 exec_hi, 1")
    P(f"ds_write_b128 v{T+1}, v[{ACC+8}:{ACC+11}] offset:{DX+2048}")
    P("s_mov_b64 exec, -1")
    P("s_waitcnt lgkmcnt(0)")
    P(f"ds_write_b32 v{T+3}, v{T+5} offset:{FLO}")
    P("s_mov_b32 s58, 0")
    P.label("kg_poll")
    P(f"ds_read_b32 v{T+5}, v{T+4} offset:{FLO}")
    P("s_add_u32 s58, s58, 1")
    P("s_waitcnt lgkmcnt(0)")
    P(f"v_readfirstlane_b32 s56, v{T+5}")
    P("s_cmp_ge_u32 s56, 1")
    P("s_cbranch_scc1 kg_go")
    P("s_sleep 1")
    P("s_cmp_lt_u32 s58, 0x400000")
    P("s_cbranch_scc1 kg_poll")
    P.label("kg_go")
    for q in range(3):
        P(f"ds_read_b128 v[{32+4*q}:{35+4*q}], v{T+2} offset:{DX+1024*q}")
    P("s_waitcnt lgkmcnt(0)")
    for r in range(12):
        P(f"v_add_f32 v{ACC+r}, v{ACC+r}, v{32+r}")
    NX = 80
    for r in range(4, 12):
        P(f"v_mov_b32_dpp v{NX+r-4}, v{ACC+r} wave_shl:1 row_mask:0xf bank_mask:0xf")
    fixes = [(63, 4, 32, 6), (63, 6, 0, 8), (31, 8, 0, 9), (31, 9, 0, 10), (31, 10, 0, 11), (31, 11, 32, 8)]
    for k, (dl, dr, sl, sr) in enumerate(fixes):
        P(f"v_readlane_b32 s{84+k}, v{ACC+sr}, {sl}")
    for k, (dl, dr, sl, sr) in enumerate(fixes):
        P(f"v_writelane_b32 v{NX+dr-4}, s{84+k}, {dl}")
    EA = T + 8
    P(f"v_and_b32 v{T}, 31, v0")
    P(f"v_lshlrev_b32 v{EA}, 4, v{T}")
    P(f"v_add_u32 v{EA}, s{sA}, v{EA}")
    P(f"v_lshrrev_b32 v{T+1}, 5, v0")
    P(f"v_lshl_add_u32 v{EA+1}, v{T+1}, 3, v{EA}")
    O = 88
    P(f"v_cvt_pk_f16_f32 v{O}, v{ACC}, v{ACC+1}")
    P(f"v_cvt_pk_f16_f32 v{O+1}, v{ACC+2}, v{ACC+3}")
    P(f"ds_write_b64 v{EA+1}, v[{O}:{O+1}] offset:32")
    P(f"v_and_b32 v{T}, 1, v0")
    P(f"v_cmp_eq_u32 vcc, 1, v{T}")
    P("s_mov_b32 exec_lo, -1")
    P("s_mov_b32 exec_hi, 0")
    A4 = ACC + 4
    P(f"v_cvt_pk_f16_f32 v{O+4}, v{A4}, v{A4}")
    P(f"v_cvt_pk_f16_f32 v{O+5}, v{A4+1}, v{A4+2}")
    P(f"v_cvt_pk_f16_f32 v{O+6}, v{A4+2}, v{A4+2}")
    P(f"v_cvt_pk_f16_f32 v{O+7}, v{A4+3}, v{NX}")
    P(f"ds_write_b128 v{EA}, v[{O+4}:{O+7}] offset:{32+512}")
    for a in range(4):
        o = O + 4 * (a & 1)
        w, wn = ACC + 8 + a, NX + 4 + a
        P(f"v_cndmask_b32 v{T+1}, v{w}, v{wn}, vcc")
        P(f"v_cvt_pk_f16_f32 v{o}, v{w}, v{w}")
        P(f"v_mov_b32 v{o+1}, v{o}")
        P(f"v_cvt_pk_f16_f32 v{o+2}, v{T+1}, v{wn}")
        P(f"v_cvt_pk_f16_f32 v{o+3}, v{wn}, v{wn}")
        P(f"ds_write_b128 v{EA}, v[{o}:{o+3}] offset:{32 + 2048 + 512*a}")
    P("s_mov_b32 exec_lo, 0")
    P("s_mov_b32 exec_hi, -1")
    for k in range(2):
        o = O + 4 * k
        u0, u1, un = ACC + 4 + 2 * k, ACC + 5 + 2 * k, NX + 2 * k
        P(f"v_cvt_pk_f16_f32 v{o}, v{u0}, v{u0}")
        P(f"v_cvt_pk_f16_f32 v{o+1}, v{u0}, v{u1}")
        P(f"v_cvt_pk_f16_f32 v{o+2}, v{u1}, v{u1}")
        P(f"v_cvt_pk_f16_f32 v{o+3}, v{un}, v{un}")
        P(f"ds_write_b128 v{EA}, v[{o}:{o+3}] offset:{32 + 1024 + 512*k}")
    P("s_mov_b64 exec, 0xff")
    P(f"v_mov_b32 v{T+2}, 0")
    P(f"ds_write_b32 v{VW_}, v{T+2}")
    P("s_mov_b64 exec, -1")
    P(f"v_lshlrev_b32 v{T}, 4, v0")
    P(f"v_add_u32 v{T+1}, s{sA}, v{T}")
    P("s_waitcnt lgkmcnt(0)")
    EB = 32
    for r in range(5):
        P(f"ds_read_b128 v[{EB+8*r}:{EB+8*r+3}], v{T+1} offset:{1024*r}")
        P(f"ds_read_b32 v{EB+8*r+4}, v{T+1} offset:{1024*r+16}")
    for r in range(5):
        b = EB + 8 * r; o = 72 + 4 * r
        P(f"s_waitcnt lgkmcnt({8-2*r})")
        for k in range(4):
            P(f"v_alignbit_b32 v{o+k}, v{b+k+1}, v{b+k}, 16")
    for r in range(5):
        o = 72 + 4 * r
        if r == 4: P("s_mov_b64 exec, 3")
        P(f"ds_write_b128 v{T+1}, v[{o}:{o+3}] offset:{C1 + 1024*r}")
    P("s_mov_b64 exec, -1")
```

```python
import re, os, sys
from dsl import Prog, Ins
import k1d, k2, aux
from k2 import *
WS_FL1 = WS_FLB
WS_FL1B = WS_FLB + 0x10000
WS_FLX = WS_FLB + 0x20000
WS_FL2 = WS_FLB + 0x8000
SLEEP = [int(os.environ.get('SLEEP', '4'))]
AUXL = [int(os.environ.get('AUXL', '0'))]
P3L = [int(os.environ.get('P3L', '0'))]
PW = [int(os.environ.get('PW', '0'))]
TOUCH = [int(os.environ.get('TOUCH', '1'))]
KN = "parallel_sum__ssm_conv_s4__mixer_gmlp__prompt_kernel"

def lines_of(P): return [l.text for l in P.lines]

def poll(E, name, va, vd, nlanes):
    mask = (1 << nlanes) - 1
    E(f"s_mov_b32 exec_lo, {mask & 0xffffffff:#x}")
    E(f"s_mov_b32 exec_hi, {mask >> 32:#x}")
    E("s_mov_b32 s95, 0")
    E(f"{name}:")
    E(f"global_load_dwordx2 v[{vd}:{vd+1}], v{va}, s[8:9] sc0 sc1")
    E("s_add_u32 s95, s95, 1")
    E("s_waitcnt vmcnt(0)")
    E(f"v_cmp_ne_u64 vcc, s[96:97], v[{vd}:{vd+1}]")
    E("s_nop 1")
    E("s_cmp_eq_u64 vcc, 0")
    E(f"s_cbranch_scc1 {name}_ok")
    E("s_sleep 2")
    E("s_cmp_lt_u32 s95, 0x100000")
    E(f"s_cbranch_scc1 {name}")
    E(f"{name}_ok:")
    E("s_mov_b64 exec, -1")

XWW = 4 * 24576 + 14080 + 14072
GOW = 4 * 24576 + 14072
def ldswait(E, name, va, vd):
    E("s_mov_b32 s95, 0")
    E(f"{name}:")
    E(f"ds_read_b32 v{vd}, v{va}")
    E("s_add_u32 s95, s95, 1")
    E("s_waitcnt lgkmcnt(0)")
    E(f"v_readfirstlane_b32 s94, v{vd}")
    E("s_cmp_eq_u32 s94, 1")
    E(f"s_cbranch_scc1 {name}_ok")
    E("s_sleep 1")
    E("s_cmp_lt_u32 s95, 0x1000000")
    E(f"s_cbranch_scc1 {name}")
    E(f"{name}_ok:")

def phase3(P, pr):
    P("s_load_dwordx2 s[4:5], s[0:1], 0")
    P("s_load_dwordx2 s[6:7], s[0:1], 112")
    P("s_and_b32 s12, s2, 7")
    P("s_lshr_b32 s13, s2, 3")
    P("s_lshl_b32 s14, s12, 2")
    P("s_and_b32 s15, s13, 3")
    P("s_add_u32 s14, s14, s15")
    P("s_lshr_b32 s15, s13, 2")
    srd(P, 24, 8, 0x400000, WS_HF)
    srd(P, 28, 8, 896 * 1024, WS_WOF)
    srd(P, 32, 8, 0x200000, WS_YAT)
    T = 2; VL = 10; VH = 12; VO = 16
    P(f"v_lshlrev_b32 v{VL}, 4, v0")
    for tau in range(4):
        P(f"s_add_u32 s53, s3, {tau}")
        P("s_and_b32 s53, s53, 3")
        P("s_lshl_b32 s53, s53, 10")
        P(f"v_add_u32 v{VH+tau}, s53, v{VL}")
    P("s_lshr_b32 s59, s3, 2")
    P("s_lshl_b32 s53, s59, 11")
    P(f"v_add_u32 v{VO}, s53, v{VL}")
    P(f"v_xor_b32 v{VO+1}, 2048, v{VO}")
    P("s_lshl_b32 s52, s3, 2")
    P("s_mul_i32 s53, s3, 3")
    P("s_add_u32 s53, s53, 4")
    P("s_cmp_lt_u32 s3, 4")
    P("s_cselect_b32 s52, s52, s53")
    P("s_mul_i32 s54, s14, 28")
    P("s_add_u32 s54, s54, s52")
    P("s_lshl_b32 s54, s54, 12")
    P("s_mul_i32 s55, s15, 28")
    P("s_add_u32 s55, s55, s52")
    P("s_lshl_b32 s55, s55, 12")
    P("s_waitcnt lgkmcnt(0)")
    srd(P, 16, 4, 2048 * 512 * 2)
    srd(P, 20, 6, 2048 * 512 * 2)
    XR = 20
    P(f"v_and_b32 v{T}, 15, v0")
    P(f"v_lshrrev_b32 v{T+1}, 4, v0")
    P(f"v_lshlrev_b32 v{T}, 10, v{T}")
    P(f"v_lshl_add_u32 v{VL+1}, v{T+1}, 4, v{T}")
    P("s_lshl_b32 s58, s14, 16")
    P("s_and_b32 s57, s3, 3")
    P("s_lshl_b32 s57, s57, 14")
    P("s_add_u32 s58, s58, s57")
    P("s_lshl_b32 s57, s15, 7")
    P("s_add_u32 s58, s58, s57")
    P("s_lshl_b32 s57, s59, 6")
    P("s_add_u32 s58, s58, s57")
    P(f"buffer_load_dwordx4 v[{XR}:{XR+3}], v{VL+1}, s[16:19], s58 offen")
    P("s_lshl_b32 s53, s14, 7")
    P(f"s_add_u32 s53, s53, {WS_FL2 + 4096}")
    P("s_lshl_b32 s57, s15, 8")
    P(f"s_add_u32 s57, s57, {WS_FL2 - 64}")
    P(f"v_mov_b32 v{T}, s53")
    P(f"v_mov_b32 v{T+1}, s57")
    P(f"v_cmp_gt_u32 vcc, 8, v0")
    P(f"v_cndmask_b32 v{T}, v{T+1}, v{T}, vcc")
    P(f"v_lshl_add_u32 v{T}, v0, 3, v{T}")
    prof(P, 0, pr)
    def E(t):
        if t.endswith(':'): P.label(t[:-1])
        else: P(t)
    if P3L[0] == 1: p3early(P)
    P(f"s_cmp_lg_u32 s3, {PW[0]}")
    P("s_cbranch_scc1 p3_np")
    poll(E, "p3_poll", T, T + 2, 40)
    P.label("p3_np")
    P("s_barrier")
    prof(P, 1, pr)
    HB = 80
    def hl(k):
        P(f"s_add_u32 s56, s54, {4096*k}")
        for tau in range(4):
            r = HB + 16 * k + 4 * tau
            P(f"buffer_load_dwordx4 v[{r}:{r+3}], v{VH+tau}, s[24:27], s56 offen sc1")
    AREA = 14 * 1024; YB = 8 * AREA
    P(f"v_lshrrev_b32 v{T}, 3, v0")
    P(f"v_and_b32 v{T+1}, 7, v0")
    P(f"v_lshlrev_b32 v{T+1}, 4, v{T+1}")
    P(f"v_lshl_add_u32 v{T+1}, v{T}, 12, v{T+1}")
    P("s_lshl_b32 s56, s15, 18")
    P("s_lshl_b32 s57, s3, 15")
    P("s_add_u32 s56, s56, s57")
    P("s_lshl_b32 s57, s14, 7")
    P("s_add_u32 s60, s56, s57")
    P("s_lshl_b32 s57, s3, 10")
    P(f"s_add_u32 m0, s57, {YB}")
    def acc(pi, sg_, tau):
        i = (2 * pi + sg_) * 4 + tau
        return f"a[{64+4*i}:{67+4*i}]" if 0 < (i & ~4) and i - (2 if i > 4 else 1) < 12 and i not in (0, 4) and False else None
    others = [(pi, sg_, tau) for pi in range(2) for tau in range(4) for sg_ in range(2) if not (pi == 0 and tau == 0)]
    amap = {}
    for sg_ in range(2): amap[(0, sg_, 0)] = f"v[{24+4*sg_}:{27+4*sg_}]"
    for n_, key in enumerate(others):
        amap[key] = f"a[{4*ACQ[n_]}:{4*ACQ[n_]+3}]" if n_ < 12 else f"v[{32+4*(n_-12)}:{35+4*(n_-12)}]"
    def mf(k):
        for pi in range(2):
            for sg_ in range(2):
                for tau in range(4):
                    a = amap[(pi, sg_, tau)]; r = 4 * WOQ[4 * k + 2 * pi + sg_]; h = HB + 16 * k + 4 * tau
                    P(f"v_mfma_f32_16x16x32_bf16 {a}, a[{r}:{r+3}], v[{h}:{h+3}], {'0' if k == 0 else a}")
    P("s_cmp_ge_u32 s3, 4")
    P("s_cbranch_scc1 p3_3")
    for k in range(4): hl(k)
    P(f"buffer_load_dwordx4 v{T+1}, s[32:35], s60 offen sc1 lds")
    for k in range(4):
        P(f"s_waitcnt vmcnt({1 + 4*(3-k)})"); mf(k)
    P("s_branch p3_red")
    P.label("p3_3")
    for k in range(3): hl(k)
    P(f"buffer_load_dwordx4 v{T+1}, s[32:35], s60 offen sc1 lds")
    for k in range(3):
        P(f"s_waitcnt vmcnt({1 + 4*(2-k)})"); mf(k)
    P.label("p3_red")
    prof(P, 2, pr)
    P(f"s_mul_i32 s52, s3, {AREA}")
    P(f"v_add_u32 v{T}, s52, v{VL}")
    for n_, key in enumerate(others):
        P(f"ds_write_b128 v{T}, {amap[key]} offset:{1024*n_}")
    P("s_waitcnt vmcnt(0) lgkmcnt(0)")
    P("s_barrier")
    R = 40
    gi = 0
    for pi in range(2):
        for tau in range(4):
            if pi == 0 and tau == 0: continue
            P(f"s_sub_u32 s53, s3, {tau}")
            P("s_and_b32 s53, s53, 3")
            P(f"s_xor_b32 s57, s59, {pi}")
            P("s_lshl_b32 s57, s57, 2")
            P("s_add_u32 s53, s53, s57")
            P(f"s_mul_i32 s53, s53, {AREA}")
            P(f"v_add_u32 v{T+(gi&1)}, s53, v{VL}")
            for sg_ in range(2):
                r = R + 8 * gi + 4 * sg_
                P(f"ds_read_b128 v[{r}:{r+3}], v{T+(gi&1)} offset:{1024*(2*gi+sg_)}")
            gi += 1
    P(f"v_lshrrev_b32 v{T+2}, 4, v0")
    P(f"v_bfe_u32 v{T+3}, v0, 2, 2")
    P(f"v_and_b32 v{T+4}, 3, v0")
    P(f"v_lshl_add_u32 v{T+2}, v{T+2}, 3, v{T+3}")
    P(f"v_lshlrev_b32 v{T+2}, 7, v{T+2}")
    P(f"v_lshl_add_u32 v{T+2}, v{T+4}, 3, v{T+2}")
    P("s_and_b32 s53, s3, 3")
    P("s_lshl_b32 s53, s53, 5")
    P("s_lshl_b32 s57, s59, 12")
    P("s_add_u32 s53, s53, s57")
    P(f"s_add_u32 s53, s53, {YB}")
    P(f"v_add_u32 v{T+2}, s53, v{T+2}")
    YA = 32
    P("s_waitcnt lgkmcnt(0)")
    for eta in range(2):
        P(f"ds_read_b64_tr_b16 v[{YA+2*eta}:{YA+2*eta+1}], v{T+2} offset:{512*eta}")
    for i in range(8):
        P(f"v_add_f32 v{24+i}, v{24+i}, v{R+i}")
        P(f"v_add_f32 v{R+8+i}, v{R+8+i}, v{R+16+i}")
        P(f"v_add_f32 v{R+24+i}, v{R+24+i}, v{R+32+i}")
        P(f"v_add_f32 v{R+40+i}, v{R+40+i}, v{R+48+i}")
    for i in range(8):
        P(f"v_add_f32 v{24+i}, v{24+i}, v{R+8+i}")
        P(f"v_add_f32 v{R+24+i}, v{R+24+i}, v{R+40+i}")
    for i in range(8): P(f"v_add_f32 v{24+i}, v{24+i}, v{R+24+i}")
    P("s_mov_b32 s65, 0xffff0000")
    P("s_waitcnt lgkmcnt(0)")
    for q in range(4):
        a = 24 + 2 * q
        P(f"v_cvt_pk_bf16_f32 v{T}, v{a}, v{a+1}")
        P(f"v_lshlrev_b32 v{T+2}, 16, v{XR+q}")
        P(f"v_and_b32 v{T+3}, s65, v{XR+q}")
        P(f"v_lshlrev_b32 v{T+4}, 16, v{YA+q}")
        P(f"v_and_b32 v{T+5}, s65, v{YA+q}")
        P(f"v_add_f32 v{T+2}, v{T+2}, v{T+4}")
        P(f"v_add_f32 v{T+3}, v{T+3}, v{T+5}")
        P(f"v_cvt_pk_bf16_f32 v{T+4}, v{T+2}, v{T+3}")
        P(f"v_lshlrev_b32 v{T+2}, 16, v{T+4}")
        P(f"v_and_b32 v{T+3}, s65, v{T+4}")
        P(f"v_lshlrev_b32 v{T+4}, 16, v{T}")
        P(f"v_and_b32 v{T+5}, s65, v{T}")
        P(f"v_add_f32 v{T+2}, v{T+2}, v{T+4}")
        P(f"v_add_f32 v{T+3}, v{T+3}, v{T+5}")
        P(f"v_cvt_pk_bf16_f32 v{R+q}, v{T+2}, v{T+3}")
    P(f"buffer_store_dwordx4 v[{R}:{R+3}], v{VL+1}, s[20:23], s58 offen")
    prof(P, 3, pr)
    if pr: P("s_waitcnt vmcnt(0)")
    prof(P, 4, pr)

CNT = [0]
def early2(P):
    n = CNT[0]; CNT[0] += 1
    if n == 1:
        P("s_waitcnt lgkmcnt(0)")
        P("s_barrier")
    P("s_lshl_b32 s57, s2, 8")
    P(f"s_add_u32 s57, s57, {WS_FLX}")
    P("v_and_b32 v132, 31, v0")
    P("v_lshlrev_b32 v132, 3, v132")
    P("v_add_u32 v132, s57, v132")
    P("s_cmp_lt_u32 s3, 4")
    P(f"s_cbranch_scc1 e2_done{n}")
    P.label(f"e2_conv{n}")
    PAR = 104; V = 112
    P("s_sub_u32 s56, s3, 4")
    P("s_lshr_b32 s57, s56, 1")
    P("s_lshl_b32 s61, s2, 1")
    P("s_add_u32 s61, s61, s57")
    P(f"s_mul_i32 s56, s56, {CW_AREA}")
    P(f"s_add_u32 s56, s56, {4*24576}")
    P(f"v_mov_b32 v{V}, s56")
    P(f"v_mov_b32 v{V+4}, 0")
    P(f"v_mov_b32 v{V+5}, 0")
    P(f"ds_write_b64 v{V}, v[{V+4}:{V+5}] offset:14072")
    P(f"v_lshlrev_b32 v{V+2}, 2, v0")
    P("s_lshl_b32 s57, s61, 8")
    P(f"v_add_u32 v{V+2}, s57, v{V+2}")
    P("s_lshl_b32 s57, s61, 1")
    P(f"v_mov_b32 v{V+3}, s57")
    for k in range(6):
        P(f"global_load_dword v{PAR+k}, v{V+2}, s[{68+2*k}:{69+2*k}]")
    P(f"global_load_ushort v{PAR+6}, v{V+3}, s[80:81]")
    P(f"global_load_ushort v{PAR+7}, v{V+3}, s[82:83]")
    if k2.XE[0]: P("global_load_dwordx2 v[134:135], v132, s[8:9] sc0 sc1")
    P.label(f"e2_done{n}")

FREEQ = [4 * ft + t for ft in range(7) for t in (1, 2, 3)]
WOQ = FREEQ[:16]
ACQ = FREEQ[16:] + [4 * ft for ft in range(7)]
def p3early(P):
    n = CNT[0]; CNT[0] += 1
    srd(P, 44, 8, 896 * 1024, WS_WOF)
    P("s_lshl_b32 s84, s3, 2")
    P("s_mul_i32 s85, s3, 3")
    P("s_add_u32 s85, s85, 4")
    P("s_cmp_lt_u32 s3, 4")
    P("s_cselect_b32 s84, s84, s85")
    P("s_lshr_b32 s85, s2, 5")
    P("s_mul_i32 s85, s85, 28")
    P("s_add_u32 s85, s85, s84")
    P("s_lshl_b32 s85, s85, 12")
    P("s_lshr_b32 s86, s3, 2")
    P("s_lshl_b32 s86, s86, 11")
    P("v_lshlrev_b32 v1, 4, v0")
    for k in range(4):
        for pi in range(2):
            P(f"s_xor_b32 s87, s86, {2048*pi}")
            P("s_add_u32 s87, s87, s85")
            P(f"s_add_u32 s87, s87, {4096*k}")
            for sg_ in range(2):
                r = 4 * WOQ[4 * k + 2 * pi + sg_]
                P(f"buffer_load_dwordx4 a[{r}:{r+3}], v1, s[44:47], s87 offen offset:{1024*sg_} sc1")
    return 16

def signal_to(E, tag, code, nl, drain=True):
    E("s_waitcnt vmcnt(0) lgkmcnt(0)" if drain else "s_waitcnt lgkmcnt(0)")
    E("s_barrier")
    E("s_cmp_lg_u32 s3, 0")
    E(f"s_cbranch_scc1 {tag}_ns")
    for c in code: E(c)
    E("v_mov_b32 v4, s96")
    E("v_mov_b32 v5, s97")
    E(f"s_mov_b64 exec, {(1 << nl) - 1}")
    E("global_store_dwordx2 v2, v[4:5], s[8:9] sc0 sc1")
    E("s_mov_b64 exec, -1")
    E(f"{tag}_ns:")
def sig1(P, n):
    def E(t):
        if t.endswith(':'): P.label(t[:-1])
        else: P(t)
    signal_to(E, f"p1{n}", ["s_lshl_b32 s53, s2, 3", f"s_add_u32 s53, s53, {WS_FL1}", "v_lshlrev_b32 v2, 11, v0", "v_add_u32 v2, s53, v2"], 8)
    if n == 1 and AUXL[0]:
        P("v_lshlrev_b32 v112, 7, v0")
        P("s_lshl_b32 s56, s14, 18")
        P("s_lshl_b32 s57, s3, 13")
        P("s_add_u32 s56, s56, s57")
        P(f"s_add_u32 s56, s56, {65536 * aux.AUXT[0]}")
        for e in range(AUXL[0]):
            P("buffer_load_dword v143, v112, s[36:39], s56 offen")
            P("s_add_u32 s56, s56, 65536")
    P("s_cmp_ge_u32 s3, 4")
    P(f"s_cbranch_scc1 s1_nw{n}")
    V = 112
    if TOUCH[0] == 2 and n == 0:
        P("s_lshl_b32 s56, s14, 18")
        P(f"s_add_u32 s56, s56, {48*4096}")
        P(f"v_lshlrev_b32 v{V}, 7, v0")
        P("s_lshl_b32 s57, s15, 13")
        P("s_cmp_eq_u32 s3, 1")
        P("s_cbranch_scc1 s1_q1")
        P("s_mov_b32 s57, 57344")
        P("s_cmp_lg_u32 s3, 2")
        P("s_cbranch_scc1 s1_q2")
        P("s_cmp_lg_u32 s15, 0")
        P("s_cbranch_scc1 s1_q2")
        P.label("s1_q1")
        P("s_add_u32 s56, s56, s57")
        P(f"buffer_load_dword v143, v{V}, s[36:39], s56 offen")
        P.label("s1_q2")
    if TOUCH[0] == 1:
        P("s_and_b32 s56, s2, 7")
        P("s_lshl_b32 s56, s56, 5")
        P("s_lshr_b32 s57, s2, 3")
        P("s_add_u32 s56, s56, s57")
        P("s_lshl_b32 s56, s56, 15")
        P(f"v_lshlrev_b32 v{V}, 7, v0")
        P("s_cmp_eq_u32 s3, 0")
        P(f"s_cbranch_scc1 s1_t2{n}")
        P("s_cmp_lg_u32 s3, 3")
        P(f"s_cbranch_scc1 s1_t1{n}")
        P(f"buffer_load_dword v143, v{V}, s[36:39], s56 offen")
        P.label(f"s1_t1{n}")
        P("s_lshl_b32 s57, s3, 13")
        P("s_add_u32 s56, s56, s57")
        P(f"buffer_load_dword v143, v{V}, s[36:39], s56 offen")
        P.label(f"s1_t2{n}")
    P(f"v_lshrrev_b32 v{V}, 3, v0")
    P(f"v_and_b32 v{V+1}, 7, v0")
    P(f"v_lshrrev_b32 v{V+2}, 1, v{V}")
    P(f"v_xor_b32 v{V+1}, v{V+1}, v{V+2}")
    P(f"v_lshlrev_b32 v{V+1}, 4, v{V+1}")
    P(f"v_lshl_add_u32 v{V+1}, v{V}, 12, v{V+1}")
    P(f"v_xor_b32 v{V+2}, 64, v{V+1}")
    P("s_and_b32 s56, s2, 7")
    P("s_lshr_b32 s56, s56, 1")
    P("s_lshl_b32 s56, s56, 3")
    P("s_bfe_u32 s57, s2, 0x30003")
    P("s_add_u32 s56, s56, s57")
    P("s_lshl_b32 s56, s56, 18")
    P("s_lshl_b32 s57, s3, 10")
    P("s_add_u32 s56, s56, s57")
    P("s_mul_i32 s57, s3, 24576")
    for q in range(2):
        for e in range(8):
            P(f"s_add_u32 m0, s57, {q*8192 + e*1024}")
            P(f"s_add_u32 s61, s56, {q*128 + e*32768}")
            P(f"buffer_load_dwordx4 v{V+1+(e&1)}, s[36:39], s61 offen lds")
    if n == 1 and k2.XE[0]:
        P(f"s_branch s1_x{n}")
    P.label(f"s1_nw{n}")
    if n == 1 and k2.XE[0]:
        P("s_sub_u32 s56, s3, 4")
        P("s_lshl_b32 s56, s56, 14")
        P("s_lshl_b32 s57, s14, 3")
        P("s_add_u32 s56, s56, s57")
        P(f"s_add_u32 s56, s56, {WS_FLX}")
        P("v_lshlrev_b32 v2, 8, v0")
        P("v_add_u32 v2, s56, v2")
        P("v_mov_b32 v4, s96")
        P("v_mov_b32 v5, s97")
        P("global_store_dwordx2 v2, v[4:5], s[8:9] sc0 sc1")
        P.label(f"s1_x{n}")
    P("s_lshl_b32 s93, s14, 3")
    P("s_add_u32 s93, s93, s15")
    P("s_lshl_b32 s93, s93, 3")
    P("s_add_u32 s93, s93, s3")
    P("s_lshl_b32 s93, s93, 3")
    P(f"s_add_u32 s93, s93, {WS_FL1B}")
def z1flag(E, va):
    E(f"v_mov_b32 v{va}, s93")
    E(f"v_mov_b32 v{va+1}, s96")
    E(f"v_mov_b32 v{va+2}, s97")
    E("s_mov_b64 exec, 1")
    E(f"global_store_dwordx2 v{va}, v[{va+1}:{va+2}], s[8:9] sc0 sc1")
    E("s_mov_b64 exec, -1")
def z1issue(E, va, vd):
    E("s_mul_i32 s64, s15, 112")
    E("s_lshr_b32 s62, s64, 7")
    E("s_add_u32 s64, s64, 111")
    E("s_lshr_b32 s63, s64, 7")
    E("s_sub_u32 s63, s63, s62")
    E("s_lshl_b32 s63, s63, 6")
    E("s_lshl_b32 s64, s14, 3")
    E("s_add_u32 s64, s64, s62")
    E("s_lshl_b32 s64, s64, 6")
    E(f"s_add_u32 s64, s64, {WS_FL1B}")
    E(f"v_bfe_u32 v{va}, v0, 3, 1")
    E(f"v_mul_u32_u24 v{va}, s63, v{va}")
    E(f"v_and_b32 v{vd}, 7, v0")
    E(f"v_lshl_add_u32 v{va}, v{vd}, 3, v{va}")
    E(f"v_add_u32 v{va}, s64, v{va}")
    E(f"global_load_dwordx2 v[{vd}:{vd+1}], v{va}, s[8:9] sc0 sc1")
def z1check(E, name, va, vd):
    E(f"v_cmp_ne_u64 vcc, s[96:97], v[{vd}:{vd+1}]")
    E("s_nop 1")
    E("s_cmp_eq_u64 vcc, 0")
    E(f"s_cbranch_scc1 {name}_ok")
    poll(E, name, va, vd, 64)

def build(pr=False):
    k2.HOOKS['sig1'] = sig1
    if not P3L[0]: k2.HOOKS['p3early'] = p3early
    k2.HOOKS['t1'] = early2
    out = []
    E = out.append
    k2.PROF_K[0] = 0
    P1 = Prog(); k1d.gen_k1(P1, aux=aux.aux, pr=pr)
    L1 = lines_of(P1)
    def amap(m):
        if m.group(1):
            lo, hi = int(m.group(1)), int(m.group(2))
            return f"v[{lo+16}:{hi+16}]" if lo >= 112 else m.group(0)
        n = int(m.group(3)); return f"v{n+16}" if n >= 112 else m.group(0)
    L1 = [re.sub(r'\ba\[(\d+):(\d+)\]|\ba(\d+)\b', amap, l) for l in L1]
    nend = 0
    for l in L1:
        if l == "k1_kernel:": E(KN + ":"); continue
        if l == "k1_end:": break
        if l == "s_cbranch_scc1 k1_end": E("s_cbranch_scc1 f_end"); continue
        if l == "s_lshl_b32 s53, s14, 3" and 'nonce_addr' not in globals():
            globals()['nonce_addr'] = 1; E("s_mov_b32 s53, 0"); continue
        if l == "s_or_b32 s53, s15, s3": E("s_or_b32 s53, s2, s3"); continue
        if l == "s_endpgm":
            nend += 1
            if nend == 1: E("s_branch p1_done")
            else:
                PE = Prog(); early2(PE)
                for x_ in lines_of(PE): E(x_)
                E("v_mov_b32 v13, 0")
                E("s_mov_b32 s95, 0")
                E("aux_nonce:")
                E("global_load_dwordx2 v[14:15], v13, s[10:11] sc0 sc1")
                E("s_add_u32 s95, s95, 1")
                E("s_waitcnt vmcnt(0)")
                E("v_readfirstlane_b32 s96, v14")
                E("v_readfirstlane_b32 s97, v15")
                E("s_cmp_lg_u32 s96, 0")
                E("s_cbranch_scc1 aux_sig")
                E("s_cmp_lt_u32 s95, 0x200000")
                E("s_cbranch_scc1 aux_nonce")
                E("aux_sig:")
                PE = Prog(); sig1(PE, 1)
                for x_ in lines_of(PE): E(x_)
            continue
        E(l)
    globals().pop('nonce_addr', None)
    E("p1_done:")
    k2.PROF_K[0] = 1
    P2 = Prog(); k2.gen_k2(P2, pr=pr)
    L2 = lines_of(P2)
    skip = {"k2_kernel:", "s_cmp_ge_u32 s2, 256", "s_cbranch_scc1 k2_end", "v_lshrrev_b32 v1, 6, v0", "v_and_b32 v0, 63, v0",
            "v_readfirstlane_b32 s3, v1", "s_load_dwordx2 s[8:9], s[0:1], 128", "s_load_dwordx2 s[10:11], s[0:1], 64",
            "s_load_dwordx4 s[68:71], s[0:1], 8", "s_load_dwordx4 s[72:75], s[0:1], 24", "s_load_dwordx4 s[76:79], s[0:1], 40", "s_load_dwordx2 s[80:81], s[0:1], 56"}
    firstz = True; firstx = True
    for l in L2:
        if l in skip: continue
        if l == "k2_end:": break
        if l == "s_endpgm": E("s_branch p2_done"); continue
        if l.startswith("buffer_load") and any(f"s[{a}:{a+3}]" in l for a in (20, 24, 36)):
            l = l.replace(" lds", " sc1 lds") if l.endswith(" lds") else l + " sc1"
        if l == "@ZPOLL":
            E(f"v_mov_b32 v22, {GOW}")
            E("s_cmp_lg_u32 s3, 0")
            E("s_cbranch_scc1 p2_lw")
            E("s_and_b32 s53, s2, 7")
            E("s_lshl_b32 s53, s53, 11")
            E(f"s_add_u32 s53, s53, {WS_FL1}")
            E("v_lshlrev_b32 v20, 4, v0")
            E("v_add_u32 v20, s53, v20")
            E("s_mov_b32 s95, 0")
            E("p2_zpoll:")
            E("global_load_dwordx4 v[28:31], v20, s[8:9] sc0 sc1")
            E("global_load_dwordx4 v[32:35], v20, s[8:9] offset:1024 sc0 sc1")
            E("s_add_u32 s95, s95, 1")
            E("s_waitcnt vmcnt(0)")
            E("v_cmp_ne_u64 s[62:63], s[96:97], v[28:29]")
            E("v_cmp_ne_u64 s[64:65], s[96:97], v[30:31]")
            E("v_cmp_ne_u64 s[66:67], s[96:97], v[32:33]")
            E("v_cmp_ne_u64 vcc, s[96:97], v[34:35]")
            E("s_nop 1")
            E("s_or_b64 s[62:63], s[62:63], s[64:65]")
            E("s_or_b64 s[66:67], s[66:67], vcc")
            E("s_or_b64 s[62:63], s[62:63], s[66:67]")
            E("s_cmp_eq_u64 s[62:63], 0")
            E("s_cbranch_scc1 p2_set")
            E(f"s_sleep {SLEEP[0]}")
            E("s_cmp_lt_u32 s95, 0x100000")
            E("s_cbranch_scc1 p2_zpoll")
            E("p2_set:")
            E("s_lshl_b32 s62, s2, 13")
            E("v_lshlrev_b32 v20, 4, v0")
            for e in range(8):
                if e % 4 == 0:
                    E(f"s_mov_b32 m0, {4*24576 + 4*14080 + 512 + 4608*(e//4)}")
                    if e: E("s_add_u32 s62, s62, 4096")
                    else: E("s_nop 0")
                E(f"buffer_load_dwordx4 v20, s[36:39], s62 offen offset:{1024*(e&3)} sc1 lds")
            E("v_mov_b32 v23, 1")
            E("ds_write_b32 v22, v23")
            E("s_branch p2_go")
            E("p2_lw:")
            ldswait(E, "p2_lwl", 22, 23)
            E("p2_go:")
            continue
        if l.startswith("@Z1") and not k2.Z1LATE[0]:
            continue
        if l == "@Z1FLAG":
            z1flag(E, 21); continue
        if l.startswith("@Z1ISSUE"):
            z1issue(E, *map(int, l.split()[1:])); continue
        if l.startswith("@Z1CHECK"):
            z1check(E, "p2_z1w" + l[8:9], *map(int, l.split()[1:])); continue
        if l == "@XEARLY":
            z1check(E, "p2_xe", 132, 134)
            continue
        if l == "@TOUCH":
            E("s_and_b32 s56, s2, 7")
            E("s_lshl_b32 s56, s56, 5")
            E("s_lshr_b32 s57, s2, 3")
            E("s_add_u32 s56, s56, s57")
            E("s_lshl_b32 s56, s56, 15")
            E("s_lshl_b32 s57, s52, 13")
            E("s_add_u32 s56, s56, s57")
            E("v_lshlrev_b32 v2, 7, v0")
            E("buffer_load_dword v143, v2, s[16:19], s56 offen")
            continue
        if l == "@XWSET":
            E("s_cmp_lg_u32 s3, 0")
            E("s_cbranch_scc1 p2_xs")
            E(f"v_mov_b32 v22, {XWW}")
            E("v_mov_b32 v23, 1")
            E("ds_write_b32 v22, v23")
            E("p2_xs:")
            continue
        if l == "@XPOLL":
            if k2.Z1LATE[0]:
                E("s_waitcnt vmcnt(0)")
                z1flag(E, 3)
            E(f"v_mov_b32 v2, {XWW}")
            ldswait(E, "p2_xw", 2, 3)
            continue
        E(l)
    E("p2_done:")
    E("s_setprio 0")
    signal_to(E, "p2", ["s_lshl_b32 s53, s2, 3", f"s_add_u32 s53, s53, {WS_FL2}", "v_mov_b32 v2, s53",
                  "s_lshl_b32 s53, s14, 7", "s_lshl_b32 s56, s15, 3", "s_add_u32 s53, s53, s56", f"s_add_u32 s53, s53, {WS_FL2 + 4096}",
                  "v_writelane_b32 v2, s53, 1"], 2)
    k2.PROF_K[0] = 2
    k2.PROF_V[0] = 142
    P3 = Prog(); phase3(P3, pr)
    k2.PROF_V[0] = 26
    out += lines_of(P3)
    E("f_end:")
    E("s_endpgm")
    P = Prog()
    for l in out:
        if l.endswith(':'): P.label(l[:-1])
        else: P(l)
    body = P.finish()
    HDR = open('parallel_sum__ssm_conv_s4__mixer_gmlp__prompt.s.ref').read().split('; Override launch')[0]
    first = f"; @launch kernel={KN} grid=(256,1,1) block=(512,1,1) lds=163840" if os.environ.get("ASLIST") else "; @launch grid=(256,1,1) block=(512,1,1) lds=163840"
    return HDR + first + f'''
.amdgcn_target "amdgcn-amd-amdhsa--gfx950"
.text
.globl {KN}
.p2align 8
.type {KN},@function
{body}
.section .rodata,"a"
.p2align 6
.amdhsa_kernel {KN}
  .amdhsa_next_free_vgpr 256
  .amdhsa_next_free_sgpr 100
  .amdhsa_accum_offset 144
  .amdhsa_group_segment_fixed_size 0
  .amdhsa_kernarg_size 136
  .amdhsa_user_sgpr_count 2
  .amdhsa_user_sgpr_kernarg_segment_ptr 1
  .amdhsa_system_sgpr_workgroup_id_x 1
.end_amdhsa_kernel
'''
if __name__ == "__main__":
    k2.FUSED[0] = 1
    for nm in ('GSPLIT', 'GAT'):
        if os.environ.get(nm): getattr(k1d, nm)[0] = int(os.environ[nm])
    if os.environ.get('PRIO'): k2.PRIO[:] = [int(c) for c in os.environ['PRIO']]
    open(sys.argv[1], 'w').write(build(pr=('prof' in sys.argv)))
```

```python
from dsl import Prog
from k2 import *
from k1 import ln1, bf16_round_v, fbits, GK0, GK1, wpre, XB
from k1b import Buf
import math
import k2
from reblk import rb_load, rb_store

def gelu_consts(P, Rr, K):
    P(f"v_mul_f32 v{K[0]}, s63, v{Rr}")
    P(f"v_mul_f32 v{K[1]}, v{Rr}, v{Rr}")
    P(f"v_mul_f32 v{K[1]}, v{K[1]}, v{Rr}")
    P(f"v_mul_f32 v{K[1]}, s64, v{K[1]}")
    P(f"v_rcp_f32 v{K[2]}, v{Rr}")
def gelu_stream(A, T, K):
    B = Buf()
    for q in range(8):
        a, b = A + 2 * q, A + 2 * q + 1
        t0, t1 = T + (q & 1) * 2, T + 1 + (q & 1) * 2
        B(f"v_mul_f32 v{t0}, v{a}, v{a}")
        B(f"v_mul_f32 v{t1}, v{b}, v{b}")
        B(f"v_fma_f32 v{t0}, v{t0}, v{K[1]}, v{K[0]}")
        B(f"v_fma_f32 v{t1}, v{t1}, v{K[1]}, v{K[0]}")
        B(f"v_mul_f32 v{t0}, v{t0}, v{a}")
        B(f"v_mul_f32 v{t1}, v{t1}, v{b}")
        B(f"v_exp_f32 v{t0}, v{t0}")
        B(f"v_exp_f32 v{t1}, v{t1}")
        B(f"v_fma_f32 v{t0}, v{t0}, v{K[2]}, v{K[2]}")
        B(f"v_fma_f32 v{t1}, v{t1}, v{K[2]}, v{K[2]}")
        B(f"v_rcp_f32 v{t0}, v{t0}")
        B(f"v_rcp_f32 v{t1}, v{t1}")
        B(f"v_mul_f32 v{a}, v{a}, v{t0}")
        B(f"v_mul_f32 v{b}, v{b}, v{t1}")
        B(f"v_cvt_pk_bf16_f32 v{A+q}, v{a}, v{b}")
    return B.l

def gen_k1(P, aux=None, pr=False):
    P.label("k1_kernel")
    P("s_cmp_ge_u32 s2, 256")
    P("s_cbranch_scc1 k1_end")
    P("s_load_dwordx2 s[4:5], s[0:1], 0")
    P("s_load_dwordx2 s[6:7], s[0:1], 80")
    P("s_load_dwordx2 s[8:9], s[0:1], 128")
    P("s_load_dwordx2 s[10:11], s[0:1], 120")
    P("s_load_dwordx4 s[40:43], s[0:1], 88")
    P("s_load_dwordx2 s[100:101], s[0:1], 112")
    if k2.FUSED[0]:
        P("s_load_dwordx4 s[68:71], s[0:1], 8")
        P("s_load_dwordx4 s[72:75], s[0:1], 24")
        P("s_load_dwordx4 s[76:79], s[0:1], 40")
        P("s_load_dwordx4 s[80:83], s[0:1], 56")
    P("v_lshrrev_b32 v1, 6, v0")
    P("v_and_b32 v0, 63, v0")
    P("v_readfirstlane_b32 s3, v1")
    P("s_mov_b32 s62, 0x3f803f80")
    P(f"s_mov_b32 s63, {fbits(GK0)}")
    P(f"s_mov_b32 s64, {fbits(GK1)}")
    P("s_and_b32 s12, s2, 7")
    P("s_lshr_b32 s13, s2, 3")
    P("s_lshl_b32 s14, s12, 2")
    P("s_and_b32 s15, s13, 3")
    P("s_add_u32 s14, s14, s15")
    P("s_lshr_b32 s15, s13, 2")
    X = 32; T = 2; VB = 16
    P(f"v_lshrrev_b32 v{T}, 3, v0")
    P(f"v_and_b32 v{T+1}, 7, v0")
    P(f"v_lshlrev_b32 v{T+2}, 4, v{T+1}")
    P(f"v_lshl_add_u32 v{T+2}, v{T}, 10, v{T+2}")
    P("s_lshl_b32 s52, s14, 16")
    P("s_lshl_b32 s53, s3, 13")
    P("s_add_u32 s52, s52, s53")
    P(f"v_lshrrev_b32 v{T+4}, 4, v0")
    P(f"v_and_b32 v{T+5}, 15, v0")
    P("s_lshl_b32 s53, s3, 2")
    P(f"v_add_u32 v{VB}, s53, v{T+4}")
    P("s_movk_i32 s53, 3584")
    P(f"v_mul_u32_u24 v{VB}, s53, v{VB}")
    P(f"v_lshl_add_u32 v{VB}, v{T+5}, 4, v{VB}")
    P("s_lshl_b32 s54, s15, 8")
    P("s_add_u32 s55, s54, 1792")
    P("s_waitcnt lgkmcnt(0)")
    srd(P, 16, 4, 2048 * 512 * 2)
    issued = []
    for e in range(8):
        P(f"buffer_load_dwordx4 v[{X+4*e}:{X+4*e+3}], v{T+2}, s[16:19], s52 offen offset:{128*e}")
        issued.append(('X', e))
    srd(P, 20, 6, 512 * 1792 * 2)
    srd(P, 24, 8, 0x400000, WS_Z2F)
    srd(P, 28, 8, 0x400000, WS_Z1F)
    srd(P, 32, 8, 32 * 2 * 28 * 512, WS_ST)
    srd(P, 36, 40, 2048 * 2048 * 2)
    srd(P, 44, 8, 0x800000, WS_WF)
    VXW = 23
    P("s_and_b32 s53, s3, 1")
    P("s_lshl_b32 s53, s53, 3")
    P(f"v_add_u32 v{T+3}, s53, v{T}")
    P(f"v_xor_b32 v{T+3}, v{T+3}, v{T+1}")
    P(f"v_lshlrev_b32 v{T+3}, 4, v{T+3}")
    P(f"v_lshl_add_u32 v{T+3}, v{T}, 10, v{T+3}")
    P("s_lshl_b32 s53, s3, 13")
    P(f"s_add_u32 s53, s53, {XB}")
    P(f"v_add_u32 v{VXW}, s53, v{T+3}")
    P(f"v_xor_b32 v{VXW+1}, 128, v{VXW}")
    if aux is not None:
        P("s_cmp_eq_u32 s15, 7")
        P("s_cbranch_scc1 k1_aux")
    ACC2, ACC1, WFR = 64, 80, 96
    def land(u):
        if u < 8: return f"v[{WFR+4*u}:{WFR+4*u+3}]"
        if u < 12: return f"v[{ACC1+4*(u-8)}:{ACC1+4*(u-8)+3}]"
        if u < 16: return f"a[{112+4*(u-12)}:{115+4*(u-12)}]"
        return f"v[{X+4*(u%8)}:{X+4*(u%8)+3}]"
    def bld(u):
        half, ku = u // 16, u % 16
        P(f"s_add_u32 s57, s{55 if half == 0 else 54}, {ku * 32 * 3584}")
        P(f"buffer_load_dwordx4 {land(u)}, v{VB}, s[20:23], s57 offen")
        issued.append(('B', u))
    def wait_for(tags):
        last = max(k for k, t in enumerate(issued) if t in tags)
        n = len(issued) - 1 - last
        P(f"s_waitcnt vmcnt({min(n,63)})")
    for u in range(4): bld(u)
    prof(P, 0, pr)
    P("s_lshl_b32 s53, s14, 3")
    P("v_mov_b32 v13, s53")
    P("s_or_b32 s53, s15, s3")
    P("s_cmp_lg_u32 s53, 0")
    P("s_cbranch_scc1 k1_nolead")
    P("s_memrealtime s[96:97]")
    P("s_waitcnt lgkmcnt(0)")
    P("s_or_b32 s96, s96, 1")
    P("v_mov_b32 v14, s96")
    P("v_mov_b32 v15, s97")
    P("s_mov_b64 exec, 1")
    P("global_store_dwordx2 v13, v[14:15], s[10:11] sc0 sc1")
    P("s_mov_b64 exec, -1")
    P.label("k1_nolead")
    if PRI[0]:
        P("s_cmp_lt_u32 s3, 4")
        P("s_cbranch_scc1 k1_nopri")
        P("s_setprio 1")
        P.label("k1_nopri")
    VLW = 17
    P(f"v_lshlrev_b32 v{T}, 2, v{T+4}")
    P(f"v_xor_b32 v{T}, v{T}, v{T+5}")
    P(f"v_lshlrev_b32 v{T}, 4, v{T}")
    P(f"v_lshl_add_u32 v{T}, v{T+4}, 8, v{T}")
    P("s_lshl_b32 s53, s3, 10")
    P(f"v_add_u32 v{VLW}, s53, v{T}")
    P(f"v_add_u32 v{VLW+1}, 0x10000, v{VLW}")
    def bwr(u):
        addr = (u % 12) * 8192
        wait_for({('B', u)})
        P(f"ds_write_b128 v{VLW+(addr>>16)}, {land(u)} offset:{addr & 0xffff}")
    P("s_lshr_b32 s59, s3, 2")
    P("s_and_b32 s58, s3, 3")
    VT = 19
    P(f"v_lshrrev_b32 v{T}, 4, v0")
    P(f"v_bfe_u32 v{T+1}, v0, 2, 2")
    P(f"v_and_b32 v{T+2}, 3, v0")
    P(f"v_and_b32 v{T+3}, 1, v{T}")
    P(f"v_lshl_add_u32 v{T+2}, v{T+3}, 2, v{T+2}")
    P(f"v_lshrrev_b32 v{T+3}, 1, v{T+2}")
    P(f"v_and_b32 v{T+4}, 1, v{T+2}")
    P(f"v_lshrrev_b32 v{T}, 1, v{T}")
    P(f"v_lshl_add_u32 v{T}, v{T}, 3, v{T+1}")
    P(f"v_lshlrev_b32 v{T}, 8, v{T}")
    P(f"v_lshlrev_b32 v{T+1}, 6, v{T+1}")
    P("s_lshl_b32 s53, s58, 6")
    P(f"v_lshlrev_b32 v{T+5}, 5, v{T+4}")
    P(f"v_lshl_add_u32 v{T+5}, v{T+3}, 3, v{T+5}")
    P(f"v_add_u32 v{T+5}, s53, v{T+5}")
    P(f"v_xor_b32 v{T+5}, v{T+5}, v{T+1}")
    P(f"v_add_u32 v{VT}, v{T+5}, v{T}")
    P(f"v_add_u32 v{VT+1}, 0x10000, v{VT}")
    P(f"v_and_b32 v{T+5}, 1, v{T+3}")
    P(f"v_lshlrev_b32 v{T+5}, 5, v{T+5}")
    P(f"v_lshl_add_u32 v{T+5}, v{T+4}, 4, v{T+5}")
    P(f"v_lshrrev_b32 v{T+3}, 1, v{T+3}")
    P(f"v_lshl_add_u32 v{T+5}, v{T+3}, 3, v{T+5}")
    P(f"v_add_u32 v{T+5}, s53, v{T+5}")
    P(f"v_xor_b32 v{T+5}, v{T+5}, v{T+1}")
    P(f"v_add_u32 v{VT+2}, v{T+5}, v{T}")
    P(f"v_add_u32 v{VT+3}, 0x10000, v{VT+2}")
    VXR = 1
    P(f"v_and_b32 v{T}, 31, v0")
    P(f"v_lshrrev_b32 v{T+1}, 5, v0")
    P(f"v_and_b32 v{T+2}, 15, v0")
    P(f"v_xor_b32 v{T+1}, v{T+1}, v{T+2}")
    P(f"v_lshlrev_b32 v{T+1}, 4, v{T+1}")
    P(f"v_lshl_add_u32 v{T+1}, v{T}, 10, v{T+1}")
    P("s_lshl_b32 s53, s59, 15")
    P(f"s_add_u32 s53, s53, {XB}")
    P(f"v_add_u32 v{VXR}, s53, v{T+1}")
    RS = 8 * 8192
    P(f"v_lshlrev_b32 v{T}, 2, v{T}")
    P("s_lshl_b32 s53, s59, 7")
    P(f"s_add_u32 s53, s53, {RS}")
    P(f"v_add_u32 v28, s53, v{T}")
    P(f"v_lshrrev_b32 v{T}, 3, v0")
    P(f"v_lshlrev_b32 v{T}, 2, v{T}")
    P("s_lshl_b32 s53, s3, 5")
    P(f"s_add_u32 s53, s53, {RS}")
    P(f"v_add_u32 v29, s53, v{T}")
    def freg(st, i, sl, k0, n):
        r = WFR + 16 * st + 8 * i + 4 * sl + k0
        return f"v[{r}:{r+n-1}]"
    def rds(sp):
        out = []
        for i in range(2):
            u = 2 * sp + i
            addr = (u % 12) * 8192
            vb = VT + 2 * (sp // 8) + (addr >> 16)
            for sl in range(2):
                for rr in range(2):
                    out.append(f"ds_read_b64_tr_b16 {freg(sp & 1, i, sl, 2*rr, 2)}, v{vb} offset:{(addr & 0xffff) + 4096*sl + 1024*rr}")
        return out
    S, Q = 8, 9
    for r in range(4): P(f"v_mov_b32 v{S+r}, 0")
    for e in range(8):
        wait_for({('X', e)})
        for r in range(4 * e, 4 * e + 4):
            P(f"v_dot2c_f32_bf16 v{S+(r&1)*2}, s62, v{X+r}")
        if e % 2 == 1: bld(4 + e // 2)
    P(f"v_add_f32 v{S}, v{S}, v{S+2}")
    for m in ("quad_perm:[1,0,3,2]", "quad_perm:[2,3,0,1]", "row_half_mirror"):
        P(f"v_add_f32_dpp v{S}, v{S}, v{S} {m} row_mask:0xf bank_mask:0xf")
    P(f"v_mul_f32 v{S}, 0xbb000000, v{S}")
    bf16_round_v(P, S + 2, S, S + 4)
    P("s_mov_b32 s65, 0xffff0000")
    P("s_movk_i32 s66, 0x3f80")
    for e in range(8):
        for r in range(4 * e, 4 * e + 4):
            a, b = T + (r % 3) * 2, T + 1 + (r % 3) * 2
            P(f"v_dot2_f32_bf16 v{a}, v{X+r}, s66, v{S+2}")
            P(f"v_and_b32 v{b}, s65, v{X+r}")
            P(f"v_add_f32 v{b}, v{b}, v{S+2}")
            if r > 4 * e:
                a2, b2 = T + ((r - 1) % 3) * 2, T + 1 + ((r - 1) % 3) * 2
                P(f"v_cvt_pk_bf16_f32 v{X+r-1}, v{a2}, v{b2}")
        r = 4 * e + 3
        bld(8 + e)
        P(f"v_cvt_pk_bf16_f32 v{X+r}, v{T+(r%3)*2}, v{T+1+(r%3)*2}")
        P(f"ds_write_b128 v{VXW+(e&1)}, v[{X+4*e}:{X+4*e+3}] offset:{256*(e>>1)}")
    for u in range(4): bwr(u)
    for r in range(32):
        P(f"v_dot2c_f32_bf16 v{Q+(r&1)*2}, v{X+r}, v{X+r}")
    P(f"v_add_f32 v{Q}, v{Q}, v{Q+2}")
    for m in ("quad_perm:[1,0,3,2]", "quad_perm:[2,3,0,1]", "row_half_mirror"):
        P(f"v_add_f32_dpp v{Q}, v{Q}, v{Q} {m} row_mask:0xf bank_mask:0xf")
    P(f"v_sub_f32 v{S}, v{S}, v{S+2}")
    P(f"v_mul_f32 v{Q}, 0x3b000000, v{Q}")
    P(f"v_fma_f32 v{Q}, -v{S}, v{S}, v{Q}")
    P(f"v_max_f32 v{Q}, 0, v{Q}")
    bf16_round_v(P, Q, Q, S + 2)
    P(f"v_add_f32 v{Q}, 0x3727c5ac, v{Q}")
    bf16_round_v(P, Q, Q, S + 2)
    P(f"v_sqrt_f32 v{Q}, v{Q}")
    bf16_round_v(P, Q, Q, S + 2)
    P(f"v_rcp_f32 v{Q}, v{Q}")
    P(f"ds_write_b32 v29, v{Q}")
    P("s_waitcnt lgkmcnt(0)")
    P("s_barrier")
    for s_ in rds(0): P(s_)
    RR = 28
    P(f"ds_read_b32 v{RR}, v28")
    def xfr(q, his):
        P(f"v_xor_b32 v{T+(q&1)}, {32*q}, v{VXR}")
        for hi in his:
            k16 = 8 * hi + q
            P(f"ds_read_b128 a[{4*k16}:{4*k16+3}], v{T+(q&1)} offset:{256*hi}")
    for q in range(8):
        xfr(q, (0, 1))
        if q >= 4: bwr(q)
    prof(P, 1, pr)
    hooks = {}
    def step(sp, vside=()):
        if FINE[0] and sp < 12: P(f"s_memtime s[{68+2*sp}:{69+2*sp}]")
        P("s_waitcnt lgkmcnt(0)")
        if sp % 2 == 1 and sp < 15: P("s_barrier")
        if sp in hooks: hooks[sp]()
        acc = ACC2 if sp < 8 else ACC1
        rd = rds(sp + 1) if sp < 15 else []
        vside = list(vside)
        per = (len(vside) + 3) // 4
        k = 0
        for i in range(2):
            u = 2 * sp + i
            for sl in range(2):
                k16 = 2 * (u % 16) + sl
                P(f"v_mfma_f32_32x32x16_bf16 v[{acc}:{acc+15}], {freg(sp & 1, i, sl, 0, 4)}, a[{4*k16}:{4*k16+3}], {'0' if k16 == 0 else f'v[{acc}:{acc+15}]'}")
                if k == 0:
                    for x_ in rd: P(x_)
                if k in (1, 2) and sp >= 1 and 2 * sp + 5 + k < 32: bwr(2 * sp + 5 + k)
                if sp in (0, 1) and k in (1, 2, 3, 0): xfr(4 * sp + k, (2,))
                if sp == 2: xfr(k, (3,))
                if sp == 5: xfr(4 + k, (3,))
                if k in (1, 3) and sp < 4: bld(16 + 2 * sp + (k >> 1))
                if k in (0, 1) and 6 <= sp <= 9: bld(24 + 2 * (sp - 6) + k)
                if k == 3 and sp == 5:
                    P("global_load_dwordx2 v[14:15], v13, s[10:11] sc0 sc1"); issued.append(('N', 0))
                for _ in range(per):
                    if vside: P(vside.pop(0))
                k += 1
        assert not vside
    def split(lst, n):
        k = (len(lst) + n - 1) // n
        return [lst[i*k:(i+1)*k] for i in range(n)]
    for sp in range(8): step(sp)
    prof(P, 2, pr)
    Z2 = ACC2
    GT = 8
    GK = 23
    GK = (12, 23, 24)
    gelu_consts(P, RR, GK)
    gs = gelu_stream(ACC2, GT, GK)
    SS = Buf()
    S2, Q2 = ACC2 + 8, ACC2 + 9
    SS(f"v_mov_b32 v{S2}, 0")
    SS(f"v_mov_b32 v{Q2}, 0")
    for q in range(8):
        SS(f"v_dot2c_f32_bf16 v{S2}, s62, v{Z2+q}")
        SS(f"v_dot2c_f32_bf16 v{Q2}, v{Z2+q}, v{Z2+q}")
    SS(f"v_mov_b32 v{S2+2}, v{S2}")
    SS(f"v_mov_b32 v{S2+3}, v{Q2}")
    SS(f"v_permlane32_swap_b32 v{S2}, v{S2+2}")
    SS(f"v_permlane32_swap_b32 v{Q2}, v{S2+3}")
    SS(f"v_add_f32 v{S2}, v{S2}, v{S2+2}")
    SS(f"v_add_f32 v{Q2}, v{Q2}, v{S2+3}")
    SS(f"v_lshlrev_b32 v{S2+4}, 4, v0")
    SS("s_lshl_b32 s53, s14, 1")
    SS("s_add_u32 s53, s53, s59")
    SS("s_mul_i32 s60, s53, 14336")
    SS("s_lshl_b32 s53, s15, 2")
    SS("s_add_u32 s53, s53, s58")
    SS("s_lshl_b32 s53, s53, 9")
    SS("s_add_u32 s53, s53, s60")
    av = split(gs + SS.l, GSPLIT[0])
    for k in range(GSPLIT[0]): step(8 + k, av[k])
    wait_for({('N', 0)})
    P("s_mov_b32 s56, 0")
    P.label("k1_nonce")
    P("v_readfirstlane_b32 s96, v14")
    P("v_readfirstlane_b32 s97, v15")
    P("s_cmp_lg_u32 s96, 0")
    P("s_cbranch_scc1 k1_nonce_ok")
    P("global_load_dwordx2 v[14:15], v13, s[10:11] sc0 sc1")
    P("s_add_u32 s56, s56, 1")
    P("s_waitcnt vmcnt(0)")
    P("s_cmp_lt_u32 s56, 0x200000")
    P("s_cbranch_scc1 k1_nonce")
    P.label("k1_nonce_ok")
    P(f"v_mov_b32 v{S2+2}, v14")
    P(f"v_mov_b32 v{S2+3}, v15")
    P("s_mov_b32 exec_hi, 0")
    P(f"buffer_store_dwordx4 v[{S2}:{S2+3}], v{S2+4}, s[32:35], s53 offen sc0 sc1")
    issued.append(('S', 0))
    P("s_mov_b64 exec, -1")
    if REBLK[0] == 1:
        rb_load(P, 0, 30)
        for _ in range(4): issued.append(('R', 0))
    prof(P, 3, pr)
    for sp in range(8 + GSPLIT[0], GAT[0]): step(sp)
    F = k2.FUSED[0]
    GA = 16
    P(f"v_lshlrev_b32 v{S2+4}, 4, v0")
    P("s_mul_i32 s61, s58, 3584")
    P("s_add_u32 s61, s61, s60")
    P(f"v_and_b32 v{S2+5}, 31, v0")
    P(f"v_lshlrev_b32 v{S2+5}, 4, v{S2+5}")
    def gather():
        for k in range(4):
            P(f"buffer_load_dwordx4 a[{GA+4*k}:{GA+3+4*k}], v{S2+4+(k==3)}, s[32:35], s61 offen offset:{1024*k} sc0 sc1")
    gather()
    AT = 29
    def addr_setup(P):
        P(f"v_and_b32 v{T}, 31, v0")
        P(f"v_lshrrev_b32 v{T+1}, 5, v0")
        P(f"v_lshlrev_b32 v{T}, 6, v{T}")
        P(f"v_lshl_add_u32 v{T}, v{T+1}, 5, v{T}")
        if F:
            P("s_lshl_b32 s84, s58, 11")
            P("s_lshl_b32 s85, s59, 14")
            P("s_add_u32 s84, s84, s85")
            P(f"s_add_u32 s84, s84, {XB + 1024}")
        else:
            P("s_lshl_b32 s84, s3, 11")
        P(f"v_add_u32 v{AT}, s84, v{T}")
        P(f"v_lshrrev_b32 v{T+1}, 4, v0")
        P(f"v_bfe_u32 v{T+2}, v0, 2, 2")
        P(f"v_and_b32 v{T+3}, 3, v0")
        P(f"v_lshl_add_u32 v{T+1}, v{T+1}, 3, v{T+2}")
        P(f"v_lshlrev_b32 v{T+1}, 6, v{T+1}")
        P(f"v_lshl_add_u32 v{T+1}, v{T+3}, 3, v{T+1}")
        P(f"v_add_u32 v{AT+1}, s84, v{T+1}")
        P(f"v_lshlrev_b32 v{AT+2}, 4, v0")
        P("s_lshl_b32 s86, s14, 1")
        P("s_add_u32 s86, s86, s59")
        for tl in range(2):
            P("s_lshl_b32 s84, s15, 3")
            P("s_lshl_b32 s87, s58, 1")
            P("s_add_u32 s84, s84, s87")
            if tl: P("s_add_u32 s84, s84, 1")
            P("s_mul_i32 s87, s84, 37")
            P("s_lshr_b32 s87, s87, 8")
            P("s_mul_i32 s65, s87, 7")
            P("s_sub_u32 s84, s84, s65")
            P("s_add_u32 s65, s84, 6")
            P("s_sub_u32 s66, s84, 1")
            P("s_cmp_eq_u32 s84, 0")
            P("s_cselect_b32 s65, s65, s66")
            P("s_bitcmp1_b32 s87, 0")
            P("s_cselect_b32 s84, s65, s84")
            P("s_lshl_b32 s87, s87, 6")
            P("s_add_u32 s87, s87, s86")
            P("s_mul_i32 s87, s87, 7")
            P("s_add_u32 s87, s87, s84")
            P(f"s_lshl_b32 s{88+tl}, s87, 10")
    AB = Buf(); addr_setup(AB)
    items = []
    for l_ in AB.l:
        if l_.startswith('s_cselect'): items[-1] += '\n' + l_
        else: items.append(l_)
    asp = split(items, 16 - GAT[0])
    for sp in range(GAT[0], 16): step(sp, asp[sp - GAT[0]])
    if FINE[0]:
        P("s_lshl_b32 s92, s2, 3")
        P("s_add_u32 s92, s92, s3")
        P("s_lshl_b32 s92, s92, 6")
        P(f"s_add_u32 s92, s92, {WS_PROF + 3*0x40000}")
        P("v_mov_b32 v25, s92")
        for k in range(12):
            P(f"v_mov_b32 v26, s{68+2*k}")
            P(f"global_store_dword v25, v26, s[8:9] offset:{4*k}")
    prof(P, 4, pr)
    def z1epi():
        Z1 = ACC1
        P(f"v_and_b32 v{T}, 15, v0")
        P(f"v_bfe_u32 v{T+1}, v0, 4, 1")
        P(f"v_lshrrev_b32 v{T+2}, 5, v0")
        P(f"v_lshlrev_b32 v{T}, 4, v{T}")
        P(f"v_lshl_add_u32 v{T}, v{T+1}, 10, v{T}")
        P(f"v_lshl_add_u32 v{T}, v{T+2}, 9, v{T}")
        P("s_mul_i32 s53, s14, 28")
        P("s_lshl_b32 s56, s15, 2")
        P("s_add_u32 s53, s53, s56")
        P("s_add_u32 s53, s53, s58")
        P("s_lshl_b32 s53, s53, 12")
        P("s_lshl_b32 s56, s59, 11")
        P("s_add_u32 s53, s53, s56")
        for s_ in gelu_stream(ACC1, GT, GK): P(s_)
        P(f"buffer_store_dwordx4 v[{Z1}:{Z1+3}], v{T}, s[28:31], s53 offen sc1")
        P(f"buffer_store_dwordx4 v[{Z1+4}:{Z1+7}], v{T}, s[28:31], s53 offen offset:256 sc1")
    ZL = F and k2.Z1LATE[0]
    if not ZL: z1epi()
    prof(P, 5, pr)
    if REBLK[0] == 1:
        P("s_cmp_lg_u32 s58, 0")
        P("s_cbranch_scc1 k1_rbw")
        P("s_waitcnt vmcnt(16)")
        P("s_branch k1_rbs")
        P.label("k1_rbw")
        P("s_waitcnt vmcnt(2)")
        P.label("k1_rbs")
        rb_store(P, 0, XB, T, X + 16)
    PS = WFR
    MS = XB + 9216 if F else 2 * 8192
    S, Q = PS, PS + 1
    if FT[0]: P("s_memtime s[40:41]")
    P("s_mov_b32 s56, 0")
    P(f"s_waitcnt vmcnt({0 if ZL else 2})")
    P.label("k1_poll")
    for k in range(4):
        for r in range(4): P(f"v_accvgpr_read_b32 v{X+4*k+r}, a{GA+4*k+r}")
    P(f"v_mul_f32 v{X+12}, 0.5, v{X+12}")
    P(f"v_mul_f32 v{X+13}, 0.5, v{X+13}")
    for k in range(4):
        P(f"v_xor_b32 v{X+4*k+2}, v{X+4*k+2}, v14")
        P(f"v_xor_b32 v{X+4*k+3}, v{X+4*k+3}, v15")
        P(f"v_or_b32 v{X+4*k+2}, v{X+4*k+2}, v{X+4*k+3}")
    P(f"v_or_b32 v{X+2}, v{X+2}, v{X+6}")
    P(f"v_or_b32 v{X+10}, v{X+10}, v{X+14}")
    P(f"v_or_b32 v{X+2}, v{X+2}, v{X+10}")
    P(f"v_cmp_ne_u32 vcc, 0, v{X+2}")
    P("s_add_u32 s56, s56, 1")
    P("s_cmp_eq_u64 vcc, 0")
    P("s_cbranch_scc1 k1_got")
    gather()
    P("s_waitcnt vmcnt(0)")
    P("s_cmp_lt_u32 s56, 0x100000")
    P("s_cbranch_scc1 k1_poll")
    P.label("k1_got")
    if FT[0]: P("s_memtime s[42:43]")
    for r in range(2):
        P(f"v_add_f32 v{X+r}, v{X+r}, v{X+4+r}")
        P(f"v_add_f32 v{X+8+r}, v{X+8+r}, v{X+12+r}")
        P(f"v_add_f32 v{PS+r}, v{X+r}, v{X+8+r}")
    P(f"v_mov_b32 v{PS+2}, v{PS}")
    P(f"v_mov_b32 v{PS+3}, v{PS+1}")
    P(f"v_permlane32_swap_b32 v{PS}, v{PS+2}")
    P(f"v_permlane32_swap_b32 v{PS+1}, v{PS+3}")
    P(f"v_add_f32 v{PS}, v{PS}, v{PS+2}")
    P(f"v_add_f32 v{PS+1}, v{PS+1}, v{PS+3}")
    P(f"v_and_b32 v{VT+3}, 31, v0")
    P(f"v_lshlrev_b32 v{VT+3}, 3, v{VT+3}")
    P("s_lshl_b32 s53, s59, 8")
    P(f"s_add_u32 s53, s53, {MS}")
    P(f"v_add_u32 v{VT+3}, s53, v{VT+3}")
    P("s_lshl_b32 s53, s58, 9")
    P(f"v_add_u32 v{T}, s53, v{VT+3}")
    P(f"ds_write_b64 v{T}, v[{S}:{Q}]")
    if 't1' in k2.HOOKS: k2.HOOKS['t1'](P)
    U = X
    for r in range(8):
        P(f"v_lshlrev_b32 v{U+2*r}, 16, v{Z2+r}")
        P(f"v_and_b32 v{U+2*r+1}, 0xffff0000, v{Z2+r}")
    if FT[0]: P("s_memtime s[44:45]")
    P("s_waitcnt lgkmcnt(0)")
    P("s_barrier")
    if FT[0]: P("s_memtime s[46:47]")
    for k in range(4): P(f"ds_read_b64 v[{PS+2*k}:{PS+2*k+1}], v{VT+3} offset:{512*k}")
    P("s_waitcnt lgkmcnt(0)")
    for r in range(2):
        P(f"v_add_f32 v{PS+r}, v{PS+r}, v{PS+2+r}")
        P(f"v_add_f32 v{PS+4+r}, v{PS+4+r}, v{PS+6+r}")
        P(f"v_add_f32 v{PS+r}, v{PS+r}, v{PS+4+r}")
    P(f"v_mul_f32 v{S}, {fbits(1/896)}, v{S}")
    P(f"v_mul_f32 v{Q}, {fbits(1/896)}, v{Q}")
    P(f"v_fma_f32 v{Q}, -v{S}, v{S}, v{Q}")
    P(f"v_max_f32 v{Q}, 0, v{Q}")
    bf16_round_v(P, S, S, T + 2)
    bf16_round_v(P, Q, Q, T + 2)
    P(f"v_add_f32 v{Q}, 0x3727c5ac, v{Q}")
    bf16_round_v(P, Q, Q, T + 2)
    P(f"v_sqrt_f32 v{Q}, v{Q}")
    bf16_round_v(P, Q, Q, T + 2)
    P(f"v_rcp_f32 v{Q}, v{Q}")
    for r in range(16): P(f"v_sub_f32 v{U+r}, v{U+r}, v{S}")
    for r in range(16): P(f"v_mul_f32 v{U+r}, v{U+r}, v{Q}")
    for r in range(8): P(f"v_cvt_pk_bf16_f32 v{Z2+r}, v{U+2*r}, v{U+2*r+1}")
    if FT[0]: P("s_memtime s[48:49]")
    P(f"ds_write_b128 v{AT}, v[{Z2}:{Z2+3}]")
    P(f"ds_write_b128 v{AT}, v[{Z2+4}:{Z2+7}] offset:16")
    O = X + 16
    for tl in range(2):
        for rr in range(2):
            P(f"ds_read_b64_tr_b16 v[{O+4*tl+2*rr}:{O+4*tl+2*rr+1}], v{AT+1} offset:{32*tl + 256*rr}")
    for tl in range(2):
        P(f"s_waitcnt lgkmcnt({2 - 2*tl})")
        P(f"buffer_store_dwordx4 v[{O+4*tl}:{O+4*tl+3}], v{AT+2}, s[24:27], s{88+tl} offen sc1")
    if FT[0]: P("s_memtime s[50:51]")
    if FT[0]:
        P("s_waitcnt lgkmcnt(0)")
        P("s_lshl_b32 s92, s2, 3")
        P("s_add_u32 s92, s92, s3")
        P("s_lshl_b32 s92, s92, 6")
        P(f"s_add_u32 s92, s92, {WS_PROF + 3*0x40000}")
        P("v_mov_b32 v25, s92")
        for k in range(6):
            P(f"v_mov_b32 v26, s{40+2*k}")
            P(f"global_store_dword v25, v26, s[8:9] offset:{4*k}")
        P(f"v_mov_b32 v26, s56")
        P(f"global_store_dword v25, v26, s[8:9] offset:24")
    prof(P, 6, pr)
    if pr: P("s_waitcnt vmcnt(0)")
    prof(P, 7, pr)
    if F:
        k2.HOOKS['sig1'](P, 0)
        if ZL: z1epi()
    P("s_endpgm")
    if aux is not None:
        P.label("k1_aux")
        prof(P, 0, pr)
        aux(P, X, T, VXW, pr)
    P.label("k1_end")
    P("s_endpgm")
    return dict(vgpr=128, agpr=128, lds=160 * 1024)
GSPLIT = [3]
FINE = [0]
PRI = [0]
GAT = [14]
import os
FT = [int(os.environ.get('FT', '0'))]
REBLK = [0]
```

```python
from dsl import Prog
import os
if os.environ.get("COMPACT"):
    WS_Z2F, WS_Z1F, WS_HF, WS_XNT, WS_YAT, WS_KR, WS_WOF, WS_ST, WS_FLB = 0, 0x380000, 0x700000, 0xA80000, 0xC80000, 0x1000000, 0xE80000, 0xF60000, 0x1040000
else:
    WS_Z2F, WS_Z1F, WS_HF, WS_XNT, WS_YAT, WS_KR, WS_WOF, WS_ST, WS_FLB = 0, 0x400000, 0x800000, 0xC00000, 0xE00000, 0x1000000, 0x1800000, 0x1900000, 0x1B00000
WS_WF  = 0x2000000
KR_STRIDE = 8704

def srd(P, d, base, nbytes, off=0):
    if off:
        P(f"s_add_u32 s{d}, s{base}, {off}")
        P(f"s_addc_u32 s{d+1}, s{base+1}, 0")
        P(f"s_and_b32 s{d+1}, s{d+1}, 0xffff")
    else:
        P(f"s_mov_b32 s{d}, s{base}")
        P(f"s_and_b32 s{d+1}, s{base+1}, 0xffff")
    P(f"s_mov_b32 s{d+2}, {nbytes}")
    P(f"s_mov_b32 s{d+3}, 0x00020000")

WS_PROF = 0x1A00000
PROF_K = [0]
DBGN = [0]
PROF_V = [26]
PRIO = [0, 0]
LF = [0]
FUSED = [0]
HOOKS = {}
import os
DEC = [int(os.environ.get('DEC', '0'))]
XWS = [int(os.environ.get('XWS', '0'))]
XE = [int(os.environ.get('XE', '0'))]
Z1LATE = [int(os.environ.get('Z1LATE', '0'))]
K2PRE = [0]
EXP = [0]
def prof(P, idx, on):
    if not on: return
    if os.environ.get("DBGSTAMP"):
        slot = {(0,1):2,(0,2):3,(0,3):4,(0,4):5,(0,7):6,(1,2):8,(1,4):9,(2,1):10,(2,2):11,(2,4):12,(0,0):13}.get((PROF_K[0], idx))
        if slot is None: return
        n = DBGN[0]; DBGN[0] += 1
        b_ = PROF_V[0]
        P("s_or_b32 s92, s3, 0")
        P("s_cmp_lg_u32 s3, 0")
        P(f"s_cbranch_scc1 dbgs{n}")
        P("s_and_b32 s92, s2, 31")
        P("s_cmp_lg_u32 s92, 9")
        P(f"s_cbranch_scc1 dbgs{n}")
        P("s_load_dwordx2 s[98:99], s[0:1], 120")
        P("s_memrealtime s[90:91]")
        P("s_waitcnt lgkmcnt(0)")
        P(f"v_mov_b32 v{b_}, s90")
        P(f"v_mov_b32 v{b_-1}, {4*slot}")
        P("s_mov_b64 exec, 1")
        P(f"global_atomic_umax v{b_-1}, v{b_}, s[98:99] sc1")
        P("s_mov_b64 exec, -1")
        P.label(f"dbgs{n}")
        return
    P("s_memrealtime s[90:91]")
    P("s_lshl_b32 s92, s2, 3")
    P("s_add_u32 s92, s92, s3")
    P("s_lshl_b32 s92, s92, 6")
    P(f"s_add_u32 s92, s92, {WS_PROF + PROF_K[0]*0x40000 + idx*8}")
    P("s_waitcnt lgkmcnt(0)")
    b_ = PROF_V[0]
    P(f"v_mov_b32 v{b_}, s90")
    P(f"v_mov_b32 v{b_+1}, s91")
    P(f"v_mov_b32 v{b_-1}, s92")
    P(f"global_store_dwordx2 v{b_-1}, v[{b_}:{b_+1}], s[8:9]")

def epi_addr(P, sw):
    P("s_and_b32 s53, s15, 1")
    P("s_mul_i32 s58, s15, 7")
    P("s_add_u32 s58, s58, s53")
    P("s_lshr_b32 s58, s58, 1")
    P("s_lshl_b32 s59, s53, 2")
    P("s_sub_u32 s59, 3, s59")
    P("s_add_u32 s59, s59, s58")
    P("s_mul_i32 s60, s14, 28")
    P("s_add_u32 s58, s58, s60")
    P("s_add_u32 s59, s59, s60")
    P("s_lshl_b32 s58, s58, 2")
    P("s_lshl_b32 s59, s59, 2")
    P(f"s_add_u32 s58, s58, s{sw}")
    P(f"s_add_u32 s59, s59, s{sw}")
    P("s_lshl_b32 s58, s58, 10")
    P("s_lshl_b32 s59, s59, 10")
    P("s_lshl_b32 s53, s53, 3")
    P("s_add_u32 s59, s59, s53")
    P("s_add_u32 s60, s58, 8192")
    P("s_lshl_b32 s61, s14, 7")
    P(f"s_lshl_b32 s53, s{sw}, 5")
    P("s_add_u32 s61, s61, s53")
def epi_math(P, R, Z1, H, BI, G, q):
    a, b = R + 2 * q, R + 2 * q + 1
    P(f"v_add_f32 v{a}, v{a}, v{BI}")
    P(f"v_add_f32 v{b}, v{b}, v{BI}")
    P(f"v_cvt_pk_bf16_f32 v{G}, v{a}, v{b}")
    P(f"v_lshlrev_b32 v{G+1}, 16, v{Z1+q}")
    P(f"v_and_b32 v{G+2}, s62, v{Z1+q}")
    P(f"v_lshlrev_b32 v{a}, 16, v{G}")
    P(f"v_and_b32 v{b}, s62, v{G}")
    P(f"v_mul_f32 v{a}, v{a}, v{G+1}")
    P(f"v_mul_f32 v{b}, v{b}, v{G+2}")
    P(f"v_cvt_pk_bf16_f32 v{H+q}, v{a}, v{b}")
CW_AREA = 14080
FLO = 14076
from kgen import kgen
def gen_conv(P, CB, pr):
    prof(P, 0, pr)
    if PRIO[1] == 9: P("s_endpgm")
    elif PRIO[1]: P(f's_setprio {PRIO[1]}')
    T = 2
    P("s_sub_u32 s52, s3, 4")
    P("s_lshr_b32 s53, s52, 1")
    P("s_lshl_b32 s54, s2, 1")
    P("s_add_u32 s54, s54, s53")
    P(f"s_mul_i32 s55, s52, {CW_AREA}")
    P(f"s_add_u32 s55, s55, {CB}")
    PAR = 104
    P("s_lshr_b32 s63, s52, 1")
    P("s_mul_i32 s63, s63, 4608")
    P(f"s_add_u32 s63, s63, {CB + 4*CW_AREA}")
    P(f"v_mov_b32 v{T+2}, 0")
    P(f"v_mov_b32 v{T+3}, 0")
    P(f"v_lshlrev_b32 v{T+1}, 3, v0")
    P(f"v_add_u32 v{T+1}, s63, v{T+1}")
    P(f"ds_write_b64 v{T+1}, v[{T+2}:{T+3}]")
    P("s_xor_b32 s60, s52, 1")
    P(f"s_mul_i32 s60, s60, {CW_AREA}")
    P(f"s_add_u32 s60, s60, {CB}")
    P("s_and_b32 s61, s52, 1")
    if not FUSED[0]:
        P(f"v_mov_b32 v{T}, s55")
        P(f"v_mov_b32 v{T+1}, 0")
        P(f"ds_write_b32 v{T}, v{T+1} offset:{FLO}")
        P(f"v_lshlrev_b32 v{T}, 2, v0")
        P("s_lshl_b32 s53, s54, 8")
        P(f"v_add_u32 v{T}, s53, v{T}")
        P("s_lshl_b32 s53, s54, 1")
        P(f"v_mov_b32 v{T+1}, s53")
        P("s_waitcnt lgkmcnt(0)")
        for k in range(6):
            P(f"global_load_dword v{PAR+k}, v{T}, s[{68+2*k}:{69+2*k}]")
        P(f"global_load_ushort v{PAR+6}, v{T+1}, s[80:81]")
        P(f"global_load_ushort v{PAR+7}, v{T+1}, s[10:11]")
        if K2PRE[0]:
            P("s_and_b32 s56, s2, 7")
            P("s_lshl_b32 s56, s56, 5")
            P("s_lshr_b32 s57, s2, 3")
            P("s_add_u32 s56, s56, s57")
            P("s_lshl_b32 s56, s56, 15")
            P("s_lshl_b32 s57, s52, 13")
            P("s_add_u32 s56, s56, s57")
            P(f"v_lshlrev_b32 v{T+2}, 7, v0")
            P(f"buffer_load_dword v{PAR+8}, v{T+2}, s[16:19], s56 offen")
        P("s_barrier")
        P("s_waitcnt vmcnt(1)" if K2PRE[0] else "s_waitcnt vmcnt(0)")
    P(f"v_lshlrev_b32 v{PAR+6}, 16, v{PAR+6}")
    prof(P, 3, pr)
    if FUSED[0]:
        kgen(P, PAR, 55, 60, 61, None)
        P.lines.append(__import__('dsl').Ins('@XPOLL'))
    else:
        P("s_lshl_b32 s59, s54, 12")
        P(f"v_lshlrev_b32 v{T}, 4, v0")
        P("s_add_u32 m0, s63, 512")
        P("s_nop 0")
        for e in range(4):
            P(f"buffer_load_dwordx4 v{T}, s[36:39], s59 offen offset:{1024*e} lds")
        kgen(P, PAR, 55, 60, 61, None)
    prof(P, 2, pr)
    P(f"v_mov_b32 v{T+9}, s57")
    P(f"v_mov_b32 v{T+8}, v{PAR+7}")
    P("s_lshl_b32 s57, s54, 12")
    VA = 12
    P(f"v_lshlrev_b32 v{T+8}, 16, v{T+8}")
    P(f"v_and_b32 v{T}, 15, v0")
    P(f"v_lshrrev_b32 v{T+1}, 5, v0")
    P(f"v_bfe_u32 v{T+2}, v0, 4, 1")
    P(f"v_lshl_add_u32 v{T+3}, v{T+1}, 4, v{T}")
    P(f"v_add_u32 v{T+3}, 9, v{T+3}")
    P(f"v_lshlrev_b32 v{T+4}, 3, v{T+2}")
    P(f"v_sub_u32 v{T+3}, v{T+3}, v{T+4}")
    P(f"v_and_b32 v{T+4}, 1, v{T+3}")
    P(f"v_sub_u32 v{T+3}, v{T+3}, v{T+4}")
    P(f"v_lshlrev_b32 v{T+3}, 1, v{T+3}")
    P("s_movk_i32 s58, 4288")
    P(f"v_mad_u32_u24 v{T+3}, v{T+4}, s58, v{T+3}")
    P("s_lshl_b32 s56, s61, 8")
    P("s_add_u32 s58, s55, s56")
    P(f"v_add_u32 v{VA}, s58, v{T+3}")
    for k in range(1, 4): P(f"v_add_u32 v{VA+k}, {1024*k}, v{VA}")
    P(f"v_sub_u32 v{T+3}, v{T}, v{T+1}")
    P(f"v_lshlrev_b32 v{T+3}, 5, v{T+3}")
    P(f"v_lshl_add_u32 v{T+3}, v{T+2}, 4, v{T+3}")
    P("s_mov_b32 s58, s63")
    P("s_sub_u32 s56, s58, s56")
    P(f"v_add_u32 v{VA+4}, s56, v{T+3}")
    P(f"v_lshl_add_u32 v{T+3}, v{T}, 1, v{T+1}")
    P(f"v_lshlrev_b32 v{T+3}, 4, v{T+3}")
    P(f"v_xor_b32 v{T+4}, 1, v{T+2}")
    P(f"v_lshl_add_u32 v{T+3}, v{T+4}, 3, v{T+3}")
    P("s_lshl_b32 s56, s61, 11")
    P("s_add_u32 s58, s58, s56")
    P(f"v_add_u32 v{VA+5}, s58, v{T+3}")
    P(f"v_lshrrev_b32 v{T+3}, 4, v0")
    P(f"v_lshlrev_b32 v{T+3}, 3, v{T+3}")
    P(f"v_lshl_add_u32 v{VA+6}, v{T}, 5, v{T+3}")
    P(f"v_add_u32 v{VA+6}, s56, v{VA+6}")
    AF, BF, CACC = 20, 52, 84
    for r in range(32): P(f"v_mov_b32 v{CACC+r}, 0")
    P("s_waitcnt lgkmcnt(0)" if (FUSED[0] and XE[0]) else "s_waitcnt vmcnt(0) lgkmcnt(0)")
    def rds(st, dl):
        out = []
        for i in range(8):
            o = 128 * (i & 1) + 16 * dl
            ra = (lambda k: f"v[{AF+4*i+k}:{AF+4*i+k+1}]") if st == 0 else (lambda k: f"a[{4*i+k}:{4*i+k+1}]")
            rb = f"v[{BF+4*i}:{BF+4*i+3}]" if st == 0 else f"a[{32+4*i}:{32+4*i+3}]"
            out.append(f"ds_read2_b32 {ra(0)}, v{VA+(i>>1)} offset0:{o} offset1:{o+1}")
            out.append(f"ds_read2_b32 {ra(2)}, v{VA+(i>>1)} offset0:{o+2} offset1:{o+3}")
            out.append(f"ds_read_b128 {rb}, v{VA+4} offset:{512+512*i-64*dl}")
        return out
    def mf(st, side):
        side = list(side)
        for i in range(8):
            for w in range(8 - i):
                a = CACC + 4 * (i + w)
                ra = f"v[{AF+4*i}:{AF+4*i+3}]" if st == 0 else f"a[{4*i}:{4*i+3}]"
                rb = f"v[{BF+4*w}:{BF+4*w+3}]" if st == 0 else f"a[{32+4*w}:{32+4*w+3}]"
                P(f"v_mfma_f32_16x16x32_f16 v[{a}:{a+3}], {ra}, {rb}, v[{a}:{a+3}]")
                if side: P(side.pop(0))
    if FUSED[0]: P.lines.append(__import__('dsl').Ins('@Z1ISSUE 19 116'))
    for x_ in rds(0, 0): P(x_)
    P("s_mov_b32 s59, 0")
    P.label("k2_cloop")
    P("s_waitcnt lgkmcnt(0)")
    mf(0, rds(1, 1))
    P("s_waitcnt lgkmcnt(0)")
    mf(1, rds(0, 2))
    for k in range(4): P(f"v_add_u32 v{VA+k}, 128, v{VA+k}")
    P(f"v_subrev_u32 v{VA+4}, 128, v{VA+4}")
    P("s_add_u32 s59, s59, 1")
    P("s_cmp_lt_u32 s59, 2")
    P("s_cbranch_scc1 k2_cloop")
    P("s_waitcnt lgkmcnt(0)")
    P(f"v_lshlrev_b32 v{T}, 4, v0")
    P(f"v_add_u32 v{T+1}, s55, v{T}")
    for u in range(8):
        P(f"ds_write_b128 v{T+1}, v[{CACC+4*u}:{CACC+4*u+3}] offset:{1024*u}")
    P(f"v_mov_b32 v{T+3}, s55")
    P(f"v_mov_b32 v{T+4}, s60")
    P(f"v_mov_b32 v{T+5}, 2")
    P("s_lshl_b32 s56, s61, 12")
    P("s_add_u32 s58, s56, s60")
    P("s_add_u32 s56, s56, s55")
    P(f"v_add_u32 v{T+1}, s56, v{T}")
    P(f"v_add_u32 v{T+2}, s58, v{T}")
    P("s_waitcnt lgkmcnt(0)")
    P(f"ds_write_b32 v{T+3}, v{T+5} offset:{FLO}")
    for k in range(4):
        P(f"ds_read_b128 v[{CACC+4*k}:{CACC+4*k+3}], v{T+1} offset:{1024*k}")
        P(f"ds_read_b64 v[{AF+2*k}:{AF+2*k+1}], v{VA+5} offset:{512+512*k}")
    P("s_mov_b32 s58, 0")
    P.label("k2_cp")
    P(f"ds_read_b32 v{T+5}, v{T+4} offset:{FLO}")
    P("s_add_u32 s58, s58, 1")
    P("s_waitcnt lgkmcnt(0)")
    P(f"v_readfirstlane_b32 s56, v{T+5}")
    P("s_cmp_eq_u32 s56, 2")
    P("s_cbranch_scc1 k2_cg")
    P("s_sleep 1")
    P("s_cmp_lt_u32 s58, 0x400000")
    P("s_cbranch_scc1 k2_cp")
    P.label("k2_cg")
    for k in range(4):
        P(f"ds_read_b128 v[{CACC+16+4*k}:{CACC+19+4*k}], v{T+2} offset:{1024*k}")
    P("s_mov_b32 s62, 0xffff0000")
    P("s_waitcnt lgkmcnt(0)")
    for k in range(4):
        a = CACC + 4 * k; xl, xh = AF + 2 * k, AF + 2 * k + 1
        for i in range(4): P(f"v_add_f32 v{a+i}, v{a+i}, v{a+16+i}")
        for i in range(4): P(f"v_mul_f32 v{a+i}, v{a+i}, v{T+9}")
        P(f"v_cvt_pk_bf16_f32 v{T}, v{a}, v{a+1}")
        P(f"v_cvt_pk_bf16_f32 v{T+1}, v{a+2}, v{a+3}")
        P(f"v_cvt_f32_f16_sdwa v{a}, v{xh} dst_sel:DWORD dst_unused:UNUSED_PAD src0_sel:WORD_1")
        P(f"v_cvt_f32_f16 v{a+1}, v{xh}")
        P(f"v_cvt_f32_f16_sdwa v{a+2}, v{xl} dst_sel:DWORD dst_unused:UNUSED_PAD src0_sel:WORD_1")
        P(f"v_cvt_f32_f16 v{a+3}, v{xl}")
        for i in range(4): P(f"v_mul_f32 v{a+i}, v{a+i}, v{T+8}")
        P(f"v_cvt_pk_bf16_f32 v{T+2}, v{a}, v{a+1}")
        P(f"v_cvt_pk_bf16_f32 v{T+3}, v{a+2}, v{a+3}")
        for hh in range(2):
            P(f"v_lshlrev_b32 v{a+2*hh}, 16, v{T+hh}")
            P(f"v_and_b32 v{a+2*hh+1}, s62, v{T+hh}")
            P(f"v_lshlrev_b32 v{T+4}, 16, v{T+2+hh}")
            P(f"v_and_b32 v{T+5}, s62, v{T+2+hh}")
            P(f"v_add_f32 v{a+2*hh}, v{a+2*hh}, v{T+4}")
            P(f"v_add_f32 v{a+2*hh+1}, v{a+2*hh+1}, v{T+5}")
        P(f"v_cvt_pk_bf16_f32 v{BF+2*k}, v{a}, v{a+1}")
        P(f"v_cvt_pk_bf16_f32 v{BF+2*k+1}, v{a+2}, v{a+3}")
        P(f"buffer_store_dwordx2 v[{BF+2*k}:{BF+2*k+1}], v{VA+6}, s[40:43], s57 offen offset:{512*k} sc1")
    P.label("k2_ctail")
    prof(P, 1, pr)
    if DEC[0]:
        P.lines.append(__import__('dsl').Ins('@YFLAG'))
        P("s_endpgm")
        return
    AREA = CB // 4
    if FUSED[0]:
        P('s_waitcnt vmcnt(4)')
        P.lines.append(__import__('dsl').Ins('@Z1CHECKb 19 116'))
    epi_addr(P, 52)
    Z1 = 20; VL = 2
    P(f"v_lshlrev_b32 v{VL}, 4, v0")
    P(f"buffer_load_dwordx4 v[{Z1}:{Z1+3}], v{VL}, s[24:27], s60 offen")
    P(f"buffer_load_dwordx2 v[{Z1+4}:{Z1+5}], v{VL}, s[24:27], s59 offen")
    P(f"v_and_b32 v3, 15, v0")
    P(f"v_lshlrev_b32 v3, 1, v3")
    P(f"buffer_load_ushort v{Z1+6}, v3, s[32:35], s61 offen")
    nearly = HOOKS['p3early'](P) if 'p3early' in HOOKS else 0
    P("s_mov_b32 s62, 0xffff0000")
    P("s_barrier")
    R = 84
    for dl in range(4):
        P(f"s_sub_u32 s53, s52, {dl}")
        P("s_and_b32 s53, s53, 3")
        P(f"s_mul_i32 s53, s53, {AREA}")
        P(f"v_add_u32 v{4+(dl&1)}, s53, v{VL}")
        for k in range(3):
            r = R + 12 * dl + 4 * k
            off = 21504 + 1024 * k if dl == 0 else (dl - 1) * 7168 + (4 + k) * 1024
            P(f"ds_read_b128 v[{r}:{r+3}], v{4+(dl&1)} offset:{off}")
    P("s_waitcnt lgkmcnt(6)")
    for r in range(12): P(f"v_add_f32 v{R+r}, v{R+r}, v{R+12+r}")
    P("s_waitcnt lgkmcnt(0)")
    for r in range(12): P(f"v_add_f32 v{R+24+r}, v{R+24+r}, v{R+36+r}")
    for r in range(12): P(f"v_add_f32 v{R+r}, v{R+r}, v{R+24+r}")
    P(f"s_waitcnt vmcnt({nearly})")
    P(f"v_lshlrev_b32 v{Z1+7}, 16, v{Z1+6}")
    H = 28
    for q in range(6):
        epi_math(P, R, Z1, H, Z1 + 7, 6, q)
        if q == 3: P(f"buffer_store_dwordx4 v[{H}:{H+3}], v{VL}, s[28:31], s60 offen sc1")
    P(f"buffer_store_dwordx2 v[{H+4}:{H+5}], v{VL}, s[28:31], s59 offen sc1")
    P("s_endpgm")

def gen_k2(P, NST=3, conv=True, nz=3, pr=False):
    STG = 8192
    AREA = NST * STG
    P.label("k2_kernel")
    P("s_cmp_ge_u32 s2, 256")
    P("s_cbranch_scc1 k2_end")
    if not FUSED[0]:
        P("s_load_dwordx2 s[4:5], s[0:1], 88")
        P("s_load_dwordx2 s[6:7], s[0:1], 96")
    P("s_load_dwordx2 s[8:9], s[0:1], 128")
    P("s_load_dwordx2 s[10:11], s[0:1], 64")
    P("s_load_dwordx4 s[68:71], s[0:1], 8")
    P("s_load_dwordx4 s[72:75], s[0:1], 24")
    P("s_load_dwordx4 s[76:79], s[0:1], 40")
    P("s_load_dwordx2 s[80:81], s[0:1], 56")
    P("v_lshrrev_b32 v1, 6, v0")
    P("v_and_b32 v0, 63, v0")
    P("v_readfirstlane_b32 s3, v1")
    P("s_and_b32 s12, s2, 7")
    P("s_lshr_b32 s13, s2, 3")
    P("s_lshr_b32 s14, s12, 1")
    P("s_lshl_b32 s14, s14, 3")
    P("s_and_b32 s15, s13, 7")
    P("s_add_u32 s14, s14, s15")
    P("s_and_b32 s15, s12, 1")
    P("s_lshl_b32 s15, s15, 2")
    P("s_lshr_b32 s13, s13, 3")
    P("s_add_u32 s15, s15, s13")
    if EXP[0] in (5, 6):
        P("s_mov_b32 s14, 0")
        P("s_mov_b32 s15, 0")
    P("s_waitcnt lgkmcnt(0)")
    srd(P, 16, 40 if FUSED[0] else 4, 2048 * 2048 * 2)
    srd(P, 20, 8, 0x400000, WS_Z2F)
    srd(P, 24, 8, 0x400000, WS_Z1F)
    srd(P, 28, 8, 0x400000, WS_HF)
    srd(P, 32, 42 if FUSED[0] else 6, 4096)
    srd(P, 36, 8, 0x200000, WS_XNT)
    srd(P, 40, 8, 0x200000, WS_YAT)
    if conv:
        P("s_cmp_ge_u32 s3, 4")
        P("s_cbranch_scc1 k2_conv")
    if PRIO[0] == 9: P('s_endpgm')
    elif PRIO[0]: P(f's_setprio {PRIO[0]}')
    prof(P, 0, pr)
    if pr: P("s_memtime s[82:83]")
    VW = 2
    VZ = 10
    VA = 12
    T = 20
    WF = 28
    ZB = 60
    P(f"v_lshrrev_b32 v{T}, 3, v0")
    P(f"v_and_b32 v{T+1}, 7, v0")
    P(f"v_lshrrev_b32 v{T+2}, 1, v{T}")
    P(f"v_xor_b32 v{T+1}, v{T+1}, v{T+2}")
    P(f"v_lshlrev_b32 v{T+1}, 4, v{T+1}")
    P(f"v_lshl_add_u32 v{T+1}, v{T}, 12, v{T+1}")
    P(f"v_xor_b32 v{T+2}, 64, v{T+1}")
    for e in range(8):
        P(f"v_add_u32 v{VW+e}, {8*e*4096 - 1024*(e&3)}, v{T+1+(e&1)}")
    P(f"v_lshlrev_b32 v{VZ}, 4, v0")
    P(f"v_add_u32 v{VZ+1}, 4096, v{VZ}")
    P(f"v_and_b32 v{T}, 15, v0")
    P(f"v_lshrrev_b32 v{T+1}, 4, v0")
    P(f"v_lshrrev_b32 v{T+2}, 1, v{T}")
    P(f"v_xor_b32 v{T+1}, v{T+1}, v{T+2}")
    P(f"v_lshlrev_b32 v{T+1}, 4, v{T+1}")
    P(f"v_lshl_add_u32 v{T+1}, v{T}, 7, v{T+1}")
    P(f"s_mul_i32 s52, s3, {AREA}")
    for tau in range(4):
        P(f"s_add_u32 s53, s3, {tau}")
        P(f"s_and_b32 s53, s53, 3")
        P(f"s_lshl_b32 s53, s53, 11")
        P(f"s_add_u32 s53, s53, s52")
        P(f"v_add_u32 v{VA+tau}, s53, v{T+1}")
        P(f"v_xor_b32 v{VA+4+tau}, 64, v{VA+tau}")
    P("s_lshl_b32 s54, s14, 18")
    P("s_lshl_b32 s53, s3, 10")
    P("s_add_u32 s54, s54, s53")
    P(f"s_mul_i32 s55, s15, {64*7168}")
    P(f"s_mul_i32 s53, s3, {16*7168}")
    P("s_add_u32 s55, s55, s53")
    def wdma(q):
        out = []
        st = q % NST
        for e in range(8):
            pre = []
            if e % 4 == 0:
                pre.append(f"s_add_u32 m0, s52, {st*STG + e*1024}")
                if e == 0: pre.append(f"s_add_u32 s56, s54, {q*128}")
                else: pre.append("s_nop 0")
            out.append("\n".join(pre + [f"buffer_load_dwordx4 v{VW+e}, s[16:19], s56 offen offset:{1024*(e&3)} lds"]))
        return out
    def zld(i):
        out = []
        b = ZB + 28 * (i % nz)
        for ft in range(7):
            pre = [f"s_add_u32 s57, s55, {i*7168}"] if ft == 0 else []
            out.append("\n".join(pre + [f"buffer_load_dwordx4 v[{b+4*ft}:{b+4*ft+3}], v{VZ+(ft>>2)}, s[20:23], s57 offen offset:{1024*(ft&3)}"]))
        return out
    def wrd(i):
        out = []
        st = (i // 2) % NST; h = i & 1
        b = WF + 16 * (i & 1)
        for tau in range(4):
            out.append(f"ds_read_b128 v[{b+4*tau}:{b+4*tau+3}], v{VA+4*h+tau} offset:{st*STG}")
        return out
    ZD = nz - 1
    WD = NST - 1
    issued = []
    def emit(lst, tag):
        for s in lst:
            P(s); issued.append(tag)
    if FUSED[0]:
        for q in range(WD):
            for _ in range(8): issued.append(('W', q))
        for _ in range(2): issued.append(('W', 0))
        P.lines.append(__import__('dsl').Ins('@ZPOLL'))
        for i in range(ZD): emit(zld(i), ('Z', i))
    else:
        for q in range(max(WD, (ZD + 1) // 2)):
            if q < WD: emit(wdma(q), ('W', q))
            for i in (2 * q, 2 * q + 1):
                if i < ZD: emit(zld(i), ('Z', i))
    if conv and not FUSED[0]: P('s_barrier')
    def wait_for(tags):
        if not any(t in tags for t in issued): return
        last = max(k for k, t in enumerate(issued) if t in tags)
        n = len(issued) - 1 - last
        P(f"s_waitcnt vmcnt({min(n,63)})")
    Z1 = ZB + 28 * ((15 - ZD) % nz)
    def epi_loads():
        if FUSED[0]: P.lines.append(__import__('dsl').Ins('@Z1CHECKa 24 26'))
        epi_addr(P, 3)
        P(f"buffer_load_dwordx4 v[{Z1}:{Z1+3}], v{VZ}, s[24:27], s58 offen")
        P(f"buffer_load_dwordx4 v[{Z1+4}:{Z1+7}], v{VZ+1}, s[24:27], s58 offen")
        if DEC[0]:
            P(f"buffer_load_dwordx4 v[{Z1+8}:{Z1+11}], v{VZ}, s[24:27], s60 offen")
            P(f"buffer_load_dwordx2 v[{Z1+12}:{Z1+13}], v{VZ}, s[24:27], s59 offen")
        P(f"v_and_b32 v{T}, 15, v0")
        P(f"v_lshlrev_b32 v{T}, 1, v{T}")
        P(f"buffer_load_ushort v{T+3}, v{T}, s[32:35], s61 offen")
    wait_for({('W', 0)})
    if FUSED[0]:
        P.lines.append(__import__('dsl').Ins('@Z1FLAG'))
        if Z1LATE[0]: issued.append(('F', 0))
    if pr: P('s_memrealtime s[80:81]')
    for s in wrd(0): P(s)
    for i in range(16):
        need_tags = {('Z', i)}
        if i + 1 < 16: need_tags.add(('W', (i + 1) // 2))
        wait_for(need_tags)
        if i == XWS[0] and FUSED[0]: P.lines.append(__import__('dsl').Ins('@XWSET'))
        P("s_waitcnt lgkmcnt(0)")
        side = []
        if i + 1 < 16: side += [(s, None) for s in wrd(i + 1)]
        if i + ZD < 16: side += [(s, ('Z', i + ZD)) for s in zld(i + ZD)]
        if i % 2 == 0 and i // 2 + WD < 8: side += [(s, ('W', i // 2 + WD)) for s in wdma(i // 2 + WD)]
        zb = ZB + 28 * (i % nz); wb = WF + 16 * (i & 1)
        if EXP[0] in (3, 4):
            drop = 'W' if EXP[0] == 3 else 'Z'
            side2 = []
            for x in side:
                if x[1] and x[1][0] == drop: side2.append(("s_nop 0", None))
                else: side2.append(x)
            side = side2
        if EXP[0] == 2:
            for x in side:
                if x[1]: issued.append(x[1])
            side = [x for x in side if not x[1]]
            P("s_sleep 7")
        k = 0
        if LF[0]:
            if LF[0] == 2: P("s_setprio 3")
            mem = [x for x in side if x[1]]; side = [x for x in side if not x[1]]
            for s_, tag in mem:
                P(s_); issued.append(tag)
            if LF[0] == 2: P("s_setprio 0")
        for ft in range(7):
            for tau in range(4):
                a = 4 * (ft * 4 + tau)
                if EXP[0] not in (1, 3, 4, 6): P(f"v_mfma_f32_16x16x32_bf16 a[{a}:{a+3}], v[{zb+4*ft}:{zb+4*ft+3}], v[{wb+4*tau}:{wb+4*tau+3}], {'0' if i == 0 else f'a[{a}:{a+3}]'}")
                if k < len(side):
                    s, tag = side[k]; k += 1
                    P(s)
                    if tag: issued.append(tag)
        assert k == len(side)
        if i == 8 and FUSED[0]:
            P.lines.append(__import__('dsl').Ins('@Z1ISSUE 24 26'))
            if Z1LATE[0]: issued.append(('F', 1))
        if i == 16 - ZD:
            epi_loads()
            for _ in range(5 if DEC[0] else 3): issued.append(('E', 0))
    prof(P, 2, pr)
    if pr:
        P('v_mov_b32 v26, s80')
        P('v_mov_b32 v27, s81')
        P('global_store_dwordx2 v25, v[26:27], s[8:9] offset:-8')
    if DEC[0]:
        P(f"v_add_u32 v{T+2}, s52, v{VZ}")
        for tau in range(1, 4):
            for ft in range(7):
                a = 4 * (ft * 4 + tau)
                P(f"ds_write_b128 v{T+2}, a[{a}:{a+3}] offset:{(tau-1)*7168 + ft*1024}")
        P("s_mov_b32 s62, 0xffff0000")
        P.lines.append(__import__('dsl').Ins('@GSYNC'))
        RB = [ZB + 28 * ((15 - ZD + 1) % nz), ZB + 28 * ((15 - ZD + 2) % nz), WF]
        R = RB[0]
        for dl in range(1, 4):
            P(f"s_sub_u32 s53, s3, {dl}")
            P("s_and_b32 s53, s53, 3")
            P(f"s_mul_i32 s53, s53, {AREA}")
            P(f"v_add_u32 v{T+2}, s53, v{VZ}")
            for ft in range(7):
                r = RB[dl - 1] + 4 * ft
                P(f"ds_read_b128 v[{r}:{r+3}], v{T+2} offset:{(dl-1)*7168 + ft*1024}")
        G = T + 4
        P("s_waitcnt lgkmcnt(14)")
        for ft in range(7):
            for i in range(4): P(f"v_accvgpr_read_b32 v{G+i}, a{16*ft+i}")
            for i in range(4): P(f"v_add_f32 v{R+4*ft+i}, v{R+4*ft+i}, v{G+i}")
        P("s_waitcnt lgkmcnt(0)")
        for r in range(28): P(f"v_add_f32 v{RB[1]+r}, v{RB[1]+r}, v{RB[2]+r}")
        for r in range(28): P(f"v_add_f32 v{R+r}, v{R+r}, v{RB[1]+r}")
        P("s_waitcnt vmcnt(0)")
        P(f"v_lshlrev_b32 v{T+1}, 16, v{T+3}")
        H = RB[1]
        for q in range(14):
            epi_math(P, R, Z1, H, T + 1, G, q)
            if q == 3: P(f"buffer_store_dwordx4 v[{H}:{H+3}], v{VZ}, s[28:31], s58 offen sc1")
            if q == 7: P(f"buffer_store_dwordx4 v[{H+4}:{H+7}], v{VZ+1}, s[28:31], s58 offen sc1")
            if q == 11: P(f"buffer_store_dwordx4 v[{H+8}:{H+11}], v{VZ}, s[28:31], s60 offen sc1")
        P(f"buffer_store_dwordx2 v[{H+12}:{H+13}], v{VZ}, s[28:31], s59 offen sc1")
        prof(P, 3, pr)
        P.lines.append(__import__('dsl').Ins('@HFLAG'))
        prof(P, 4, pr)
        P("s_endpgm")
        P.label("k2_conv")
        gen_conv(P, 4 * AREA, pr)
        P.label("k2_end")
        return None
    P(f"v_add_u32 v{T+2}, s52, v{VZ}")
    for tau in range(1, 4):
        for ft in range(7):
            a = 4 * (ft * 4 + tau)
            P(f"ds_write_b128 v{T+2}, a[{a}:{a+3}] offset:{(tau-1)*7168 + ft*1024}")
    for ft in range(4, 7):
        P(f"ds_write_b128 v{T+2}, a[{16*ft}:{16*ft+3}] offset:{21504 + (ft-4)*1024}")
    R = WF
    for ft in range(4):
        for i in range(4): P(f"v_accvgpr_read_b32 v{R+4*ft+i}, a{16*ft+i}")
    P("s_mov_b32 s62, 0xffff0000")
    P("s_waitcnt lgkmcnt(0)")
    nearly = HOOKS['p3early'](P) if 'p3early' in HOOKS else 0
    P("s_barrier")
    RB = [ZB + 28 * ((15 - ZD + 1) % nz), ZB + 28 * ((15 - ZD + 2) % nz), WF + 16]
    for dl in range(1, 4):
        P(f"s_sub_u32 s53, s3, {dl}")
        P("s_and_b32 s53, s53, 3")
        P(f"s_mul_i32 s53, s53, {AREA}")
        P(f"v_add_u32 v{T+2}, s53, v{VZ}")
        for ft in range(4):
            r = RB[dl - 1] + 4 * ft
            P(f"ds_read_b128 v[{r}:{r+3}], v{T+2} offset:{(dl-1)*7168 + ft*1024}")
    G = T + 4
    P("s_waitcnt lgkmcnt(8)")
    for r in range(16): P(f"v_add_f32 v{R+r}, v{R+r}, v{RB[0]+r}")
    P("s_waitcnt lgkmcnt(0)")
    for r in range(16): P(f"v_add_f32 v{RB[1]+r}, v{RB[1]+r}, v{RB[2]+r}")
    for r in range(16): P(f"v_add_f32 v{R+r}, v{R+r}, v{RB[1]+r}")
    P(f"s_waitcnt vmcnt({nearly})")
    P(f"v_lshlrev_b32 v{T+1}, 16, v{T+3}")
    H = RB[0]
    for q in range(8):
        epi_math(P, R, Z1, H, T + 1, G, q)
        if q == 3: P(f"buffer_store_dwordx4 v[{H}:{H+3}], v{VZ}, s[28:31], s58 offen sc1")
    P(f"buffer_store_dwordx4 v[{H+4}:{H+7}], v{VZ+1}, s[28:31], s58 offen sc1")
    prof(P, 3, pr)
    if pr: P("s_waitcnt vmcnt(0)")
    prof(P, 4, pr)
    if pr:
        P("s_memtime s[84:85]")
        P("s_waitcnt lgkmcnt(0)")
        P("s_sub_u32 s84, s84, s82")
        P("v_mov_b32 v26, s84")
        P("v_mov_b32 v27, 0")
        P("global_store_dwordx2 v25, v[26:27], s[8:9] offset:8")
    P("s_endpgm")
    if conv:
        P.label("k2_conv")
        gen_conv(P, 4 * AREA, pr)
    P.label("k2_end")
    P("s_endpgm")
    return dict(vgpr=ZB + 28 * max(nz, 3), agpr=112, lds=4 * AREA + (65536 if conv else 0))
```

```python
import re, os, sys
from dsl import Prog, Ins
import k1d, k2, aux
from k2 import *
WS_FL1 = WS_FLB
WS_FL1B = WS_FLB + 0x10000
WS_FLX = WS_FLB + 0x20000
WS_FL2 = WS_FLB + 0x8000
SLEEP = [int(os.environ.get('SLEEP', '4'))]
AUXL = [int(os.environ.get('AUXL', '0'))]
P3L = [int(os.environ.get('P3L', '0'))]
PW = [int(os.environ.get('PW', '0'))]
TOUCH = [int(os.environ.get('TOUCH', '1'))]
KN = "parallel_sum__ssm_conv_s4__mixer_gmlp__prompt_kernel"

def lines_of(P): return [l.text for l in P.lines]

def poll(E, name, va, vd, nlanes):
    mask = (1 << nlanes) - 1
    E(f"s_mov_b32 exec_lo, {mask & 0xffffffff:#x}")
    E(f"s_mov_b32 exec_hi, {mask >> 32:#x}")
    E("s_mov_b32 s95, 0")
    E(f"{name}:")
    E(f"global_load_dwordx2 v[{vd}:{vd+1}], v{va}, s[8:9] sc0 sc1")
    E("s_add_u32 s95, s95, 1")
    E("s_waitcnt vmcnt(0)")
    E(f"v_cmp_ne_u64 vcc, s[96:97], v[{vd}:{vd+1}]")
    E("s_nop 1")
    E("s_cmp_eq_u64 vcc, 0")
    E(f"s_cbranch_scc1 {name}_ok")
    E("s_sleep 2")
    E("s_cmp_lt_u32 s95, 0x100000")
    E(f"s_cbranch_scc1 {name}")
    E(f"{name}_ok:")
    E("s_mov_b64 exec, -1")

XWW = 4 * 24576 + 14080 + 14072
CN1 = 4 * 24576 + 2 * 14080 + 14072
CN2 = 4 * 24576 + 3 * 14080 + 14072
GOW = 4 * 24576 + 14072
def ldswait(E, name, va, vd, val=1, sleep=True):
    E("s_mov_b32 s95, 0")
    E(f"{name}:")
    E(f"ds_read_b32 v{vd}, v{va}")
    E("s_add_u32 s95, s95, 1")
    E("s_waitcnt lgkmcnt(0)")
    E(f"v_readfirstlane_b32 s94, v{vd}")
    E(f"s_cmp_eq_u32 s94, {val}")
    E(f"s_cbranch_scc1 {name}_ok")
    if sleep: E("s_sleep 8" if name == "p2_xw" else "s_sleep 1")
    E("s_cmp_lt_u32 s95, 0x1000000")
    E(f"s_cbranch_scc1 {name}")
    E(f"{name}_ok:")

def phase3(P, pr):
    P("s_and_b32 s12, s2, 7")
    P("s_lshr_b32 s13, s2, 3")
    P("s_lshl_b32 s14, s12, 2")
    P("s_and_b32 s15, s13, 3")
    P("s_add_u32 s14, s14, s15")
    P("s_lshr_b32 s15, s13, 2")
    srd(P, 24, 8, 0x400000, WS_HF)
    srd(P, 28, 8, 896 * 1024, WS_WOF)
    srd(P, 32, 8, 0x200000, WS_YAT)
    T = 2; VL = 10; VH = 12; VO = 16
    P(f"v_lshlrev_b32 v{VL}, 4, v0")
    for tau in range(4):
        P(f"s_add_u32 s53, s3, {tau}")
        P("s_and_b32 s53, s53, 3")
        P("s_lshl_b32 s53, s53, 10")
        P(f"v_add_u32 v{VH+tau}, s53, v{VL}")
    P("s_lshr_b32 s59, s3, 2")
    P("s_lshl_b32 s53, s59, 11")
    P(f"v_add_u32 v{VO}, s53, v{VL}")
    P(f"v_xor_b32 v{VO+1}, 2048, v{VO}")
    P("s_lshl_b32 s52, s3, 2")
    P("s_mul_i32 s53, s3, 3")
    P("s_add_u32 s53, s53, 4")
    P("s_cmp_lt_u32 s3, 4")
    P("s_cselect_b32 s52, s52, s53")
    P("s_mul_i32 s54, s14, 28")
    P("s_add_u32 s54, s54, s52")
    P("s_lshl_b32 s54, s54, 12")
    P("s_mul_i32 s55, s15, 28")
    P("s_add_u32 s55, s55, s52")
    P("s_lshl_b32 s55, s55, 12")
    P("s_waitcnt lgkmcnt(0)")
    srd(P, 16, 4, 2048 * 512 * 2)
    srd(P, 20, 100, 2048 * 512 * 2)
    XR = 20
    P(f"v_and_b32 v{T}, 15, v0")
    P(f"v_lshrrev_b32 v{T+1}, 4, v0")
    P(f"v_lshlrev_b32 v{T}, 10, v{T}")
    P(f"v_lshl_add_u32 v{VL+1}, v{T+1}, 4, v{T}")
    P("s_lshl_b32 s58, s14, 16")
    P("s_and_b32 s57, s3, 3")
    P("s_lshl_b32 s57, s57, 14")
    P("s_add_u32 s58, s58, s57")
    P("s_lshl_b32 s57, s15, 7")
    P("s_add_u32 s58, s58, s57")
    P("s_lshl_b32 s57, s59, 6")
    P("s_add_u32 s58, s58, s57")
    P(f"buffer_load_dwordx4 v[{XR}:{XR+3}], v{VL+1}, s[16:19], s58 offen")
    P("s_lshl_b32 s53, s14, 7")
    P(f"s_add_u32 s53, s53, {WS_FL2 + 4096}")
    P("s_lshl_b32 s57, s15, 8")
    P(f"s_add_u32 s57, s57, {WS_FL2 - 64}")
    P(f"v_mov_b32 v{T}, s53")
    P(f"v_mov_b32 v{T+1}, s57")
    P(f"v_cmp_gt_u32 vcc, 8, v0")
    P(f"v_cndmask_b32 v{T}, v{T+1}, v{T}, vcc")
    P(f"v_lshl_add_u32 v{T}, v0, 3, v{T}")
    if k2.DEC[0]:
        P("s_lshl_b32 s53, s14, 7")
        P(f"s_add_u32 s53, s53, {WS_FL2 + 8192}")
        P(f"v_lshlrev_b32 v{T}, 3, v0")
        P(f"v_add_u32 v{T}, s53, v{T}")
    prof(P, 0, pr)
    def E(t):
        if t.endswith(':'): P.label(t[:-1])
        else: P(t)
    if P3L[0] == 1: p3early(P)
    P(f"s_cmp_lg_u32 s3, {PW[0]}")
    P("s_cbranch_scc1 p3_np")
    poll(E, "p3_poll", T, T + 2, 8 if k2.DEC[0] else 40)
    P.label("p3_np")
    P("s_barrier")
    prof(P, 1, pr)
    HB = 80
    def hl(k):
        P(f"s_add_u32 s56, s54, {4096*k}")
        for tau in range(4):
            r = HB + 16 * k + 4 * tau
            P(f"buffer_load_dwordx4 v[{r}:{r+3}], v{VH+tau}, s[24:27], s56 offen sc1")
    AREA = 14 * 1024; YB = 8 * AREA
    P(f"v_lshrrev_b32 v{T}, 3, v0")
    P(f"v_and_b32 v{T+1}, 7, v0")
    P(f"v_lshlrev_b32 v{T+1}, 4, v{T+1}")
    P(f"v_lshl_add_u32 v{T+1}, v{T}, 12, v{T+1}")
    P("s_lshl_b32 s56, s15, 18")
    P("s_lshl_b32 s57, s3, 15")
    P("s_add_u32 s56, s56, s57")
    P("s_lshl_b32 s57, s14, 7")
    P("s_add_u32 s60, s56, s57")
    P("s_lshl_b32 s57, s3, 10")
    P(f"s_add_u32 m0, s57, {YB}")
    def acc(pi, sg_, tau):
        i = (2 * pi + sg_) * 4 + tau
        return f"a[{64+4*i}:{67+4*i}]" if 0 < (i & ~4) and i - (2 if i > 4 else 1) < 12 and i not in (0, 4) and False else None
    others = [(pi, sg_, tau) for pi in range(2) for tau in range(4) for sg_ in range(2) if not (pi == 0 and tau == 0)]
    amap = {}
    for sg_ in range(2): amap[(0, sg_, 0)] = f"v[{24+4*sg_}:{27+4*sg_}]"
    for n_, key in enumerate(others):
        amap[key] = f"a[{4*ACQ[n_]}:{4*ACQ[n_]+3}]" if n_ < 12 else f"v[{32+4*(n_-12)}:{35+4*(n_-12)}]"
    def mf(k):
        for pi in range(2):
            for sg_ in range(2):
                for tau in range(4):
                    a = amap[(pi, sg_, tau)]; r = 4 * WOQ[4 * k + 2 * pi + sg_]; h = HB + 16 * k + 4 * tau
                    P(f"v_mfma_f32_16x16x32_bf16 {a}, a[{r}:{r+3}], v[{h}:{h+3}], {'0' if k == 0 else a}")
    P("s_cmp_ge_u32 s3, 4")
    P("s_cbranch_scc1 p3_3")
    D = 0 if k2.DEC[0] else 1
    for k in range(4): hl(k)
    if D: P(f"buffer_load_dwordx4 v{T+1}, s[32:35], s60 offen sc1 lds")
    for k in range(4):
        P(f"s_waitcnt vmcnt({D + 4*(3-k)})"); mf(k)
    P("s_branch p3_red")
    P.label("p3_3")
    for k in range(3): hl(k)
    if D: P(f"buffer_load_dwordx4 v{T+1}, s[32:35], s60 offen sc1 lds")
    else:
        P("s_sub_u32 s53, s3, 4")
        P("s_lshl_b32 s57, s15, 10")
        P("s_lshl_b32 s56, s53, 8")
        P("s_add_u32 s57, s57, s56")
        P(f"s_add_u32 s57, s57, {WS_FL2}")
        P(f"v_and_b32 v{T+4}, 31, v0")
        P(f"v_lshlrev_b32 v{T+4}, 3, v{T+4}")
        P(f"v_add_u32 v{T+4}, s57, v{T+4}")
        P(f"global_load_dwordx2 v[{T+6}:{T+7}], v{T+4}, s[8:9] sc0 sc1")
    for k in range(3):
        P(f"s_waitcnt vmcnt({1 + 4*(2-k)})"); mf(k)
    if not D:
        P("s_waitcnt vmcnt(0)")
        z1check(E, "p3_y", T + 4, T + 6)
        P("s_lshl_b32 s56, s15, 18")
        P("s_lshl_b32 s57, s53, 16")
        P("s_add_u32 s56, s56, s57")
        P("s_lshl_b32 s57, s14, 7")
        P("s_add_u32 s60, s56, s57")
        P("s_lshl_b32 s57, s53, 11")
        P(f"s_add_u32 m0, s57, {YB}")
        P("s_add_u32 s61, s60, 32768")
        P(f"buffer_load_dwordx4 v{T+1}, s[32:35], s60 offen sc1 lds")
        P(f"s_add_u32 m0, s57, {YB + 1024}")
        P("s_nop 0")
        P(f"buffer_load_dwordx4 v{T+1}, s[32:35], s61 offen sc1 lds")
    P.label("p3_red")
    prof(P, 2, pr)
    P(f"s_mul_i32 s52, s3, {AREA}")
    P(f"v_add_u32 v{T}, s52, v{VL}")
    for n_, key in enumerate(others):
        P(f"ds_write_b128 v{T}, {amap[key]} offset:{1024*n_}")
    P("s_waitcnt vmcnt(0) lgkmcnt(0)")
    P("s_barrier")
    R = 40
    gi = 0
    for pi in range(2):
        for tau in range(4):
            if pi == 0 and tau == 0: continue
            P(f"s_sub_u32 s53, s3, {tau}")
            P("s_and_b32 s53, s53, 3")
            P(f"s_xor_b32 s57, s59, {pi}")
            P("s_lshl_b32 s57, s57, 2")
            P("s_add_u32 s53, s53, s57")
            P(f"s_mul_i32 s53, s53, {AREA}")
            P(f"v_add_u32 v{T+(gi&1)}, s53, v{VL}")
            for sg_ in range(2):
                r = R + 8 * gi + 4 * sg_
                P(f"ds_read_b128 v[{r}:{r+3}], v{T+(gi&1)} offset:{1024*(2*gi+sg_)}")
            gi += 1
    P(f"v_lshrrev_b32 v{T+2}, 4, v0")
    P(f"v_bfe_u32 v{T+3}, v0, 2, 2")
    P(f"v_and_b32 v{T+4}, 3, v0")
    P(f"v_lshl_add_u32 v{T+2}, v{T+2}, 3, v{T+3}")
    P(f"v_lshlrev_b32 v{T+2}, 7, v{T+2}")
    P(f"v_lshl_add_u32 v{T+2}, v{T+4}, 3, v{T+2}")
    P("s_and_b32 s53, s3, 3")
    P("s_lshl_b32 s53, s53, 5")
    P("s_lshl_b32 s57, s59, 12")
    P("s_add_u32 s53, s53, s57")
    P(f"s_add_u32 s53, s53, {YB}")
    P(f"v_add_u32 v{T+2}, s53, v{T+2}")
    YA = 32
    P("s_waitcnt lgkmcnt(0)")
    for eta in range(2):
        P(f"ds_read_b64_tr_b16 v[{YA+2*eta}:{YA+2*eta+1}], v{T+2} offset:{512*eta}")
    for i in range(8):
        P(f"v_add_f32 v{24+i}, v{24+i}, v{R+i}")
        P(f"v_add_f32 v{R+8+i}, v{R+8+i}, v{R+16+i}")
        P(f"v_add_f32 v{R+24+i}, v{R+24+i}, v{R+32+i}")
        P(f"v_add_f32 v{R+40+i}, v{R+40+i}, v{R+48+i}")
    for i in range(8):
        P(f"v_add_f32 v{24+i}, v{24+i}, v{R+8+i}")
        P(f"v_add_f32 v{R+24+i}, v{R+24+i}, v{R+40+i}")
    for i in range(8): P(f"v_add_f32 v{24+i}, v{24+i}, v{R+24+i}")
    P("s_mov_b32 s65, 0xffff0000")
    P("s_waitcnt lgkmcnt(0)")
    for q in range(4):
        a = 24 + 2 * q
        P(f"v_cvt_pk_bf16_f32 v{T}, v{a}, v{a+1}")
        P(f"v_lshlrev_b32 v{T+2}, 16, v{XR+q}")
        P(f"v_and_b32 v{T+3}, s65, v{XR+q}")
        P(f"v_lshlrev_b32 v{T+4}, 16, v{YA+q}")
        P(f"v_and_b32 v{T+5}, s65, v{YA+q}")
        P(f"v_add_f32 v{T+2}, v{T+2}, v{T+4}")
        P(f"v_add_f32 v{T+3}, v{T+3}, v{T+5}")
        P(f"v_cvt_pk_bf16_f32 v{T+4}, v{T+2}, v{T+3}")
        P(f"v_lshlrev_b32 v{T+2}, 16, v{T+4}")
        P(f"v_and_b32 v{T+3}, s65, v{T+4}")
        P(f"v_lshlrev_b32 v{T+4}, 16, v{T}")
        P(f"v_and_b32 v{T+5}, s65, v{T}")
        P(f"v_add_f32 v{T+2}, v{T+2}, v{T+4}")
        P(f"v_add_f32 v{T+3}, v{T+3}, v{T+5}")
        P(f"v_cvt_pk_bf16_f32 v{R+q}, v{T+2}, v{T+3}")
    P(f"buffer_store_dwordx4 v[{R}:{R+3}], v{VL+1}, s[20:23], s58 offen")
    prof(P, 3, pr)
    if pr: P("s_waitcnt vmcnt(0)")
    prof(P, 4, pr)

CNT = [0]
def early2(P):
    n = CNT[0]; CNT[0] += 1
    if n == 1:
        P("s_waitcnt lgkmcnt(0)")
        P("s_barrier")
    P("s_lshl_b32 s57, s2, 8")
    P(f"s_add_u32 s57, s57, {WS_FLX}")
    P("v_and_b32 v132, 31, v0")
    P("v_lshlrev_b32 v132, 3, v132")
    P("v_add_u32 v132, s57, v132")
    P("s_cmp_lt_u32 s3, 4")
    P(f"s_cbranch_scc1 e2_done{n}")
    P.label(f"e2_conv{n}")
    PAR = 104; V = 112
    P("s_sub_u32 s56, s3, 4")
    P("s_lshr_b32 s57, s56, 1")
    P("s_lshl_b32 s61, s2, 1")
    P("s_add_u32 s61, s61, s57")
    P(f"s_mul_i32 s56, s56, {CW_AREA}")
    P(f"s_add_u32 s56, s56, {4*24576}")
    P(f"v_mov_b32 v{V}, s56")
    P(f"v_mov_b32 v{V+4}, 0")
    P(f"v_mov_b32 v{V+5}, 0")
    P(f"ds_write_b64 v{V}, v[{V+4}:{V+5}] offset:14072")
    P(f"v_lshlrev_b32 v{V+2}, 2, v0")
    P("s_lshl_b32 s57, s61, 8")
    P(f"v_add_u32 v{V+2}, s57, v{V+2}")
    P("s_lshl_b32 s57, s61, 1")
    P(f"v_mov_b32 v{V+3}, s57")
    for k in range(6):
        P(f"global_load_dword v{PAR+k}, v{V+2}, s[{68+2*k}:{69+2*k}]")
    P(f"global_load_ushort v{PAR+6}, v{V+3}, s[80:81]")
    P(f"global_load_ushort v{PAR+7}, v{V+3}, s[82:83]")
    if k2.XE[0]: P("global_load_dwordx2 v[134:135], v132, s[8:9] sc0 sc1")
    P.label(f"e2_done{n}")

FREEQ = [4 * ft + t for ft in range(7) for t in (1, 2, 3)]
WOQ = FREEQ[:16]
ACQ = FREEQ[16:] + [4 * ft for ft in range(7)]
def p3early(P):
    n = CNT[0]; CNT[0] += 1
    srd(P, 44, 8, 896 * 1024, WS_WOF)
    P("s_lshl_b32 s84, s3, 2")
    P("s_mul_i32 s85, s3, 3")
    P("s_add_u32 s85, s85, 4")
    P("s_cmp_lt_u32 s3, 4")
    P("s_cselect_b32 s84, s84, s85")
    P("s_lshr_b32 s85, s2, 5")
    P("s_mul_i32 s85, s85, 28")
    P("s_add_u32 s85, s85, s84")
    P("s_lshl_b32 s85, s85, 12")
    P("s_lshr_b32 s86, s3, 2")
    P("s_lshl_b32 s86, s86, 11")
    P("v_lshlrev_b32 v1, 4, v0")
    for k in range(4):
        for pi in range(2):
            P(f"s_xor_b32 s87, s86, {2048*pi}")
            P("s_add_u32 s87, s87, s85")
            P(f"s_add_u32 s87, s87, {4096*k}")
            for sg_ in range(2):
                r = 4 * WOQ[4 * k + 2 * pi + sg_]
                P(f"buffer_load_dwordx4 a[{r}:{r+3}], v1, s[44:47], s87 offen offset:{1024*sg_} sc1")
    return 16

def signal_to(E, tag, code, nl, drain=True):
    E("s_waitcnt vmcnt(0) lgkmcnt(0)" if drain else "s_waitcnt lgkmcnt(0)")
    E("s_barrier")
    E("s_cmp_lg_u32 s3, 0")
    E(f"s_cbranch_scc1 {tag}_ns")
    for c in code: E(c)
    E("v_mov_b32 v4, s96")
    E("v_mov_b32 v5, s97")
    E(f"s_mov_b64 exec, {(1 << nl) - 1}")
    E("global_store_dwordx2 v2, v[4:5], s[8:9] sc0 sc1")
    E("s_mov_b64 exec, -1")
    E(f"{tag}_ns:")
def sig1(P, n):
    def E(t):
        if t.endswith(':'): P.label(t[:-1])
        else: P(t)
    signal_to(E, f"p1{n}", ["s_lshl_b32 s53, s2, 3", f"s_add_u32 s53, s53, {WS_FL1}", "v_lshlrev_b32 v2, 11, v0", "v_add_u32 v2, s53, v2"], 8)
    if n == 1 and AUXL[0]:
        P("v_lshlrev_b32 v112, 7, v0")
        P("s_lshl_b32 s56, s14, 18")
        P("s_lshl_b32 s57, s3, 13")
        P("s_add_u32 s56, s56, s57")
        P(f"s_add_u32 s56, s56, {65536 * aux.AUXT[0]}")
        for e in range(AUXL[0]):
            P("buffer_load_dword v143, v112, s[36:39], s56 offen")
            P("s_add_u32 s56, s56, 65536")
    P("s_cmp_ge_u32 s3, 4")
    P(f"s_cbranch_scc1 s1_nw{n}")
    V = 112
    if TOUCH[0] == 2 and n == 0:
        P("s_lshl_b32 s56, s14, 18")
        P(f"s_add_u32 s56, s56, {48*4096}")
        P(f"v_lshlrev_b32 v{V}, 7, v0")
        P("s_lshl_b32 s57, s15, 13")
        P("s_cmp_eq_u32 s3, 1")
        P("s_cbranch_scc1 s1_q1")
        P("s_mov_b32 s57, 57344")
        P("s_cmp_lg_u32 s3, 2")
        P("s_cbranch_scc1 s1_q2")
        P("s_cmp_lg_u32 s15, 0")
        P("s_cbranch_scc1 s1_q2")
        P.label("s1_q1")
        P("s_add_u32 s56, s56, s57")
        P(f"buffer_load_dword v143, v{V}, s[36:39], s56 offen")
        P.label("s1_q2")
    if TOUCH[0] == 1:
        P("s_and_b32 s56, s2, 7")
        P("s_lshl_b32 s56, s56, 5")
        P("s_lshr_b32 s57, s2, 3")
        P("s_add_u32 s56, s56, s57")
        P("s_lshl_b32 s56, s56, 15")
        P(f"v_lshlrev_b32 v{V}, 7, v0")
        P("s_cmp_eq_u32 s3, 0")
        P(f"s_cbranch_scc1 s1_t2{n}")
        P("s_cmp_lg_u32 s3, 3")
        P(f"s_cbranch_scc1 s1_t1{n}")
        P(f"buffer_load_dword v143, v{V}, s[36:39], s56 offen")
        P.label(f"s1_t1{n}")
        P("s_lshl_b32 s57, s3, 13")
        P("s_add_u32 s56, s56, s57")
        P(f"buffer_load_dword v143, v{V}, s[36:39], s56 offen")
        P.label(f"s1_t2{n}")
    P(f"v_lshrrev_b32 v{V}, 3, v0")
    P(f"v_and_b32 v{V+1}, 7, v0")
    P(f"v_lshrrev_b32 v{V+2}, 1, v{V}")
    P(f"v_xor_b32 v{V+1}, v{V+1}, v{V+2}")
    P(f"v_lshlrev_b32 v{V+1}, 4, v{V+1}")
    P(f"v_lshl_add_u32 v{V+1}, v{V}, 12, v{V+1}")
    P(f"v_xor_b32 v{V+2}, 64, v{V+1}")
    P("s_and_b32 s56, s2, 7")
    P("s_lshr_b32 s56, s56, 1")
    P("s_lshl_b32 s56, s56, 3")
    P("s_bfe_u32 s57, s2, 0x30003")
    P("s_add_u32 s56, s56, s57")
    P("s_lshl_b32 s56, s56, 18")
    P("s_lshl_b32 s57, s3, 10")
    P("s_add_u32 s56, s56, s57")
    P("s_mul_i32 s57, s3, 24576")
    for q in range(2):
        for e in range(8):
            P(f"s_add_u32 m0, s57, {q*8192 + e*1024}")
            P(f"s_add_u32 s61, s56, {q*128 + e*32768}")
            P(f"buffer_load_dwordx4 v{V+1+(e&1)}, s[36:39], s61 offen lds")
    if n == 1 and k2.XE[0]:
        P(f"s_branch s1_x{n}")
    P.label(f"s1_nw{n}")
    if n == 1 and k2.XE[0]:
        P("s_sub_u32 s56, s3, 4")
        P("s_lshl_b32 s56, s56, 14")
        P("s_lshl_b32 s57, s14, 3")
        P("s_add_u32 s56, s56, s57")
        P(f"s_add_u32 s56, s56, {WS_FLX}")
        P("v_lshlrev_b32 v2, 8, v0")
        P("v_add_u32 v2, s56, v2")
        P("v_mov_b32 v4, s96")
        P("v_mov_b32 v5, s97")
        P("global_store_dwordx2 v2, v[4:5], s[8:9] sc0 sc1")
        P.label(f"s1_x{n}")
    P("s_lshl_b32 s93, s14, 3")
    P("s_add_u32 s93, s93, s15")
    P("s_lshl_b32 s93, s93, 3")
    P("s_add_u32 s93, s93, s3")
    P("s_lshl_b32 s93, s93, 3")
    P(f"s_add_u32 s93, s93, {WS_FL1B}")
def z1flag(E, va):
    E(f"v_mov_b32 v{va}, s93")
    E(f"v_mov_b32 v{va+1}, s96")
    E(f"v_mov_b32 v{va+2}, s97")
    E("s_mov_b64 exec, 1")
    E(f"global_store_dwordx2 v{va}, v[{va+1}:{va+2}], s[8:9] sc0 sc1")
    E("s_mov_b64 exec, -1")
def z1issue(E, va, vd):
    E("s_mul_i32 s64, s15, 112")
    E("s_lshr_b32 s62, s64, 7")
    E("s_add_u32 s64, s64, 111")
    E("s_lshr_b32 s63, s64, 7")
    E("s_sub_u32 s63, s63, s62")
    E("s_lshl_b32 s63, s63, 6")
    E("s_lshl_b32 s64, s14, 3")
    E("s_add_u32 s64, s64, s62")
    E("s_lshl_b32 s64, s64, 6")
    E(f"s_add_u32 s64, s64, {WS_FL1B}")
    E(f"v_bfe_u32 v{va}, v0, 3, 1")
    E(f"v_mul_u32_u24 v{va}, s63, v{va}")
    E(f"v_and_b32 v{vd}, 7, v0")
    E(f"v_lshl_add_u32 v{va}, v{vd}, 3, v{va}")
    E(f"v_add_u32 v{va}, s64, v{va}")
    E(f"global_load_dwordx2 v[{vd}:{vd+1}], v{va}, s[8:9] sc0 sc1")
def z1check(E, name, va, vd):
    E(f"v_cmp_ne_u64 vcc, s[96:97], v[{vd}:{vd+1}]")
    E("s_nop 1")
    E("s_cmp_eq_u64 vcc, 0")
    E(f"s_cbranch_scc1 {name}_ok")
    poll(E, name, va, vd, 64)

def build(pr=False):
    k2.HOOKS['sig1'] = sig1
    if not P3L[0]: k2.HOOKS['p3early'] = p3early
    k2.HOOKS['t1'] = early2
    out = []
    E = out.append
    k2.PROF_K[0] = 0
    P1 = Prog(); k1d.gen_k1(P1, aux=aux.aux, pr=pr)
    L1 = lines_of(P1)
    def amap(m):
        if m.group(1):
            lo, hi = int(m.group(1)), int(m.group(2))
            return f"v[{lo+16}:{hi+16}]" if lo >= 112 else m.group(0)
        n = int(m.group(3)); return f"v{n+16}" if n >= 112 else m.group(0)
    L1 = [re.sub(r'\ba\[(\d+):(\d+)\]|\ba(\d+)\b', amap, l) for l in L1]
    nend = 0
    for l in L1:
        if l == "k1_kernel:": E(KN + ":"); continue
        if l == "k1_end:": break
        if l == "s_cbranch_scc1 k1_end": E("s_cbranch_scc1 f_end"); continue
        if l == "s_lshl_b32 s53, s14, 3" and 'nonce_addr' not in globals():
            globals()['nonce_addr'] = 1; E("s_mov_b32 s53, 0"); continue
        if l == "s_or_b32 s53, s15, s3": E("s_or_b32 s53, s2, s3"); continue
        if l == "s_endpgm":
            nend += 1
            if nend == 1: E("s_branch p1_done")
            else:
                PE = Prog(); early2(PE)
                for x_ in lines_of(PE): E(x_)
                E("v_mov_b32 v13, 0")
                E("s_mov_b32 s95, 0")
                E("aux_nonce:")
                E("global_load_dwordx2 v[14:15], v13, s[10:11] sc0 sc1")
                E("s_add_u32 s95, s95, 1")
                E("s_waitcnt vmcnt(0)")
                E("v_readfirstlane_b32 s96, v14")
                E("v_readfirstlane_b32 s97, v15")
                E("s_cmp_lg_u32 s96, 0")
                E("s_cbranch_scc1 aux_sig")
                E("s_cmp_lt_u32 s95, 0x200000")
                E("s_cbranch_scc1 aux_nonce")
                E("aux_sig:")
                PE = Prog(); sig1(PE, 1)
                for x_ in lines_of(PE): E(x_)
            continue
        E(l)
    globals().pop('nonce_addr', None)
    E("p1_done:")
    E("s_setprio 0")
    k2.PROF_K[0] = 1
    P2 = Prog(); k2.gen_k2(P2, pr=pr)
    L2 = lines_of(P2)
    skip = {"k2_kernel:", "s_cmp_ge_u32 s2, 256", "s_cbranch_scc1 k2_end", "v_lshrrev_b32 v1, 6, v0", "v_and_b32 v0, 63, v0",
            "v_readfirstlane_b32 s3, v1", "s_load_dwordx2 s[8:9], s[0:1], 128", "s_load_dwordx2 s[10:11], s[0:1], 64",
            "s_load_dwordx4 s[68:71], s[0:1], 8", "s_load_dwordx4 s[72:75], s[0:1], 24", "s_load_dwordx4 s[76:79], s[0:1], 40", "s_load_dwordx2 s[80:81], s[0:1], 56"}
    firstz = True; firstx = True
    for l in L2:
        if l in skip: continue
        if l == "k2_end:": break
        if l == "s_endpgm": E("s_branch p2_done"); continue
        if l.startswith("buffer_load") and any(f"s[{a}:{a+3}]" in l for a in (20, 24, 36)):
            l = l.replace(" lds", " sc1 lds") if l.endswith(" lds") else l + " sc1"
        if l == "@ZPOLL":
            E(f"v_mov_b32 v22, {GOW}")
            E("s_cmp_lg_u32 s3, 0")
            E("s_cbranch_scc1 p2_lw")
            E("s_and_b32 s53, s2, 7")
            E("s_lshl_b32 s53, s53, 11")
            E(f"s_add_u32 s53, s53, {WS_FL1}")
            E("v_lshlrev_b32 v20, 4, v0")
            E("v_add_u32 v20, s53, v20")
            E("s_mov_b32 s95, 0")
            E("p2_zpoll:")
            E("global_load_dwordx4 v[28:31], v20, s[8:9] sc0 sc1")
            E("global_load_dwordx4 v[32:35], v20, s[8:9] offset:1024 sc0 sc1")
            E("s_add_u32 s95, s95, 1")
            E("s_waitcnt vmcnt(0)")
            E("v_cmp_ne_u64 s[62:63], s[96:97], v[28:29]")
            E("v_cmp_ne_u64 s[64:65], s[96:97], v[30:31]")
            E("v_cmp_ne_u64 s[66:67], s[96:97], v[32:33]")
            E("v_cmp_ne_u64 vcc, s[96:97], v[34:35]")
            E("s_nop 1")
            E("s_or_b64 s[62:63], s[62:63], s[64:65]")
            E("s_or_b64 s[66:67], s[66:67], vcc")
            E("s_or_b64 s[62:63], s[62:63], s[66:67]")
            E("s_cmp_eq_u64 s[62:63], 0")
            E("s_cbranch_scc1 p2_set")
            E(f"s_sleep {SLEEP[0]}")
            E("s_cmp_lt_u32 s95, 0x100000")
            E("s_cbranch_scc1 p2_zpoll")
            E("p2_set:")
            E("s_lshl_b32 s62, s2, 13")
            E("v_lshlrev_b32 v20, 4, v0")
            for e in range(8):
                if e % 4 == 0:
                    E(f"s_mov_b32 m0, {4*24576 + 4*14080 + 512 + 4608*(e//4)}")
                    if e: E("s_add_u32 s62, s62, 4096")
                    else: E("s_nop 0")
                E(f"buffer_load_dwordx4 v20, s[36:39], s62 offen offset:{1024*(e&3)} sc1 lds")
            E("v_mov_b32 v23, 1")
            E("ds_write_b32 v22, v23")
            E("s_branch p2_go")
            E("p2_lw:")
            ldswait(E, "p2_lwl", 22, 23)
            E("p2_go:")
            continue
        if l.startswith("@Z1") and not k2.Z1LATE[0]:
            continue
        if l == "@Z1FLAG":
            z1flag(E, 21); continue
        if l.startswith("@Z1ISSUE"):
            z1issue(E, *map(int, l.split()[1:])); continue
        if l.startswith("@Z1CHECK"):
            z1check(E, "p2_z1w" + l[8:9], *map(int, l.split()[1:])); continue
        if l == "@XEARLY":
            z1check(E, "p2_xe", 132, 134)
            continue
        if l == "@TOUCH":
            E("s_and_b32 s56, s2, 7")
            E("s_lshl_b32 s56, s56, 5")
            E("s_lshr_b32 s57, s2, 3")
            E("s_add_u32 s56, s56, s57")
            E("s_lshl_b32 s56, s56, 15")
            E("s_lshl_b32 s57, s52, 13")
            E("s_add_u32 s56, s56, s57")
            E("v_lshlrev_b32 v2, 7, v0")
            E("buffer_load_dword v143, v2, s[16:19], s56 offen")
            continue
        if l == "@GSYNC":
            E(f"v_mov_b32 v24, {CN1}")
            E("v_mov_b32 v25, 1")
            E("s_waitcnt lgkmcnt(0)")
            E("s_mov_b64 exec, 1")
            E("ds_add_u32 v24, v25")
            E("s_mov_b64 exec, -1")
            ldswait(E, "p2_gs", 24, 25, 4, False)
            continue
        if l == "@HFLAG":
            E(f"v_mov_b32 v24, {CN2}")
            E("v_mov_b32 v25, 1")
            E("s_lshl_b32 s53, s14, 7")
            E("s_lshl_b32 s56, s15, 3")
            E("s_add_u32 s53, s53, s56")
            E(f"s_add_u32 s53, s53, {WS_FL2 + 8192}")
            E("v_mov_b32 v2, s53")
            E("v_mov_b32 v4, s96")
            E("v_mov_b32 v5, s97")
            E("s_waitcnt vmcnt(0)")
            E("s_mov_b64 exec, 1")
            E("ds_add_rtn_u32 v25, v24, v25")
            E("s_waitcnt lgkmcnt(0)")
            E("v_readfirstlane_b32 s94, v25")
            E("s_cmp_lg_u32 s94, 3")
            E("s_cbranch_scc1 p2_hn")
            E("global_store_dwordx2 v2, v[4:5], s[8:9] sc0 sc1")
            E("p2_hn:")
            E("s_mov_b64 exec, -1")
            continue
        if l == "@YFLAG":
            E("s_lshl_b32 s53, s2, 2")
            E("s_add_u32 s53, s53, s52")
            E("s_lshl_b32 s53, s53, 3")
            E(f"s_add_u32 s53, s53, {WS_FL2}")
            E("v_mov_b32 v2, s53")
            E("v_mov_b32 v4, s96")
            E("v_mov_b32 v5, s97")
            E("s_waitcnt vmcnt(0)")
            E("s_mov_b64 exec, 1")
            E("global_store_dwordx2 v2, v[4:5], s[8:9] sc0 sc1")
            E("s_mov_b64 exec, -1")
            continue
        if l == "@XWSET":
            E("s_cmp_lg_u32 s3, 0")
            E("s_cbranch_scc1 p2_xs")
            E(f"v_mov_b32 v21, {XWW}")
            E("v_mov_b32 v22, 1")
            E("ds_write_b32 v21, v22")
            E("p2_xs:")
            continue
        if l == "@XPOLL":
            if k2.Z1LATE[0]:
                E("s_waitcnt vmcnt(0)")
                z1flag(E, 3)
            E(f"v_mov_b32 v2, {XWW}")
            ldswait(E, "p2_xw", 2, 3)
            continue
        E(l)
    E("p2_done:")
    E("s_setprio 0")
    if not k2.DEC[0]:
        signal_to(E, "p2", ["s_lshl_b32 s53, s2, 3", f"s_add_u32 s53, s53, {WS_FL2}", "v_mov_b32 v2, s53",
                      "s_lshl_b32 s53, s14, 7", "s_lshl_b32 s56, s15, 3", "s_add_u32 s53, s53, s56", f"s_add_u32 s53, s53, {WS_FL2 + 4096}",
                      "v_writelane_b32 v2, s53, 1"], 2)
    k2.PROF_K[0] = 2
    k2.PROF_V[0] = 142
    P3 = Prog(); phase3(P3, pr)
    k2.PROF_V[0] = 26
    out += lines_of(P3)
    E("f_end:")
    E("s_endpgm")
    P = Prog()
    for l in out:
        if l.endswith(':'): P.label(l[:-1])
        else: P(l)
    body = P.finish()
    HDR = open('parallel_sum__ssm_conv_s4__mixer_gmlp__prompt.s.ref').read().split('; Override launch')[0]
    first = f"; @launch kernel={KN} grid=(256,1,1) block=(512,1,1) lds=163840" if os.environ.get("ASLIST") else "; @launch grid=(256,1,1) block=(512,1,1) lds=163840"
    return HDR + first + f'''
.amdgcn_target "amdgcn-amd-amdhsa--gfx950"
.text
.globl {KN}
.p2align 8
.type {KN},@function
{body}
.section .rodata,"a"
.p2align 6
.amdhsa_kernel {KN}
  .amdhsa_next_free_vgpr 256
  .amdhsa_next_free_sgpr 102
  .amdhsa_accum_offset 144
  .amdhsa_group_segment_fixed_size 0
  .amdhsa_kernarg_size 136
  .amdhsa_user_sgpr_count 2
  .amdhsa_user_sgpr_kernarg_segment_ptr 1
  .amdhsa_system_sgpr_workgroup_id_x 1
.end_amdhsa_kernel
'''
if __name__ == "__main__":
    k2.FUSED[0] = 1
    for nm in ('GSPLIT', 'GAT', 'PRI'):
        if os.environ.get(nm): getattr(k1d, nm)[0] = int(os.environ[nm])
    if os.environ.get('PRIO'): k2.PRIO[:] = [int(c) for c in os.environ['PRIO']]
    open(sys.argv[1], 'w').write(build(pr=('prof' in sys.argv)))
```

```python
from k1 import *
from reblk import rb_load, rb_store

LOG2E = math.log2(math.e)
PROWS = [0,1,2,3,4,5,6,7, 256,258,260,262, 512,516,768,772, 1024,1280,1536,1792, 2048]
TROW = 272
QT0 = 21 * TROW
KW_AREA = 16384

def cmul(P, r, a, b, t):
    P(f"v_pk_mul_f32 v[{t}:{t+1}], v[{a}:{a+1}], v[{b}:{b+1}] op_sel:[0,0] op_sel_hi:[1,0]")
    P(f"v_pk_fma_f32 v[{r}:{r+1}], v[{a}:{a+1}], v[{b}:{b+1}], v[{t}:{t+1}] op_sel:[1,1,0] op_sel_hi:[0,1,1] neg_lo:[1,0,0]")

import os
AUXRB = [0]
HZ = [int(os.environ.get('HZ', '0'))]
AUXT = [int(os.environ.get('AUXT', '0'))]
def aux(P, X, T, VXW, pr):
    P("s_load_dwordx2 s[84:85], s[0:1], 104")
    P("s_waitcnt lgkmcnt(0)")
    srd(P, 20, 84, 896 * 512 * 2)
    srd(P, 24, 8, 0x200000, WS_XNT)
    srd(P, 28, 8, 896 * 1024, WS_WOF)
    P("s_mul_i32 s54, s14, 7")
    P("s_add_u32 s54, s54, s3")
    P("s_mul_i32 s55, s54, 1171")
    P("s_lshr_b32 s55, s55, 15")
    P("s_mul_i32 s56, s55, 28")
    P("s_sub_u32 s56, s54, s56")
    P("s_lshl_b32 s56, s56, 15")
    P("s_lshl_b32 s55, s55, 7")
    P("s_add_u32 s56, s56, s55")
    P(f"v_lshrrev_b32 v{T}, 3, v0")
    P(f"v_and_b32 v{T+1}, 7, v0")
    P(f"v_lshlrev_b32 v{T+1}, 4, v{T+1}")
    P(f"v_lshl_add_u32 v{T+1}, v{T}, 10, v{T+1}")
    WO = 112
    for e in range(4):
        P(f"s_add_u32 s57, s56, {8192*e}")
        P(f"buffer_load_dwordx4 v[{WO+4*e}:{WO+4*e+3}], v{T+1}, s[20:23], s57 offen")
    if AUXRB[0]: rb_load(P, 0, 30)
    NT = AUXT[0]
    if NT:
        P("v_lshlrev_b32 v30, 7, v0")
        P("s_lshl_b32 s56, s14, 18")
        P("s_lshl_b32 s57, s3, 13")
        P("s_add_u32 s56, s56, s57")
        for e in range(NT):
            P("buffer_load_dword v31, v30, s[36:39], s56 offen")
            P("s_add_u32 s56, s56, 65536")
    P(f"s_waitcnt vmcnt({(8 if AUXRB[0] else 4) + NT})")
    ln1(P, X, T, 16, 52)
    for r in range(32):
        a, b = T + 4 + (r & 1) * 2, T + 5 + (r & 1) * 2
        P(f"v_lshlrev_b32 v{a}, 16, v{X+r}")
        P(f"v_and_b32 v{b}, 0xffff0000, v{X+r}")
        P(f"v_cvt_pk_f16_f32 v{X+r}, v{a}, v{b}")
    for e in range(8):
        P(f"ds_write_b128 v{VXW+(e&1)}, v[{X+4*e}:{X+4*e+3}] offset:{256*(e>>1)}")
    P(f"v_lshlrev_b32 v{T}, 4, v0")
    P("s_lshl_b32 s53, s3, 12")
    P(f"v_add_u32 v{T}, s53, v{T}")
    P(f"s_waitcnt vmcnt({(4 if AUXRB[0] else 0) + NT})")
    for e in range(4):
        P(f"ds_write_b128 v{T}, v[{WO+4*e}:{WO+4*e+3}] offset:{1024*e}")
    P(f"v_lshrrev_b32 v{T+1}, 2, v0")
    P(f"v_and_b32 v{T+2}, 3, v0")
    P(f"v_lshlrev_b32 v{T+1}, 7, v{T+1}")
    P(f"v_lshl_add_u32 v{T+1}, v{T+2}, 4, v{T+1}")
    P(f"v_add_u32 v{T+1}, s53, v{T+1}")
    P("s_waitcnt lgkmcnt(0)")
    for dt in range(4):
        for eta in range(2):
            d = WO + 4 * dt + 2 * eta
            P(f"ds_read_b64_tr_b16 v[{d}:{d+1}], v{T+1} offset:{2048*eta + 64*(dt>>1) + 8*(dt&1)}")
    P(f"v_lshlrev_b32 v{T}, 4, v0")
    P("s_lshl_b32 s53, s54, 12")
    P("s_waitcnt lgkmcnt(0)")
    P("s_cmp_eq_u32 s3, 7")
    P("s_cbranch_scc1 aux_nowo")
    for dt in range(4):
        P(f"buffer_store_dwordx4 v[{WO+4*dt}:{WO+4*dt+3}], v{T}, s[28:31], s53 offen offset:{1024*dt} sc1")
    P.label("aux_nowo")
    if HZ[0]:
        srd(P, 32, 8, 0x400000, WS_HF)
        P("s_lshr_b32 s53, s3, 1")
        P("s_mul_i32 s53, s53, 7")
        P("s_mul_i32 s55, s14, 28")
        P("s_add_u32 s53, s53, s55")
        P("s_add_u32 s53, s53, 3")
        P("s_lshl_b32 s53, s53, 12")
        P("s_and_b32 s55, s3, 1")
        P("s_lshl_b32 s55, s55, 11")
        P("s_add_u32 s53, s53, s55")
        for e in range(2):
            P(f"buffer_store_dwordx4 v[{WO}:{WO+3}], v{T}, s[32:35], s53 offen offset:{1024*e} sc1")
    P("s_barrier")
    P(f"v_lshrrev_b32 v{T}, 4, v0")
    P(f"v_bfe_u32 v{T+1}, v0, 2, 2")
    P(f"v_and_b32 v{T+2}, 3, v0")
    P(f"v_lshlrev_b32 v{T}, 3, v{T}")
    P(f"v_add_u32 v{T}, 7, v{T}")
    P(f"v_sub_u32 v{T}, v{T}, v{T+1}")
    P(f"v_lshrrev_b32 v{T+3}, 1, v{T+2}")
    P(f"v_and_b32 v{T+2}, 1, v{T+2}")
    P("s_and_b32 s53, s3, 1")
    P("s_lshl_b32 s53, s53, 7")
    P("s_lshr_b32 s55, s3, 1")
    P("s_lshl_b32 s55, s55, 8")
    P(f"s_add_u32 s55, s55, {XB}")
    for rr in range(2):
        if rr: P(f"v_subrev_u32 v{T}, 4, v{T}")
        P(f"v_and_b32 v{T+4}, 15, v{T}")
        P(f"v_xor_b32 v{T+4}, v{T+4}, v{T+3}")
        P(f"v_lshlrev_b32 v{T+4}, 4, v{T+4}")
        P(f"v_xor_b32 v{T+4}, s53, v{T+4}")
        P(f"v_lshl_add_u32 v{T+4}, v{T+2}, 3, v{T+4}")
        P(f"v_lshl_add_u32 v{T+4}, v{T}, 10, v{T+4}")
        P(f"v_add_u32 v{T+5+rr}, s55, v{T+4}")
    P(f"v_and_b32 v{T}, 15, v0")
    P(f"v_lshrrev_b32 v{T+1}, 4, v0")
    P(f"v_lshlrev_b32 v{T}, 12, v{T}")
    P(f"v_lshl_add_u32 v{T}, v{T+1}, 4, v{T}")
    P("s_lshl_b32 s53, s3, 18")
    P("s_lshl_b32 s55, s14, 7")
    P("s_add_u32 s53, s53, s55")
    for D in range(4):
        for rr in range(2):
            P(f"v_xor_b32 v{T+7+rr}, {32*D}, v{T+5+rr}")
        for half in range(2):
            for rr in range(2):
                d = X + 8 * D + 4 * half + 2 * rr
                P(f"ds_read_b64_tr_b16 v[{d}:{d+1}], v{T+7+rr} offset:{32768*half}")
    P("s_waitcnt lgkmcnt(0)")
    for D in range(4):
        P(f"s_add_u32 s55, s53, {65536*D}")
        for half in range(2):
            d = X + 8 * D + 4 * half
            P(f"buffer_store_dwordx4 v[{d}:{d+3}], v{T}, s[24:27], s55 offen offset:{64*half} sc1")
    if AUXRB[0]:
        P("s_waitcnt vmcnt(8)")
        rb_store(P, 0, 32768, T, 64)
    prof(P, 1, pr)
    P("s_endpgm")
```

```python
import re, os, sys
from dsl import Prog, Ins
import k1d, k2, aux
from k2 import *
WS_FL1 = WS_FLB + 0x40000
WS_FL1B = WS_FLB + 0x10000
WS_FLX = WS_FLB + 0x20000
WS_FL2 = WS_FLB + 0x8000
SLEEP = [int(os.environ.get('SLEEP', '4'))]
AUXL = [int(os.environ.get('AUXL', '0'))]
P3L = [int(os.environ.get('P3L', '0'))]
PW = [int(os.environ.get('PW', '0'))]
REP = [int(os.environ.get('REP', '8'))]
SL3 = [int(os.environ.get('SL3', '2'))]
M4 = [int(os.environ.get('M4', '0'))]
TOUCH = [int(os.environ.get('TOUCH', '1'))]
KN = "parallel_sum__ssm_conv_s4__mixer_gmlp__prompt_kernel"

def lines_of(P): return [l.text for l in P.lines]

def poll(E, name, va, vd, nlanes):
    mask = (1 << nlanes) - 1
    E(f"s_mov_b32 exec_lo, {mask & 0xffffffff:#x}")
    E(f"s_mov_b32 exec_hi, {mask >> 32:#x}")
    E("s_mov_b32 s95, 0")
    E(f"{name}:")
    E(f"global_load_dwordx2 v[{vd}:{vd+1}], v{va}, s[8:9] sc0 sc1")
    E("s_add_u32 s95, s95, 1")
    E("s_waitcnt vmcnt(0)")
    E(f"v_cmp_ne_u64 vcc, s[96:97], v[{vd}:{vd+1}]")
    E("s_nop 1")
    E("s_cmp_eq_u64 vcc, 0")
    E(f"s_cbranch_scc1 {name}_ok")
    E(f"s_sleep {SL3[0]}")
    E("s_cmp_lt_u32 s95, 0x100000")
    E(f"s_cbranch_scc1 {name}")
    E(f"{name}_ok:")
    E("s_mov_b64 exec, -1")

XWW = 4 * 24576 + 14080 + 14072
CN1 = 4 * 24576 + 2 * 14080 + 14072
CN2 = 4 * 24576 + 3 * 14080 + 14072
GOW = 4 * 24576 + 14072
def ldswait(E, name, va, vd, val=1, sleep=True):
    E("s_mov_b32 s95, 0")
    E(f"{name}:")
    E(f"ds_read_b32 v{vd}, v{va}")
    E("s_add_u32 s95, s95, 1")
    E("s_waitcnt lgkmcnt(0)")
    E(f"v_readfirstlane_b32 s94, v{vd}")
    E(f"s_cmp_eq_u32 s94, {val}")
    E(f"s_cbranch_scc1 {name}_ok")
    if sleep: E("s_sleep 8" if name == "p2_xw" else "s_sleep 1")
    E("s_cmp_lt_u32 s95, 0x1000000")
    E(f"s_cbranch_scc1 {name}")
    E(f"{name}_ok:")

def phase3(P, pr):
    P("s_and_b32 s12, s2, 7")
    P("s_lshr_b32 s13, s2, 3")
    P("s_lshl_b32 s14, s12, 2")
    P("s_and_b32 s15, s13, 3")
    P("s_add_u32 s14, s14, s15")
    P("s_lshr_b32 s15, s13, 2")
    srd(P, 24, 8, 0x400000, WS_HF)
    srd(P, 28, 8, 896 * 1024, WS_WOF)
    srd(P, 32, 8, 0x200000, WS_YAT)
    T = 2; VL = 10; VH = 12; VO = 16
    P(f"v_lshlrev_b32 v{VL}, 4, v0")
    for tau in range(4):
        P(f"s_add_u32 s53, s3, {tau}")
        P("s_and_b32 s53, s53, 3")
        P("s_lshl_b32 s53, s53, 10")
        P(f"v_add_u32 v{VH+tau}, s53, v{VL}")
    P("s_lshr_b32 s59, s3, 2")
    P("s_lshl_b32 s53, s59, 11")
    P(f"v_add_u32 v{VO}, s53, v{VL}")
    P(f"v_xor_b32 v{VO+1}, 2048, v{VO}")
    P("s_lshl_b32 s52, s3, 2")
    P("s_mul_i32 s53, s3, 3")
    P("s_add_u32 s53, s53, 4")
    P("s_cmp_lt_u32 s3, 4")
    P("s_cselect_b32 s52, s52, s53")
    P("s_mul_i32 s54, s14, 28")
    P("s_add_u32 s54, s54, s52")
    P("s_lshl_b32 s54, s54, 12")
    P("s_mul_i32 s55, s15, 28")
    P("s_add_u32 s55, s55, s52")
    P("s_lshl_b32 s55, s55, 12")
    P("s_waitcnt lgkmcnt(0)")
    srd(P, 16, 4, 2048 * 512 * 2)
    srd(P, 20, 100, 2048 * 512 * 2)
    XR = 20
    P(f"v_and_b32 v{T}, 15, v0")
    P(f"v_lshrrev_b32 v{T+1}, 4, v0")
    P(f"v_lshlrev_b32 v{T}, 10, v{T}")
    P(f"v_lshl_add_u32 v{VL+1}, v{T+1}, 4, v{T}")
    P("s_lshl_b32 s58, s14, 16")
    P("s_and_b32 s57, s3, 3")
    P("s_lshl_b32 s57, s57, 14")
    P("s_add_u32 s58, s58, s57")
    P("s_lshl_b32 s57, s15, 7")
    P("s_add_u32 s58, s58, s57")
    P("s_lshl_b32 s57, s59, 6")
    P("s_add_u32 s58, s58, s57")
    P(f"buffer_load_dwordx4 v[{XR}:{XR+3}], v{VL+1}, s[16:19], s58 offen")
    P("s_lshl_b32 s53, s14, 7")
    P(f"s_add_u32 s53, s53, {WS_FL2 + 4096}")
    P("s_lshl_b32 s57, s15, 8")
    P(f"s_add_u32 s57, s57, {WS_FL2 - 64}")
    P(f"v_mov_b32 v{T}, s53")
    P(f"v_mov_b32 v{T+1}, s57")
    P(f"v_cmp_gt_u32 vcc, 8, v0")
    P(f"v_cndmask_b32 v{T}, v{T+1}, v{T}, vcc")
    P(f"v_lshl_add_u32 v{T}, v0, 3, v{T}")
    if k2.DEC[0]:
        P("s_lshl_b32 s53, s14, 7")
        P(f"s_add_u32 s53, s53, {WS_FL2 + 8192}")
        P(f"v_lshlrev_b32 v{T}, 3, v0")
        P(f"v_add_u32 v{T}, s53, v{T}")
    prof(P, 0, pr)
    def E(t):
        if t.endswith(':'): P.label(t[:-1])
        else: P(t)
    if M4[0]:
        P(f"v_mov_b32 v{T+4}, {CN2}")
        ldswait(E, "p3_cn", T + 4, T + 5, 4)
    if P3L[0] == 1: p3early(P)
    P(f"s_cmp_lg_u32 s3, {PW[0]}")
    P("s_cbranch_scc1 p3_np")
    poll(E, "p3_poll", T, T + 2, 8 if k2.DEC[0] else 40)
    P.label("p3_np")
    P("s_barrier")
    prof(P, 1, pr)
    HB = 80
    def hl(k):
        P(f"s_add_u32 s56, s54, {4096*k}")
        for tau in range(4):
            r = HB + 16 * k + 4 * tau
            P(f"buffer_load_dwordx4 v[{r}:{r+3}], v{VH+tau}, s[24:27], s56 offen sc1")
    AREA = 14 * 1024; YB = 8 * AREA
    P(f"v_lshrrev_b32 v{T}, 3, v0")
    P(f"v_and_b32 v{T+1}, 7, v0")
    P(f"v_lshlrev_b32 v{T+1}, 4, v{T+1}")
    P(f"v_lshl_add_u32 v{T+1}, v{T}, 12, v{T+1}")
    P("s_lshl_b32 s56, s15, 18")
    P("s_lshl_b32 s57, s3, 15")
    P("s_add_u32 s56, s56, s57")
    P("s_lshl_b32 s57, s14, 7")
    P("s_add_u32 s60, s56, s57")
    P("s_lshl_b32 s57, s3, 10")
    P(f"s_add_u32 m0, s57, {YB}")
    def acc(pi, sg_, tau):
        i = (2 * pi + sg_) * 4 + tau
        return f"a[{64+4*i}:{67+4*i}]" if 0 < (i & ~4) and i - (2 if i > 4 else 1) < 12 and i not in (0, 4) and False else None
    others = [(pi, sg_, tau) for pi in range(2) for tau in range(4) for sg_ in range(2) if not (pi == 0 and tau == 0)]
    amap = {}
    for sg_ in range(2): amap[(0, sg_, 0)] = f"v[{24+4*sg_}:{27+4*sg_}]"
    for n_, key in enumerate(others):
        amap[key] = f"a[{4*ACQ[n_]}:{4*ACQ[n_]+3}]" if n_ < 12 else f"v[{32+4*(n_-12)}:{35+4*(n_-12)}]"
    def mf(k):
        for pi in range(2):
            for sg_ in range(2):
                for tau in range(4):
                    a = amap[(pi, sg_, tau)]; r = 4 * WOQ[4 * k + 2 * pi + sg_]; h = HB + 16 * k + 4 * tau
                    P(f"v_mfma_f32_16x16x32_bf16 {a}, a[{r}:{r+3}], v[{h}:{h+3}], {'0' if k == 0 else a}")
    P("s_cmp_ge_u32 s3, 4")
    P("s_cbranch_scc1 p3_3")
    D = 0 if k2.DEC[0] else 1
    for k in range(4): hl(k)
    if D: P(f"buffer_load_dwordx4 v{T+1}, s[32:35], s60 offen sc1 lds")
    for k in range(4):
        P(f"s_waitcnt vmcnt({D + 4*(3-k)})"); mf(k)
    P("s_branch p3_red")
    P.label("p3_3")
    for k in range(3): hl(k)
    if D: P(f"buffer_load_dwordx4 v{T+1}, s[32:35], s60 offen sc1 lds")
    else:
        P("s_sub_u32 s53, s3, 4")
        P("s_lshl_b32 s57, s15, 10")
        P("s_lshl_b32 s56, s53, 8")
        P("s_add_u32 s57, s57, s56")
        P(f"s_add_u32 s57, s57, {WS_FL2}")
        P(f"v_and_b32 v{T+4}, 31, v0")
        P(f"v_lshlrev_b32 v{T+4}, 3, v{T+4}")
        P(f"v_add_u32 v{T+4}, s57, v{T+4}")
        P(f"global_load_dwordx2 v[{T+6}:{T+7}], v{T+4}, s[8:9] sc0 sc1")
    for k in range(3):
        P(f"s_waitcnt vmcnt({1 + 4*(2-k)})"); mf(k)
    if not D:
        P("s_waitcnt vmcnt(0)")
        z1check(E, "p3_y", T + 4, T + 6)
        P("s_lshl_b32 s56, s15, 18")
        P("s_lshl_b32 s57, s53, 16")
        P("s_add_u32 s56, s56, s57")
        P("s_lshl_b32 s57, s14, 7")
        P("s_add_u32 s60, s56, s57")
        P("s_lshl_b32 s57, s53, 11")
        P(f"s_add_u32 m0, s57, {YB}")
        P("s_add_u32 s61, s60, 32768")
        P(f"buffer_load_dwordx4 v{T+1}, s[32:35], s60 offen sc1 lds")
        P(f"s_add_u32 m0, s57, {YB + 1024}")
        P("s_nop 0")
        P(f"buffer_load_dwordx4 v{T+1}, s[32:35], s61 offen sc1 lds")
    P.label("p3_red")
    prof(P, 2, pr)
    P(f"s_mul_i32 s52, s3, {AREA}")
    P(f"v_add_u32 v{T}, s52, v{VL}")
    for n_, key in enumerate(others):
        P(f"ds_write_b128 v{T}, {amap[key]} offset:{1024*n_}")
    P("s_waitcnt vmcnt(0) lgkmcnt(0)")
    P("s_barrier")
    R = 40
    gi = 0
    for pi in range(2):
        for tau in range(4):
            if pi == 0 and tau == 0: continue
            P(f"s_sub_u32 s53, s3, {tau}")
            P("s_and_b32 s53, s53, 3")
            P(f"s_xor_b32 s57, s59, {pi}")
            P("s_lshl_b32 s57, s57, 2")
            P("s_add_u32 s53, s53, s57")
            P(f"s_mul_i32 s53, s53, {AREA}")
            P(f"v_add_u32 v{T+(gi&1)}, s53, v{VL}")
            for sg_ in range(2):
                r = R + 8 * gi + 4 * sg_
                P(f"ds_read_b128 v[{r}:{r+3}], v{T+(gi&1)} offset:{1024*(2*gi+sg_)}")
            gi += 1
    P(f"v_lshrrev_b32 v{T+2}, 4, v0")
    P(f"v_bfe_u32 v{T+3}, v0, 2, 2")
    P(f"v_and_b32 v{T+4}, 3, v0")
    P(f"v_lshl_add_u32 v{T+2}, v{T+2}, 3, v{T+3}")
    P(f"v_lshlrev_b32 v{T+2}, 7, v{T+2}")
    P(f"v_lshl_add_u32 v{T+2}, v{T+4}, 3, v{T+2}")
    P("s_and_b32 s53, s3, 3")
    P("s_lshl_b32 s53, s53, 5")
    P("s_lshl_b32 s57, s59, 12")
    P("s_add_u32 s53, s53, s57")
    P(f"s_add_u32 s53, s53, {YB}")
    P(f"v_add_u32 v{T+2}, s53, v{T+2}")
    YA = 32
    P("s_waitcnt lgkmcnt(0)")
    for eta in range(2):
        P(f"ds_read_b64_tr_b16 v[{YA+2*eta}:{YA+2*eta+1}], v{T+2} offset:{512*eta}")
    for i in range(8):
        P(f"v_add_f32 v{24+i}, v{24+i}, v{R+i}")
        P(f"v_add_f32 v{R+8+i}, v{R+8+i}, v{R+16+i}")
        P(f"v_add_f32 v{R+24+i}, v{R+24+i}, v{R+32+i}")
        P(f"v_add_f32 v{R+40+i}, v{R+40+i}, v{R+48+i}")
    for i in range(8):
        P(f"v_add_f32 v{24+i}, v{24+i}, v{R+8+i}")
        P(f"v_add_f32 v{R+24+i}, v{R+24+i}, v{R+40+i}")
    for i in range(8): P(f"v_add_f32 v{24+i}, v{24+i}, v{R+24+i}")
    P("s_mov_b32 s65, 0xffff0000")
    P("s_waitcnt lgkmcnt(0)")
    for q in range(4):
        a = 24 + 2 * q
        P(f"v_cvt_pk_bf16_f32 v{T}, v{a}, v{a+1}")
        P(f"v_lshlrev_b32 v{T+2}, 16, v{XR+q}")
        P(f"v_and_b32 v{T+3}, s65, v{XR+q}")
        P(f"v_lshlrev_b32 v{T+4}, 16, v{YA+q}")
        P(f"v_and_b32 v{T+5}, s65, v{YA+q}")
        P(f"v_add_f32 v{T+2}, v{T+2}, v{T+4}")
        P(f"v_add_f32 v{T+3}, v{T+3}, v{T+5}")
        P(f"v_cvt_pk_bf16_f32 v{T+4}, v{T+2}, v{T+3}")
        P(f"v_lshlrev_b32 v{T+2}, 16, v{T+4}")
        P(f"v_and_b32 v{T+3}, s65, v{T+4}")
        P(f"v_lshlrev_b32 v{T+4}, 16, v{T}")
        P(f"v_and_b32 v{T+5}, s65, v{T}")
        P(f"v_add_f32 v{T+2}, v{T+2}, v{T+4}")
        P(f"v_add_f32 v{T+3}, v{T+3}, v{T+5}")
        P(f"v_cvt_pk_bf16_f32 v{R+q}, v{T+2}, v{T+3}")
    P(f"buffer_store_dwordx4 v[{R}:{R+3}], v{VL+1}, s[20:23], s58 offen")
    prof(P, 3, pr)
    if pr: P("s_waitcnt vmcnt(0)")
    prof(P, 4, pr)

CNT = [0]
def early2(P):
    n = CNT[0]; CNT[0] += 1
    if n == 1:
        P("s_waitcnt lgkmcnt(0)")
        P("s_barrier")
    P("s_lshl_b32 s57, s2, 8")
    P(f"s_add_u32 s57, s57, {WS_FLX}")
    P("v_and_b32 v132, 31, v0")
    P("v_lshlrev_b32 v132, 3, v132")
    P("v_add_u32 v132, s57, v132")
    P("s_cmp_lt_u32 s3, 4")
    P(f"s_cbranch_scc1 e2_done{n}")
    P.label(f"e2_conv{n}")
    PAR = 104; V = 112
    P("s_sub_u32 s56, s3, 4")
    P("s_lshr_b32 s57, s56, 1")
    P("s_lshl_b32 s61, s2, 1")
    P("s_add_u32 s61, s61, s57")
    P(f"s_mul_i32 s56, s56, {CW_AREA}")
    P(f"s_add_u32 s56, s56, {4*24576}")
    P(f"v_mov_b32 v{V}, s56")
    P(f"v_mov_b32 v{V+4}, 0")
    P(f"v_mov_b32 v{V+5}, 0")
    P(f"ds_write_b64 v{V}, v[{V+4}:{V+5}] offset:14072")
    P(f"v_lshlrev_b32 v{V+2}, 2, v0")
    P("s_lshl_b32 s57, s61, 8")
    P(f"v_add_u32 v{V+2}, s57, v{V+2}")
    P("s_lshl_b32 s57, s61, 1")
    P(f"v_mov_b32 v{V+3}, s57")
    for k in range(6):
        P(f"global_load_dword v{PAR+k}, v{V+2}, s[{68+2*k}:{69+2*k}]")
    P(f"global_load_ushort v{PAR+6}, v{V+3}, s[80:81]")
    P(f"global_load_ushort v{PAR+7}, v{V+3}, s[82:83]")
    if k2.XE[0]: P("global_load_dwordx2 v[134:135], v132, s[8:9] sc0 sc1")
    P.label(f"e2_done{n}")

FREEQ = [4 * ft + t for ft in range(7) for t in (1, 2, 3)]
WOQ = FREEQ[:16]
ACQ = FREEQ[16:] + [4 * ft for ft in range(7)]
def p3early(P):
    n = CNT[0]; CNT[0] += 1
    srd(P, 44, 8, 896 * 1024, WS_WOF)
    P("s_lshl_b32 s84, s3, 2")
    P("s_mul_i32 s85, s3, 3")
    P("s_add_u32 s85, s85, 4")
    P("s_cmp_lt_u32 s3, 4")
    P("s_cselect_b32 s84, s84, s85")
    P("s_lshr_b32 s85, s2, 5")
    P("s_mul_i32 s85, s85, 28")
    P("s_add_u32 s85, s85, s84")
    P("s_lshl_b32 s85, s85, 12")
    P("s_lshr_b32 s86, s3, 2")
    P("s_lshl_b32 s86, s86, 11")
    P("v_lshlrev_b32 v1, 4, v0")
    for k in range(4):
        for pi in range(2):
            P(f"s_xor_b32 s87, s86, {2048*pi}")
            P("s_add_u32 s87, s87, s85")
            P(f"s_add_u32 s87, s87, {4096*k}")
            for sg_ in range(2):
                r = 4 * WOQ[4 * k + 2 * pi + sg_]
                P(f"buffer_load_dwordx4 a[{r}:{r+3}], v1, s[44:47], s87 offen offset:{1024*sg_} sc1")
    return 16

def signal_to(E, tag, code, nl, drain=True):
    E("s_waitcnt vmcnt(0) lgkmcnt(0)" if drain else "s_waitcnt lgkmcnt(0)")
    E("s_barrier")
    E("s_cmp_lg_u32 s3, 0")
    E(f"s_cbranch_scc1 {tag}_ns")
    for c in code: E(c)
    E("v_mov_b32 v4, s96")
    E("v_mov_b32 v5, s97")
    E(f"s_mov_b32 exec_lo, {((1 << nl) - 1) & 0xffffffff:#x}")
    E(f"s_mov_b32 exec_hi, {((1 << nl) - 1) >> 32:#x}")
    E("global_store_dwordx2 v2, v[4:5], s[8:9] sc0 sc1")
    E("s_mov_b64 exec, -1")
    E(f"{tag}_ns:")
def sig1(P, n):
    def E(t):
        if t.endswith(':'): P.label(t[:-1])
        else: P(t)
    signal_to(E, f"p1{n}", ["s_lshl_b32 s53, s2, 3", f"s_add_u32 s53, s53, {WS_FL1}", "v_lshlrev_b32 v2, 11, v0", "v_add_u32 v2, s53, v2"], REP[0])
    if n == 1 and AUXL[0]:
        P("v_lshlrev_b32 v112, 7, v0")
        P("s_lshl_b32 s56, s14, 18")
        P("s_lshl_b32 s57, s3, 13")
        P("s_add_u32 s56, s56, s57")
        P(f"s_add_u32 s56, s56, {65536 * aux.AUXT[0]}")
        for e in range(AUXL[0]):
            P("buffer_load_dword v143, v112, s[36:39], s56 offen")
            P("s_add_u32 s56, s56, 65536")
    P("s_cmp_ge_u32 s3, 4")
    P(f"s_cbranch_scc1 s1_nw{n}")
    V = 112
    if TOUCH[0] == 2 and n == 0:
        P("s_lshl_b32 s56, s14, 18")
        P(f"s_add_u32 s56, s56, {48*4096}")
        P(f"v_lshlrev_b32 v{V}, 7, v0")
        P("s_lshl_b32 s57, s15, 13")
        P("s_cmp_eq_u32 s3, 1")
        P("s_cbranch_scc1 s1_q1")
        P("s_mov_b32 s57, 57344")
        P("s_cmp_lg_u32 s3, 2")
        P("s_cbranch_scc1 s1_q2")
        P("s_cmp_lg_u32 s15, 0")
        P("s_cbranch_scc1 s1_q2")
        P.label("s1_q1")
        P("s_add_u32 s56, s56, s57")
        P(f"buffer_load_dword v143, v{V}, s[36:39], s56 offen")
        P.label("s1_q2")
    if TOUCH[0] == 1:
        P("s_and_b32 s56, s2, 7")
        P("s_lshl_b32 s56, s56, 5")
        P("s_lshr_b32 s57, s2, 3")
        P("s_add_u32 s56, s56, s57")
        P("s_lshl_b32 s56, s56, 15")
        P(f"v_lshlrev_b32 v{V}, 7, v0")
        P("s_cmp_eq_u32 s3, 0")
        P(f"s_cbranch_scc1 s1_t2{n}")
        P("s_cmp_lg_u32 s3, 3")
        P(f"s_cbranch_scc1 s1_t1{n}")
        P(f"buffer_load_dword v143, v{V}, s[36:39], s56 offen")
        P.label(f"s1_t1{n}")
        P("s_lshl_b32 s57, s3, 13")
        P("s_add_u32 s56, s56, s57")
        P(f"buffer_load_dword v143, v{V}, s[36:39], s56 offen")
        P.label(f"s1_t2{n}")
    P(f"v_lshrrev_b32 v{V}, 3, v0")
    P(f"v_and_b32 v{V+1}, 7, v0")
    P(f"v_lshrrev_b32 v{V+2}, 1, v{V}")
    P(f"v_xor_b32 v{V+1}, v{V+1}, v{V+2}")
    P(f"v_lshlrev_b32 v{V+1}, 4, v{V+1}")
    P(f"v_lshl_add_u32 v{V+1}, v{V}, 12, v{V+1}")
    P(f"v_xor_b32 v{V+2}, 64, v{V+1}")
    P("s_and_b32 s56, s2, 7")
    P("s_lshr_b32 s56, s56, 1")
    P("s_lshl_b32 s56, s56, 3")
    P("s_bfe_u32 s57, s2, 0x30003")
    P("s_add_u32 s56, s56, s57")
    P("s_lshl_b32 s56, s56, 18")
    P("s_lshl_b32 s57, s3, 10")
    P("s_add_u32 s56, s56, s57")
    P("s_mul_i32 s57, s3, 24576")
    for q in range(2):
        for e in range(8):
            P(f"s_add_u32 m0, s57, {q*8192 + e*1024}")
            P(f"s_add_u32 s61, s56, {q*128 + e*32768}")
            P(f"buffer_load_dwordx4 v{V+1+(e&1)}, s[36:39], s61 offen lds")
    if n == 1 and k2.XE[0]:
        P(f"s_branch s1_x{n}")
    P.label(f"s1_nw{n}")
    if n == 1 and k2.XE[0]:
        P("s_sub_u32 s56, s3, 4")
        P("s_lshl_b32 s56, s56, 14")
        P("s_lshl_b32 s57, s14, 3")
        P("s_add_u32 s56, s56, s57")
        P(f"s_add_u32 s56, s56, {WS_FLX}")
        P("v_lshlrev_b32 v2, 8, v0")
        P("v_add_u32 v2, s56, v2")
        P("v_mov_b32 v4, s96")
        P("v_mov_b32 v5, s97")
        P("global_store_dwordx2 v2, v[4:5], s[8:9] sc0 sc1")
        P.label(f"s1_x{n}")
    P("s_lshl_b32 s93, s14, 3")
    P("s_add_u32 s93, s93, s15")
    P("s_lshl_b32 s93, s93, 3")
    P("s_add_u32 s93, s93, s3")
    P("s_lshl_b32 s93, s93, 3")
    P(f"s_add_u32 s93, s93, {WS_FL1B}")
def z1flag(E, va):
    E(f"v_mov_b32 v{va}, s93")
    E(f"v_mov_b32 v{va+1}, s96")
    E(f"v_mov_b32 v{va+2}, s97")
    E("s_mov_b64 exec, 1")
    E(f"global_store_dwordx2 v{va}, v[{va+1}:{va+2}], s[8:9] sc0 sc1")
    E("s_mov_b64 exec, -1")
def z1issue(E, va, vd):
    E("s_mul_i32 s64, s15, 112")
    E("s_lshr_b32 s62, s64, 7")
    E("s_add_u32 s64, s64, 111")
    E("s_lshr_b32 s63, s64, 7")
    E("s_sub_u32 s63, s63, s62")
    E("s_lshl_b32 s63, s63, 6")
    E("s_lshl_b32 s64, s14, 3")
    E("s_add_u32 s64, s64, s62")
    E("s_lshl_b32 s64, s64, 6")
    E(f"s_add_u32 s64, s64, {WS_FL1B}")
    E(f"v_bfe_u32 v{va}, v0, 3, 1")
    E(f"v_mul_u32_u24 v{va}, s63, v{va}")
    E(f"v_and_b32 v{vd}, 7, v0")
    E(f"v_lshl_add_u32 v{va}, v{vd}, 3, v{va}")
    E(f"v_add_u32 v{va}, s64, v{va}")
    E(f"global_load_dwordx2 v[{vd}:{vd+1}], v{va}, s[8:9] sc0 sc1")
def z1check(E, name, va, vd):
    E(f"v_cmp_ne_u64 vcc, s[96:97], v[{vd}:{vd+1}]")
    E("s_nop 1")
    E("s_cmp_eq_u64 vcc, 0")
    E(f"s_cbranch_scc1 {name}_ok")
    poll(E, name, va, vd, 64)

def build(pr=False):
    k2.HOOKS['sig1'] = sig1
    if not P3L[0]: k2.HOOKS['p3early'] = p3early
    k2.HOOKS['t1'] = early2
    out = []
    E = out.append
    k2.PROF_K[0] = 0
    P1 = Prog(); k1d.gen_k1(P1, aux=aux.aux, pr=pr)
    L1 = lines_of(P1)
    def amap(m):
        if m.group(1):
            lo, hi = int(m.group(1)), int(m.group(2))
            return f"v[{lo+16}:{hi+16}]" if lo >= 112 else m.group(0)
        n = int(m.group(3)); return f"v{n+16}" if n >= 112 else m.group(0)
    L1 = [re.sub(r'\ba\[(\d+):(\d+)\]|\ba(\d+)\b', amap, l) for l in L1]
    nend = 0
    for l in L1:
        if l == "k1_kernel:": E(KN + ":"); continue
        if l == "k1_end:": break
        if l == "s_cbranch_scc1 k1_end": E("s_cbranch_scc1 f_end"); continue
        if l == "s_lshl_b32 s53, s14, 3" and 'nonce_addr' not in globals():
            globals()['nonce_addr'] = 1; E("s_mov_b32 s53, 0"); continue
        if l == "s_or_b32 s53, s15, s3": E("s_or_b32 s53, s2, s3"); continue
        if l == "s_endpgm":
            nend += 1
            if nend == 1: E("s_branch p1_done")
            else:
                PE = Prog(); early2(PE)
                for x_ in lines_of(PE): E(x_)
                E("v_mov_b32 v13, 0")
                E("s_mov_b32 s95, 0")
                E("aux_nonce:")
                E("global_load_dwordx2 v[14:15], v13, s[10:11] sc0 sc1")
                E("s_add_u32 s95, s95, 1")
                E("s_waitcnt vmcnt(0)")
                E("v_readfirstlane_b32 s96, v14")
                E("v_readfirstlane_b32 s97, v15")
                E("s_cmp_lg_u32 s96, 0")
                E("s_cbranch_scc1 aux_sig")
                E("s_cmp_lt_u32 s95, 0x200000")
                E("s_cbranch_scc1 aux_nonce")
                E("aux_sig:")
                PE = Prog(); sig1(PE, 1)
                for x_ in lines_of(PE): E(x_)
            continue
        E(l)
    globals().pop('nonce_addr', None)
    E("p1_done:")
    E("s_setprio 0")
    k2.PROF_K[0] = 1
    P2 = Prog(); k2.gen_k2(P2, pr=pr)
    L2 = lines_of(P2)
    skip = {"k2_kernel:", "s_cmp_ge_u32 s2, 256", "s_cbranch_scc1 k2_end", "v_lshrrev_b32 v1, 6, v0", "v_and_b32 v0, 63, v0",
            "v_readfirstlane_b32 s3, v1", "s_load_dwordx2 s[8:9], s[0:1], 128", "s_load_dwordx2 s[10:11], s[0:1], 64",
            "s_load_dwordx4 s[68:71], s[0:1], 8", "s_load_dwordx4 s[72:75], s[0:1], 24", "s_load_dwordx4 s[76:79], s[0:1], 40", "s_load_dwordx2 s[80:81], s[0:1], 56"}
    firstz = True; firstx = True
    for l in L2:
        if l in skip: continue
        if l == "k2_end:": break
        if l == "s_endpgm": E("s_branch p2_done"); continue
        if l.startswith("buffer_load") and any(f"s[{a}:{a+3}]" in l for a in (20, 24, 36)):
            l = l.replace(" lds", " sc1 lds") if l.endswith(" lds") else l + " sc1"
        if l == "@ZPOLL":
            E(f"v_mov_b32 v22, {GOW}")
            E("s_cmp_lg_u32 s3, 0")
            E("s_cbranch_scc1 p2_lw")
            E(f"s_and_b32 s53, s2, {REP[0]-1}")
            E("s_lshl_b32 s53, s53, 11")
            E(f"s_add_u32 s53, s53, {WS_FL1}")
            E("v_lshlrev_b32 v20, 4, v0")
            E("v_add_u32 v20, s53, v20")
            E("s_mov_b32 s95, 0")
            E("p2_zpoll:")
            E("global_load_dwordx4 v[28:31], v20, s[8:9] sc0 sc1")
            E("global_load_dwordx4 v[32:35], v20, s[8:9] offset:1024 sc0 sc1")
            E("s_add_u32 s95, s95, 1")
            E("s_waitcnt vmcnt(0)")
            E("v_cmp_ne_u64 s[62:63], s[96:97], v[28:29]")
            E("v_cmp_ne_u64 s[64:65], s[96:97], v[30:31]")
            E("v_cmp_ne_u64 s[66:67], s[96:97], v[32:33]")
            E("v_cmp_ne_u64 vcc, s[96:97], v[34:35]")
            E("s_nop 1")
            E("s_or_b64 s[62:63], s[62:63], s[64:65]")
            E("s_or_b64 s[66:67], s[66:67], vcc")
            E("s_or_b64 s[62:63], s[62:63], s[66:67]")
            E("s_cmp_eq_u64 s[62:63], 0")
            E("s_cbranch_scc1 p2_set")
            E(f"s_sleep {SLEEP[0]}")
            E("s_cmp_lt_u32 s95, 0x100000")
            E("s_cbranch_scc1 p2_zpoll")
            E("p2_set:")
            E("s_lshl_b32 s62, s2, 13")
            E("v_lshlrev_b32 v20, 4, v0")
            for e in range(8):
                if e % 4 == 0:
                    E(f"s_mov_b32 m0, {4*24576 + 4*14080 + 512 + 4608*(e//4)}")
                    if e: E("s_add_u32 s62, s62, 4096")
                    else: E("s_nop 0")
                E(f"buffer_load_dwordx4 v20, s[36:39], s62 offen offset:{1024*(e&3)} sc1 lds")
            E("v_mov_b32 v23, 1")
            E("ds_write_b32 v22, v23")
            E("s_branch p2_go")
            E("p2_lw:")
            ldswait(E, "p2_lwl", 22, 23)
            E("p2_go:")
            continue
        if l.startswith("@Z1") and not k2.Z1LATE[0]:
            continue
        if l == "@Z1FLAG":
            z1flag(E, 21); continue
        if l.startswith("@Z1ISSUE"):
            z1issue(E, *map(int, l.split()[1:])); continue
        if l.startswith("@Z1CHECK"):
            z1check(E, "p2_z1w" + l[8:9], *map(int, l.split()[1:])); continue
        if l == "@XEARLY":
            z1check(E, "p2_xe", 132, 134)
            continue
        if l == "@TOUCH":
            E("s_and_b32 s56, s2, 7")
            E("s_lshl_b32 s56, s56, 5")
            E("s_lshr_b32 s57, s2, 3")
            E("s_add_u32 s56, s56, s57")
            E("s_lshl_b32 s56, s56, 15")
            E("s_lshl_b32 s57, s52, 13")
            E("s_add_u32 s56, s56, s57")
            E("v_lshlrev_b32 v2, 7, v0")
            E("buffer_load_dword v143, v2, s[16:19], s56 offen")
            continue
        if l == "@GSYNC":
            E(f"v_mov_b32 v24, {CN1}")
            E("v_mov_b32 v25, 1")
            E("s_waitcnt lgkmcnt(0)")
            E("s_mov_b64 exec, 1")
            E("ds_add_u32 v24, v25")
            E("s_mov_b64 exec, -1")
            ldswait(E, "p2_gs", 24, 25, 4, False)
            continue
        if l == "@HFLAG":
            E(f"v_mov_b32 v24, {CN2}")
            E("v_mov_b32 v25, 1")
            E("s_lshl_b32 s53, s14, 7")
            E("s_lshl_b32 s56, s15, 3")
            E("s_add_u32 s53, s53, s56")
            E(f"s_add_u32 s53, s53, {WS_FL2 + 8192}")
            E("v_mov_b32 v2, s53")
            E("v_mov_b32 v4, s96")
            E("v_mov_b32 v5, s97")
            E("s_waitcnt vmcnt(0)")
            E("s_mov_b64 exec, 1")
            E("ds_add_rtn_u32 v25, v24, v25")
            E("s_waitcnt lgkmcnt(0)")
            E("v_readfirstlane_b32 s94, v25")
            E("s_cmp_lg_u32 s94, 3")
            E("s_cbranch_scc1 p2_hn")
            E("global_store_dwordx2 v2, v[4:5], s[8:9] sc0 sc1")
            E("p2_hn:")
            E("s_mov_b64 exec, -1")
            continue
        if l == "@YFLAG":
            E("s_lshl_b32 s53, s2, 2")
            E("s_add_u32 s53, s53, s52")
            E("s_lshl_b32 s53, s53, 3")
            E(f"s_add_u32 s53, s53, {WS_FL2}")
            E("v_mov_b32 v2, s53")
            E("v_mov_b32 v4, s96")
            E("v_mov_b32 v5, s97")
            E("s_waitcnt vmcnt(0)")
            E("s_mov_b64 exec, 1")
            E("global_store_dwordx2 v2, v[4:5], s[8:9] sc0 sc1")
            E("s_mov_b64 exec, -1")
            continue
        if l == "@XWSET":
            E("s_cmp_lg_u32 s3, 0")
            E("s_cbranch_scc1 p2_xs")
            E(f"v_mov_b32 v21, {XWW}")
            E("v_mov_b32 v22, 1")
            E("ds_write_b32 v21, v22")
            E("p2_xs:")
            continue
        if l == "@XPOLL":
            if k2.Z1LATE[0]:
                E("s_waitcnt vmcnt(0)")
                z1flag(E, 3)
            E(f"v_mov_b32 v2, {XWW}")
            ldswait(E, "p2_xw", 2, 3)
            continue
        E(l)
    E("p2_done:")
    E("s_setprio 0")
    if not k2.DEC[0]:
        signal_to(E, "p2", ["s_lshl_b32 s53, s2, 3", f"s_add_u32 s53, s53, {WS_FL2}", "v_mov_b32 v2, s53",
                      "s_lshl_b32 s53, s14, 7", "s_lshl_b32 s56, s15, 3", "s_add_u32 s53, s53, s56", f"s_add_u32 s53, s53, {WS_FL2 + 4096}",
                      "v_writelane_b32 v2, s53, 1"], 2)
    k2.PROF_K[0] = 2
    k2.PROF_V[0] = 142
    P3 = Prog(); phase3(P3, pr)
    k2.PROF_V[0] = 26
    out += lines_of(P3)
    E("f_end:")
    E("s_endpgm")
    P = Prog()
    for l in out:
        if l.endswith(':'): P.label(l[:-1])
        else: P(l)
    body = P.finish()
    HDR = open('parallel_sum__ssm_conv_s4__mixer_gmlp__prompt.s.ref').read().split('; Override launch')[0]
    first = f"; @launch kernel={KN} grid=(256,1,1) block=(512,1,1) lds=163840" if os.environ.get("ASLIST") else "; @launch grid=(256,1,1) block=(512,1,1) lds=163840"
    return HDR + first + f'''
.amdgcn_target "amdgcn-amd-amdhsa--gfx950"
.text
.globl {KN}
.p2align 8
.type {KN},@function
{body}
.section .rodata,"a"
.p2align 6
.amdhsa_kernel {KN}
  .amdhsa_next_free_vgpr 256
  .amdhsa_next_free_sgpr 102
  .amdhsa_accum_offset 144
  .amdhsa_group_segment_fixed_size 0
  .amdhsa_kernarg_size 136
  .amdhsa_user_sgpr_count 2
  .amdhsa_user_sgpr_kernarg_segment_ptr 1
  .amdhsa_system_sgpr_workgroup_id_x 1
.end_amdhsa_kernel
'''
if __name__ == "__main__":
    k2.FUSED[0] = 1
    if os.environ.get('LF'): k2.LF[0] = int(os.environ['LF'])
    for nm in ('GSPLIT', 'GAT', 'PRI'):
        if os.environ.get(nm): getattr(k1d, nm)[0] = int(os.environ[nm])
    if os.environ.get('PRIO'): k2.PRIO[:] = [int(c) for c in os.environ['PRIO']]
    open(sys.argv[1], 'w').write(build(pr=('prof' in sys.argv)))
```

```python
from k1 import *
from reblk import rb_load, rb_store

LOG2E = math.log2(math.e)
PROWS = [0,1,2,3,4,5,6,7, 256,258,260,262, 512,516,768,772, 1024,1280,1536,1792, 2048]
TROW = 272
QT0 = 21 * TROW
KW_AREA = 16384

def cmul(P, r, a, b, t):
    P(f"v_pk_mul_f32 v[{t}:{t+1}], v[{a}:{a+1}], v[{b}:{b+1}] op_sel:[0,0] op_sel_hi:[1,0]")
    P(f"v_pk_fma_f32 v[{r}:{r+1}], v[{a}:{a+1}], v[{b}:{b+1}], v[{t}:{t+1}] op_sel:[1,1,0] op_sel_hi:[0,1,1] neg_lo:[1,0,0]")

import os
AUXRB = [0]
FW = [int(os.environ.get('FW', '0'))]
HZ = [int(os.environ.get('HZ', '0'))]
AUXT = [int(os.environ.get('AUXT', '0'))]
def aux(P, X, T, VXW, pr):
    P("s_load_dwordx2 s[84:85], s[0:1], 104")
    P("s_waitcnt lgkmcnt(0)")
    srd(P, 20, 84, 896 * 512 * 2)
    srd(P, 24, 8, 0x200000, WS_XNT)
    srd(P, 28, 8, 896 * 1024, WS_WOF)
    P("s_mul_i32 s54, s14, 7")
    P("s_add_u32 s54, s54, s3")
    P("s_mul_i32 s55, s54, 1171")
    P("s_lshr_b32 s55, s55, 15")
    P("s_mul_i32 s56, s55, 28")
    P("s_sub_u32 s56, s54, s56")
    P("s_lshl_b32 s56, s56, 15")
    P("s_lshl_b32 s55, s55, 7")
    P("s_add_u32 s56, s56, s55")
    P(f"v_lshrrev_b32 v{T}, 3, v0")
    P(f"v_and_b32 v{T+1}, 7, v0")
    P(f"v_lshlrev_b32 v{T+1}, 4, v{T+1}")
    P(f"v_lshl_add_u32 v{T+1}, v{T}, 10, v{T+1}")
    WO = 112
    for e in range(4):
        P(f"s_add_u32 s57, s56, {8192*e}")
        P(f"buffer_load_dwordx4 v[{WO+4*e}:{WO+4*e+3}], v{T+1}, s[20:23], s57 offen")
    if AUXRB[0]: rb_load(P, 0, 30)
    if FW[0]:
        P("s_cmp_ge_u32 s3, 2")
        P("s_cbranch_scc1 aux_nofw")
        P("s_and_b32 s56, s14, 15")
        P("s_lshl_b32 s56, s56, 10")
        P(f"s_mov_b32 s57, {WS_FLB + 0x40000}")
        P("s_cmp_eq_u32 s3, 0")
        P(f"s_cselect_b32 s57, s57, {WS_FLB + 0x8000}")
        P("s_add_u32 s56, s56, s57")
        P("v_lshlrev_b32 v30, 4, v0")
        P("v_add_u32 v30, s56, v30")
        P("global_load_dwordx4 v[128:131], v30, s[8:9] sc0 sc1")
        P.label("aux_nofw")
    NT = AUXT[0]
    if NT:
        P("v_lshlrev_b32 v30, 7, v0")
        P("s_lshl_b32 s56, s14, 18")
        P("s_lshl_b32 s57, s3, 13")
        P("s_add_u32 s56, s56, s57")
        for e in range(NT):
            P("buffer_load_dword v31, v30, s[36:39], s56 offen")
            P("s_add_u32 s56, s56, 65536")
    P(f"s_waitcnt vmcnt({(8 if AUXRB[0] else 4) + NT})")
    ln1(P, X, T, 16, 52)
    for r in range(32):
        a, b = T + 4 + (r & 1) * 2, T + 5 + (r & 1) * 2
        P(f"v_lshlrev_b32 v{a}, 16, v{X+r}")
        P(f"v_and_b32 v{b}, 0xffff0000, v{X+r}")
        P(f"v_cvt_pk_f16_f32 v{X+r}, v{a}, v{b}")
    for e in range(8):
        P(f"ds_write_b128 v{VXW+(e&1)}, v[{X+4*e}:{X+4*e+3}] offset:{256*(e>>1)}")
    P(f"v_lshlrev_b32 v{T}, 4, v0")
    P("s_lshl_b32 s53, s3, 12")
    P(f"v_add_u32 v{T}, s53, v{T}")
    P(f"s_waitcnt vmcnt({(4 if AUXRB[0] else 0) + NT})")
    for e in range(4):
        P(f"ds_write_b128 v{T}, v[{WO+4*e}:{WO+4*e+3}] offset:{1024*e}")
    P(f"v_lshrrev_b32 v{T+1}, 2, v0")
    P(f"v_and_b32 v{T+2}, 3, v0")
    P(f"v_lshlrev_b32 v{T+1}, 7, v{T+1}")
    P(f"v_lshl_add_u32 v{T+1}, v{T+2}, 4, v{T+1}")
    P(f"v_add_u32 v{T+1}, s53, v{T+1}")
    P("s_waitcnt lgkmcnt(0)")
    for dt in range(4):
        for eta in range(2):
            d = WO + 4 * dt + 2 * eta
            P(f"ds_read_b64_tr_b16 v[{d}:{d+1}], v{T+1} offset:{2048*eta + 64*(dt>>1) + 8*(dt&1)}")
    P(f"v_lshlrev_b32 v{T}, 4, v0")
    P("s_lshl_b32 s53, s54, 12")
    P("s_waitcnt lgkmcnt(0)")
    P("s_cmp_eq_u32 s3, 7")
    P("s_cbranch_scc1 aux_nowo")
    for dt in range(4):
        P(f"buffer_store_dwordx4 v[{WO+4*dt}:{WO+4*dt+3}], v{T}, s[28:31], s53 offen offset:{1024*dt} sc1")
    P.label("aux_nowo")
    if HZ[0]:
        srd(P, 32, 8, 0x400000, WS_HF)
        P("s_lshr_b32 s53, s3, 1")
        P("s_mul_i32 s53, s53, 7")
        P("s_mul_i32 s55, s14, 28")
        P("s_add_u32 s53, s53, s55")
        P("s_add_u32 s53, s53, 3")
        P("s_lshl_b32 s53, s53, 12")
        P("s_and_b32 s55, s3, 1")
        P("s_lshl_b32 s55, s55, 11")
        P("s_add_u32 s53, s53, s55")
        for e in range(2):
            P(f"buffer_store_dwordx4 v[{WO}:{WO+3}], v{T}, s[32:35], s53 offen offset:{1024*e} sc1")
    P("s_barrier")
    P(f"v_lshrrev_b32 v{T}, 4, v0")
    P(f"v_bfe_u32 v{T+1}, v0, 2, 2")
    P(f"v_and_b32 v{T+2}, 3, v0")
    P(f"v_lshlrev_b32 v{T}, 3, v{T}")
    P(f"v_add_u32 v{T}, 7, v{T}")
    P(f"v_sub_u32 v{T}, v{T}, v{T+1}")
    P(f"v_lshrrev_b32 v{T+3}, 1, v{T+2}")
    P(f"v_and_b32 v{T+2}, 1, v{T+2}")
    P("s_and_b32 s53, s3, 1")
    P("s_lshl_b32 s53, s53, 7")
    P("s_lshr_b32 s55, s3, 1")
    P("s_lshl_b32 s55, s55, 8")
    P(f"s_add_u32 s55, s55, {XB}")
    for rr in range(2):
        if rr: P(f"v_subrev_u32 v{T}, 4, v{T}")
        P(f"v_and_b32 v{T+4}, 15, v{T}")
        P(f"v_xor_b32 v{T+4}, v{T+4}, v{T+3}")
        P(f"v_lshlrev_b32 v{T+4}, 4, v{T+4}")
        P(f"v_xor_b32 v{T+4}, s53, v{T+4}")
        P(f"v_lshl_add_u32 v{T+4}, v{T+2}, 3, v{T+4}")
        P(f"v_lshl_add_u32 v{T+4}, v{T}, 10, v{T+4}")
        P(f"v_add_u32 v{T+5+rr}, s55, v{T+4}")
    P(f"v_and_b32 v{T}, 15, v0")
    P(f"v_lshrrev_b32 v{T+1}, 4, v0")
    P(f"v_lshlrev_b32 v{T}, 12, v{T}")
    P(f"v_lshl_add_u32 v{T}, v{T+1}, 4, v{T}")
    P("s_lshl_b32 s53, s3, 18")
    P("s_lshl_b32 s55, s14, 7")
    P("s_add_u32 s53, s53, s55")
    for D in range(4):
        for rr in range(2):
            P(f"v_xor_b32 v{T+7+rr}, {32*D}, v{T+5+rr}")
        for half in range(2):
            for rr in range(2):
                d = X + 8 * D + 4 * half + 2 * rr
                P(f"ds_read_b64_tr_b16 v[{d}:{d+1}], v{T+7+rr} offset:{32768*half}")
    P("s_waitcnt lgkmcnt(0)")
    for D in range(4):
        P(f"s_add_u32 s55, s53, {65536*D}")
        for half in range(2):
            d = X + 8 * D + 4 * half
            P(f"buffer_store_dwordx4 v[{d}:{d+3}], v{T}, s[24:27], s55 offen offset:{64*half} sc1")
    if AUXRB[0]:
        P("s_waitcnt vmcnt(8)")
        rb_store(P, 0, 32768, T, 64)
    prof(P, 1, pr)
    P("s_endpgm")
```

```python
from k1 import *
from reblk import rb_load, rb_store

LOG2E = math.log2(math.e)
PROWS = [0,1,2,3,4,5,6,7, 256,258,260,262, 512,516,768,772, 1024,1280,1536,1792, 2048]
TROW = 272
QT0 = 21 * TROW
KW_AREA = 16384

def cmul(P, r, a, b, t):
    P(f"v_pk_mul_f32 v[{t}:{t+1}], v[{a}:{a+1}], v[{b}:{b+1}] op_sel:[0,0] op_sel_hi:[1,0]")
    P(f"v_pk_fma_f32 v[{r}:{r+1}], v[{a}:{a+1}], v[{b}:{b+1}], v[{t}:{t+1}] op_sel:[1,1,0] op_sel_hi:[0,1,1] neg_lo:[1,0,0]")

import os
AUXRB = [0]
FW = [int(os.environ.get('FW', '0'))]
HZ = [int(os.environ.get('HZ', '0'))]
AUXT = [int(os.environ.get('AUXT', '0'))]
def aux(P, X, T, VXW, pr):
    P("s_load_dwordx2 s[84:85], s[0:1], 104")
    P("s_waitcnt lgkmcnt(0)")
    srd(P, 20, 84, 896 * 512 * 2)
    srd(P, 24, 8, 0x200000, WS_XNT)
    srd(P, 28, 8, 896 * 1024, WS_WOF)
    P("s_mul_i32 s54, s14, 7")
    P("s_add_u32 s54, s54, s3")
    P("s_mul_i32 s55, s54, 1171")
    P("s_lshr_b32 s55, s55, 15")
    P("s_mul_i32 s56, s55, 28")
    P("s_sub_u32 s56, s54, s56")
    P("s_lshl_b32 s56, s56, 15")
    P("s_lshl_b32 s55, s55, 7")
    P("s_add_u32 s56, s56, s55")
    P(f"v_lshrrev_b32 v{T}, 3, v0")
    P(f"v_and_b32 v{T+1}, 7, v0")
    P(f"v_lshlrev_b32 v{T+1}, 4, v{T+1}")
    P(f"v_lshl_add_u32 v{T+1}, v{T}, 10, v{T+1}")
    WO = 112
    for e in range(4):
        P(f"s_add_u32 s57, s56, {8192*e}")
        P(f"buffer_load_dwordx4 v[{WO+4*e}:{WO+4*e+3}], v{T+1}, s[20:23], s57 offen")
    if AUXRB[0]: rb_load(P, 0, 30)
    if FW[0]:
        P("s_cmp_ge_u32 s3, 2")
        P("s_cbranch_scc1 aux_nofw")
        P("s_and_b32 s56, s14, 15")
        P("s_lshl_b32 s56, s56, 10")
        P(f"s_mov_b32 s57, {WS_FLB + 0x40000}")
        P("s_cmp_eq_u32 s3, 0")
        P(f"s_cselect_b32 s57, s57, {WS_FLB + 0x8000}")
        P("s_add_u32 s56, s56, s57")
        P("v_lshlrev_b32 v30, 4, v0")
        P("v_add_u32 v30, s56, v30")
        P("global_load_dwordx4 v[128:131], v30, s[8:9] sc0 sc1")
        if FW[0] >= 2:
            P("s_branch aux_nofw2")
        P.label("aux_nofw")
        if FW[0] >= 2:
            P("s_lshl_b32 s56, s14, 12")
            P("v_lshlrev_b32 v30, 6, v0")
            P("v_add_u32 v30, s56, v30")
            for k in range(6):
                P(f"s_cmp_lg_u32 s3, {2+k}")
                P(f"s_cbranch_scc1 aux_pw{k}")
                P(f"global_load_dword v128, v30, s[{68+2*k}:{69+2*k}]")
                P.label(f"aux_pw{k}")
            P.label("aux_nofw2")
    NT = AUXT[0]
    if NT:
        P("v_lshlrev_b32 v30, 7, v0")
        P("s_lshl_b32 s56, s14, 18")
        P("s_lshl_b32 s57, s3, 13")
        P("s_add_u32 s56, s56, s57")
        for e in range(NT):
            P("buffer_load_dword v31, v30, s[36:39], s56 offen")
            P("s_add_u32 s56, s56, 65536")
    P(f"s_waitcnt vmcnt({(8 if AUXRB[0] else 4) + NT})")
    ln1(P, X, T, 16, 52)
    for r in range(32):
        a, b = T + 4 + (r & 1) * 2, T + 5 + (r & 1) * 2
        P(f"v_lshlrev_b32 v{a}, 16, v{X+r}")
        P(f"v_and_b32 v{b}, 0xffff0000, v{X+r}")
        P(f"v_cvt_pk_f16_f32 v{X+r}, v{a}, v{b}")
    for e in range(8):
        P(f"ds_write_b128 v{VXW+(e&1)}, v[{X+4*e}:{X+4*e+3}] offset:{256*(e>>1)}")
    P(f"v_lshlrev_b32 v{T}, 4, v0")
    P("s_lshl_b32 s53, s3, 12")
    P(f"v_add_u32 v{T}, s53, v{T}")
    P(f"s_waitcnt vmcnt({(4 if AUXRB[0] else 0) + NT})")
    for e in range(4):
        P(f"ds_write_b128 v{T}, v[{WO+4*e}:{WO+4*e+3}] offset:{1024*e}")
    P(f"v_lshrrev_b32 v{T+1}, 2, v0")
    P(f"v_and_b32 v{T+2}, 3, v0")
    P(f"v_lshlrev_b32 v{T+1}, 7, v{T+1}")
    P(f"v_lshl_add_u32 v{T+1}, v{T+2}, 4, v{T+1}")
    P(f"v_add_u32 v{T+1}, s53, v{T+1}")
    P("s_waitcnt lgkmcnt(0)")
    for dt in range(4):
        for eta in range(2):
            d = WO + 4 * dt + 2 * eta
            P(f"ds_read_b64_tr_b16 v[{d}:{d+1}], v{T+1} offset:{2048*eta + 64*(dt>>1) + 8*(dt&1)}")
    P(f"v_lshlrev_b32 v{T}, 4, v0")
    P("s_lshl_b32 s53, s54, 12")
    P("s_waitcnt lgkmcnt(0)")
    P("s_cmp_eq_u32 s3, 7")
    P("s_cbranch_scc1 aux_nowo")
    for dt in range(4):
        P(f"buffer_store_dwordx4 v[{WO+4*dt}:{WO+4*dt+3}], v{T}, s[28:31], s53 offen offset:{1024*dt} sc1")
    P.label("aux_nowo")
    if HZ[0]:
        srd(P, 32, 8, 0x400000, WS_HF)
        P("s_lshr_b32 s53, s3, 1")
        P("s_mul_i32 s53, s53, 7")
        P("s_mul_i32 s55, s14, 28")
        P("s_add_u32 s53, s53, s55")
        P("s_add_u32 s53, s53, 3")
        P("s_lshl_b32 s53, s53, 12")
        P("s_and_b32 s55, s3, 1")
        P("s_lshl_b32 s55, s55, 11")
        P("s_add_u32 s53, s53, s55")
        for e in range(2):
            P(f"buffer_store_dwordx4 v[{WO}:{WO+3}], v{T}, s[32:35], s53 offen offset:{1024*e} sc1")
    P("s_barrier")
    P(f"v_lshrrev_b32 v{T}, 4, v0")
    P(f"v_bfe_u32 v{T+1}, v0, 2, 2")
    P(f"v_and_b32 v{T+2}, 3, v0")
    P(f"v_lshlrev_b32 v{T}, 3, v{T}")
    P(f"v_add_u32 v{T}, 7, v{T}")
    P(f"v_sub_u32 v{T}, v{T}, v{T+1}")
    P(f"v_lshrrev_b32 v{T+3}, 1, v{T+2}")
    P(f"v_and_b32 v{T+2}, 1, v{T+2}")
    P("s_and_b32 s53, s3, 1")
    P("s_lshl_b32 s53, s53, 7")
    P("s_lshr_b32 s55, s3, 1")
    P("s_lshl_b32 s55, s55, 8")
    P(f"s_add_u32 s55, s55, {XB}")
    for rr in range(2):
        if rr: P(f"v_subrev_u32 v{T}, 4, v{T}")
        P(f"v_and_b32 v{T+4}, 15, v{T}")
        P(f"v_xor_b32 v{T+4}, v{T+4}, v{T+3}")
        P(f"v_lshlrev_b32 v{T+4}, 4, v{T+4}")
        P(f"v_xor_b32 v{T+4}, s53, v{T+4}")
        P(f"v_lshl_add_u32 v{T+4}, v{T+2}, 3, v{T+4}")
        P(f"v_lshl_add_u32 v{T+4}, v{T}, 10, v{T+4}")
        P(f"v_add_u32 v{T+5+rr}, s55, v{T+4}")
    P(f"v_and_b32 v{T}, 15, v0")
    P(f"v_lshrrev_b32 v{T+1}, 4, v0")
    P(f"v_lshlrev_b32 v{T}, 12, v{T}")
    P(f"v_lshl_add_u32 v{T}, v{T+1}, 4, v{T}")
    P("s_lshl_b32 s53, s3, 18")
    P("s_lshl_b32 s55, s14, 7")
    P("s_add_u32 s53, s53, s55")
    for D in range(4):
        for rr in range(2):
            P(f"v_xor_b32 v{T+7+rr}, {32*D}, v{T+5+rr}")
        for half in range(2):
            for rr in range(2):
                d = X + 8 * D + 4 * half + 2 * rr
                P(f"ds_read_b64_tr_b16 v[{d}:{d+1}], v{T+7+rr} offset:{32768*half}")
    P("s_waitcnt lgkmcnt(0)")
    for D in range(4):
        P(f"s_add_u32 s55, s53, {65536*D}")
        for half in range(2):
            d = X + 8 * D + 4 * half
            P(f"buffer_store_dwordx4 v[{d}:{d+3}], v{T}, s[24:27], s55 offen offset:{64*half} sc1")
    if AUXRB[0]:
        P("s_waitcnt vmcnt(8)")
        rb_store(P, 0, 32768, T, 64)
    prof(P, 1, pr)
    P("s_endpgm")
```

```python
from k1 import *
from reblk import rb_load, rb_store

LOG2E = math.log2(math.e)
PROWS = [0,1,2,3,4,5,6,7, 256,258,260,262, 512,516,768,772, 1024,1280,1536,1792, 2048]
TROW = 272
QT0 = 21 * TROW
KW_AREA = 16384

def cmul(P, r, a, b, t):
    P(f"v_pk_mul_f32 v[{t}:{t+1}], v[{a}:{a+1}], v[{b}:{b+1}] op_sel:[0,0] op_sel_hi:[1,0]")
    P(f"v_pk_fma_f32 v[{r}:{r+1}], v[{a}:{a+1}], v[{b}:{b+1}], v[{t}:{t+1}] op_sel:[1,1,0] op_sel_hi:[0,1,1] neg_lo:[1,0,0]")

import os
AUXRB = [0]
WW = [int(os.environ.get('WW', '0'))]
FW = [int(os.environ.get('FW', '0'))]
HZ = [int(os.environ.get('HZ', '0'))]
AUXT = [int(os.environ.get('AUXT', '0'))]
def aux(P, X, T, VXW, pr):
    P("s_load_dwordx2 s[84:85], s[0:1], 104")
    if WW[0]:
        P("s_lshl_b32 s56, s14, 3")
        P("s_add_u32 s56, s56, s3")
        P("s_mul_i32 s56, s56, 7168")
        P("v_lshlrev_b32 v30, 7, v0")
        P("s_mov_b32 exec_hi, 0x00ffffff")
        P("buffer_load_dword v129, v30, s[20:23], s56 offen")
        P("s_mov_b64 exec, -1")
    P("s_waitcnt lgkmcnt(0)")
    srd(P, 20, 84, 896 * 512 * 2)
    srd(P, 24, 8, 0x200000, WS_XNT)
    srd(P, 28, 8, 896 * 1024, WS_WOF)
    P("s_mul_i32 s54, s14, 7")
    P("s_add_u32 s54, s54, s3")
    P("s_mul_i32 s55, s54, 1171")
    P("s_lshr_b32 s55, s55, 15")
    P("s_mul_i32 s56, s55, 28")
    P("s_sub_u32 s56, s54, s56")
    P("s_lshl_b32 s56, s56, 15")
    P("s_lshl_b32 s55, s55, 7")
    P("s_add_u32 s56, s56, s55")
    P(f"v_lshrrev_b32 v{T}, 3, v0")
    P(f"v_and_b32 v{T+1}, 7, v0")
    P(f"v_lshlrev_b32 v{T+1}, 4, v{T+1}")
    P(f"v_lshl_add_u32 v{T+1}, v{T}, 10, v{T+1}")
    WO = 112
    for e in range(4):
        P(f"s_add_u32 s57, s56, {8192*e}")
        P(f"buffer_load_dwordx4 v[{WO+4*e}:{WO+4*e+3}], v{T+1}, s[20:23], s57 offen")
    if AUXRB[0]: rb_load(P, 0, 30)
    if FW[0]:
        P("s_cmp_ge_u32 s3, 2")
        P("s_cbranch_scc1 aux_nofw")
        P("s_and_b32 s56, s14, 15")
        P("s_lshl_b32 s56, s56, 10")
        P(f"s_mov_b32 s57, {WS_FLB + 0x40000}")
        P("s_cmp_eq_u32 s3, 0")
        P(f"s_cselect_b32 s57, s57, {WS_FLB + 0x8000}")
        P("s_add_u32 s56, s56, s57")
        P("v_lshlrev_b32 v30, 4, v0")
        P("v_add_u32 v30, s56, v30")
        P("global_load_dwordx4 v[128:131], v30, s[8:9] sc0 sc1")
        if FW[0] >= 2:
            P("s_branch aux_nofw2")
        P.label("aux_nofw")
        if FW[0] >= 2:
            P("s_lshl_b32 s56, s14, 12")
            P("v_lshlrev_b32 v30, 6, v0")
            P("v_add_u32 v30, s56, v30")
            for k in range(6):
                P(f"s_cmp_lg_u32 s3, {2+k}")
                P(f"s_cbranch_scc1 aux_pw{k}")
                P(f"global_load_dword v128, v30, s[{68+2*k}:{69+2*k}]")
                P.label(f"aux_pw{k}")
            P.label("aux_nofw2")
    NT = AUXT[0]
    if NT:
        P("v_lshlrev_b32 v30, 7, v0")
        P("s_lshl_b32 s56, s14, 18")
        P("s_lshl_b32 s57, s3, 13")
        P("s_add_u32 s56, s56, s57")
        for e in range(NT):
            P("buffer_load_dword v31, v30, s[36:39], s56 offen")
            P("s_add_u32 s56, s56, 65536")
    P(f"s_waitcnt vmcnt({(8 if AUXRB[0] else 4) + NT})")
    ln1(P, X, T, 16, 52)
    for r in range(32):
        a, b = T + 4 + (r & 1) * 2, T + 5 + (r & 1) * 2
        P(f"v_lshlrev_b32 v{a}, 16, v{X+r}")
        P(f"v_and_b32 v{b}, 0xffff0000, v{X+r}")
        P(f"v_cvt_pk_f16_f32 v{X+r}, v{a}, v{b}")
    for e in range(8):
        P(f"ds_write_b128 v{VXW+(e&1)}, v[{X+4*e}:{X+4*e+3}] offset:{256*(e>>1)}")
    P(f"v_lshlrev_b32 v{T}, 4, v0")
    P("s_lshl_b32 s53, s3, 12")
    P(f"v_add_u32 v{T}, s53, v{T}")
    P(f"s_waitcnt vmcnt({(4 if AUXRB[0] else 0) + NT})")
    for e in range(4):
        P(f"ds_write_b128 v{T}, v[{WO+4*e}:{WO+4*e+3}] offset:{1024*e}")
    P(f"v_lshrrev_b32 v{T+1}, 2, v0")
    P(f"v_and_b32 v{T+2}, 3, v0")
    P(f"v_lshlrev_b32 v{T+1}, 7, v{T+1}")
    P(f"v_lshl_add_u32 v{T+1}, v{T+2}, 4, v{T+1}")
    P(f"v_add_u32 v{T+1}, s53, v{T+1}")
    P("s_waitcnt lgkmcnt(0)")
    for dt in range(4):
        for eta in range(2):
            d = WO + 4 * dt + 2 * eta
            P(f"ds_read_b64_tr_b16 v[{d}:{d+1}], v{T+1} offset:{2048*eta + 64*(dt>>1) + 8*(dt&1)}")
    P(f"v_lshlrev_b32 v{T}, 4, v0")
    P("s_lshl_b32 s53, s54, 12")
    P("s_waitcnt lgkmcnt(0)")
    P("s_cmp_eq_u32 s3, 7")
    P("s_cbranch_scc1 aux_nowo")
    for dt in range(4):
        P(f"buffer_store_dwordx4 v[{WO+4*dt}:{WO+4*dt+3}], v{T}, s[28:31], s53 offen offset:{1024*dt} sc1")
    P.label("aux_nowo")
    if HZ[0]:
        srd(P, 32, 8, 0x400000, WS_HF)
        P("s_lshr_b32 s53, s3, 1")
        P("s_mul_i32 s53, s53, 7")
        P("s_mul_i32 s55, s14, 28")
        P("s_add_u32 s53, s53, s55")
        P("s_add_u32 s53, s53, 3")
        P("s_lshl_b32 s53, s53, 12")
        P("s_and_b32 s55, s3, 1")
        P("s_lshl_b32 s55, s55, 11")
        P("s_add_u32 s53, s53, s55")
        for e in range(2):
            P(f"buffer_store_dwordx4 v[{WO}:{WO+3}], v{T}, s[32:35], s53 offen offset:{1024*e} sc1")
    P("s_barrier")
    P(f"v_lshrrev_b32 v{T}, 4, v0")
    P(f"v_bfe_u32 v{T+1}, v0, 2, 2")
    P(f"v_and_b32 v{T+2}, 3, v0")
    P(f"v_lshlrev_b32 v{T}, 3, v{T}")
    P(f"v_add_u32 v{T}, 7, v{T}")
    P(f"v_sub_u32 v{T}, v{T}, v{T+1}")
    P(f"v_lshrrev_b32 v{T+3}, 1, v{T+2}")
    P(f"v_and_b32 v{T+2}, 1, v{T+2}")
    P("s_and_b32 s53, s3, 1")
    P("s_lshl_b32 s53, s53, 7")
    P("s_lshr_b32 s55, s3, 1")
    P("s_lshl_b32 s55, s55, 8")
    P(f"s_add_u32 s55, s55, {XB}")
    for rr in range(2):
        if rr: P(f"v_subrev_u32 v{T}, 4, v{T}")
        P(f"v_and_b32 v{T+4}, 15, v{T}")
        P(f"v_xor_b32 v{T+4}, v{T+4}, v{T+3}")
        P(f"v_lshlrev_b32 v{T+4}, 4, v{T+4}")
        P(f"v_xor_b32 v{T+4}, s53, v{T+4}")
        P(f"v_lshl_add_u32 v{T+4}, v{T+2}, 3, v{T+4}")
        P(f"v_lshl_add_u32 v{T+4}, v{T}, 10, v{T+4}")
        P(f"v_add_u32 v{T+5+rr}, s55, v{T+4}")
    P(f"v_and_b32 v{T}, 15, v0")
    P(f"v_lshrrev_b32 v{T+1}, 4, v0")
    P(f"v_lshlrev_b32 v{T}, 12, v{T}")
    P(f"v_lshl_add_u32 v{T}, v{T+1}, 4, v{T}")
    P("s_lshl_b32 s53, s3, 18")
    P("s_lshl_b32 s55, s14, 7")
    P("s_add_u32 s53, s53, s55")
    for D in range(4):
        for rr in range(2):
            P(f"v_xor_b32 v{T+7+rr}, {32*D}, v{T+5+rr}")
        for half in range(2):
            for rr in range(2):
                d = X + 8 * D + 4 * half + 2 * rr
                P(f"ds_read_b64_tr_b16 v[{d}:{d+1}], v{T+7+rr} offset:{32768*half}")
    P("s_waitcnt lgkmcnt(0)")
    for D in range(4):
        P(f"s_add_u32 s55, s53, {65536*D}")
        for half in range(2):
            d = X + 8 * D + 4 * half
            P(f"buffer_store_dwordx4 v[{d}:{d+3}], v{T}, s[24:27], s55 offen offset:{64*half} sc1")
    if AUXRB[0]:
        P("s_waitcnt vmcnt(8)")
        rb_store(P, 0, 32768, T, 64)
    prof(P, 1, pr)
    P("s_endpgm")
```

```python
from dsl import Prog
from k2 import *
from k1 import ln1, bf16_round_v, fbits, GK0, GK1, wpre, XB
from k1b import Buf
import math
import k2
from reblk import rb_load, rb_store

def gelu_consts(P, Rr, K):
    P(f"v_mul_f32 v{K[0]}, s63, v{Rr}")
    P(f"v_mul_f32 v{K[1]}, v{Rr}, v{Rr}")
    P(f"v_mul_f32 v{K[1]}, v{K[1]}, v{Rr}")
    P(f"v_mul_f32 v{K[1]}, s64, v{K[1]}")
    P(f"v_rcp_f32 v{K[2]}, v{Rr}")
def gelu_stream(A, T, K):
    B = Buf()
    for q in range(8):
        a, b = A + 2 * q, A + 2 * q + 1
        t0, t1 = T + (q & 1) * 2, T + 1 + (q & 1) * 2
        B(f"v_mul_f32 v{t0}, v{a}, v{a}")
        B(f"v_mul_f32 v{t1}, v{b}, v{b}")
        B(f"v_fma_f32 v{t0}, v{t0}, v{K[1]}, v{K[0]}")
        B(f"v_fma_f32 v{t1}, v{t1}, v{K[1]}, v{K[0]}")
        B(f"v_mul_f32 v{t0}, v{t0}, v{a}")
        B(f"v_mul_f32 v{t1}, v{t1}, v{b}")
        B(f"v_exp_f32 v{t0}, v{t0}")
        B(f"v_exp_f32 v{t1}, v{t1}")
        B(f"v_fma_f32 v{t0}, v{t0}, v{K[2]}, v{K[2]}")
        B(f"v_fma_f32 v{t1}, v{t1}, v{K[2]}, v{K[2]}")
        B(f"v_rcp_f32 v{t0}, v{t0}")
        B(f"v_rcp_f32 v{t1}, v{t1}")
        B(f"v_mul_f32 v{a}, v{a}, v{t0}")
        B(f"v_mul_f32 v{b}, v{b}, v{t1}")
        B(f"v_cvt_pk_bf16_f32 v{A+q}, v{a}, v{b}")
    return B.l

def gen_k1(P, aux=None, pr=False):
    P.label("k1_kernel")
    P("s_cmp_ge_u32 s2, 256")
    P("s_cbranch_scc1 k1_end")
    P("s_load_dwordx2 s[4:5], s[0:1], 0")
    P("s_load_dwordx2 s[6:7], s[0:1], 80")
    def rest_loads():
        P("s_load_dwordx2 s[8:9], s[0:1], 128")
        P("s_load_dwordx2 s[10:11], s[0:1], 120")
        P("s_load_dwordx4 s[40:43], s[0:1], 88")
        P("s_load_dwordx2 s[100:101], s[0:1], 112")
        if k2.FUSED[0]:
            P("s_load_dwordx4 s[68:71], s[0:1], 8")
            P("s_load_dwordx4 s[72:75], s[0:1], 24")
            P("s_load_dwordx4 s[76:79], s[0:1], 40")
            P("s_load_dwordx4 s[80:83], s[0:1], 56")
    if not M1[0]: rest_loads()
    P("v_lshrrev_b32 v1, 6, v0")
    P("v_and_b32 v0, 63, v0")
    P("v_readfirstlane_b32 s3, v1")
    P("s_mov_b32 s62, 0x3f803f80")
    P(f"s_mov_b32 s63, {fbits(GK0)}")
    P(f"s_mov_b32 s64, {fbits(GK1)}")
    P("s_and_b32 s12, s2, 7")
    P("s_lshr_b32 s13, s2, 3")
    P("s_lshl_b32 s14, s12, 2")
    P("s_and_b32 s15, s13, 3")
    P("s_add_u32 s14, s14, s15")
    P("s_lshr_b32 s15, s13, 2")
    X = 32; T = 2; VB = 16
    P(f"v_lshrrev_b32 v{T}, 3, v0")
    P(f"v_and_b32 v{T+1}, 7, v0")
    P(f"v_lshlrev_b32 v{T+2}, 4, v{T+1}")
    P(f"v_lshl_add_u32 v{T+2}, v{T}, 10, v{T+2}")
    P("s_lshl_b32 s52, s14, 16")
    P("s_lshl_b32 s53, s3, 13")
    P("s_add_u32 s52, s52, s53")
    P(f"v_lshrrev_b32 v{T+4}, 4, v0")
    P(f"v_and_b32 v{T+5}, 15, v0")
    P("s_lshl_b32 s53, s3, 2")
    P(f"v_add_u32 v{VB}, s53, v{T+4}")
    P("s_movk_i32 s53, 3584")
    P(f"v_mul_u32_u24 v{VB}, s53, v{VB}")
    P(f"v_lshl_add_u32 v{VB}, v{T+5}, 4, v{VB}")
    P("s_lshl_b32 s54, s15, 8")
    P("s_add_u32 s55, s54, 1792")
    P("s_waitcnt lgkmcnt(0)")
    srd(P, 16, 4, 2048 * 512 * 2)
    issued = []
    for e in range(8):
        P(f"buffer_load_dwordx4 v[{X+4*e}:{X+4*e+3}], v{T+2}, s[16:19], s52 offen offset:{128*e}")
        issued.append(('X', e))
    srd(P, 20, 6, 512 * 1792 * 2)
    if M1[0]:
        rest_loads()
        P("s_waitcnt lgkmcnt(0)")
    srd(P, 24, 8, 0x400000, WS_Z2F)
    srd(P, 28, 8, 0x400000, WS_Z1F)
    srd(P, 32, 8, 32 * 2 * 28 * 512, WS_ST)
    srd(P, 36, 40, 2048 * 2048 * 2)
    srd(P, 44, 8, 0x800000, WS_WF)
    VXW = 23
    P("s_and_b32 s53, s3, 1")
    P("s_lshl_b32 s53, s53, 3")
    P(f"v_add_u32 v{T+3}, s53, v{T}")
    P(f"v_xor_b32 v{T+3}, v{T+3}, v{T+1}")
    P(f"v_lshlrev_b32 v{T+3}, 4, v{T+3}")
    P(f"v_lshl_add_u32 v{T+3}, v{T}, 10, v{T+3}")
    P("s_lshl_b32 s53, s3, 13")
    P(f"s_add_u32 s53, s53, {XB}")
    P(f"v_add_u32 v{VXW}, s53, v{T+3}")
    P(f"v_xor_b32 v{VXW+1}, 128, v{VXW}")
    if aux is not None:
        P("s_cmp_eq_u32 s15, 7")
        P("s_cbranch_scc1 k1_aux")
    ACC2, ACC1, WFR = 64, 80, 96
    def land(u):
        if u < 8: return f"v[{WFR+4*u}:{WFR+4*u+3}]"
        if u < 12: return f"v[{ACC1+4*(u-8)}:{ACC1+4*(u-8)+3}]"
        if u < 16: return f"a[{112+4*(u-12)}:{115+4*(u-12)}]"
        return f"v[{X+4*(u%8)}:{X+4*(u%8)+3}]"
    def bld(u):
        half, ku = u // 16, u % 16
        P(f"s_add_u32 s57, s{55 if half == 0 else 54}, {ku * 32 * 3584}")
        P(f"buffer_load_dwordx4 {land(u)}, v{VB}, s[20:23], s57 offen")
        issued.append(('B', u))
    def wait_for(tags):
        last = max(k for k, t in enumerate(issued) if t in tags)
        n = len(issued) - 1 - last
        P(f"s_waitcnt vmcnt({min(n,63)})")
    for u in range(4): bld(u)
    prof(P, 0, pr)
    P("s_lshl_b32 s53, s14, 3")
    P("v_mov_b32 v13, s53")
    P("s_or_b32 s53, s15, s3")
    P("s_cmp_lg_u32 s53, 0")
    P("s_cbranch_scc1 k1_nolead")
    P("s_memrealtime s[96:97]")
    P("s_waitcnt lgkmcnt(0)")
    P("s_or_b32 s96, s96, 1")
    P("v_mov_b32 v14, s96")
    P("v_mov_b32 v15, s97")
    P("s_mov_b64 exec, 1")
    P("global_store_dwordx2 v13, v[14:15], s[10:11] sc0 sc1")
    P("s_mov_b64 exec, -1")
    P.label("k1_nolead")
    if PRI[0]:
        P("s_cmp_lt_u32 s3, 4")
        P("s_cbranch_scc1 k1_nopri")
        P("s_setprio 1")
        P.label("k1_nopri")
    VLW = 17
    P(f"v_lshlrev_b32 v{T}, 2, v{T+4}")
    P(f"v_xor_b32 v{T}, v{T}, v{T+5}")
    P(f"v_lshlrev_b32 v{T}, 4, v{T}")
    P(f"v_lshl_add_u32 v{T}, v{T+4}, 8, v{T}")
    P("s_lshl_b32 s53, s3, 10")
    P(f"v_add_u32 v{VLW}, s53, v{T}")
    P(f"v_add_u32 v{VLW+1}, 0x10000, v{VLW}")
    def bwr(u):
        addr = (u % 12) * 8192
        wait_for({('B', u)})
        P(f"ds_write_b128 v{VLW+(addr>>16)}, {land(u)} offset:{addr & 0xffff}")
    P("s_lshr_b32 s59, s3, 2")
    P("s_and_b32 s58, s3, 3")
    VT = 19
    P(f"v_lshrrev_b32 v{T}, 4, v0")
    P(f"v_bfe_u32 v{T+1}, v0, 2, 2")
    P(f"v_and_b32 v{T+2}, 3, v0")
    P(f"v_and_b32 v{T+3}, 1, v{T}")
    P(f"v_lshl_add_u32 v{T+2}, v{T+3}, 2, v{T+2}")
    P(f"v_lshrrev_b32 v{T+3}, 1, v{T+2}")
    P(f"v_and_b32 v{T+4}, 1, v{T+2}")
    P(f"v_lshrrev_b32 v{T}, 1, v{T}")
    P(f"v_lshl_add_u32 v{T}, v{T}, 3, v{T+1}")
    P(f"v_lshlrev_b32 v{T}, 8, v{T}")
    P(f"v_lshlrev_b32 v{T+1}, 6, v{T+1}")
    P("s_lshl_b32 s53, s58, 6")
    P(f"v_lshlrev_b32 v{T+5}, 5, v{T+4}")
    P(f"v_lshl_add_u32 v{T+5}, v{T+3}, 3, v{T+5}")
    P(f"v_add_u32 v{T+5}, s53, v{T+5}")
    P(f"v_xor_b32 v{T+5}, v{T+5}, v{T+1}")
    P(f"v_add_u32 v{VT}, v{T+5}, v{T}")
    P(f"v_add_u32 v{VT+1}, 0x10000, v{VT}")
    P(f"v_and_b32 v{T+5}, 1, v{T+3}")
    P(f"v_lshlrev_b32 v{T+5}, 5, v{T+5}")
    P(f"v_lshl_add_u32 v{T+5}, v{T+4}, 4, v{T+5}")
    P(f"v_lshrrev_b32 v{T+3}, 1, v{T+3}")
    P(f"v_lshl_add_u32 v{T+5}, v{T+3}, 3, v{T+5}")
    P(f"v_add_u32 v{T+5}, s53, v{T+5}")
    P(f"v_xor_b32 v{T+5}, v{T+5}, v{T+1}")
    P(f"v_add_u32 v{VT+2}, v{T+5}, v{T}")
    P(f"v_add_u32 v{VT+3}, 0x10000, v{VT+2}")
    VXR = 1
    P(f"v_and_b32 v{T}, 31, v0")
    P(f"v_lshrrev_b32 v{T+1}, 5, v0")
    P(f"v_and_b32 v{T+2}, 15, v0")
    P(f"v_xor_b32 v{T+1}, v{T+1}, v{T+2}")
    P(f"v_lshlrev_b32 v{T+1}, 4, v{T+1}")
    P(f"v_lshl_add_u32 v{T+1}, v{T}, 10, v{T+1}")
    P("s_lshl_b32 s53, s59, 15")
    P(f"s_add_u32 s53, s53, {XB}")
    P(f"v_add_u32 v{VXR}, s53, v{T+1}")
    RS = 8 * 8192
    P(f"v_lshlrev_b32 v{T}, 2, v{T}")
    P("s_lshl_b32 s53, s59, 7")
    P(f"s_add_u32 s53, s53, {RS}")
    P(f"v_add_u32 v28, s53, v{T}")
    P(f"v_lshrrev_b32 v{T}, 3, v0")
    P(f"v_lshlrev_b32 v{T}, 2, v{T}")
    P("s_lshl_b32 s53, s3, 5")
    P(f"s_add_u32 s53, s53, {RS}")
    P(f"v_add_u32 v29, s53, v{T}")
    def freg(st, i, sl, k0, n):
        r = WFR + 16 * st + 8 * i + 4 * sl + k0
        return f"v[{r}:{r+n-1}]"
    def rds(sp):
        out = []
        for i in range(2):
            u = 2 * sp + i
            addr = (u % 12) * 8192
            vb = VT + 2 * (sp // 8) + (addr >> 16)
            for sl in range(2):
                for rr in range(2):
                    out.append(f"ds_read_b64_tr_b16 {freg(sp & 1, i, sl, 2*rr, 2)}, v{vb} offset:{(addr & 0xffff) + 4096*sl + 1024*rr}")
        return out
    S, Q = 8, 9
    for r in range(4): P(f"v_mov_b32 v{S+r}, 0")
    for e in range(8):
        wait_for({('X', e)})
        for r in range(4 * e, 4 * e + 4):
            P(f"v_dot2c_f32_bf16 v{S+(r&1)*2}, s62, v{X+r}")
        if e % 2 == 1: bld(4 + e // 2)
    P(f"v_add_f32 v{S}, v{S}, v{S+2}")
    for m in ("quad_perm:[1,0,3,2]", "quad_perm:[2,3,0,1]", "row_half_mirror"):
        P(f"v_add_f32_dpp v{S}, v{S}, v{S} {m} row_mask:0xf bank_mask:0xf")
    P(f"v_mul_f32 v{S}, 0xbb000000, v{S}")
    bf16_round_v(P, S + 2, S, S + 4)
    P("s_mov_b32 s65, 0xffff0000")
    P("s_movk_i32 s66, 0x3f80")
    for e in range(8):
        for r in range(4 * e, 4 * e + 4):
            a, b = T + (r % 3) * 2, T + 1 + (r % 3) * 2
            P(f"v_dot2_f32_bf16 v{a}, v{X+r}, s66, v{S+2}")
            P(f"v_and_b32 v{b}, s65, v{X+r}")
            P(f"v_add_f32 v{b}, v{b}, v{S+2}")
            if r > 4 * e:
                a2, b2 = T + ((r - 1) % 3) * 2, T + 1 + ((r - 1) % 3) * 2
                P(f"v_cvt_pk_bf16_f32 v{X+r-1}, v{a2}, v{b2}")
        r = 4 * e + 3
        bld(8 + e)
        P(f"v_cvt_pk_bf16_f32 v{X+r}, v{T+(r%3)*2}, v{T+1+(r%3)*2}")
        P(f"ds_write_b128 v{VXW+(e&1)}, v[{X+4*e}:{X+4*e+3}] offset:{256*(e>>1)}")
    for u in range(4): bwr(u)
    for r in range(32):
        P(f"v_dot2c_f32_bf16 v{Q+(r&1)*2}, v{X+r}, v{X+r}")
    P(f"v_add_f32 v{Q}, v{Q}, v{Q+2}")
    for m in ("quad_perm:[1,0,3,2]", "quad_perm:[2,3,0,1]", "row_half_mirror"):
        P(f"v_add_f32_dpp v{Q}, v{Q}, v{Q} {m} row_mask:0xf bank_mask:0xf")
    P(f"v_sub_f32 v{S}, v{S}, v{S+2}")
    P(f"v_mul_f32 v{Q}, 0x3b000000, v{Q}")
    P(f"v_fma_f32 v{Q}, -v{S}, v{S}, v{Q}")
    P(f"v_max_f32 v{Q}, 0, v{Q}")
    bf16_round_v(P, Q, Q, S + 2)
    P(f"v_add_f32 v{Q}, 0x3727c5ac, v{Q}")
    bf16_round_v(P, Q, Q, S + 2)
    P(f"v_sqrt_f32 v{Q}, v{Q}")
    bf16_round_v(P, Q, Q, S + 2)
    P(f"v_rcp_f32 v{Q}, v{Q}")
    P(f"ds_write_b32 v29, v{Q}")
    P("s_waitcnt lgkmcnt(0)")
    P("s_barrier")
    for s_ in rds(0): P(s_)
    RR = 28
    P(f"ds_read_b32 v{RR}, v28")
    def xfr(q, his):
        P(f"v_xor_b32 v{T+(q&1)}, {32*q}, v{VXR}")
        for hi in his:
            k16 = 8 * hi + q
            P(f"ds_read_b128 a[{4*k16}:{4*k16+3}], v{T+(q&1)} offset:{256*hi}")
    for q in range(8):
        xfr(q, (0, 1))
        if q >= 4: bwr(q)
    prof(P, 1, pr)
    hooks = {}
    def step(sp, vside=()):
        if FINE[0] and sp < 12: P(f"s_memtime s[{68+2*sp}:{69+2*sp}]")
        P("s_waitcnt lgkmcnt(0)")
        if sp % 2 == 1 and sp < 15: P("s_barrier")
        if sp in hooks: hooks[sp]()
        acc = ACC2 if sp < 8 else ACC1
        rd = rds(sp + 1) if sp < 15 else []
        vside = list(vside)
        per = (len(vside) + 3) // 4
        k = 0
        for i in range(2):
            u = 2 * sp + i
            for sl in range(2):
                k16 = 2 * (u % 16) + sl
                P(f"v_mfma_f32_32x32x16_bf16 v[{acc}:{acc+15}], {freg(sp & 1, i, sl, 0, 4)}, a[{4*k16}:{4*k16+3}], {'0' if k16 == 0 else f'v[{acc}:{acc+15}]'}")
                if k == 0:
                    for x_ in rd: P(x_)
                if k in (1, 2) and sp >= 1 and 2 * sp + 5 + k < 32: bwr(2 * sp + 5 + k)
                if sp in (0, 1) and k in (1, 2, 3, 0): xfr(4 * sp + k, (2,))
                if sp == 2: xfr(k, (3,))
                if sp == 5: xfr(4 + k, (3,))
                if k in (1, 3) and sp < 4: bld(16 + 2 * sp + (k >> 1))
                if k in (0, 1) and 6 <= sp <= 9: bld(24 + 2 * (sp - 6) + k)
                if k == 3 and sp == 5:
                    P("global_load_dwordx2 v[14:15], v13, s[10:11] sc0 sc1"); issued.append(('N', 0))
                for _ in range(per):
                    if vside: P(vside.pop(0))
                k += 1
        assert not vside
    def split(lst, n):
        k = (len(lst) + n - 1) // n
        return [lst[i*k:(i+1)*k] for i in range(n)]
    for sp in range(8): step(sp)
    prof(P, 2, pr)
    Z2 = ACC2
    GT = 8
    GK = 23
    GK = (12, 23, 24)
    gelu_consts(P, RR, GK)
    gs = gelu_stream(ACC2, GT, GK)
    SS = Buf()
    S2, Q2 = ACC2 + 8, ACC2 + 9
    SS(f"v_mov_b32 v{S2}, 0")
    SS(f"v_mov_b32 v{Q2}, 0")
    for q in range(8):
        SS(f"v_dot2c_f32_bf16 v{S2}, s62, v{Z2+q}")
        SS(f"v_dot2c_f32_bf16 v{Q2}, v{Z2+q}, v{Z2+q}")
    SS(f"v_mov_b32 v{S2+2}, v{S2}")
    SS(f"v_mov_b32 v{S2+3}, v{Q2}")
    SS(f"v_permlane32_swap_b32 v{S2}, v{S2+2}")
    SS(f"v_permlane32_swap_b32 v{Q2}, v{S2+3}")
    SS(f"v_add_f32 v{S2}, v{S2}, v{S2+2}")
    SS(f"v_add_f32 v{Q2}, v{Q2}, v{S2+3}")
    SS(f"v_lshlrev_b32 v{S2+4}, 4, v0")
    SS("s_lshl_b32 s53, s14, 1")
    SS("s_add_u32 s53, s53, s59")
    SS("s_mul_i32 s60, s53, 14336")
    SS("s_lshl_b32 s53, s15, 2")
    SS("s_add_u32 s53, s53, s58")
    SS("s_lshl_b32 s53, s53, 9")
    SS("s_add_u32 s53, s53, s60")
    av = split(gs + SS.l, GSPLIT[0])
    for k in range(GSPLIT[0]): step(8 + k, av[k])
    wait_for({('N', 0)})
    P("s_mov_b32 s56, 0")
    P.label("k1_nonce")
    P("v_readfirstlane_b32 s96, v14")
    P("v_readfirstlane_b32 s97, v15")
    P("s_cmp_lg_u32 s96, 0")
    P("s_cbranch_scc1 k1_nonce_ok")
    P("global_load_dwordx2 v[14:15], v13, s[10:11] sc0 sc1")
    P("s_add_u32 s56, s56, 1")
    P("s_waitcnt vmcnt(0)")
    P("s_cmp_lt_u32 s56, 0x200000")
    P("s_cbranch_scc1 k1_nonce")
    P.label("k1_nonce_ok")
    P(f"v_mov_b32 v{S2+2}, v14")
    P(f"v_mov_b32 v{S2+3}, v15")
    P("s_mov_b32 exec_hi, 0")
    P(f"buffer_store_dwordx4 v[{S2}:{S2+3}], v{S2+4}, s[32:35], s53 offen sc0 sc1")
    issued.append(('S', 0))
    P("s_mov_b64 exec, -1")
    if REBLK[0] == 1:
        rb_load(P, 0, 30)
        for _ in range(4): issued.append(('R', 0))
    prof(P, 3, pr)
    for sp in range(8 + GSPLIT[0], GAT[0]): step(sp)
    F = k2.FUSED[0]
    GA = 16
    P(f"v_lshlrev_b32 v{S2+4}, 4, v0")
    P("s_mul_i32 s61, s58, 3584")
    P("s_add_u32 s61, s61, s60")
    P(f"v_and_b32 v{S2+5}, 31, v0")
    P(f"v_lshlrev_b32 v{S2+5}, 4, v{S2+5}")
    def gather():
        for k in range(4):
            P(f"buffer_load_dwordx4 a[{GA+4*k}:{GA+3+4*k}], v{S2+4+(k==3)}, s[32:35], s61 offen offset:{1024*k} sc0 sc1")
    gather()
    AT = 29
    def addr_setup(P):
        P(f"v_and_b32 v{T}, 31, v0")
        P(f"v_lshrrev_b32 v{T+1}, 5, v0")
        P(f"v_lshlrev_b32 v{T}, 6, v{T}")
        P(f"v_lshl_add_u32 v{T}, v{T+1}, 5, v{T}")
        if F:
            P("s_lshl_b32 s84, s58, 11")
            P("s_lshl_b32 s85, s59, 14")
            P("s_add_u32 s84, s84, s85")
            P(f"s_add_u32 s84, s84, {XB + 1024}")
        else:
            P("s_lshl_b32 s84, s3, 11")
        P(f"v_add_u32 v{AT}, s84, v{T}")
        P(f"v_lshrrev_b32 v{T+1}, 4, v0")
        P(f"v_bfe_u32 v{T+2}, v0, 2, 2")
        P(f"v_and_b32 v{T+3}, 3, v0")
        P(f"v_lshl_add_u32 v{T+1}, v{T+1}, 3, v{T+2}")
        P(f"v_lshlrev_b32 v{T+1}, 6, v{T+1}")
        P(f"v_lshl_add_u32 v{T+1}, v{T+3}, 3, v{T+1}")
        P(f"v_add_u32 v{AT+1}, s84, v{T+1}")
        P(f"v_lshlrev_b32 v{AT+2}, 4, v0")
        P("s_lshl_b32 s86, s14, 1")
        P("s_add_u32 s86, s86, s59")
        for tl in range(2):
            P("s_lshl_b32 s84, s15, 3")
            P("s_lshl_b32 s87, s58, 1")
            P("s_add_u32 s84, s84, s87")
            if tl: P("s_add_u32 s84, s84, 1")
            P("s_mul_i32 s87, s84, 37")
            P("s_lshr_b32 s87, s87, 8")
            P("s_mul_i32 s65, s87, 7")
            P("s_sub_u32 s84, s84, s65")
            P("s_add_u32 s65, s84, 6")
            P("s_sub_u32 s66, s84, 1")
            P("s_cmp_eq_u32 s84, 0")
            P("s_cselect_b32 s65, s65, s66")
            P("s_bitcmp1_b32 s87, 0")
            P("s_cselect_b32 s84, s65, s84")
            P("s_lshl_b32 s87, s87, 6")
            P("s_add_u32 s87, s87, s86")
            P("s_mul_i32 s87, s87, 7")
            P("s_add_u32 s87, s87, s84")
            P(f"s_lshl_b32 s{88+tl}, s87, 10")
    AB = Buf(); addr_setup(AB)
    items = []
    for l_ in AB.l:
        if l_.startswith('s_cselect'): items[-1] += '\n' + l_
        else: items.append(l_)
    asp = split(items, 16 - GAT[0])
    for sp in range(GAT[0], 16): step(sp, asp[sp - GAT[0]])
    if FINE[0]:
        P("s_lshl_b32 s92, s2, 3")
        P("s_add_u32 s92, s92, s3")
        P("s_lshl_b32 s92, s92, 6")
        P(f"s_add_u32 s92, s92, {WS_PROF + 3*0x40000}")
        P("v_mov_b32 v25, s92")
        for k in range(12):
            P(f"v_mov_b32 v26, s{68+2*k}")
            P(f"global_store_dword v25, v26, s[8:9] offset:{4*k}")
    prof(P, 4, pr)
    def z1epi():
        Z1 = ACC1
        P(f"v_and_b32 v{T}, 15, v0")
        P(f"v_bfe_u32 v{T+1}, v0, 4, 1")
        P(f"v_lshrrev_b32 v{T+2}, 5, v0")
        P(f"v_lshlrev_b32 v{T}, 4, v{T}")
        P(f"v_lshl_add_u32 v{T}, v{T+1}, 10, v{T}")
        P(f"v_lshl_add_u32 v{T}, v{T+2}, 9, v{T}")
        P("s_mul_i32 s53, s14, 28")
        P("s_lshl_b32 s56, s15, 2")
        P("s_add_u32 s53, s53, s56")
        P("s_add_u32 s53, s53, s58")
        P("s_lshl_b32 s53, s53, 12")
        P("s_lshl_b32 s56, s59, 11")
        P("s_add_u32 s53, s53, s56")
        for s_ in gelu_stream(ACC1, GT, GK): P(s_)
        P(f"buffer_store_dwordx4 v[{Z1}:{Z1+3}], v{T}, s[28:31], s53 offen sc1")
        P(f"buffer_store_dwordx4 v[{Z1+4}:{Z1+7}], v{T}, s[28:31], s53 offen offset:256 sc1")
    ZL = F and k2.Z1LATE[0]
    if not ZL: z1epi()
    prof(P, 5, pr)
    if REBLK[0] == 1:
        P("s_cmp_lg_u32 s58, 0")
        P("s_cbranch_scc1 k1_rbw")
        P("s_waitcnt vmcnt(16)")
        P("s_branch k1_rbs")
        P.label("k1_rbw")
        P("s_waitcnt vmcnt(2)")
        P.label("k1_rbs")
        rb_store(P, 0, XB, T, X + 16)
    PS = WFR
    MS = XB + 9216 if F else 2 * 8192
    S, Q = PS, PS + 1
    if FT[0]: P("s_memtime s[40:41]")
    P("s_mov_b32 s56, 0")
    P(f"s_waitcnt vmcnt({0 if ZL else 2})")
    P.label("k1_poll")
    for k in range(4):
        for r in range(4): P(f"v_accvgpr_read_b32 v{X+4*k+r}, a{GA+4*k+r}")
    P(f"v_mul_f32 v{X+12}, 0.5, v{X+12}")
    P(f"v_mul_f32 v{X+13}, 0.5, v{X+13}")
    for k in range(4):
        P(f"v_xor_b32 v{X+4*k+2}, v{X+4*k+2}, v14")
        P(f"v_xor_b32 v{X+4*k+3}, v{X+4*k+3}, v15")
        P(f"v_or_b32 v{X+4*k+2}, v{X+4*k+2}, v{X+4*k+3}")
    P(f"v_or_b32 v{X+2}, v{X+2}, v{X+6}")
    P(f"v_or_b32 v{X+10}, v{X+10}, v{X+14}")
    P(f"v_or_b32 v{X+2}, v{X+2}, v{X+10}")
    P(f"v_cmp_ne_u32 vcc, 0, v{X+2}")
    P("s_add_u32 s56, s56, 1")
    P("s_cmp_eq_u64 vcc, 0")
    P("s_cbranch_scc1 k1_got")
    gather()
    P("s_waitcnt vmcnt(0)")
    P("s_cmp_lt_u32 s56, 0x100000")
    P("s_cbranch_scc1 k1_poll")
    P.label("k1_got")
    if FT[0]: P("s_memtime s[42:43]")
    for r in range(2):
        P(f"v_add_f32 v{X+r}, v{X+r}, v{X+4+r}")
        P(f"v_add_f32 v{X+8+r}, v{X+8+r}, v{X+12+r}")
        P(f"v_add_f32 v{PS+r}, v{X+r}, v{X+8+r}")
    P(f"v_mov_b32 v{PS+2}, v{PS}")
    P(f"v_mov_b32 v{PS+3}, v{PS+1}")
    P(f"v_permlane32_swap_b32 v{PS}, v{PS+2}")
    P(f"v_permlane32_swap_b32 v{PS+1}, v{PS+3}")
    P(f"v_add_f32 v{PS}, v{PS}, v{PS+2}")
    P(f"v_add_f32 v{PS+1}, v{PS+1}, v{PS+3}")
    P(f"v_and_b32 v{VT+3}, 31, v0")
    P(f"v_lshlrev_b32 v{VT+3}, 3, v{VT+3}")
    P("s_lshl_b32 s53, s59, 8")
    P(f"s_add_u32 s53, s53, {MS}")
    P(f"v_add_u32 v{VT+3}, s53, v{VT+3}")
    P("s_lshl_b32 s53, s58, 9")
    P(f"v_add_u32 v{T}, s53, v{VT+3}")
    P(f"ds_write_b64 v{T}, v[{S}:{Q}]")
    if 't1' in k2.HOOKS: k2.HOOKS['t1'](P)
    U = X
    for r in range(8):
        P(f"v_lshlrev_b32 v{U+2*r}, 16, v{Z2+r}")
        P(f"v_and_b32 v{U+2*r+1}, 0xffff0000, v{Z2+r}")
    if FT[0]: P("s_memtime s[44:45]")
    P("s_waitcnt lgkmcnt(0)")
    P("s_barrier")
    if FT[0]: P("s_memtime s[46:47]")
    for k in range(4): P(f"ds_read_b64 v[{PS+2*k}:{PS+2*k+1}], v{VT+3} offset:{512*k}")
    P("s_waitcnt lgkmcnt(0)")
    for r in range(2):
        P(f"v_add_f32 v{PS+r}, v{PS+r}, v{PS+2+r}")
        P(f"v_add_f32 v{PS+4+r}, v{PS+4+r}, v{PS+6+r}")
        P(f"v_add_f32 v{PS+r}, v{PS+r}, v{PS+4+r}")
    P(f"v_mul_f32 v{S}, {fbits(1/896)}, v{S}")
    P(f"v_mul_f32 v{Q}, {fbits(1/896)}, v{Q}")
    P(f"v_fma_f32 v{Q}, -v{S}, v{S}, v{Q}")
    P(f"v_max_f32 v{Q}, 0, v{Q}")
    bf16_round_v(P, S, S, T + 2)
    bf16_round_v(P, Q, Q, T + 2)
    P(f"v_add_f32 v{Q}, 0x3727c5ac, v{Q}")
    bf16_round_v(P, Q, Q, T + 2)
    P(f"v_sqrt_f32 v{Q}, v{Q}")
    bf16_round_v(P, Q, Q, T + 2)
    P(f"v_rcp_f32 v{Q}, v{Q}")
    for r in range(16): P(f"v_sub_f32 v{U+r}, v{U+r}, v{S}")
    for r in range(16): P(f"v_mul_f32 v{U+r}, v{U+r}, v{Q}")
    for r in range(8): P(f"v_cvt_pk_bf16_f32 v{Z2+r}, v{U+2*r}, v{U+2*r+1}")
    if FT[0]: P("s_memtime s[48:49]")
    P(f"ds_write_b128 v{AT}, v[{Z2}:{Z2+3}]")
    P(f"ds_write_b128 v{AT}, v[{Z2+4}:{Z2+7}] offset:16")
    O = X + 16
    for tl in range(2):
        for rr in range(2):
            P(f"ds_read_b64_tr_b16 v[{O+4*tl+2*rr}:{O+4*tl+2*rr+1}], v{AT+1} offset:{32*tl + 256*rr}")
    for tl in range(2):
        P(f"s_waitcnt lgkmcnt({2 - 2*tl})")
        P(f"buffer_store_dwordx4 v[{O+4*tl}:{O+4*tl+3}], v{AT+2}, s[24:27], s{88+tl} offen sc1")
    if FT[0]: P("s_memtime s[50:51]")
    if FT[0]:
        P("s_waitcnt lgkmcnt(0)")
        P("s_lshl_b32 s92, s2, 3")
        P("s_add_u32 s92, s92, s3")
        P("s_lshl_b32 s92, s92, 6")
        P(f"s_add_u32 s92, s92, {WS_PROF + 3*0x40000}")
        P("v_mov_b32 v25, s92")
        for k in range(6):
            P(f"v_mov_b32 v26, s{40+2*k}")
            P(f"global_store_dword v25, v26, s[8:9] offset:{4*k}")
        P(f"v_mov_b32 v26, s56")
        P(f"global_store_dword v25, v26, s[8:9] offset:24")
    prof(P, 6, pr)
    if pr: P("s_waitcnt vmcnt(0)")
    prof(P, 7, pr)
    if F:
        k2.HOOKS['sig1'](P, 0)
        if ZL: z1epi()
    P("s_endpgm")
    if aux is not None:
        P.label("k1_aux")
        prof(P, 0, pr)
        aux(P, X, T, VXW, pr)
    P.label("k1_end")
    P("s_endpgm")
    return dict(vgpr=128, agpr=128, lds=160 * 1024)
GSPLIT = [3]
FINE = [0]
PRI = [0]
GAT = [14]
import os
M1 = [int(os.environ.get('M1', '0'))]
FT = [int(os.environ.get('FT', '0'))]
REBLK = [0]
```

```python
import re, os, sys
from dsl import Prog, Ins
import k1d, k2, aux
from k2 import *
WS_FL1 = WS_FLB + 0x40000
WS_FL1B = WS_FLB + 0x10000
WS_FLX = WS_FLB + 0x20000
WS_FL2 = WS_FLB + 0x8000
SLEEP = [int(os.environ.get('SLEEP', '4'))]
AUXL = [int(os.environ.get('AUXL', '0'))]
P3L = [int(os.environ.get('P3L', '0'))]
PW = [int(os.environ.get('PW', '0'))]
REP = [int(os.environ.get('REP', '8'))]
SL3 = [int(os.environ.get('SL3', '2'))]
M4 = [int(os.environ.get('M4', '0'))]
YF = [int(os.environ.get('YF', '0'))]
TOUCH = [int(os.environ.get('TOUCH', '1'))]
KN = "parallel_sum__ssm_conv_s4__mixer_gmlp__prompt_kernel"

def lines_of(P): return [l.text for l in P.lines]

def poll(E, name, va, vd, nlanes):
    mask = (1 << nlanes) - 1
    E(f"s_mov_b32 exec_lo, {mask & 0xffffffff:#x}")
    E(f"s_mov_b32 exec_hi, {mask >> 32:#x}")
    E("s_mov_b32 s95, 0")
    E(f"{name}:")
    E(f"global_load_dwordx2 v[{vd}:{vd+1}], v{va}, s[8:9] sc0 sc1")
    E("s_add_u32 s95, s95, 1")
    E("s_waitcnt vmcnt(0)")
    E(f"v_cmp_ne_u64 vcc, s[96:97], v[{vd}:{vd+1}]")
    E("s_nop 1")
    E("s_cmp_eq_u64 vcc, 0")
    E(f"s_cbranch_scc1 {name}_ok")
    E(f"s_sleep {SL3[0]}")
    E("s_cmp_lt_u32 s95, 0x100000")
    E(f"s_cbranch_scc1 {name}")
    E(f"{name}_ok:")
    E("s_mov_b64 exec, -1")

XWW = 4 * 24576 + 14080 + 14072
CN1 = 4 * 24576 + 2 * 14080 + 14072
CN2 = 4 * 24576 + 3 * 14080 + 14072
GOW = 4 * 24576 + 14072
def ldswait(E, name, va, vd, val=1, sleep=True):
    E("s_mov_b32 s95, 0")
    E(f"{name}:")
    E(f"ds_read_b32 v{vd}, v{va}")
    E("s_add_u32 s95, s95, 1")
    E("s_waitcnt lgkmcnt(0)")
    E(f"v_readfirstlane_b32 s94, v{vd}")
    E(f"s_cmp_eq_u32 s94, {val}")
    E(f"s_cbranch_scc1 {name}_ok")
    if sleep: E("s_sleep 2" if name == "p2_xw" else "s_sleep 1")
    E("s_cmp_lt_u32 s95, 0x1000000")
    E(f"s_cbranch_scc1 {name}")
    E(f"{name}_ok:")

def phase3(P, pr):
    P("s_and_b32 s12, s2, 7")
    P("s_lshr_b32 s13, s2, 3")
    P("s_lshl_b32 s14, s12, 2")
    P("s_and_b32 s15, s13, 3")
    P("s_add_u32 s14, s14, s15")
    P("s_lshr_b32 s15, s13, 2")
    srd(P, 24, 8, 0x400000, WS_HF)
    srd(P, 28, 8, 896 * 1024, WS_WOF)
    srd(P, 32, 8, 0x200000, WS_YAT)
    T = 2; VL = 10; VH = 12; VO = 16
    P(f"v_lshlrev_b32 v{VL}, 4, v0")
    for tau in range(4):
        P(f"s_add_u32 s53, s3, {tau}")
        P("s_and_b32 s53, s53, 3")
        P("s_lshl_b32 s53, s53, 10")
        P(f"v_add_u32 v{VH+tau}, s53, v{VL}")
    P("s_lshr_b32 s59, s3, 2")
    P("s_lshl_b32 s53, s59, 11")
    P(f"v_add_u32 v{VO}, s53, v{VL}")
    P(f"v_xor_b32 v{VO+1}, 2048, v{VO}")
    P("s_lshl_b32 s52, s3, 2")
    P("s_mul_i32 s53, s3, 3")
    P("s_add_u32 s53, s53, 4")
    P("s_cmp_lt_u32 s3, 4")
    P("s_cselect_b32 s52, s52, s53")
    P("s_mul_i32 s54, s14, 28")
    P("s_add_u32 s54, s54, s52")
    P("s_lshl_b32 s54, s54, 12")
    P("s_mul_i32 s55, s15, 28")
    P("s_add_u32 s55, s55, s52")
    P("s_lshl_b32 s55, s55, 12")
    P("s_waitcnt lgkmcnt(0)")
    srd(P, 16, 4, 2048 * 512 * 2)
    srd(P, 20, 100, 2048 * 512 * 2)
    XR = 20
    P(f"v_and_b32 v{T}, 15, v0")
    P(f"v_lshrrev_b32 v{T+1}, 4, v0")
    P(f"v_lshlrev_b32 v{T}, 10, v{T}")
    P(f"v_lshl_add_u32 v{VL+1}, v{T+1}, 4, v{T}")
    P("s_lshl_b32 s58, s14, 16")
    P("s_and_b32 s57, s3, 3")
    P("s_lshl_b32 s57, s57, 14")
    P("s_add_u32 s58, s58, s57")
    P("s_lshl_b32 s57, s15, 7")
    P("s_add_u32 s58, s58, s57")
    P("s_lshl_b32 s57, s59, 6")
    P("s_add_u32 s58, s58, s57")
    P(f"buffer_load_dwordx4 v[{XR}:{XR+3}], v{VL+1}, s[16:19], s58 offen")
    P("s_lshl_b32 s53, s14, 7")
    P(f"s_add_u32 s53, s53, {WS_FL2 + 4096}")
    P("s_lshl_b32 s57, s15, 8")
    P(f"s_add_u32 s57, s57, {WS_FL2 - 64}")
    P(f"v_mov_b32 v{T}, s53")
    P(f"v_mov_b32 v{T+1}, s57")
    P(f"v_cmp_gt_u32 vcc, 8, v0")
    P(f"v_cndmask_b32 v{T}, v{T+1}, v{T}, vcc")
    P(f"v_lshl_add_u32 v{T}, v0, 3, v{T}")
    if k2.DEC[0]:
        P("s_lshl_b32 s53, s14, 7")
        P(f"s_add_u32 s53, s53, {WS_FL2 + 8192}")
        P(f"v_lshlrev_b32 v{T}, 3, v0")
        P(f"v_add_u32 v{T}, s53, v{T}")
    prof(P, 0, pr)
    def E(t):
        if t.endswith(':'): P.label(t[:-1])
        else: P(t)
    if M4[0]:
        P(f"v_mov_b32 v{T+4}, {CN2}")
        ldswait(E, "p3_cn", T + 4, T + 5, 4)
    if P3L[0] == 1: p3early(P)
    P(f"s_cmp_lg_u32 s3, {PW[0]}")
    P("s_cbranch_scc1 p3_np")
    poll(E, "p3_poll", T, T + 2, 8 if k2.DEC[0] else 40)
    P.label("p3_np")
    P("s_barrier")
    prof(P, 1, pr)
    HB = 80
    def hl(k):
        P(f"s_add_u32 s56, s54, {4096*k}")
        for tau in range(4):
            r = HB + 16 * k + 4 * tau
            P(f"buffer_load_dwordx4 v[{r}:{r+3}], v{VH+tau}, s[24:27], s56 offen sc1")
    AREA = 14 * 1024; YB = 8 * AREA
    P(f"v_lshrrev_b32 v{T}, 3, v0")
    P(f"v_and_b32 v{T+1}, 7, v0")
    P(f"v_lshlrev_b32 v{T+1}, 4, v{T+1}")
    P(f"v_lshl_add_u32 v{T+1}, v{T}, 12, v{T+1}")
    P("s_lshl_b32 s56, s15, 18")
    P("s_lshl_b32 s57, s3, 15")
    P("s_add_u32 s56, s56, s57")
    P("s_lshl_b32 s57, s14, 7")
    P("s_add_u32 s60, s56, s57")
    P("s_lshl_b32 s57, s3, 10")
    P(f"s_add_u32 m0, s57, {YB}")
    def acc(pi, sg_, tau):
        i = (2 * pi + sg_) * 4 + tau
        return f"a[{64+4*i}:{67+4*i}]" if 0 < (i & ~4) and i - (2 if i > 4 else 1) < 12 and i not in (0, 4) and False else None
    others = [(pi, sg_, tau) for pi in range(2) for tau in range(4) for sg_ in range(2) if not (pi == 0 and tau == 0)]
    amap = {}
    for sg_ in range(2): amap[(0, sg_, 0)] = f"v[{24+4*sg_}:{27+4*sg_}]"
    for n_, key in enumerate(others):
        amap[key] = f"a[{4*ACQ[n_]}:{4*ACQ[n_]+3}]" if n_ < 12 else f"v[{32+4*(n_-12)}:{35+4*(n_-12)}]"
    def mf(k):
        for pi in range(2):
            for sg_ in range(2):
                for tau in range(4):
                    a = amap[(pi, sg_, tau)]; r = 4 * WOQ[4 * k + 2 * pi + sg_]; h = HB + 16 * k + 4 * tau
                    P(f"v_mfma_f32_16x16x32_bf16 {a}, a[{r}:{r+3}], v[{h}:{h+3}], {'0' if k == 0 else a}")
    P("s_cmp_ge_u32 s3, 4")
    P("s_cbranch_scc1 p3_3")
    if YF[0]:
        def body(nk, tag):
            P("s_lshl_b32 s57, s15, 10")
            P("s_lshl_b32 s56, s3, 7")
            P("s_add_u32 s57, s57, s56")
            P(f"s_add_u32 s57, s57, {WS_FL2}")
            P(f"v_and_b32 v{T+4}, 15, v0")
            P(f"v_lshlrev_b32 v{T+4}, 3, v{T+4}")
            P(f"v_add_u32 v{T+4}, s57, v{T+4}")
            P(f"global_load_dwordx2 v[{T+6}:{T+7}], v{T+4}, s[8:9] sc0 sc1")
            for k in range(nk): hl(k)
            P(f"s_waitcnt vmcnt({4*nk})")
            z1check(E, "p3_y" + tag, T + 4, T + 6)
            P(f"buffer_load_dwordx4 v{T+1}, s[32:35], s60 offen sc1 lds")
            for k in range(nk):
                P(f"s_waitcnt vmcnt({1 + 4*(nk-1-k)})"); mf(k)
        body(4, "a")
        P("s_branch p3_red")
        P.label("p3_3")
        body(3, "b")
    else:
        D = 0 if k2.DEC[0] else 1
        for k in range(4): hl(k)
        if D: P(f"buffer_load_dwordx4 v{T+1}, s[32:35], s60 offen sc1 lds")
        for k in range(4):
            P(f"s_waitcnt vmcnt({D + 4*(3-k)})"); mf(k)
        P("s_branch p3_red")
        P.label("p3_3")
        for k in range(3): hl(k)
        if D: P(f"buffer_load_dwordx4 v{T+1}, s[32:35], s60 offen sc1 lds")
        else:
            P("s_sub_u32 s53, s3, 4")
            P("s_lshl_b32 s57, s15, 10")
            P("s_lshl_b32 s56, s53, 8")
            P("s_add_u32 s57, s57, s56")
            P(f"s_add_u32 s57, s57, {WS_FL2}")
            P(f"v_and_b32 v{T+4}, 31, v0")
            P(f"v_lshlrev_b32 v{T+4}, 3, v{T+4}")
            P(f"v_add_u32 v{T+4}, s57, v{T+4}")
            P(f"global_load_dwordx2 v[{T+6}:{T+7}], v{T+4}, s[8:9] sc0 sc1")
        for k in range(3):
            P(f"s_waitcnt vmcnt({1 + 4*(2-k)})"); mf(k)
        if not D:
            P("s_waitcnt vmcnt(0)")
            z1check(E, "p3_y", T + 4, T + 6)
            P("s_lshl_b32 s56, s15, 18")
            P("s_lshl_b32 s57, s53, 16")
            P("s_add_u32 s56, s56, s57")
            P("s_lshl_b32 s57, s14, 7")
            P("s_add_u32 s60, s56, s57")
            P("s_lshl_b32 s57, s53, 11")
            P(f"s_add_u32 m0, s57, {YB}")
            P("s_add_u32 s61, s60, 32768")
            P(f"buffer_load_dwordx4 v{T+1}, s[32:35], s60 offen sc1 lds")
            P(f"s_add_u32 m0, s57, {YB + 1024}")
            P("s_nop 0")
            P(f"buffer_load_dwordx4 v{T+1}, s[32:35], s61 offen sc1 lds")
    P.label("p3_red")
    prof(P, 2, pr)
    P(f"s_mul_i32 s52, s3, {AREA}")
    P(f"v_add_u32 v{T}, s52, v{VL}")
    for n_, key in enumerate(others):
        P(f"ds_write_b128 v{T}, {amap[key]} offset:{1024*n_}")
    P("s_waitcnt vmcnt(0) lgkmcnt(0)")
    P("s_barrier")
    R = 40
    gi = 0
    for pi in range(2):
        for tau in range(4):
            if pi == 0 and tau == 0: continue
            P(f"s_sub_u32 s53, s3, {tau}")
            P("s_and_b32 s53, s53, 3")
            P(f"s_xor_b32 s57, s59, {pi}")
            P("s_lshl_b32 s57, s57, 2")
            P("s_add_u32 s53, s53, s57")
            P(f"s_mul_i32 s53, s53, {AREA}")
            P(f"v_add_u32 v{T+(gi&1)}, s53, v{VL}")
            for sg_ in range(2):
                r = R + 8 * gi + 4 * sg_
                P(f"ds_read_b128 v[{r}:{r+3}], v{T+(gi&1)} offset:{1024*(2*gi+sg_)}")
            gi += 1
    P(f"v_lshrrev_b32 v{T+2}, 4, v0")
    P(f"v_bfe_u32 v{T+3}, v0, 2, 2")
    P(f"v_and_b32 v{T+4}, 3, v0")
    P(f"v_lshl_add_u32 v{T+2}, v{T+2}, 3, v{T+3}")
    P(f"v_lshlrev_b32 v{T+2}, 7, v{T+2}")
    P(f"v_lshl_add_u32 v{T+2}, v{T+4}, 3, v{T+2}")
    P("s_and_b32 s53, s3, 3")
    P("s_lshl_b32 s53, s53, 5")
    P("s_lshl_b32 s57, s59, 12")
    P("s_add_u32 s53, s53, s57")
    P(f"s_add_u32 s53, s53, {YB}")
    P(f"v_add_u32 v{T+2}, s53, v{T+2}")
    YA = 32
    P("s_waitcnt lgkmcnt(0)")
    for eta in range(2):
        P(f"ds_read_b64_tr_b16 v[{YA+2*eta}:{YA+2*eta+1}], v{T+2} offset:{512*eta}")
    for i in range(8):
        P(f"v_add_f32 v{24+i}, v{24+i}, v{R+i}")
        P(f"v_add_f32 v{R+8+i}, v{R+8+i}, v{R+16+i}")
        P(f"v_add_f32 v{R+24+i}, v{R+24+i}, v{R+32+i}")
        P(f"v_add_f32 v{R+40+i}, v{R+40+i}, v{R+48+i}")
    for i in range(8):
        P(f"v_add_f32 v{24+i}, v{24+i}, v{R+8+i}")
        P(f"v_add_f32 v{R+24+i}, v{R+24+i}, v{R+40+i}")
    for i in range(8): P(f"v_add_f32 v{24+i}, v{24+i}, v{R+24+i}")
    P("s_mov_b32 s65, 0xffff0000")
    P("s_waitcnt lgkmcnt(0)")
    for q in range(4):
        a = 24 + 2 * q
        P(f"v_cvt_pk_bf16_f32 v{T}, v{a}, v{a+1}")
        P(f"v_lshlrev_b32 v{T+2}, 16, v{XR+q}")
        P(f"v_and_b32 v{T+3}, s65, v{XR+q}")
        P(f"v_lshlrev_b32 v{T+4}, 16, v{YA+q}")
        P(f"v_and_b32 v{T+5}, s65, v{YA+q}")
        P(f"v_add_f32 v{T+2}, v{T+2}, v{T+4}")
        P(f"v_add_f32 v{T+3}, v{T+3}, v{T+5}")
        P(f"v_cvt_pk_bf16_f32 v{T+4}, v{T+2}, v{T+3}")
        P(f"v_lshlrev_b32 v{T+2}, 16, v{T+4}")
        P(f"v_and_b32 v{T+3}, s65, v{T+4}")
        P(f"v_lshlrev_b32 v{T+4}, 16, v{T}")
        P(f"v_and_b32 v{T+5}, s65, v{T}")
        P(f"v_add_f32 v{T+2}, v{T+2}, v{T+4}")
        P(f"v_add_f32 v{T+3}, v{T+3}, v{T+5}")
        P(f"v_cvt_pk_bf16_f32 v{R+q}, v{T+2}, v{T+3}")
    P(f"buffer_store_dwordx4 v[{R}:{R+3}], v{VL+1}, s[20:23], s58 offen sc1")
    prof(P, 3, pr)
    if pr: P("s_waitcnt vmcnt(0)")
    prof(P, 4, pr)

CNT = [0]
def early2(P):
    n = CNT[0]; CNT[0] += 1
    if n == 1:
        P("s_waitcnt lgkmcnt(0)")
        P("s_barrier")
    P("s_lshl_b32 s57, s2, 8")
    P(f"s_add_u32 s57, s57, {WS_FLX}")
    P("v_and_b32 v132, 31, v0")
    P("v_lshlrev_b32 v132, 3, v132")
    P("v_add_u32 v132, s57, v132")
    P("s_cmp_lt_u32 s3, 4")
    P(f"s_cbranch_scc1 e2_done{n}")
    P.label(f"e2_conv{n}")
    PAR = 104; V = 112
    P("s_sub_u32 s56, s3, 4")
    P("s_lshr_b32 s57, s56, 1")
    P("s_lshl_b32 s61, s2, 1")
    P("s_add_u32 s61, s61, s57")
    P(f"s_mul_i32 s56, s56, {CW_AREA}")
    P(f"s_add_u32 s56, s56, {4*24576}")
    P(f"v_mov_b32 v{V}, s56")
    P(f"v_mov_b32 v{V+4}, 0")
    P(f"v_mov_b32 v{V+5}, 0")
    P(f"ds_write_b64 v{V}, v[{V+4}:{V+5}] offset:14072")
    P(f"v_lshlrev_b32 v{V+2}, 2, v0")
    P("s_lshl_b32 s57, s61, 8")
    P(f"v_add_u32 v{V+2}, s57, v{V+2}")
    P("s_lshl_b32 s57, s61, 1")
    P(f"v_mov_b32 v{V+3}, s57")
    for k in range(6):
        P(f"global_load_dword v{PAR+k}, v{V+2}, s[{68+2*k}:{69+2*k}]")
    P(f"global_load_ushort v{PAR+6}, v{V+3}, s[80:81]")
    P(f"global_load_ushort v{PAR+7}, v{V+3}, s[82:83]")
    if k2.XE[0]: P("global_load_dwordx2 v[134:135], v132, s[8:9] sc0 sc1")
    P.label(f"e2_done{n}")

FREEQ = [4 * ft + t for ft in range(7) for t in (1, 2, 3)]
WOQ = FREEQ[:16]
ACQ = FREEQ[16:] + [4 * ft for ft in range(7)]
def p3early(P):
    n = CNT[0]; CNT[0] += 1
    srd(P, 44, 8, 896 * 1024, WS_WOF)
    P("s_lshl_b32 s84, s3, 2")
    P("s_mul_i32 s85, s3, 3")
    P("s_add_u32 s85, s85, 4")
    P("s_cmp_lt_u32 s3, 4")
    P("s_cselect_b32 s84, s84, s85")
    P("s_lshr_b32 s85, s2, 5")
    P("s_mul_i32 s85, s85, 28")
    P("s_add_u32 s85, s85, s84")
    P("s_lshl_b32 s85, s85, 12")
    P("s_lshr_b32 s86, s3, 2")
    P("s_lshl_b32 s86, s86, 11")
    P("v_lshlrev_b32 v1, 4, v0")
    for k in range(4):
        for pi in range(2):
            P(f"s_xor_b32 s87, s86, {2048*pi}")
            P("s_add_u32 s87, s87, s85")
            P(f"s_add_u32 s87, s87, {4096*k}")
            for sg_ in range(2):
                r = 4 * WOQ[4 * k + 2 * pi + sg_]
                P(f"buffer_load_dwordx4 a[{r}:{r+3}], v1, s[44:47], s87 offen offset:{1024*sg_} sc1")
    return 16

def signal_to(E, tag, code, nl, drain=True):
    E("s_waitcnt vmcnt(0) lgkmcnt(0)" if drain else "s_waitcnt lgkmcnt(0)")
    E("s_barrier")
    E("s_cmp_lg_u32 s3, 0")
    E(f"s_cbranch_scc1 {tag}_ns")
    for c in code: E(c)
    E("v_mov_b32 v4, s96")
    E("v_mov_b32 v5, s97")
    E(f"s_mov_b32 exec_lo, {((1 << nl) - 1) & 0xffffffff:#x}")
    E(f"s_mov_b32 exec_hi, {((1 << nl) - 1) >> 32:#x}")
    E("global_store_dwordx2 v2, v[4:5], s[8:9] sc0 sc1")
    E("s_mov_b64 exec, -1")
    E(f"{tag}_ns:")
def sig1(P, n):
    def E(t):
        if t.endswith(':'): P.label(t[:-1])
        else: P(t)
    signal_to(E, f"p1{n}", ["s_lshl_b32 s53, s2, 3", f"s_add_u32 s53, s53, {WS_FL1}", "v_lshlrev_b32 v2, 11, v0", "v_add_u32 v2, s53, v2"], REP[0])
    if n == 1 and AUXL[0]:
        P("v_lshlrev_b32 v112, 7, v0")
        P("s_lshl_b32 s56, s14, 18")
        P("s_lshl_b32 s57, s3, 13")
        P("s_add_u32 s56, s56, s57")
        P(f"s_add_u32 s56, s56, {65536 * aux.AUXT[0]}")
        for e in range(AUXL[0]):
            P("buffer_load_dword v143, v112, s[36:39], s56 offen")
            P("s_add_u32 s56, s56, 65536")
    P("s_cmp_ge_u32 s3, 4")
    P(f"s_cbranch_scc1 s1_nw{n}")
    V = 112
    if TOUCH[0] == 2 and n == 0:
        P("s_lshl_b32 s56, s14, 18")
        P(f"s_add_u32 s56, s56, {48*4096}")
        P(f"v_lshlrev_b32 v{V}, 7, v0")
        P("s_lshl_b32 s57, s15, 13")
        P("s_cmp_eq_u32 s3, 1")
        P("s_cbranch_scc1 s1_q1")
        P("s_mov_b32 s57, 57344")
        P("s_cmp_lg_u32 s3, 2")
        P("s_cbranch_scc1 s1_q2")
        P("s_cmp_lg_u32 s15, 0")
        P("s_cbranch_scc1 s1_q2")
        P.label("s1_q1")
        P("s_add_u32 s56, s56, s57")
        P(f"buffer_load_dword v143, v{V}, s[36:39], s56 offen")
        P.label("s1_q2")
    if TOUCH[0] == 1:
        P("s_and_b32 s56, s2, 7")
        P("s_lshl_b32 s56, s56, 5")
        P("s_lshr_b32 s57, s2, 3")
        P("s_add_u32 s56, s56, s57")
        P("s_lshl_b32 s56, s56, 15")
        P(f"v_lshlrev_b32 v{V}, 7, v0")
        P("s_cmp_eq_u32 s3, 0")
        P(f"s_cbranch_scc1 s1_t2{n}")
        P("s_cmp_lg_u32 s3, 3")
        P(f"s_cbranch_scc1 s1_t1{n}")
        P(f"buffer_load_dword v143, v{V}, s[36:39], s56 offen")
        P.label(f"s1_t1{n}")
        P("s_lshl_b32 s57, s3, 13")
        P("s_add_u32 s56, s56, s57")
        P(f"buffer_load_dword v143, v{V}, s[36:39], s56 offen")
        P.label(f"s1_t2{n}")
    P(f"v_lshrrev_b32 v{V}, 3, v0")
    P(f"v_and_b32 v{V+1}, 7, v0")
    P(f"v_lshrrev_b32 v{V+2}, 1, v{V}")
    P(f"v_xor_b32 v{V+1}, v{V+1}, v{V+2}")
    P(f"v_lshlrev_b32 v{V+1}, 4, v{V+1}")
    P(f"v_lshl_add_u32 v{V+1}, v{V}, 12, v{V+1}")
    P(f"v_xor_b32 v{V+2}, 64, v{V+1}")
    P("s_and_b32 s56, s2, 7")
    P("s_lshr_b32 s56, s56, 1")
    P("s_lshl_b32 s56, s56, 3")
    P("s_bfe_u32 s57, s2, 0x30003")
    P("s_add_u32 s56, s56, s57")
    P("s_lshl_b32 s56, s56, 18")
    P("s_lshl_b32 s57, s3, 10")
    P("s_add_u32 s56, s56, s57")
    P("s_mul_i32 s57, s3, 24576")
    for q in range(2):
        for e in range(8):
            P(f"s_add_u32 m0, s57, {q*8192 + e*1024}")
            P(f"s_add_u32 s61, s56, {q*128 + e*32768}")
            P(f"buffer_load_dwordx4 v{V+1+(e&1)}, s[36:39], s61 offen lds")
    if n == 1 and k2.XE[0]:
        P(f"s_branch s1_x{n}")
    P.label(f"s1_nw{n}")
    if n == 1 and k2.XE[0]:
        P("s_sub_u32 s56, s3, 4")
        P("s_lshl_b32 s56, s56, 14")
        P("s_lshl_b32 s57, s14, 3")
        P("s_add_u32 s56, s56, s57")
        P(f"s_add_u32 s56, s56, {WS_FLX}")
        P("v_lshlrev_b32 v2, 8, v0")
        P("v_add_u32 v2, s56, v2")
        P("v_mov_b32 v4, s96")
        P("v_mov_b32 v5, s97")
        P("global_store_dwordx2 v2, v[4:5], s[8:9] sc0 sc1")
        P.label(f"s1_x{n}")
    P("s_lshl_b32 s93, s14, 3")
    P("s_add_u32 s93, s93, s15")
    P("s_lshl_b32 s93, s93, 3")
    P("s_add_u32 s93, s93, s3")
    P("s_lshl_b32 s93, s93, 3")
    P(f"s_add_u32 s93, s93, {WS_FL1B}")
def z1flag(E, va):
    E(f"v_mov_b32 v{va}, s93")
    E(f"v_mov_b32 v{va+1}, s96")
    E(f"v_mov_b32 v{va+2}, s97")
    E("s_mov_b64 exec, 1")
    E(f"global_store_dwordx2 v{va}, v[{va+1}:{va+2}], s[8:9] sc0 sc1")
    E("s_mov_b64 exec, -1")
def z1issue(E, va, vd):
    E("s_mul_i32 s64, s15, 112")
    E("s_lshr_b32 s62, s64, 7")
    E("s_add_u32 s64, s64, 111")
    E("s_lshr_b32 s63, s64, 7")
    E("s_sub_u32 s63, s63, s62")
    E("s_lshl_b32 s63, s63, 6")
    E("s_lshl_b32 s64, s14, 3")
    E("s_add_u32 s64, s64, s62")
    E("s_lshl_b32 s64, s64, 6")
    E(f"s_add_u32 s64, s64, {WS_FL1B}")
    E(f"v_bfe_u32 v{va}, v0, 3, 1")
    E(f"v_mul_u32_u24 v{va}, s63, v{va}")
    E(f"v_and_b32 v{vd}, 7, v0")
    E(f"v_lshl_add_u32 v{va}, v{vd}, 3, v{va}")
    E(f"v_add_u32 v{va}, s64, v{va}")
    E(f"global_load_dwordx2 v[{vd}:{vd+1}], v{va}, s[8:9] sc0 sc1")
def z1check(E, name, va, vd):
    E(f"v_cmp_ne_u64 vcc, s[96:97], v[{vd}:{vd+1}]")
    E("s_nop 1")
    E("s_cmp_eq_u64 vcc, 0")
    E(f"s_cbranch_scc1 {name}_ok")
    poll(E, name, va, vd, 64)

def phase3b(P, pr):
    def E(t):
        if t.endswith(':'): P.label(t[:-1])
        else: P(t)
    P("s_and_b32 s12, s2, 7")
    P("s_lshr_b32 s13, s2, 3")
    P("s_lshl_b32 s14, s12, 2")
    P("s_and_b32 s15, s13, 3")
    P("s_add_u32 s14, s14, s15")
    P("s_lshr_b32 s15, s13, 2")
    srd(P, 24, 8, 0x400000, WS_HF)
    srd(P, 44, 8, 896 * 1024, WS_WOF)
    srd(P, 32, 8, 0x200000, WS_YAT)
    srd(P, 16, 4, 2048 * 512 * 2)
    srd(P, 20, 100, 2048 * 512 * 2)
    T = 2; VL = 10; VH = 12; VO = 14
    P("s_and_b32 s84, s3, 3")
    P("s_lshr_b32 s85, s3, 2")
    P("s_and_b32 s86, s3, 1")
    P("s_lshl_b32 s53, s85, 1")
    P("s_add_u32 s86, s86, s53")
    P("s_bfe_u32 s59, s3, 0x10001")
    P(f"v_lshlrev_b32 v{VL}, 4, v0")
    P("s_lshl_b32 s53, s86, 10")
    P(f"v_add_u32 v{VH}, s53, v{VL}")
    P(f"v_xor_b32 v{VH+1}, 1024, v{VH}")
    P("s_lshl_b32 s53, s59, 11")
    P(f"v_add_u32 v{VO}, s53, v{VL}")
    P(f"v_xor_b32 v{VO+1}, 2048, v{VO}")
    P("s_mul_i32 s52, s84, 7")
    P("s_mul_i32 s54, s14, 28")
    P("s_add_u32 s54, s54, s52")
    P("s_lshl_b32 s54, s54, 12")
    P("s_mul_i32 s55, s15, 28")
    P("s_add_u32 s55, s55, s52")
    P("s_lshl_b32 s55, s55, 12")
    P("s_lshl_b32 s53, s14, 7")
    P(f"s_add_u32 s53, s53, {WS_FL2 + 8192}")
    P(f"v_lshlrev_b32 v{T}, 3, v0")
    P(f"v_add_u32 v{T}, s53, v{T}")
    prof(P, 0, pr)
    for k in range(7):
        P(f"s_add_u32 s57, s55, {4096*k}")
        for pi in range(2):
            for sg_ in range(2):
                r = 16 * k + 8 * pi + 4 * sg_
                P(f"buffer_load_dwordx4 a[{r}:{r+3}], v{VO+pi}, s[44:47], s57 offen offset:{1024*sg_} sc1")
    XR = 20
    P(f"v_and_b32 v{T+4}, 15, v0")
    P(f"v_lshrrev_b32 v{T+5}, 4, v0")
    P(f"v_lshlrev_b32 v{T+4}, 10, v{T+4}")
    P(f"v_lshl_add_u32 v{VL+1}, v{T+5}, 4, v{T+4}")
    P("s_lshl_b32 s58, s14, 16")
    P("s_lshl_b32 s57, s86, 14")
    P("s_add_u32 s58, s58, s57")
    P("s_lshl_b32 s57, s15, 7")
    P("s_add_u32 s58, s58, s57")
    P("s_lshl_b32 s57, s59, 6")
    P("s_add_u32 s58, s58, s57")
    P(f"buffer_load_dwordx4 v[{XR}:{XR+3}], v{VL+1}, s[16:19], s58 offen")
    P(f"s_cmp_lg_u32 s3, {PW[0]}")
    P("s_cbranch_scc1 p3_np")
    poll(E, "p3_poll", T, T + 2, 8)
    P.label("p3_np")
    P("s_barrier")
    prof(P, 1, pr)
    HB = 80; AREA = 6 * 1024; YB = 8 * AREA
    for k in range(7):
        P(f"s_add_u32 s56, s54, {4096*k}")
        for tau in range(2):
            r = HB + 8 * k + 4 * tau
            P(f"buffer_load_dwordx4 v[{r}:{r+3}], v{VH+tau}, s[24:27], s56 offen sc1")
    P("s_lshl_b32 s57, s15, 10")
    P("s_lshl_b32 s56, s3, 7")
    P("s_add_u32 s57, s57, s56")
    P(f"s_add_u32 s57, s57, {WS_FL2}")
    P(f"v_and_b32 v{T+4}, 15, v0")
    P(f"v_lshlrev_b32 v{T+4}, 3, v{T+4}")
    P(f"v_add_u32 v{T+4}, s57, v{T+4}")
    P(f"global_load_dwordx2 v[{T+6}:{T+7}], v{T+4}, s[8:9] sc0 sc1")
    P(f"v_lshrrev_b32 v{T}, 3, v0")
    P(f"v_and_b32 v{T+1}, 7, v0")
    P(f"v_lshlrev_b32 v{T+1}, 4, v{T+1}")
    P(f"v_lshl_add_u32 v{T+1}, v{T}, 12, v{T+1}")
    P("s_lshl_b32 s56, s15, 18")
    P("s_lshl_b32 s57, s3, 15")
    P("s_add_u32 s56, s56, s57")
    P("s_lshl_b32 s57, s14, 7")
    P("s_add_u32 s60, s56, s57")
    P("s_lshl_b32 s57, s3, 10")
    P(f"s_add_u32 m0, s57, {YB}")
    def acc(pi, sg_, tau):
        g = tau + 2 * pi
        r = 24 + 8 * g + 4 * sg_
        return f"v[{r}:{r+3}]"
    for k in range(7):
        P(f"s_waitcnt vmcnt({1 + 2*(6-k)})")
        for pi in range(2):
            for sg_ in range(2):
                for tau in range(2):
                    a = acc(pi, sg_, tau); r = 16 * k + 8 * pi + 4 * sg_; h = HB + 8 * k + 4 * tau
                    P(f"v_mfma_f32_16x16x32_bf16 {a}, a[{r}:{r+3}], v[{h}:{h+3}], {'0' if k == 0 else a}")
    P("s_waitcnt vmcnt(0)")
    z1check(E, "p3_y", T + 4, T + 6)
    P(f"buffer_load_dwordx4 v{T+1}, s[32:35], s60 offen sc1 lds")
    prof(P, 2, pr)
    P(f"s_mul_i32 s52, s3, {AREA}")
    P(f"v_add_u32 v{T}, s52, v{VL}")
    for g in range(1, 4):
        for sg_ in range(2):
            r = 24 + 8 * g + 4 * sg_
            P(f"ds_write_b128 v{T}, v[{r}:{r+3}] offset:{2048*(g-1) + 1024*sg_}")
    P(f"v_lshrrev_b32 v{T+2}, 4, v0")
    P(f"v_bfe_u32 v{T+3}, v0, 2, 2")
    P(f"v_and_b32 v{T+4}, 3, v0")
    P(f"v_lshl_add_u32 v{T+2}, v{T+2}, 3, v{T+3}")
    P(f"v_lshlrev_b32 v{T+2}, 7, v{T+2}")
    P(f"v_lshl_add_u32 v{T+2}, v{T+4}, 3, v{T+2}")
    P("s_lshl_b32 s53, s86, 5")
    P("s_lshl_b32 s57, s59, 12")
    P("s_add_u32 s53, s53, s57")
    P(f"s_add_u32 s53, s53, {YB}")
    P(f"v_add_u32 v{T+2}, s53, v{T+2}")
    for dl in range(1, 4):
        P(f"s_xor_b32 s53, s3, {dl}")
        P(f"s_mul_i32 s53, s53, {AREA}")
        P(f"v_add_u32 v{15+dl}, s53, v{VL}")
    P("s_mov_b32 s65, 0xffff0000")
    P("s_waitcnt vmcnt(0) lgkmcnt(0)")
    P("s_barrier")
    R = 56; YA = 32
    for dl in range(1, 4):
        for sg_ in range(2):
            r = R + 8 * (dl - 1) + 4 * sg_
            P(f"ds_read_b128 v[{r}:{r+3}], v{15+dl} offset:{2048*(dl-1) + 1024*sg_}")
    for eta in range(2):
        P(f"ds_read_b64_tr_b16 v[{YA+2*eta}:{YA+2*eta+1}], v{T+2} offset:{512*eta}")
    P("s_waitcnt lgkmcnt(2)")
    for i in range(8):
        P(f"v_add_f32 v{24+i}, v{24+i}, v{R+i}")
        P(f"v_add_f32 v{R+8+i}, v{R+8+i}, v{R+16+i}")
    for i in range(8): P(f"v_add_f32 v{24+i}, v{24+i}, v{R+8+i}")
    P("s_waitcnt lgkmcnt(0)")
    for q in range(4):
        a = 24 + 2 * q
        P(f"v_cvt_pk_bf16_f32 v{T}, v{a}, v{a+1}")
        P(f"v_lshlrev_b32 v{T+2}, 16, v{XR+q}")
        P(f"v_and_b32 v{T+3}, s65, v{XR+q}")
        P(f"v_lshlrev_b32 v{T+4}, 16, v{YA+q}")
        P(f"v_and_b32 v{T+5}, s65, v{YA+q}")
        P(f"v_add_f32 v{T+2}, v{T+2}, v{T+4}")
        P(f"v_add_f32 v{T+3}, v{T+3}, v{T+5}")
        P(f"v_cvt_pk_bf16_f32 v{T+4}, v{T+2}, v{T+3}")
        P(f"v_lshlrev_b32 v{T+2}, 16, v{T+4}")
        P(f"v_and_b32 v{T+3}, s65, v{T+4}")
        P(f"v_lshlrev_b32 v{T+4}, 16, v{T}")
        P(f"v_and_b32 v{T+5}, s65, v{T}")
        P(f"v_add_f32 v{T+2}, v{T+2}, v{T+4}")
        P(f"v_add_f32 v{T+3}, v{T+3}, v{T+5}")
        P(f"v_cvt_pk_bf16_f32 v{R+q}, v{T+2}, v{T+3}")
    P(f"buffer_store_dwordx4 v[{R}:{R+3}], v{VL+1}, s[20:23], s58 offen sc1")
    prof(P, 3, pr)
    if pr: P("s_waitcnt vmcnt(0)")
    prof(P, 4, pr)

def build(pr=False):
    k2.HOOKS['sig1'] = sig1
    if not P3L[0]: k2.HOOKS['p3early'] = p3early
    k2.HOOKS['t1'] = early2
    out = []
    E = out.append
    k2.PROF_K[0] = 0
    P1 = Prog(); k1d.gen_k1(P1, aux=aux.aux, pr=pr)
    L1 = lines_of(P1)
    def amap(m):
        if m.group(1):
            lo, hi = int(m.group(1)), int(m.group(2))
            return f"v[{lo+16}:{hi+16}]" if lo >= 112 else m.group(0)
        n = int(m.group(3)); return f"v{n+16}" if n >= 112 else m.group(0)
    L1 = [re.sub(r'\ba\[(\d+):(\d+)\]|\ba(\d+)\b', amap, l) for l in L1]
    nend = 0
    for l in L1:
        if l == "k1_kernel:": E(KN + ":"); continue
        if l == "k1_end:": break
        if l == "s_cbranch_scc1 k1_end": E("s_cbranch_scc1 f_end"); continue
        if l == "s_lshl_b32 s53, s14, 3" and 'nonce_addr' not in globals():
            globals()['nonce_addr'] = 1; E("s_mov_b32 s53, 0"); continue
        if l == "s_or_b32 s53, s15, s3": E("s_or_b32 s53, s2, s3"); continue
        if l == "s_endpgm":
            nend += 1
            if nend == 1: E("s_branch p1_done")
            else:
                PE = Prog(); early2(PE)
                for x_ in lines_of(PE): E(x_)
                E("v_mov_b32 v13, 0")
                E("s_mov_b32 s95, 0")
                E("aux_nonce:")
                E("global_load_dwordx2 v[14:15], v13, s[10:11] sc0 sc1")
                E("s_add_u32 s95, s95, 1")
                E("s_waitcnt vmcnt(0)")
                E("v_readfirstlane_b32 s96, v14")
                E("v_readfirstlane_b32 s97, v15")
                E("s_cmp_lg_u32 s96, 0")
                E("s_cbranch_scc1 aux_sig")
                E("s_cmp_lt_u32 s95, 0x200000")
                E("s_cbranch_scc1 aux_nonce")
                E("aux_sig:")
                PE = Prog(); sig1(PE, 1)
                for x_ in lines_of(PE): E(x_)
            continue
        E(l)
    globals().pop('nonce_addr', None)
    E("p1_done:")
    E("s_setprio 0")
    k2.PROF_K[0] = 1
    P2 = Prog(); k2.gen_k2(P2, pr=pr)
    L2 = lines_of(P2)
    skip = {"k2_kernel:", "s_cmp_ge_u32 s2, 256", "s_cbranch_scc1 k2_end", "v_lshrrev_b32 v1, 6, v0", "v_and_b32 v0, 63, v0",
            "v_readfirstlane_b32 s3, v1", "s_load_dwordx2 s[8:9], s[0:1], 128", "s_load_dwordx2 s[10:11], s[0:1], 64",
            "s_load_dwordx4 s[68:71], s[0:1], 8", "s_load_dwordx4 s[72:75], s[0:1], 24", "s_load_dwordx4 s[76:79], s[0:1], 40", "s_load_dwordx2 s[80:81], s[0:1], 56"}
    firstz = True; firstx = True
    for l in L2:
        if l in skip: continue
        if l == "k2_end:": break
        if l == "s_endpgm": E("s_branch p2_done"); continue
        if l.startswith("buffer_load") and any(f"s[{a}:{a+3}]" in l for a in (20, 24, 36)):
            l = l.replace(" lds", " sc1 lds") if l.endswith(" lds") else l + " sc1"
        if l == "@ZPOLL":
            E(f"v_mov_b32 v22, {GOW}")
            E("s_cmp_lg_u32 s3, 0")
            E("s_cbranch_scc1 p2_lw")
            E(f"s_and_b32 s53, s2, {REP[0]-1}")
            E("s_lshl_b32 s53, s53, 11")
            E(f"s_add_u32 s53, s53, {WS_FL1}")
            E("v_lshlrev_b32 v20, 4, v0")
            E("v_add_u32 v20, s53, v20")
            E("s_mov_b32 s95, 0")
            E("p2_zpoll:")
            E("global_load_dwordx4 v[28:31], v20, s[8:9] sc0 sc1")
            E("global_load_dwordx4 v[32:35], v20, s[8:9] offset:1024 sc0 sc1")
            E("s_add_u32 s95, s95, 1")
            E("s_waitcnt vmcnt(0)")
            E("v_cmp_ne_u64 s[62:63], s[96:97], v[28:29]")
            E("v_cmp_ne_u64 s[64:65], s[96:97], v[30:31]")
            E("v_cmp_ne_u64 s[66:67], s[96:97], v[32:33]")
            E("v_cmp_ne_u64 vcc, s[96:97], v[34:35]")
            E("s_nop 1")
            E("s_or_b64 s[62:63], s[62:63], s[64:65]")
            E("s_or_b64 s[66:67], s[66:67], vcc")
            E("s_or_b64 s[62:63], s[62:63], s[66:67]")
            E("s_cmp_eq_u64 s[62:63], 0")
            E("s_cbranch_scc1 p2_set")
            E(f"s_sleep {SLEEP[0]}")
            E("s_cmp_lt_u32 s95, 0x100000")
            E("s_cbranch_scc1 p2_zpoll")
            E("p2_set:")
            E("s_lshl_b32 s62, s2, 13")
            E("v_lshlrev_b32 v20, 4, v0")
            for e in range(8):
                if e % 4 == 0:
                    E(f"s_mov_b32 m0, {4*24576 + 4*14080 + 512 + 4608*(e//4)}")
                    if e: E("s_add_u32 s62, s62, 4096")
                    else: E("s_nop 0")
                E(f"buffer_load_dwordx4 v20, s[36:39], s62 offen offset:{1024*(e&3)} sc1 lds")
            E("v_mov_b32 v23, 1")
            E("ds_write_b32 v22, v23")
            E("s_branch p2_go")
            E("p2_lw:")
            ldswait(E, "p2_lwl", 22, 23)
            E("p2_go:")
            continue
        if l.startswith("@Z1") and not k2.Z1LATE[0]:
            continue
        if l == "@Z1FLAG":
            z1flag(E, 21); continue
        if l.startswith("@Z1ISSUE"):
            z1issue(E, *map(int, l.split()[1:])); continue
        if l.startswith("@Z1CHECK"):
            z1check(E, "p2_z1w" + l[8:9], *map(int, l.split()[1:])); continue
        if l == "@XEARLY":
            z1check(E, "p2_xe", 132, 134)
            continue
        if l == "@TOUCH":
            E("s_and_b32 s56, s2, 7")
            E("s_lshl_b32 s56, s56, 5")
            E("s_lshr_b32 s57, s2, 3")
            E("s_add_u32 s56, s56, s57")
            E("s_lshl_b32 s56, s56, 15")
            E("s_lshl_b32 s57, s52, 13")
            E("s_add_u32 s56, s56, s57")
            E("v_lshlrev_b32 v2, 7, v0")
            E("buffer_load_dword v143, v2, s[16:19], s56 offen")
            continue
        if l == "@GSYNC":
            E(f"v_mov_b32 v24, {CN1}")
            E("v_mov_b32 v25, 1")
            E("s_waitcnt lgkmcnt(0)")
            E("s_mov_b64 exec, 1")
            E("ds_add_u32 v24, v25")
            E("s_mov_b64 exec, -1")
            ldswait(E, "p2_gs", 24, 25, 4, False)
            continue
        if l == "@HFLAG":
            E(f"v_mov_b32 v24, {CN2}")
            E("v_mov_b32 v25, 1")
            E("s_lshl_b32 s53, s14, 7")
            E("s_lshl_b32 s56, s15, 3")
            E("s_add_u32 s53, s53, s56")
            E(f"s_add_u32 s53, s53, {WS_FL2 + 8192}")
            E("v_mov_b32 v2, s53")
            E("v_mov_b32 v4, s96")
            E("v_mov_b32 v5, s97")
            E("s_waitcnt vmcnt(0)")
            E("s_mov_b64 exec, 1")
            E("ds_add_rtn_u32 v25, v24, v25")
            E("s_waitcnt lgkmcnt(0)")
            E("v_readfirstlane_b32 s94, v25")
            E("s_cmp_lg_u32 s94, 3")
            E("s_cbranch_scc1 p2_hn")
            E("global_store_dwordx2 v2, v[4:5], s[8:9] sc0 sc1")
            E("p2_hn:")
            E("s_mov_b64 exec, -1")
            continue
        if l == "@YFLAG":
            E("s_lshl_b32 s53, s2, 2")
            E("s_add_u32 s53, s53, s52")
            E("s_lshl_b32 s53, s53, 3")
            E(f"s_add_u32 s53, s53, {WS_FL2}")
            E("v_mov_b32 v2, s53")
            E("v_mov_b32 v4, s96")
            E("v_mov_b32 v5, s97")
            E("s_waitcnt vmcnt(0)")
            E("s_mov_b64 exec, 1")
            E("global_store_dwordx2 v2, v[4:5], s[8:9] sc0 sc1")
            E("s_mov_b64 exec, -1")
            continue
        if l == "@XWSET":
            E("s_cmp_lg_u32 s3, 0")
            E("s_cbranch_scc1 p2_xs")
            E(f"v_mov_b32 v21, {XWW}")
            E("v_mov_b32 v22, 1")
            E("ds_write_b32 v21, v22")
            E("p2_xs:")
            continue
        if l == "@XPOLL":
            if k2.Z1LATE[0]:
                E("s_waitcnt vmcnt(0)")
                z1flag(E, 3)
            E(f"v_mov_b32 v2, {XWW}")
            ldswait(E, "p2_xw", 2, 3)
            continue
        E(l)
    E("p2_done:")
    E("s_setprio 0")
    if not k2.DEC[0]:
        signal_to(E, "p2", ["s_lshl_b32 s53, s2, 3", f"s_add_u32 s53, s53, {WS_FL2}", "v_mov_b32 v2, s53",
                      "s_lshl_b32 s53, s14, 7", "s_lshl_b32 s56, s15, 3", "s_add_u32 s53, s53, s56", f"s_add_u32 s53, s53, {WS_FL2 + 4096}",
                      "v_writelane_b32 v2, s53, 1"], 2)
    k2.PROF_K[0] = 2
    k2.PROF_V[0] = 142
    P3 = Prog(); (phase3b if os.environ.get('P3B') else phase3)(P3, pr)
    k2.PROF_V[0] = 26
    out += lines_of(P3)
    E("f_end:")
    E("s_endpgm")
    P = Prog()
    for l in out:
        if l.endswith(':'): P.label(l[:-1])
        else: P(l)
    body = P.finish()
    HDR = open('parallel_sum__ssm_conv_s4__mixer_gmlp__prompt.s.ref').read().split('; Override launch')[0]
    first = f"; @launch kernel={KN} grid=(256,1,1) block=(512,1,1) lds=163840" if os.environ.get("ASLIST") else "; @launch grid=(256,1,1) block=(512,1,1) lds=163840"
    return HDR + first + f'''
.amdgcn_target "amdgcn-amd-amdhsa--gfx950"
.text
.globl {KN}
.p2align 8
.type {KN},@function
{body}
.section .rodata,"a"
.p2align 6
.amdhsa_kernel {KN}
  .amdhsa_next_free_vgpr 256
  .amdhsa_next_free_sgpr 102
  .amdhsa_accum_offset 144
  .amdhsa_group_segment_fixed_size 0
  .amdhsa_kernarg_size 136
  .amdhsa_user_sgpr_count 2
  .amdhsa_user_sgpr_kernarg_segment_ptr 1
  .amdhsa_system_sgpr_workgroup_id_x 1
.end_amdhsa_kernel
'''
if __name__ == "__main__":
    k2.FUSED[0] = 1
    if os.environ.get('LF'): k2.LF[0] = int(os.environ['LF'])
    for nm in ('GSPLIT', 'GAT', 'PRI'):
        if os.environ.get(nm): getattr(k1d, nm)[0] = int(os.environ[nm])
    if os.environ.get('PRIO'): k2.PRIO[:] = [int(c) for c in os.environ['PRIO']]
    open(sys.argv[1], 'w').write(build(pr=('prof' in sys.argv)))
```
